```python
import torch

def _softmax(x, axis=-1):
    return torch.softmax(x, dim=axis)
def _gelu(x):
    return torch.nn.functional.gelu(x, approximate="tanh")
def _silu(x):
    return torch.nn.functional.silu(x)
def _sigmoid(x):
    return torch.sigmoid(x)
def _layernorm(x, axis=-1, eps=1e-5):
    m = x.mean(dim=axis, keepdim=True)
    v = x.var(dim=axis, keepdim=True, unbiased=False)
    return (x - m) / torch.sqrt(v + eps)
def _scatter_add(tgt, idx, src, axis=0):
    return tgt.clone().index_add_(axis, idx, src)
def _segment_sum(src, seg, n):
    out = torch.zeros((n,) + src.shape[1:], dtype=src.dtype)
    return out.index_add_(0, seg, src)
def _pad(x, pw):
    flat = tuple(v for pair in reversed(pw) for v in pair)
    return torch.nn.functional.pad(x, flat)

kernel_name = 'parallel_sum__sliding_local_dilated__dense_activation_squared_relu__prompt'

def setup_inputs():

    _w = (lambda a: (lambda t: t.to(torch.bfloat16) if t.is_floating_point() else t)(torch.as_tensor(a)))
    def _A_setup():
        B, S, D = 1, 2048, 576
        return {
            "x": _w((lambda *s: torch.randn(*s, dtype=torch.bfloat16) * 0.05)(B, S, D)),
            "wqkv": _w((lambda *s: torch.randn(*s, dtype=torch.bfloat16) * 0.1)(D, 3 * D)),
            "wo": _w((lambda *s: torch.randn(*s, dtype=torch.bfloat16) * 0.05)(D, D)),
        }
    _A_in = _A_setup()

    def _B_setup():
        B, S, D, F = 1, 2048, 576, 4608
        return {
            "x": _w((lambda *s: torch.randn(*s, dtype=torch.bfloat16) * 0.05)(B, S, D)),
            "w1": _w((lambda *s: torch.randn(*s, dtype=torch.bfloat16) * 0.05)(D, F)),
            "b1": _w((lambda *s: torch.randn(*s, dtype=torch.bfloat16) * 0.2)(F)),
            "w2": _w((lambda *s: torch.randn(*s, dtype=torch.bfloat16) * 0.05)(F, D)),
            "b2": _w((lambda *s: torch.randn(*s, dtype=torch.bfloat16) * 1.6)(D)),
        }
    _B_in = _B_setup()

    return {
        "A_x": _A_in["x"],
        "A_wqkv": _A_in["wqkv"],
        "A_wo": _A_in["wo"],
        "B_x": _B_in["x"],
        "B_w1": _B_in["w1"],
        "B_b1": _B_in["b1"],
        "B_w2": _B_in["w2"],
        "B_b2": _B_in["b2"],
    }

def reference(A_x, A_wqkv, A_wo, B_x, B_w1, B_b1, B_w2, B_b2):
    def _A_ref(x, wqkv, wo):
        B, S, D = x.shape
        H = 32; Dh = D // H
        W, dil = 8, 2
        qkv = (lambda x, *d: x.permute(*d))((x @ wqkv).reshape(B, S, 3, H, Dh), 2, 0, 3, 1, 4)
        q, k, v = qkv[0], qkv[1], qkv[2]
        scale = Dh ** -0.5
        pos = torch.arange(S)
        off = torch.arange(W) * dil
        idx = pos[:, None] - off[None, :]
        mask = idx >= 0
        idx_c = torch.where(mask, idx, 0).reshape(-1)
        kg = k[:, :, idx_c, :].reshape(B, H, S, W, Dh)
        vg = v[:, :, idx_c, :].reshape(B, H, S, W, Dh)
        logits = torch.einsum("bhsd,bhswd->bhsw", q, kg) * scale
        logits = torch.where(mask[None, None, :, :], logits, -1e9)
        attn = _softmax(logits, axis=-1)
        o = torch.einsum("bhsw,bhswd->bhsd", attn, vg)
        return (lambda x, *d: x.permute(*d))(o, 0, 2, 1, 3).reshape(B, S, D) @ wo

    def _B_ref(x, w1, b1, w2, b2):
        h = torch.einsum("bsd,df->bsf", x, w1) + b1
        zero = torch.zeros_like(h)
        r = torch.where(h > zero, h, zero)
        h = r * r
        out = torch.einsum("bsf,fd->bsd", h, w2) + b2
        return out

    x = A_x
    xn = _layernorm(x, axis=-1)
    return x + _A_ref(xn, A_wqkv, A_wo) + _B_ref(xn, B_w1, B_b1, B_w2, B_b2)
```

```python
import re

REG_RE = re.compile(r'^(-|\|)?(abs\()?([vas])(\d+)\)?\|?$')
RANGE_RE = re.compile(r'^(-)?([vas])\[(\d+):(\d+)\]$')

TRANS = ('v_exp_f32', 'v_log_f32', 'v_rcp_f32', 'v_rsq_f32', 'v_sqrt_f32', 'v_sin_f32', 'v_cos_f32',
         'v_rcp_iflag_f32')


def regs_of(tok):
    tok = tok.strip()
    m = REG_RE.match(tok)
    if m:
        return [(m.group(3), int(m.group(4)))]
    m = RANGE_RE.match(tok)
    if m:
        return [(m.group(2), i) for i in range(int(m.group(3)), int(m.group(4)) + 1)]
    if tok == 'vcc':
        return [('s', 'vcc')]
    if tok in ('vcc_lo', 'vcc_hi'):
        return [('s', 'vcc')]
    if tok == 'exec':
        return [('s', 'exec')]
    if tok == 'm0':
        return [('s', 'm0')]
    return []


class Inst:
    __slots__ = ('text', 'op', 'reads', 'writes', 'cls', 'srcc', 'ab', 'tag', 'need', 'nbytes', 'data', 'glue')

    def __init__(self, text, tag=None, need=None):
        self.text = text
        self.tag = tag
        self.need = need or []
        self.glue = False
        self.parse()

    def parse(self):
        t = self.text.split(';')[0].strip()
        parts = t.split(None, 1)
        op = parts[0]
        self.op = op
        rest = parts[1] if len(parts) > 1 else ''
        ops = []
        cur = ''
        depth = 0
        for ch in rest:
            if ch in '[(':
                depth += 1
            if ch in '])':
                depth -= 1
            if ch == ',' and depth == 0:
                ops.append(cur.strip())
                cur = ''
            else:
                cur += ch
        if cur.strip():
            ops.append(cur.strip())
        mods = []
        if ops:
            lp = ops[-1].split()
            ops[-1] = lp[0]
            mods = lp[1:]
        R = []
        W = []
        self.srcc = []
        self.ab = []
        self.data = []
        cls = None
        rg = [regs_of(o) for o in ops]
        if op.endswith(':'):
            cls = 'label'
        elif op.startswith('.'):
            cls = 'directive'
        elif op.startswith('v_mfma'):
            cls = 'mfma8' if '32x32' in op else 'mfma4'
            W += rg[0]
            R += rg[1] + rg[2] + rg[3]
            self.ab = rg[1] + rg[2]
            self.srcc = rg[3]
        elif op.startswith('v_'):
            cls = 'valu'
            base = op.replace('_e32', '').replace('_e64', '').replace('_dpp', '').replace('_sdwa', '')
            if base in TRANS:
                cls = 'trans'
            if op == 'v_nop':
                pass
            elif 'permlane' in op:
                cls = 'permlane'
                W += rg[0] + rg[1]
                R += rg[0] + rg[1]
            elif op.startswith('v_cmp'):
                W += rg[0]
                for r in rg[1:]:
                    R += r
                if op.startswith('v_cmpx'):
                    W.append(('s', 'exec'))
            elif op.startswith(('v_add_co', 'v_sub_co', 'v_addc_co', 'v_subb_co', 'v_subrev_co', 'v_mad_u64_u32',
                                'v_div_scale')):
                W += rg[0] + rg[1]
                for r in rg[2:]:
                    R += r
            else:
                W += rg[0]
                for r in rg[1:]:
                    R += r
                if base.startswith(('v_fmac', 'v_dot2c', 'v_pk_fmac', 'v_writelane')) or '_dpp' in op or 'dpp' in ' '.join(mods) \
                        or any(m.startswith(('row_', 'quad_perm', 'wave_')) for m in mods):
                    R += rg[0]
                if base.startswith(('v_readfirstlane', 'v_readlane')):
                    cls = 'readlane'
                if '_dpp' in op or any(m.startswith(('row_', 'quad_perm', 'wave_')) for m in mods):
                    cls = 'dpp'
                if base.startswith('v_dot'):
                    cls = 'dot'
            R.append(('s', 'exec'))
        elif op.startswith('ds_'):
            if op.startswith(('ds_read', 'ds_bpermute', 'ds_permute', 'ds_swizzle')):
                cls = 'ds_read'
                W += rg[0]
                for r in rg[1:]:
                    R += r
            else:
                cls = 'ds_write'
                for r in rg:
                    R += r
        elif op.startswith('buffer_') or op.startswith('global_'):
            is_lds = 'lds' in mods or '_lds_' in op
            if op in ('buffer_inv', 'buffer_wbl2'):
                cls = 'vmem_misc'
            elif 'load' in op and is_lds:
                cls = 'dma'
                for r in rg:
                    R += r
                R.append(('s', 'm0'))
            elif 'load' in op:
                cls = 'vload'
                W += rg[0]
                for r in rg[1:]:
                    R += r
            elif 'atomic' in op:
                cls = 'vatomic'
                if op.startswith('buffer_'):
                    for r in rg:
                        R += r
                    if 'sc0' in mods:
                        n = len(rg[0])
                        W += rg[0][: (n // 2 if 'cmpswap' in op else n)]
                else:
                    if 'sc0' in mods:
                        W += rg[0]
                        for r in rg[1:]:
                            R += r
                    else:
                        for r in rg:
                            R += r
            else:
                cls = 'vstore'
                for r in rg:
                    R += r
                self.data = rg[0] if op.startswith('buffer_') else rg[1]
        elif op.startswith('s_'):
            cls = 'salu'
            if op.startswith(('s_load', 's_buffer_load', 's_memtime', 's_memrealtime', 's_atomic')):
                cls = 'smem'
                W += rg[0]
                for r in rg[1:]:
                    R += r
            elif op.startswith(('s_cmp', 's_bitcmp')):
                for r in rg:
                    R += r
            elif op.startswith(('s_cbranch', 's_branch', 's_setpc', 's_swappc', 's_endpgm')):
                cls = 'branch'
                for r in rg:
                    R += r
            elif op in ('s_waitcnt', 's_nop', 's_barrier', 's_setprio', 's_sleep'):
                cls = op
            elif 'saveexec' in op:
                W += rg[0] + [('s', 'exec')]
                for r in rg[1:]:
                    R += r
            else:
                W += rg[0]
                for r in rg[1:]:
                    R += r
                if op.startswith(('s_addk', 's_mulk', 's_bitset', 's_cmov')):
                    R += rg[0]
        else:
            raise ValueError('cannot classify: ' + self.text)
        self.cls = cls
        self.reads = set(R)
        self.writes = set(W)


VALU_CLS = ('valu', 'trans', 'permlane', 'readlane', 'dpp', 'dot')
VMEM_CLS = ('dma', 'vload', 'vstore', 'vatomic', 'vmem_misc')


class Emitter:
    def __init__(self):
        self.out = []
        self.lgkm = []
        self.vm = []
        self.hist = []
        self.n_nop = 0
        self.n_wait = 0
        self.ninst = 0

    def _push(self, inst, states=1):
        self.out.append('    ' + inst.text if inst.cls not in ('label',) else inst.text)
        if inst.cls in ('label', 'directive'):
            return
        self.ninst += 1
        for h in self.hist:
            h[1] += states
        self.hist = [h for h in self.hist if h[1] < 24]
        self.hist.append([inst, 0])

    def raw(self, text):
        self.out.append(text)

    def _nop(self, n):
        while n > 0:
            k = min(n, 16)
            self._push(Inst(f's_nop {k - 1}'), states=0)
            for h in self.hist[:-1]:
                h[1] += k
            self.n_nop += 1
            n -= k

    def _wait(self, vm=None, lgkm=None):
        parts = []
        if vm is not None and vm < len(self.vm):
            vm = min(vm, 63)
            parts.append(f'vmcnt({vm})')
            self.vm = self.vm[len(self.vm) - vm:] if vm > 0 else []
        if lgkm is not None and lgkm < len(self.lgkm):
            if any(i.cls == 'smem' for i in self.lgkm):
                lgkm = 0
            lgkm = min(lgkm, 15)
            parts.append(f'lgkmcnt({lgkm})')
            self.lgkm = self.lgkm[len(self.lgkm) - lgkm:] if lgkm > 0 else []
        if parts:
            self._push(Inst('s_waitcnt ' + ' '.join(parts)))
            self.n_wait += 1

    def wait_all(self, vm=True, lgkm=True):
        self._wait(vm=0 if vm else None, lgkm=0 if lgkm else None)

    def wait_tags(self, tags):
        tags = set(tags)
        vm = None
        for k, i in enumerate(self.vm):
            if i.tag in tags:
                vm = len(self.vm) - 1 - k
        lg = None
        for k, i in enumerate(self.lgkm):
            if i.tag in tags:
                lg = len(self.lgkm) - 1 - k
        self._wait(vm=vm, lgkm=lg)

    def forget_hazards(self):
        self._nop(16)

    def emit(self, text, tag=None, need=None):
        inst = text if isinstance(text, Inst) else Inst(text, tag, need)
        if inst.cls in ('label', 'directive'):
            self._push(inst)
            return inst
        if inst.need:
            self.wait_tags(inst.need)
        touched = inst.reads | inst.writes
        vm = None
        for k, i in enumerate(self.vm):
            if i.writes & touched:
                vm = len(self.vm) - 1 - k
        lg = None
        for k, i in enumerate(self.lgkm):
            if i.writes & touched:
                lg = len(self.lgkm) - 1 - k
        self._wait(vm=vm, lgkm=lg)
        need = 0
        c = inst.cls
        is_valu = c in VALU_CLS
        is_mfma = c in ('mfma4', 'mfma8')
        is_mem = c in VMEM_CLS or c in ('ds_read', 'ds_write')
        for p, age in self.hist:
            pc = p.cls
            req = 0
            pw_v = {r for r in p.writes if r[0] in 'va'}
            pw_s = {r for r in p.writes if r[0] == 's'}
            if pc in VALU_CLS:
                if is_mfma and (pw_v & inst.reads):
                    req = max(req, 3 if pc == 'dot' else 2)
                if pc == 'dot' and (pw_v & touched) and not (inst.op == p.op and not (pw_v & (inst.reads - inst.writes))):
                    req = max(req, 3)
                if c in ('permlane', 'dpp') and (pw_v & inst.reads):
                    req = max(req, 2)
                if c == 'readlane' and (pw_v & inst.reads):
                    req = max(req, 1)
                if pc == 'trans' and is_valu and c != 'trans' and (pw_v & inst.reads):
                    req = max(req, 1)
                if pc == 'trans' and (is_mem or is_mfma) and (pw_v & inst.reads):
                    req = max(req, 2)
                if ('sdwa' in p.op or 'op_sel' in p.text) and is_valu and (pw_v & touched):
                    req = max(req, 1)
                if pw_s:
                    if c in VMEM_CLS and (pw_s & inst.reads):
                        req = max(req, 5)
                    if is_valu and ((pw_s - {('s', 'exec')}) & inst.reads):
                        req = max(req, 4 if c == 'readlane' else 2)
                    if ('s', 'exec') in pw_s:
                        req = max(req, 5)
                    if c in ('salu', 'branch', 'smem') and (pw_s & inst.reads):
                        req = max(req, 4)
                    if c == 'branch' and 'vcc' in inst.op and ('s', 'vcc') in pw_s:
                        req = max(req, 5)
            if pc in ('mfma4', 'mfma8'):
                big = pc == 'mfma8'
                if is_mfma:
                    if pw_v & set(inst.ab):
                        req = max(req, 12 if big else 8)
                    if pw_v & set(inst.srcc):
                        if not (list(sorted(pw_v)) == list(sorted(inst.srcc)) and pc == c):
                            req = max(req, 10 if big else 6)
                    elif pw_v & inst.writes:
                        req = max(req, 12 if big else 8)
                elif (is_valu or is_mem) and (pw_v & touched):
                    req = max(req, 12 if big else 8)
                if (is_valu or c in ('ds_read', 'vload')) and (set(p.srcc) & inst.writes):
                    req = max(req, 7 if big else 3)
            if pc == 'salu' and ('s', 'm0') in pw_s and c == 'dma':
                req = max(req, 1)
            if pc == 'vstore' and len(p.data) >= 3 and (set(p.data) & inst.writes):
                req = max(req, 2)
            if pc == 'vatomic' and (p.reads & inst.writes) and is_valu:
                req = max(req, 2)
            if req > age:
                need = max(need, req - age)
        if need:
            self._nop(need)
        if c == 's_waitcnt':
            m = re.search(r'vmcnt\((\d+)\)', inst.text)
            if m:
                n = int(m.group(1))
                self.vm = self.vm[len(self.vm) - n:] if 0 < n < len(self.vm) else ([] if n == 0 else self.vm)
            m = re.search(r'lgkmcnt\((\d+)\)', inst.text)
            if m:
                n = int(m.group(1))
                self.lgkm = self.lgkm[len(self.lgkm) - n:] if 0 < n < len(self.lgkm) else ([] if n == 0 else self.lgkm)
        if c == 's_nop':
            k = int(inst.text.split()[1]) + 1
            self._push(inst, states=0)
            for h in self.hist[:-1]:
                h[1] += k
            return inst
        if c in VMEM_CLS and len(self.vm) >= 63:
            self._wait(vm=62)
        if c in ('ds_read', 'ds_write') and len(self.lgkm) >= 15:
            self._wait(lgkm=14)
        self._push(inst)
        if c in VMEM_CLS:
            self.vm.append(inst)
        elif c in ('ds_read', 'ds_write', 'smem'):
            self.lgkm.append(inst)
            if c == 'smem' and not inst.op.startswith('s_load_dword ') and inst.op != 's_load_dword':
                self.lgkm.append(inst)
        return inst

    def __call__(self, text, tag=None, need=None):
        for line in text.split('\n'):
            line = line.strip()
            if not line or line.startswith(';'):
                continue
            self.emit(line, tag, need)

    def text(self):
        return '\n'.join(self.out) + '\n'


def interleave(main, side, per_gap):
    out = []
    si = 0
    for m in main:
        out.append(m)
        t = m.text if isinstance(m, Inst) else m
        if t.startswith('v_mfma'):
            k = 0
            while si < len(side) and k < per_gap:
                out.append(side[si])
                si += 1
                k += 1
    out += side[si:]
    return out


KD_FMT = '''.section .rodata,"a"
.p2align 6
.amdhsa_kernel {name}
  .amdhsa_next_free_vgpr {vgpr}
  .amdhsa_next_free_sgpr {sgpr}
  .amdhsa_accum_offset {accum}
  .amdhsa_group_segment_fixed_size 0
  .amdhsa_kernarg_size {kernarg}
  .amdhsa_user_sgpr_count 2
  .amdhsa_user_sgpr_kernarg_segment_ptr 1
  .amdhsa_system_sgpr_workgroup_id_x 1
.end_amdhsa_kernel
'''

META_FMT = '''.amdgpu_metadata
---
amdhsa.version: [1, 2]
amdhsa.kernels:
  - .name: {name}
    .symbol: {name}.kd
    .kernarg_segment_size: {kernarg}
    .kernarg_segment_align: 8
    .group_segment_fixed_size: 0
    .private_segment_fixed_size: 0
    .wavefront_size: 64
    .sgpr_count: {sgpr}
    .vgpr_count: {vgpr}
    .max_flat_workgroup_size: {wg}
    .args:
      - {{.name: kernargs, .size: {kernarg}, .offset: 0, .value_kind: by_value}}
...
.end_amdgpu_metadata
'''
```

```python
from kgen import Inst, VALU_CLS, VMEM_CLS


def I(x):
    return x if isinstance(x, (Inst, tuple)) else Inst(x)


class Stream:
    def __init__(self, name, items=()):
        self.name = name
        self.items = []
        self.pos = 0
        self.sleep = 0
        self.add(items)

    def add(self, items):
        for x in items:
            if isinstance(x, str):
                for line in x.split('\n'):
                    line = line.strip()
                    if line and not line.startswith(';'):
                        self.items.append(Inst(line))
            else:
                self.items.append(x)
        self.reglue()

    def reglue(self):
        it = self.items
        for k, x in enumerate(it):
            if not isinstance(x, Inst):
                continue
            if x.op.startswith(('s_cselect', 's_cbranch_scc', 's_addc', 's_subb')):
                assert k > 0 and isinstance(it[k - 1], Inst), 'scc consumer without producer'
                x.glue = True
            if ('s', 'vcc') in x.reads:
                q = k
                while True:
                    assert isinstance(it[q], Inst) and q > 0, 'vcc consumer without producer'
                    it[q].glue = True
                    q -= 1
                    assert isinstance(it[q], Inst), 'control item inside a vcc group'
                    if ('s', 'vcc') in it[q].writes:
                        break

    def done(self):
        return self.pos >= len(self.items)


class Op:
    def __init__(self, reads, mfmas, name=None, pre=None, requires=(), pre_requires=(), budget=None):
        self.reads = [I(x) for x in reads]
        self.mfmas = [I(x) for x in mfmas]
        self.name = name
        self.pre = pre
        self.requires = list(requires)
        self.pre_requires = list(pre_requires)
        self.budget = budget


def cost(inst):
    c = inst.cls
    if c in ('trans', 'permlane'):
        return 2.0
    if c in VALU_CLS:
        return 1.0
    if c in ('ds_read', 'ds_write'):
        return 1.0
    if c in VMEM_CLS:
        return 1.5
    if c in ('mfma4',):
        return 4.0
    if c in ('mfma8',):
        return 8.0
    return 0.5


def is_mem(inst):
    return inst.cls in VMEM_CLS or inst.cls in ('ds_read', 'ds_write')


class Sched:
    def __init__(self, E, streams):
        self.E = E
        self.streams = streams
        self.done_names = set()
        self.marks = set()

    def _head(self, s):
        while not s.done():
            x = s.items[s.pos]
            if isinstance(x, Inst):
                if s.sleep > 0:
                    return None
                return x
            kind = x[0]
            if kind == 'mark':
                if s.sleep > 0:
                    return None
                self.marks.add(x[1])
                s.pos += 1
            elif kind == 'gap':
                if s.sleep > 0:
                    return None
                s.sleep = x[1]
                s.pos += 1
                return None
            elif kind == 'after':
                if x[1] in self.done_names or x[1] in self.marks:
                    s.pos += 1
                else:
                    return None
            elif kind == 'call':
                if s.sleep > 0:
                    return None
                s.pos += 1
                x[1]()
            else:
                raise ValueError(x)
        return None

    def emit1(self, s):
        c = 0
        while True:
            x = s.items[s.pos]
            self.E.emit(x)
            c += cost(x)
            s.pos += 1
            if s.done() or not isinstance(s.items[s.pos], Inst) or not s.items[s.pos].glue:
                return c

    def flush_until(self, mark):
        if mark in self.marks:
            return
        for s in self.streams:
            if any(isinstance(x, tuple) and x[0] == 'mark' and x[1] == mark for x in s.items[s.pos:]):
                while mark not in self.marks:
                    s.sleep = 0
                    x = s.items[s.pos]
                    if isinstance(x, Inst):
                        self.emit1(s)
                    elif x[0] == 'after' and not (x[1] in self.done_names or x[1] in self.marks):
                        self.flush_until(x[1])
                        if not (x[1] in self.done_names or x[1] in self.marks):
                            raise RuntimeError(f'deadlock: mark {mark} needs {x[1]}')
                    else:
                        self._head(s)
                return
        raise RuntimeError('unknown mark ' + mark)

    def fill(self, budget, maxmem=1):
        E = self.E
        nm = 0
        for s in self.streams:
            while nm < maxmem and budget > 0:
                h = self._head(s)
                if h is None:
                    break
                k = s.pos
                while k < len(s.items) and isinstance(s.items[k], Inst) and s.items[k].cls in ('salu', 's_nop'):
                    k += 1
                if k < len(s.items) and isinstance(s.items[k], Inst) and is_mem(s.items[k]) and k - s.pos <= 4:
                    while s.pos <= k:
                        budget -= self.emit1(s)
                    nm += 1
                else:
                    break
        for s in self.streams:
            while budget > 0:
                h = self._head(s)
                if h is None or is_mem(h):
                    break
                if cost(h) > budget + 0.5 and cost(h) < 4:
                    break
                budget -= self.emit1(s)
        for s in self.streams:
            if s.sleep > 0:
                s.sleep -= 1

    def run(self, ops, D, WB, budget, maxmem=1, primed=0):
        E = self.E
        N = len(ops)

        def issue_reads(j):
            o = ops[j]
            for m in o.pre_requires:
                self.flush_until(m)
            if o.pre:
                o.pre()
            for k, x in enumerate(o.reads):
                x.tag = ('frag', id(o))
                E.emit(x)

        for j in range(primed, min(D, N)):
            issue_reads(j)
        for i in range(N):
            o = ops[i]
            for m in o.requires:
                self.flush_until(m)
            if i % WB == 0:
                E.wait_tags([('frag', id(ops[q])) for q in range(i, min(N, i + WB))])
            b = o.budget if o.budget is not None else budget
            for k, m in enumerate(o.mfmas):
                E.emit(m)
                if k == 0 and i + D < N:
                    issue_reads(i + D)
                self.fill(b / len(o.mfmas), maxmem)
            if o.name:
                self.done_names.add(o.name)

    def drain(self):
        progress = True
        while progress:
            progress = False
            for s in self.streams:
                while True:
                    s.sleep = 0
                    h = self._head(s)
                    if h is None:
                        if s.sleep > 0:
                            progress = True
                            continue
                        break
                    self.emit1(s)
                    progress = True
        for s in self.streams:
            if not s.done():
                raise RuntimeError(f'stream {s.name} blocked at {s.items[s.pos]}')
```

```python
import sys
sys.path.insert(0, 'gen')
from kgen import *
from sched import *
import layout as L

KN = 'parallel_sum__sliding_local_dilated__dense_activation_squared_relu__prompt_kernel'
OPT = dict(stop=99, stamps=0, touch=1, late0=0, latek=4, hpub=15, kvbar=16, opub=20, attdone=20, hxgap=30, higap=30, hgap=30, ogap=30)
for a in sys.argv[2:]:
    k, v = a.split('=')
    OPT[k] = int(v)
OUT = sys.argv[1]

E = Emitter()
slow_paths = []

sW, sR, sS, sC, sJ = 's4', 's5', 's6', 's7', 's8'
P_X, P_WQKV, P_WO, P_W1, P_B1, P_W2, P_B2 = 16, 18, 20, 24, 26, 28, 30
P_OUT, P_DBG, P_WS = 32, 34, 36
SRD_X, SRD_W1, SRD_WS, SRD_RP, SRD_B, SRD_OUT, SRD_DBG, SRD_CODE = 40, 44, 48, 52, 56, 60, 64, 68
SEG = 72
NONCE = 82
sT = ['s%d' % i for i in range(84, 100)]
sRP_SRC, sRP_M0, sRP_STEPL, sRP_STEPG, sRP_FLAG, sRP_D8 = 's9', 's10', 's11', 's12', 's13', 's14'
sGB = 's15'
sW1B = 's38'
sLW = 's39'


def srd(n):
    return f's[{n}:{n + 3}]'


XN = 16
FR = 160
NF = 9
VD = 196
VTR = 205
vLANE16 = 'v209'
vB1A = 'v210'
vRSTD, vNMR = 'v211', 'v212'
vONE = 213
BONE = 214
TMP = 218
vSTAMP = 'v255'
vMASKHI = 'v254'

SLOT = [0, 36864, 73728, 110592]
MISC = 147456
LDS_B1 = MISC
LDS_TOTAL = 163840

nstamp = [0]


def stamp(Em=None):
    if not OPT['stamps']:
        return
    k = nstamp[0]
    if k > 0:
        E(f'v_writelane_b32 {vSTAMP}, s100, {k - 1}')
    E('s_memtime s[100:101]')
    nstamp[0] += 1


def mk_srd(n, p, size):
    E(f's_mov_b32 s{n}, s{p}\ns_mov_b32 s{n + 1}, s{p + 1}\ns_mov_b32 s{n + 2}, {size}\ns_mov_b32 s{n + 3}, 0x20000')


hdr = open('parallel_sum__sliding_local_dilated__dense_activation_squared_relu__prompt.s.ref').read()
hdr = [l for l in hdr.split('\n') if l.startswith(';') and '@launch' not in l and 'Override' not in l and 'grid=ceil' not in l]
E.raw('\n'.join(hdr))
E.raw(f'; @launch grid=(256,1,1) block=(256,1,1) lds={LDS_TOTAL}')
E.raw(f'.amdgcn_target "amdgcn-amd-amdhsa--gfx950"\n.text\n.globl {KN}\n.p2align 8\n.type {KN},@function\n{KN}:')

E('s_cmp_ge_u32 s2, 256\ns_cbranch_scc1 L_END')
stamp()
E('s_load_dwordx16 s[16:31], s[0:1], 0')
E('s_load_dwordx4 s[32:35], s[0:1], 64')
E('s_load_dwordx2 s[36:37], s[0:1], 80')
E(f's_memrealtime s[{NONCE}:{NONCE + 1}]')
E('s_mov_b32 s99, 0')
E(f's_getpc_b64 s[{SRD_CODE}:{SRD_CODE + 1}]')
E('L_PCREF:')
E(f's_mov_b32 s{SRD_CODE + 2}, L_CODE_END-L_PCREF\ns_mov_b32 s{SRD_CODE + 3}, 0x20000')
E('v_lshlrev_b32 v2, 7, v0')
E(f's_lshr_b32 s3, s2, 3\ns_and_b32 s3, s3, 3\ns_lshl_b32 s3, s3, 15')
E(f'buffer_load_dword v250, v2, {srd(SRD_CODE)}, s3 offen')
E('v_lshrrev_b32 v1, 6, v0')
E(f'v_readfirstlane_b32 {sW}, v1')
E('v_and_b32 v1, 63, v0')
E(f'''s_and_b32 s84, s2, 7
s_lshr_b32 s85, s2, 3
s_lshr_b32 {sS}, s84, 1
s_and_b32 {sC}, s85, 3
s_and_b32 s84, s84, 1
s_lshl_b32 s84, s84, 3
s_lshr_b32 s85, s85, 2
s_add_u32 {sR}, s84, s85
s_lshl_b32 {sJ}, {sS}, 2
s_add_u32 {sJ}, {sJ}, {sC}
s_lshl_b32 s86, {sC}, 1''')
for q in range(9):
    E(f's_add_u32 s{SEG + q}, s86, {q}\ns_cmp_ge_u32 s{SEG + q}, 9\ns_cselect_b32 s87, 9, 0\ns_sub_u32 s{SEG + q}, s{SEG + q}, s87')
E('''v_bfe_u32 v2, v1, 2, 3
v_mul_u32_u24 v2, 4608, v2
v_lshrrev_b32 v3, 5, v1
v_lshl_add_u32 v2, v3, 6, v2
v_and_b32 v3, 3, v1
v_lshl_add_u32 v2, v3, 4, v2''')
E(f's_lshl_b32 s84, {sR}, 2\ns_add_u32 s84, s84, {sW}\ns_mul_i32 s84, s84, 36864')
E('s_waitcnt lgkmcnt(0)')
mk_srd(SRD_X, P_X, 2359296)
mk_srd(SRD_DBG, P_DBG, 256)
E(f's_or_b32 s85, s2, {sW}\ns_cmp_lg_u32 s85, 0\ns_cbranch_scc1 L_NONONCE')
E(f's_or_b32 s{NONCE}, s{NONCE}, 1')
E(f'v_mov_b32 v4, s{NONCE}\nv_mov_b32 v5, s{NONCE + 1}\nv_mov_b32 v6, 0')
E('s_mov_b64 exec, 1')
E.raw(f'    buffer_store_dwordx2 v[4:5], v6, {srd(SRD_DBG)}, 0 offen sc1')
E('s_mov_b64 exec, -1')
E('L_NONONCE:')
for q in range(9):
    E(f's_lshl_b32 s85, s{SEG + q}, 7\ns_add_u32 s85, s85, s84')
    for i in range(4):
        r = XN + 16 * q + 4 * i
        E(f'buffer_load_dwordx4 v[{r}:{r + 3}], v2, {srd(SRD_X)}, s85 offen offset:{1152 * i}', tag=f'x{q}')
mk_srd(SRD_W1, P_W1, 5308416)
mk_srd(SRD_WS, P_WS, 0x10000000)
mk_srd(SRD_B, P_B1, 9216)
mk_srd(SRD_OUT, P_OUT, 2359296)
for i in range(9):
    E(f'''v_add_u32 v4, {64 * i}, v1
v_mul_u32_u24 v5, 1821, v4
v_lshrrev_b32 v5, 16, v5
v_mul_u32_u24 v6, 36, v5
v_sub_u32 v6, v4, v6
v_mul_u32_u24 v5, 9216, v5
v_lshl_add_u32 v{VD + i}, v6, 4, v5''')
    if i % 4:
        E(f'v_subrev_u32 v{VD + i}, {(i % 4) * 1024}, v{VD + i}')
E(f'v_lshlrev_b32 {vLANE16}, 4, v1')
E(f's_mul_i32 {sW1B}, {sW}, {16 * 9216}\ns_mul_i32 s84, {sJ}, 576\ns_add_u32 {sW1B}, {sW1B}, s84')
E(f's_mul_i32 {sLW}, {sW}, 9216')


def dma_w1(q):
    out = [f's_mul_i32 s84, s{SEG + q}, {64 * 9216}', f's_add_u32 s84, s84, {sW1B}']
    for i in range(9):
        if i % 4 == 0:
            out.append(f's_add_u32 m0, {sLW}, {SLOT[q % 4] + i * 1024}')
        out.append(Inst(f'buffer_load_dwordx4 v{VD + i}, {srd(SRD_W1)}, s84 offen offset:{(i % 4) * 1024} lds', tag=f'st{q}'))
    return out


def emit_all(lst):
    for x in lst:
        if isinstance(x, str):
            E(x)
        else:
            E.emit(x)


E(f's_mul_i32 s85, {sJ}, 576\ns_mov_b32 m0, {LDS_B1}')
E(f'buffer_load_dwordx4 {vLANE16}, {srd(SRD_B)}, s85 offen lds', tag='b1')
mk_srd(SRD_B, P_B2, 1152)
emit_all(dma_w1(0))
late = []
late += dma_w1(1)

RPB = SLOT[3]
vA1, vA2, vS = 'v8', 'v9', 'v10'
E(f'''v_bfe_u32 v4, v1, 2, 2
v_and_b32 v5, 3, v1''')
E('s_cmp_ge_u32 s2, 164\ns_cbranch_scc1 L_RP_QKV')
E(f'''s_mul_i32 s84, s2, 1821
s_lshr_b32 s84, s84, 16
s_mul_i32 s85, s84, 36
s_sub_u32 s85, s2, s85
s_lshl_b32 s86, s2, 5
s_lshl_b32 s90, {sW}, 3
s_add_u32 s86, s86, s90
s_mov_b32 s87, 16
s_mov_b32 s88, 4
s_mov_b32 s89, 8
s_mov_b32 s{SRD_RP}, s{P_W2}
s_mov_b32 s{SRD_RP + 1}, s{P_W2 + 1}
s_mov_b32 s{SRD_RP + 2}, 5308416
s_cmp_lt_u32 s2, 144
s_cbranch_scc1 L_RP_W2C
s_mov_b32 s{SRD_RP}, s{P_WO}
s_mov_b32 s{SRD_RP + 1}, s{P_WO + 1}
s_mov_b32 s{SRD_RP + 2}, 663552
s_sub_u32 s90, s2, 144
s_lshr_b32 s84, s90, 2
s_and_b32 s85, s90, 3
s_add_u32 s85, s85, 36
s_mul_i32 s86, s90, 36
s_lshl_b32 s91, {sW}, 3
s_add_u32 s86, s86, s91
s_lshr_b32 s91, {sW}, 1
s_lshl_b32 s91, s91, 2
s_add_u32 s86, s86, s91
s_mov_b32 s87, 4
s_mov_b32 s88, 8
s_mov_b32 s89, 16
s_cmp_lt_u32 s2, 160
s_cbranch_scc1 L_RP_W2C
s_sub_u32 s84, s2, 160
s_mov_b32 s85, 40
s_lshl_b32 s86, s84, 2
s_add_u32 s86, s86, {sW}
s_mul_i32 s86, s86, 36
s_add_u32 s86, s86, 16
s_mov_b32 s87, 8
s_mov_b32 s88, 16
s_mov_b32 s89, 0
L_RP_W2C:
s_mul_i32 {sRP_SRC}, s86, 1152
s_add_u32 {sRP_M0}, {sLW}, {RPB}
s_mov_b32 {sRP_STEPL}, 32
s_mov_b32 {sRP_STEPG}, 1024
s_mul_i32 {sRP_FLAG}, s84, 41
s_add_u32 {sRP_FLAG}, {sRP_FLAG}, s85
s_mov_b32 {sRP_D8}, 0
v_bfe_u32 v6, v1, 4, 1
v_mul_lo_u32 v6, v6, s87
v_lshrrev_b32 v7, 5, v1
v_mul_lo_u32 v7, v7, s88
v_add3_u32 v6, v6, v7, v4
v_mul_u32_u24 v6, 1152, v6
v_lshl_add_u32 v6, v5, 3, v6
s_mul_i32 s90, {sW}, 288
s_add_u32 s90, s90, {RPB}
v_add_u32 {vA1}, s90, v6
s_mul_i32 s89, s89, 1152
v_add_u32 {vA2}, s89, {vA1}
s_lshl_b32 s90, s84, 2
s_add_u32 s90, s90, {sW}
s_mul_i32 s90, s90, {L.SLABW_SZ}
s_mul_i32 s91, s85, 9216
s_add_u32 s90, s90, s91
s_add_u32 s90, s90, {L.WS_SLABW}
v_add_u32 {vS}, s90, {vLANE16}
s_branch L_RP_DONE
L_RP_QKV:
s_sub_u32 s84, s2, 164
s_mov_b32 s{SRD_RP}, s{P_WQKV}
s_mov_b32 s{SRD_RP + 1}, s{P_WQKV + 1}
s_mov_b32 s{SRD_RP + 2}, 1990656
s_mul_i32 {sRP_SRC}, s84, {8 * 3456}
s_mul_i32 s85, {sW}, 6912
s_add_u32 {sRP_SRC}, {sRP_SRC}, s85
s_add_u32 {sRP_M0}, s85, {RPB}
s_mov_b32 {sRP_STEPL}, 72
s_mov_b32 {sRP_STEPG}, {L.SLABQ_SZ}
s_mov_b32 {sRP_FLAG}, s2
s_mov_b32 {sRP_D8}, 0x40000000
v_bfe_u32 v6, v1, 4, 1
v_lshlrev_b32 v6, 2, v6
v_and_b32 v7, 1, v1
v_lshl_add_u32 v6, v7, 1, v6
v_bfe_u32 v7, v1, 1, 1
v_add_u32 v6, v6, v7
s_lshl_b32 s85, {sW}, 3
v_add_u32 v6, s85, v6
v_min_u32 v6, 26, v6
v_mul_u32_u24 v7, 57, v6
v_lshrrev_b32 v7, 9, v7
v_mul_u32_u24 v11, 9, v7
v_sub_u32 v6, v6, v11
v_mul_u32_u24 v7, 1152, v7
v_lshl_add_u32 v6, v6, 3, v7
v_lshrrev_b32 v7, 5, v1
v_mul_u32_u24 v11, 576, v7
v_add_u32 v6, v6, v11
v_mul_u32_u24 v11, 3456, v4
v_add_u32 v6, v6, v11
v_add_u32 {vA1}, {RPB}, v6
v_add_u32 {vA2}, {4 * 3456}, {vA1}
s_lshr_b32 s85, s84, 3
s_and_b32 s86, s84, 3
s_lshl_b32 s85, s85, 2
s_add_u32 s85, s85, s86
s_lshl_b32 s85, s85, 2
s_add_u32 s85, s85, {sW}
s_lshl_b32 s85, s85, 10
s_bfe_u32 s86, s84, 0x10002
s_lshl_b32 s86, s86, 9
s_add_u32 s85, s85, s86
s_add_u32 s85, s85, {L.WS_SLABQ}
s_mov_b32 s86, {8 * L.SLABQ_SZ}
v_mul_lo_u32 v7, v7, s86
v_and_b32 v11, 31, v1
v_lshl_add_u32 v7, v11, 4, v7
v_add_u32 {vS}, s85, v7
s_cmp_lt_u32 s2, 236
s_cbranch_scc1 L_RP_DONE
v_mov_b32 {vS}, 0x40000000
L_RP_DONE:
s_mov_b32 s{SRD_RP + 3}, 0x20000
s_nop 4''')
for i in range(9):
    if i % 4 == 0:
        late += [f's_add_u32 m0, {sRP_M0}, {i * 1024}', f's_add_u32 s84, {sRP_SRC}, {i * 1024}']
    late.append(Inst(f'buffer_load_dwordx4 {vLANE16}, {srd(SRD_RP)}, s84 offen offset:{(i % 4) * 1024} lds', tag='rp'))
late += dma_w1(2)
if OPT['touch']:
    E(f'''v_mul_u32_u24 v4, 52, v1
v_lshrrev_b32 v4, 8, v4
v_mul_u32_u24 v5, 5, v4
v_sub_u32 v5, v1, v5
v_mul_u32_u24 v4, 9216, v4
v_lshl_add_u32 v4, v5, 7, v4
v_cmp_gt_u32 vcc, 40, v1
v_mov_b32 v5, 0x40000000
v_cndmask_b32 v15, v5, v4, vcc
s_and_b32 s84, {sR}, 7
s_mul_i32 s84, s84, {8 * 9216}
s_mul_i32 s85, {sJ}, 576
s_andn2_b32 s85, s85, 127
s_add_u32 s84, s84, s85''')
    E(f's_add_u32 s85, s{SEG + 3}, {sW}\ns_cmp_ge_u32 s85, 9\ns_cselect_b32 s86, 9, 0\ns_sub_u32 s85, s85, s86')
    E(f's_mul_i32 s85, s85, {64 * 9216}\ns_add_u32 s95, s85, s84')
    late.append(Inst(f'buffer_load_dword v251, v15, {srd(SRD_W1)}, s95 offen'))
    E(f's_and_b32 s87, {sW}, 1\ns_add_u32 s85, s{SEG + 7}, s87\ns_cmp_ge_u32 s85, 9\ns_cselect_b32 s86, 9, 0\ns_sub_u32 s85, s85, s86')
    E(f's_mul_i32 s85, s85, {64 * 9216}\ns_add_u32 s96, s85, s84')
    late.append(Inst(f'buffer_load_dword v252, v15, {srd(SRD_W1)}, s96 offen'))
vNON = 12
E('v_mov_b32 v14, 0')
late.append(Inst(f'buffer_load_dwordx2 v[{vNON}:{vNON + 1}], v14, {srd(SRD_DBG)}, 0 offen sc1', tag='nonce'))

E(f'''v_lshrrev_b32 v4, 5, v1
v_lshlrev_b32 v4, 5, v4
v_bfe_u32 v5, v1, 2, 2
v_add_u32 v4, v4, v5
v_mul_u32_u24 v4, 576, v4
v_bfe_u32 v5, v1, 4, 1
v_lshlrev_b32 v5, 5, v5
v_and_b32 v6, 3, v1
v_lshl_add_u32 v5, v6, 3, v5
v_add_u32 v{VTR}, v4, v5
v_add_u32 {vB1A}, {LDS_B1}, v5
v_mov_b32 {vMASKHI}, 0xffff0000''')
for k in range(1, 4):
    E(f'v_add_u32 v{VTR + k}, {SLOT[k]}, v{VTR}')
E(f'''v_cmp_gt_u32 vcc, 32, v1
v_mov_b32 v4, 0x3f80
v_cndmask_b32 v{BONE}, 0, v4, vcc
v_mov_b32 v{BONE + 1}, 0
v_mov_b32 v{BONE + 2}, 0
v_mov_b32 v{BONE + 3}, 0''')
E(f's_lshl_b32 s84, {sR}, 4\ns_add_u32 s84, s84, {sJ}\ns_lshl_b32 s84, s84, 2\ns_add_u32 s84, s84, {sW}')
E(f's_mul_i32 {sGB}, s84, {L.G_WAVE}\ns_add_u32 {sGB}, {sGB}, {L.WS_G}')
stamp()

T = TMP
vS0, vS1, vQ0, vQ1, vONES = 'v4', 'v5', 'v6', 'v7', 'v11'
E(f'v_mov_b32 {vS0}, 0\nv_mov_b32 {vS1}, 0\nv_mov_b32 {vQ0}, 0\nv_mov_b32 {vQ1}, 0\nv_mov_b32 {vONES}, 0x3f803f80')
X1 = 'quad_perm:[1,0,3,2] row_mask:0xf bank_mask:0xf'
X2 = 'quad_perm:[2,3,0,1] row_mask:0xf bank_mask:0xf'


def setvcc(m):
    return [f's_mov_b32 vcc_lo, {m}', f's_mov_b32 vcc_hi, {m}']


def transpose_seg(q):
    R = lambda i, d: f'v{XN + 16 * q + 4 * i + d}'
    Tm = lambda i, d: f'v{T + 4 * i + d}'
    o = []
    o += setvcc('0x55555555')
    for i0 in (0, 2):
        for d in range(4):
            o.append(f'v_cndmask_b32_dpp {Tm(i0, d)}, {R(i0 + 1, d)}, {R(i0, d)}, vcc {X1}')
    o += setvcc('0xaaaaaaaa')
    for i0 in (0, 2):
        for d in range(4):
            o.append(f'v_cndmask_b32_dpp {Tm(i0 + 1, d)}, {R(i0, d)}, {R(i0 + 1, d)}, vcc {X1}')
    o += setvcc('0x33333333')
    for i0 in (0, 1):
        for d in range(4):
            o.append(f'v_cndmask_b32_dpp {R(i0, d)}, {Tm(i0 + 2, d)}, {Tm(i0, d)}, vcc {X2}')
    o += setvcc('0xcccccccc')
    for i0 in (0, 1):
        for d in range(4):
            o.append(f'v_cndmask_b32_dpp {R(i0 + 2, d)}, {Tm(i0, d)}, {Tm(i0 + 2, d)}, vcc {X2}')
    return o


def stats_seg(q):
    o = []
    for e in range(16):
        r = f'v{XN + 16 * q + e}'
        s = (vS0, vS1)[e & 1]
        qq = (vQ0, vQ1)[e & 1]
        o.append(f'v_dot2_f32_bf16 {s}, {r}, {vONES}, {s}')
        o.append(f'v_dot2_f32_bf16 {qq}, {r}, {r}, {qq}')
    return o


for q in range(10):
    tr = transpose_seg(q) if q < 9 else []
    st = stats_seg(q - 1) if q > 0 else ['v_nop'] * 32
    k = 0
    for x in tr:
        E(x)
        if x.startswith('v_') and k < len(st):
            E(st[k])
            k += 1
    for x in st[k:]:
        E(x)
    if q >= OPT['late0']:
        n = 0
        while late and (n < OPT['latek'] or q == 9):
            x = late.pop(0)
            emit_all([x])
            if isinstance(x, Inst):
                n += 1
    if OPT['stamps'] > 1 and q in (0, 4, 8):
        stamp()
E(f'''v_add_f32 {vS0}, {vS0}, {vS1}
v_add_f32 {vQ0}, {vQ0}, {vQ1}
v_mov_b32 {vS1}, {vS0}
v_mov_b32 {vQ1}, {vQ0}
v_permlane32_swap_b32 {vS0}, {vS1}
v_permlane32_swap_b32 {vQ0}, {vQ1}
v_add_f32 {vS0}, {vS0}, {vS1}
v_add_f32 {vQ0}, {vQ0}, {vQ1}
v_mul_f32 {vS0}, 0x3ae38e39, {vS0}
v_mul_f32 {vQ0}, 0x3ae38e39, {vQ0}
v_fma_f32 {vQ0}, -{vS0}, {vS0}, {vQ0}
v_max_f32 {vQ0}, 0, {vQ0}
v_cvt_pk_bf16_f32 {vS1}, {vS0}, {vQ0}
v_lshlrev_b32 {vS0}, 16, {vS1}
v_and_b32 {vQ0}, {vMASKHI}, {vS1}
v_add_f32 {vQ0}, 0x3727c5ac, {vQ0}
v_cvt_pk_bf16_f32 {vQ0}, {vQ0}, {vQ0}
v_lshlrev_b32 {vQ0}, 16, {vQ0}
v_sqrt_f32 {vQ0}, {vQ0}
v_cvt_pk_bf16_f32 {vQ0}, {vQ0}, {vQ0}
v_lshlrev_b32 {vQ0}, 16, {vQ0}
v_rcp_f32 {vRSTD}, {vQ0}
v_mul_f32 {vNMR}, {vS0}, {vRSTD}
v_sub_f32 {vNMR}, 0, {vNMR}''')


def norm_seg(q):
    o = []
    for e0 in range(0, 16, 2):
        seq = []
        for e in (e0, e0 + 1):
            r = f'v{XN + 16 * q + e}'
            a, b = f'v{T + 2 * (e % 4)}', f'v{T + 2 * (e % 4) + 1}'
            seq.append([f'v_lshlrev_b32 {a}, 16, {r}', f'v_and_b32 {b}, {vMASKHI}, {r}',
                        f'v_fma_f32 {a}, {a}, {vRSTD}, {vNMR}', f'v_fma_f32 {b}, {b}, {vRSTD}, {vNMR}',
                        f'v_cvt_pk_bf16_f32 {r}, {a}, {b}'])
        for k in range(5):
            o += [seq[0][k], seq[1][k]]
        if e0 % 4 == 2:
            o.append(('mark', f'n{q}_{e0 // 4}'))
    return o


stamp()

fragi = [0]


def newfrag():
    f = FR + 4 * (fragi[0] % NF)
    fragi[0] += 1
    return f


def barrier_for(tag, extra_tags=()):
    def f():
        E.wait_tags([tag] + list(extra_tags))
        E('s_barrier')
        if OPT['stamps'] > 1:
            stamp()
        S.marks.add('B_' + tag)
    return f


ops = []
for n in range(9):
    f = newfrag()
    ops.append(Op([f'ds_read_b64_tr_b16 v[{f}:{f + 1}], {vB1A} offset:{64 * n}',
                   f'ds_read_b64_tr_b16 v[{f + 2}:{f + 3}], {vB1A} offset:{64 * n}'],
                  [f'v_mfma_f32_32x32x16_bf16 a[{16 * n}:{16 * n + 15}], v[{f}:{f + 3}], v[{BONE}:{BONE + 3}], 0'],
                  pre=barrier_for('st0', ['b1']) if n == 0 else None, budget=5))
for q in range(9):
    order = [(jj, n) for jj in range(4) for n in range(9)] if q < 8 else [(jj, n) for n in range(9) for jj in range(4)]
    for k, (jj, n) in enumerate(order):
        f = newfrag()
        off = 8 * jj * 576 + 64 * n
        x = XN + 16 * q + 4 * jj
        pre = None
        if k == 0 and q > 0:
            extra = {1: ['rp'], 3: ['rpst']}.get(q, [])
            pre = barrier_for(f'st{q}', extra)
        ops.append(Op([f'ds_read_b64_tr_b16 v[{f}:{f + 1}], v{VTR + q % 4} offset:{off}',
                       f'ds_read_b64_tr_b16 v[{f + 2}:{f + 3}], v{VTR + q % 4} offset:{off + 4 * 576}'],
                      [f'v_mfma_f32_32x32x16_bf16 a[{16 * n}:{16 * n + 15}], v[{f}:{f + 3}], v[{x}:{x + 3}], a[{16 * n}:{16 * n + 15}]'],
                      name=f'f{q}_{jj}_{n}', pre=pre, requires=[f'n{q}_{jj}'],
                      pre_requires=([f'dma{q}'] if (k == 0 and q >= 3) else []) + (['rpdone'] if (k == 0 and q == 2) else [])))

st_norm = Stream('norm')
for q in range(9):
    st_norm.add(norm_seg(q))
st_dma = Stream('dma')
for q in range(3, 9):
    st_dma.add([('after', f'B_st{max(q - 2, 2)}')] + dma_w1(q) + [('mark', f'dma{q}')])
st_rp = Stream('rp')
st_rp.add([('after', 'B_st1'), 's_mov_b32 s92, 0'])
RPT = TMP + 16
for f in range(9):
    t = RPT + 4 * (f % 5)
    st_rp.add([f'ds_read_b64_tr_b16 v[{t}:{t + 1}], {vA1}', f'ds_read_b64_tr_b16 v[{t + 2}:{t + 3}], {vA2}',
               f'v_add_u32 {vA1}, {sRP_STEPL}, {vA1}', f'v_add_u32 {vA2}, {sRP_STEPL}, {vA2}'])
    if f >= 3:
        f2 = f - 3
        t2 = RPT + 4 * (f2 % 5)
        st_rp.add([Inst(f'buffer_store_dwordx4 v[{t2}:{t2 + 3}], {vS}, {srd(SRD_WS)}, s92 offen sc1', tag='rpst'),
                   f's_add_u32 s92, s92, {sRP_STEPG}'])
st_rp.add([('gap', 3)])
for f2 in range(6, 9):
    t2 = RPT + 4 * (f2 % 5)
    if f2 == 8:
        st_rp.add([f's_add_u32 s92, s92, {sRP_D8}'])
    st_rp.add([Inst(f'buffer_store_dwordx4 v[{t2}:{t2 + 3}], {vS}, {srd(SRD_WS)}, s92 offen sc1', tag='rpst'),
               f's_add_u32 s92, s92, {sRP_STEPG}'])
st_rp.add([('mark', 'rpdone')])

npoll = [0]


def poll_check(load_txt, vr, cmp_lines, tag):
    k = npoll[0]
    npoll[0] += 1
    E.wait_tags([tag])
    E(f'L_PC{k}:')
    E(cmp_lines)
    E(f's_cbranch_vccnz L_PS{k}')
    E(f'L_PR{k}:')
    slow_paths.append((k, load_txt))


def get_nonce():
    poll_check(f'buffer_load_dwordx2 v[{vNON}:{vNON + 1}], v14, {srd(SRD_DBG)}, 0 offen sc1', vNON,
               f'v_cmp_eq_u32 vcc, 0, v{vNON}', 'nonce')
    E(f'v_readfirstlane_b32 s{NONCE}, v{vNON}\nv_readfirstlane_b32 s{NONCE + 1}, v{vNON + 1}')


def publish_flag(soff_lines, name):
    E(f's_cmp_lg_u32 {sW}, 0\ns_cbranch_scc1 L_PUB{name}')
    E(soff_lines)
    E('s_mov_b64 exec, 1')
    E.raw(f'    buffer_store_dwordx2 v[{vNON}:{vNON + 1}], v14, {srd(SRD_WS)}, s93 offen sc1')
    E('s_mov_b64 exec, -1')
    E(f'L_PUB{name}:')


st_misc = Stream('misc')
st_misc.add([('after', 'B_st2'), ('call', get_nonce), ('mark', 'nonce_ok'), ('after', 'B_st3'),
             ('call', lambda: publish_flag(f's_lshl_b32 s93, {sRP_FLAG}, 3\ns_add_u32 s93, s93, {L.WS_FLAG_RP}', 'RP'))])


def ffn_epi(n):
    o = [('after', f'f8_3_{n}'), ('gap', 1)]
    t = TMP
    X = TMP + 16 + 8 * (n % 2)
    for half in range(2):
        for e in range(8 * half, 8 * half + 8):
            o.append(f'v_accvgpr_read_b32 v{t + e}, a{16 * n + e}')
        for e in range(8 * half, 8 * half + 8):
            o.append(f'v_max_f32 v{t + e}, 0, v{t + e}')
        for e in range(8 * half, 8 * half + 8):
            o.append(f'v_mul_f32 v{t + e}, v{t + e}, v{t + e}')
        for p in range(4 * half, 4 * half + 4):
            o.append(f'v_cvt_pk_bf16_f32 v{X + p}, v{t + 2 * p}, v{t + 2 * p + 1}')
    for d in range(4):
        o.append(f'v_permlane16_swap_b32 v{X + d}, v{X + 4 + d}')
    for d in range(8):
        o.append(f'v_accvgpr_write_b32 a{16 * n + d}, v{X + d}')
    o.append(f's_add_u32 s94, {sGB}, {2048 * n}')
    o.append(Inst(f'buffer_store_dwordx4 v[{X}:{X + 3}], {vLANE16}, {srd(SRD_WS)}, s94 offen sc1', tag='gst'))
    o.append(Inst(f'buffer_store_dwordx4 v[{X + 4}:{X + 7}], {vLANE16}, {srd(SRD_WS)}, s94 offen offset:1024 sc1', tag='gst'))
    o.append(('mark', f'h{n}'))
    return o


st_epi = Stream('epi')
for n in range(9):
    st_epi.add(ffn_epi(n))
st_epi.add([('mark', 'hdone')])

slot_of = {g: g % 4 for g in range(14)}
free_after = {}
for g in range(9, 14):
    free_after[g] = g - 2
ATT_DONE = OPT['attdone']
avail = {0: ATT_DONE, 1: 15, 2: 12, 3: 13}
for g in range(14, 25):
    k = min(avail, key=lambda q: avail[q])
    slot_of[g] = k
    free_after[g] = avail[k]
    assert avail[k] <= g - 1, (g, avail)
    avail[k] = g + 2
QB = SLOT[0]
QB1 = QB + 4096
PITCH = 240
VL = 4
sSLQ, sSLW = 's9', 's10'


def flags_cmp(v, n):
    o = []
    for d in range(n):
        o.append(f'v_xor_b32 v{v + d}, s{NONCE + (d & 1)}, v{v + d}')
    if n == 2:
        o.append(f'v_or_b32 v{v}, v{v}, v{v + 1}')
    else:
        o.append(f'v_or3_b32 v{v}, v{v}, v{v + 1}, v{v + 2}')
        o.append(f'v_or_b32 v{v}, v{v}, v{v + 3}')
    o.append(f'v_cmp_ne_u32 vcc, 0, v{v}')
    return '\n'.join(o)


vPF = 8
vPA = 'v15'


def dma_qkv(u):
    g = 9 + u
    out = []
    if u < 4:
        out += [f's_cmp_ge_u32 {sW}, 2', f's_cselect_b32 s84, s{SEG + 2 * u + 1}, s{SEG + 2 * u}', 's_lshl_b32 s84, s84, 14',
                f's_and_b32 s85, {sW}, 1', 's_lshl_b32 s85, s85, 13', 's_add_u32 s84, s84, s85', f's_lshl_b32 s85, {sW}, 13']
        npc = 8
    else:
        out += [f's_lshl_b32 s84, s{SEG + 8}, 14', f's_lshl_b32 s85, {sW}, 12', 's_add_u32 s84, s84, s85']
        npc = 4
    out.append(f's_add_u32 s84, s84, {sSLQ}')
    for i in range(npc):
        if i % 4 == 0:
            out.append(f's_add_u32 m0, s85, {SLOT[slot_of[g]] + i * 1024}')
            if i:
                out.append('s_add_u32 s84, s84, 4096')
        out.append(Inst(f'buffer_load_dwordx4 {vLANE16}, {srd(SRD_WS)}, s84 offen offset:{(i % 4) * 1024} sc1 lds', tag=f'st{g}'))
    return out


def dma_p2(p):
    g = 14 + p
    out = []
    if p < 9:
        out += [f's_mul_i32 s84, {sC}, 9', f's_add_u32 s84, s84, {sW}', f's_add_u32 s84, s84, {4 * p}', 's_cmp_ge_u32 s84, 36',
                's_cselect_b32 s85, 36, 0', 's_sub_u32 s84, s84, s85', 's_mul_i32 s84, s84, 9216', f's_mov_b32 s85, {sLW}']
        npc = 9
    elif p == 9:
        out += [f's_add_u32 s84, {sLW}, {36 * 9216}', f's_mov_b32 s85, {sLW}']
        npc = 9
    else:
        out += [f's_mul_i32 s85, {sW}, 3072', f's_add_u32 s84, s85, {40 * 9216}']
        npc = 3
    out.append(f's_add_u32 s84, s84, {sSLW}')
    for i in range(npc):
        if i % 4 == 0:
            out.append(f's_add_u32 m0, s85, {SLOT[slot_of[g]] + i * 1024}')
            if i:
                out.append('s_add_u32 s84, s84, 4096')
        out.append(Inst(f'buffer_load_dwordx4 {vLANE16}, {srd(SRD_WS)}, s84 offen offset:{(i % 4) * 1024} sc1 lds', tag=f'st{g}'))
    return out


def poll_item(setup, load_txt, n, tag, gap):
    return [setup, Inst(load_txt, tag=tag), ('gap', gap),
            ('call', lambda: poll_check(load_txt, vPF, flags_cmp(vPF, n), tag))]


st_dma.add([('after', 'B_st5'), ('after', 'nonce_ok'),
            f's_mul_i32 {sSLQ}, {sJ}, {L.SLABQ_SZ}\ns_add_u32 {sSLQ}, {sSLQ}, {L.WS_SLABQ}',
            f's_mul_i32 {sSLW}, {sJ}, {L.SLABW_SZ}\ns_add_u32 {sSLW}, {sSLW}, {L.WS_SLABW}'])
st_dma.add([f'v_add_u32 v{VL + k}, {SLOT[k]}, {vLANE16}' for k in range(4)])
st_dma.add(poll_item(f'v_min_u32 {vPA}, {35 * 16}, {vLANE16}\nv_add_u32 {vPA}, {L.WS_FLAG_RP + 164 * 8}, {vPA}',
                     f'buffer_load_dwordx4 v[{vPF}:{vPF + 3}], {vPA}, {srd(SRD_WS)}, 0 offen sc1', 4, 'pfq', 30))
for u in range(5):
    st_dma.add([('after', f'B_st{free_after[9 + u]}')] + dma_qkv(u) + [('mark', f'dma{9 + u}')])
    if u == 1:
        st_dma.add(poll_item(f'v_lshrrev_b32 {vPA}, 1, {vLANE16}\nv_min_u32 {vPA}, {40 * 8}, {vPA}\ns_mul_i32 s84, {sS}, {41 * 8}\n'
                             f'v_add_u32 {vPA}, s84, {vPA}\nv_add_u32 {vPA}, {L.WS_FLAG_RP}, {vPA}',
                             f'buffer_load_dwordx2 v[{vPF}:{vPF + 1}], {vPA}, {srd(SRD_WS)}, 0 offen sc1', 2, 'pfw', 20))
for p in range(11):
    st_dma.add([('after', f'B_st{free_after[14 + p]}')] + dma_p2(p) + [('mark', f'dma{14 + p}')])

QA = 144
for q in range(9):
    u, sg = q // 2, q % 2
    g = 9 + u
    order = [(jj, t4) for jj in range(4) for t4 in range(4)] if q < 8 else [(jj, t4) for t4 in range(4) for jj in range(4)]
    for k, (jj, t4) in enumerate(order):
        f = newfrag()
        x = XN + 16 * q + 4 * jj
        acc = f'a[{QA + 16 * t4}:{QA + 16 * t4 + 15}]'
        first = (k == 0 and sg == 0)
        ops.append(Op([f'ds_read_b128 v[{f}:{f + 3}], v{VL + slot_of[g]} offset:{(sg * 16 + jj * 4 + t4) * 1024}'],
                      [f'v_mfma_f32_32x32x16_bf16 {acc}, v[{f}:{f + 3}], v[{x}:{x + 3}], {"0" if (q == 0 and jj == 0) else acc}'],
                      name=f'q{q}_{jj}_{t4}', pre=barrier_for(f'st{g}') if first else None,
                      pre_requires=[f'dma{g}'] if first else [], budget=4.0))

def act_regs(idx, b):
    if idx < 9:
        return f'a[{16 * idx + 4 * b}:{16 * idx + 4 * b + 3}]'
    k = idx - 9
    if k < 18:
        r = XN + 8 * k + 4 * b
        return f'v[{r}:{r + 3}]'
    r = QA + 8 * (k - 18) + 4 * b
    return f'a[{r}:{r + 3}]'


def acc2(n, b):
    r = 16 * n + 8 + 4 * b
    return f'a[{r}:{r + 3}]'


P2_EXTRA = {OPT['hpub']: ['hdone'], OPT['kvbar']: ['kvw'], OPT['opub']: ['odone'], ATT_DONE: ['attrd']}
for idx in range(41):
    p, wq = idx // 4, idx % 4
    g = 14 + p
    for n in range(9):
        f = newfrag()
        first = (wq == 0 and n == 0)
        pre = None
        prq = []
        if first:
            extra = []
            prq = [f'dma{g}']
            lg = False
            if g == OPT['hpub']:
                prq.append('hdone'); extra.append('gst')
            if g == OPT['kvbar']:
                prq.append('kvw'); extra.append('kvw')
            if g == OPT['opub']:
                prq.append('odone'); extra.append('ost')
            if g == ATT_DONE:
                prq.append('attrd')
            pre = barrier_for(f'st{g}', extra)
        req = [f'h{idx}'] if idx < 9 else [f'act{idx}']
        if idx == 0:
            req.append(f'h{n}')
        ops.append(Op([f'ds_read_b128 v[{f}:{f + 3}], v{VL + slot_of[g]} offset:{(wq * 9 + n) * 1024}'],
                      [f'v_mfma_f32_16x16x32_bf16 {acc2(n, b)}, v[{f}:{f + 3}], {act_regs(idx, b)}, {"0" if idx == 0 else acc2(n, b)}'
                       for b in range(2)],
                      name=f'p{idx}_{n}', pre=pre, pre_requires=prq, requires=req, budget=3.0))

vKW, vHX = 'v2', 'v3'
st_att = Stream('att')
st_att.add([('after', 'hdone'), ('after', 'B_st14'),
            f"""v_and_b32 v{TMP}, 31, v1
s_lshl_b32 s86, {sW}, 5
v_add_u32 v{TMP + 1}, s86, v{TMP}
v_mul_u32_u24 v{TMP + 1}, {PITCH}, v{TMP + 1}
v_lshrrev_b32 v{TMP + 2}, 5, v1
v_lshl_add_u32 v{TMP + 1}, v{TMP + 2}, 4, v{TMP + 1}
v_add_u32 {vKW}, {QB1}, v{TMP + 1}
v_subrev_u32 {vHX}, {112 * PITCH}, v{TMP + 1}
s_lshl_b32 s86, {sR}, 4
s_add_u32 s86, s86, {sJ}
s_add_u32 s86, s86, 16
s_lshl_b32 s87, s86, 12
s_add_u32 s87, s87, {L.WS_HALO}
s_cmp_eq_u32 {sR}, 15
s_cselect_b32 s87, 0x40000000, s87
v_cmp_gt_u32 vcc, {112 * PITCH}, v{TMP + 1}
v_mov_b32 v{TMP + 2}, 0x40000000
v_cndmask_b32 {vHX}, {vHX}, v{TMP + 2}, vcc"""])
for t4 in range(4):
    t = TMP
    X = TMP + 16 + 8 * (t4 % 2)
    o = [('after', f'q8_3_{t4}'), ('gap', 2)]
    ne = 16 if t4 < 3 else 8
    for e in range(ne):
        o.append(f'v_accvgpr_read_b32 v{t + e}, a{QA + 16 * t4 + e}')
    for pp in range(ne // 2):
        o.append(f'v_cvt_pk_bf16_f32 v{X + pp}, v{t + 2 * pp}, v{t + 2 * pp + 1}')
    for hh in range(ne // 8):
        o.append(Inst(f'ds_write_b128 {vKW}, v[{X + 4 * hh}:{X + 4 * hh + 3}] offset:{64 * t4 + 32 * hh}', tag='kvw'))
        o.append(Inst(f'buffer_store_dwordx4 v[{X + 4 * hh}:{X + 4 * hh + 3}], {vHX}, {srd(SRD_WS)}, s87 offen offset:{64 * t4 + 32 * hh} sc1', tag='hxst'))
    st_att.add(o)
st_att.add([('mark', 'kvw'), ('gap', OPT['hxgap'])])


def halo_publish():
    E.wait_tags(['hxst'])
    E(f's_cmp_lg_u32 {sW}, 3\ns_cbranch_scc1 L_HP')
    E(f's_lshl_b32 s89, s86, 7\ns_add_u32 s89, s89, {L.WS_FLAG_HALO}')
    E('s_mov_b64 exec, 1')
    E.raw(f'    buffer_store_dwordx2 v[{vNON}:{vNON + 1}], v14, {srd(SRD_WS)}, s89 offen sc1')
    E('s_mov_b64 exec, -1')
    E('L_HP:')


st_att.add([('call', halo_publish)])
st_att.add([('gap', OPT['higap'])])
vPF2 = TMP + 32
st_att.add([f's_lshl_b32 s86, {sR}, 4\ns_add_u32 s86, s86, {sJ}\ns_lshl_b32 s87, s86, 7\ns_add_u32 s87, s87, {L.WS_FLAG_HALO}\n'
            f's_lshl_b32 s88, {sRP_FLAG}, 3\ns_add_u32 s88, s88, {L.WS_FLAG_RP}\ns_cmp_eq_u32 {sR}, 0\ns_cselect_b32 s87, s88, s87\n'
            f'v_mov_b32 v{vPF2 + 2}, s87'])
HL = f'buffer_load_dwordx2 v[{vPF2}:{vPF2 + 1}], v{vPF2 + 2}, {srd(SRD_WS)}, 0 offen sc1'
st_att.add([Inst(HL, tag='pfh'), ('gap', 40), ('call', lambda: poll_check(HL, vPF2, flags_cmp(vPF2, 2), 'pfh'))])


def halo_import():
    E(f's_cmp_lg_u32 {sW}, 0\ns_cbranch_scc1 L_HI')
    E(f's_lshl_b32 s87, s86, 12\ns_add_u32 s87, s87, {L.WS_HALO}\ns_cmp_eq_u32 {sR}, 0\ns_cselect_b32 s87, 0x40000000, s87')
    E(f's_mov_b32 s88, m0\ns_mov_b32 m0, {QB}\ns_nop 0')
    for i in range(4):
        E.raw(f'    buffer_load_dwordx4 {vLANE16}, {srd(SRD_WS)}, s87 offen offset:{i * 1024} sc1 lds')
    E('s_mov_b32 m0, s88')
    E('L_HI:')
    E(f'buffer_load_dword v{vPF2}, v14, {srd(SRD_DBG)}, 0 offen', tag='himp')


st_att.add([('call', halo_import)])

MO, MP, MP0 = 16, 24, [44, 46, 52, 54]
A0, A0R, AP, APR, VT, VTP = (f'v{TMP + i}' for i in range(6))
AT = FR + 4 * NF
setup = f"""v_and_b32 v{TMP + 8}, 15, v1
v_lshrrev_b32 v{TMP + 9}, 4, v1
s_lshl_b32 s86, {sW}, 5
s_mul_i32 s86, s86, {PITCH}
s_add_u32 s86, s86, {QB1}
s_sub_u32 s87, s86, {16 * PITCH}
s_cmp_eq_u32 {sW}, 0
s_cselect_b32 s87, {QB}, s87
v_mul_u32_u24 v{TMP + 10}, {PITCH}, v{TMP + 8}
v_add_u32 {A0R}, s86, v{TMP + 10}
v_add_u32 {APR}, s87, v{TMP + 10}
v_lshl_add_u32 {A0}, v{TMP + 9}, 3, {A0R}
v_lshl_add_u32 {AP}, v{TMP + 9}, 3, {APR}
v_lshrrev_b32 v{TMP + 10}, 2, v1
v_mul_u32_u24 v{TMP + 10}, {PITCH}, v{TMP + 10}
v_and_b32 v{TMP + 11}, 3, v1
v_lshl_add_u32 v{TMP + 10}, v{TMP + 11}, 3, v{TMP + 10}
v_add_u32 {VT}, s86, v{TMP + 10}
v_add_u32 {VTP}, s87, v{TMP + 10}
v_lshlrev_b32 v{TMP + 9}, 2, v{TMP + 9}
v_sub_u32 v{TMP + 8}, v{TMP + 8}, v{TMP + 9}"""
st_att.add([setup])
for i in range(4):
    st_att.add([f"""v_subrev_u32 v{TMP + 9}, {i}, v{TMP + 8}
v_and_b32 v{TMP + 10}, 0x80000001, v{TMP + 9}
v_cmp_eq_u32 s[{MO + 2 * i}:{MO + 2 * i + 1}], 0, v{TMP + 10}
v_xor_b32 v{TMP + 10}, 0x80000000, v{TMP + 10}
v_cmp_eq_u32 s[{MP + 2 * i}:{MP + 2 * i + 1}], 0, v{TMP + 10}"""])
st_att.add([f's_or_b32 s86, {sR}, {sW}', ('gap', 2), 's_cmp_eq_u32 s86, 0'] +
           [f's_cselect_b64 s[{MP0[i]}:{MP0[i] + 1}], 0, s[{MP + 2 * i}:{MP + 2 * i + 1}]' for i in range(4)] +
           ['v_cmp_gt_u32 s[32:33], 16, v1'])
st_att.add([('after', f'B_st{OPT["kvbar"]}'), ('call', lambda: E.wait_tags(['himp']))])
st_att.add([f"""s_add_u32 s86, {sGB}, {9 * 2048}
s_lshl_b32 s87, {sR}, 2
s_add_u32 s87, s87, {sS}
s_lshl_b32 s87, s87, 12
s_lshl_b32 s88, {sW}, 10
s_add_u32 s87, s87, s88
s_lshl_b32 s88, {sC}, 7
s_add_u32 s87, s87, s88
s_add_u32 s87, s87, {L.WS_GREM}
v_lshlrev_b32 v207, 3, v1
v_mov_b32 v205, 0x40000000
v_cndmask_b32 v207, v205, v207, s[32:33]"""])
KOP = TMP + 6
QOP = TMP + 18
RT = TMP + 26
SS = 196
PK = 210
SC = 0.2357022603955158 * 1.4426950408889634
import struct
fl = lambda x: '0x%08x' % struct.unpack('<I', struct.pack('<f', x))[0]
P_REG = {}
for hd in range(2):
    mo = 0 if hd == 0 else 40
    o = []
    for kb in range(3):
        a, ar, off = (AP, APR, 0) if kb == 0 else (A0, A0R, (kb - 1) * 16 * PITCH)
        o.append(f'ds_read_b64 v[{KOP + 4 * kb}:{KOP + 4 * kb + 1}], {a} offset:{off + 72 + mo}')
        o.append(f'ds_read_b64 v[{KOP + 4 * kb + 2}:{KOP + 4 * kb + 3}], {ar} offset:{off + 72 + 32}')
    for b in range(2):
        o.append(f'ds_read_b64 v[{QOP + 4 * b}:{QOP + 4 * b + 1}], {A0} offset:{b * 16 * PITCH + mo}')
        o.append(f'ds_read_b64 v[{RT + 2 * b}:{RT + 2 * b + 1}], {A0R} offset:{b * 16 * PITCH + 32}')
    o.append(('gap', 6))
    for b in range(2):
        o.append(f'v_cndmask_b32 v{QOP + 4 * b + 2 + hd}, 0, v{RT + 2 * b + hd}, s[32:33]')
        o.append(f'v_mov_b32 v{QOP + 4 * b + 3 - hd}, 0')
    o.append(('gap', 1))
    for b in range(2):
        for wh in range(2):
            kb = b + wh
            o.append(f'v_mfma_f32_16x16x32_bf16 v[{SS + 4 * wh}:{SS + 4 * wh + 3}], v[{KOP + 4 * kb}:{KOP + 4 * kb + 3}], v[{QOP + 4 * b}:{QOP + 4 * b + 3}], 0')
        o.append(('gap', 4))
        m, t1, t2 = 'v204', 'v205', 'v206'
        o.append(f'v_mov_b32 {t2}, 0xf149f2ca')
        for i in range(4):
            mk = MP0[i] if b == 0 else MP + 2 * i
            o.append(f'v_cndmask_b32 v{SS + i}, {t2}, v{SS + i}, s[{mk}:{mk + 1}]')
            o.append(f'v_cndmask_b32 v{SS + 4 + i}, {t2}, v{SS + 4 + i}, s[{MO + 2 * i}:{MO + 2 * i + 1}]')
        o += [f'v_max3_f32 {m}, v{SS}, v{SS + 1}, v{SS + 2}', f'v_max3_f32 {t1}, v{SS + 3}, v{SS + 4}, v{SS + 5}',
              f'v_max3_f32 {m}, {m}, v{SS + 6}, v{SS + 7}', f'v_max_f32 {m}, {m}, {t1}', f'v_mov_b32 {t1}, {m}', ('gap', 1),
              f'v_permlane16_swap_b32 {m}, {t1}', f'v_max_f32 {m}, {m}, {t1}', f'v_mov_b32 {t1}, {m}', ('gap', 1),
              f'v_permlane32_swap_b32 {m}, {t1}', f'v_max_f32 {m}, {m}, {t1}',
              f'v_mul_f32 {m}, {fl(-SC)}, {m}', f'v_mov_b32 {t2}, {fl(SC)}']
        for i in range(8):
            o.append(f'v_fma_f32 v{SS + i}, v{SS + i}, {t2}, {m}')
        for i in range(8):
            o.append(f'v_exp_f32 v{SS + i}, v{SS + i}')
        o += [f'v_add_f32 {m}, v{SS}, v{SS + 1}', f'v_add_f32 {t1}, v{SS + 2}, v{SS + 3}', f'v_add_f32 {t2}, v{SS + 4}, v{SS + 5}',
              f'v_add_f32 {m}, {m}, v{SS + 6}', f'v_add_f32 {t1}, {t1}, v{SS + 7}', f'v_add_f32 {m}, {m}, {t2}', f'v_add_f32 {m}, {m}, {t1}',
              f'v_mov_b32 {t1}, {m}', ('gap', 1),
              f'v_permlane16_swap_b32 {m}, {t1}', f'v_add_f32 {m}, {m}, {t1}', f'v_mov_b32 {t1}, {m}', ('gap', 1),
              f'v_permlane32_swap_b32 {m}, {t1}', f'v_add_f32 {m}, {m}, {t1}', f'v_rcp_f32 {m}, {m}', 'v_nop']
        for i in range(8):
            o.append(f'v_mul_f32 v{SS + i}, v{SS + i}, {m}')
        pr = PK + 4 * b
        for i in range(4):
            o.append(f'v_cvt_pk_bf16_f32 v{pr + i}, v{SS + 2 * i}, v{SS + 2 * i + 1}')
    vo = 8 * 18 + mo
    for kb in range(3):
        a, off = (VTP, 0) if kb == 0 else (VT, (kb - 1) * 16 * PITCH)
        o.append(f'ds_read_b64_tr_b16 v[{KOP + 2 * kb}:{KOP + 2 * kb + 1}], {a} offset:{off + vo}')
        o.append(f'ds_read_b64_tr_b16 v[{KOP + 6 + 2 * kb}:{KOP + 6 + 2 * kb + 1}], {a} offset:{off + 8 * 22}')
    if hd == 1:
        o.append(('mark', 'attrd0'))
    o.append(('gap', 6))
    for b in range(2):
        pr = PK + 4 * b
        o.append(f'v_mfma_f32_16x16x32_bf16 v[{SS + 4 * b}:{SS + 4 * b + 3}], v[{KOP + 2 * b}:{KOP + 2 * b + 3}], v[{pr}:{pr + 3}], 0')
        o.append(f'v_mfma_f32_16x16x32_bf16 v[{QOP + 4 * b}:{QOP + 4 * b + 3}], v[{KOP + 6 + 2 * b}:{KOP + 6 + 2 * b + 3}], v[{pr}:{pr + 3}], 0')
    if hd == 1:
        o.append(('mark', 'attrd'))
    o.append(('gap', 4))
    for b in range(2):
        o.append(f'v_cvt_pk_bf16_f32 v{RT + 2 * b}, v{SS + 4 * b}, v{SS + 4 * b + 1}')
        o.append(f'v_cvt_pk_bf16_f32 v{RT + 2 * b + 1}, v{SS + 4 * b + 2}, v{SS + 4 * b + 3}')
        o.append(f'v_cvt_pk_bf16_f32 v{RT + 4 + b}, v{QOP + 4 * b + 2 * hd}, v{QOP + 4 * b + 2 * hd + 1}')
    for b in range(2):
        o.append(Inst(f'buffer_store_dwordx2 v[{RT + 2 * b}:{RT + 2 * b + 1}], {vLANE16}, {srd(SRD_WS)}, s86 offen offset:{1024 * b + 8 * hd} sc1', tag='ost'))
        o.append(Inst(f'buffer_store_dword v{RT + 4 + b}, v207, {srd(SRD_WS)}, s87 offen offset:{512 * b + 4 * hd} sc1', tag='ost'))
    st_att.add(o)
st_att.add([('mark', 'odone')])

st_act = Stream('act')
GFL = f's_lshl_b32 s93, {sR}, 2\ns_add_u32 s93, s93, {sS}\ns_lshl_b32 s93, s93, 7\ns_add_u32 s93, s93, {L.WS_FLAG_G}\n'
st_act.add([('after', f'B_st{OPT["hpub"]}'),
            ('call', lambda: publish_flag(GFL + f's_lshl_b32 s92, {sC}, 3\ns_add_u32 s93, s93, s92', 'H')), ('gap', OPT['hgap'])])
st_act.add(poll_item(GFL + f'v_and_b32 {vPA}, 3, v1\nv_lshlrev_b32 {vPA}, 3, {vPA}\nv_add_u32 {vPA}, s93, {vPA}',
                     f'buffer_load_dwordx2 v[{vPF}:{vPF + 1}], {vPA}, {srd(SRD_WS)}, 0 offen sc1', 2, 'pfg', 40))
for k in range(1, 4):
    st_act.add([('after', 'q8_3_3'),
                f's_add_u32 s92, {sC}, {k}\ns_and_b32 s92, s92, 3\ns_sub_u32 s92, s92, {sC}\ns_mul_i32 s92, s92, {L.G_WG}\ns_add_u32 s92, s92, {sGB}'])
    for kk in range(9):
        idx = 9 * k + kk
        if idx - 9 >= 18:
            st_act.add([('after', 'kvw')])
        if kk % 2 == 0 and kk:
            st_act.add(['s_add_u32 s92, s92, 4096'])
        for b in range(2):
            st_act.add([f'buffer_load_dwordx4 {act_regs(idx, b)}, {vLANE16}, {srd(SRD_WS)}, s92 offen offset:{(kk % 2) * 2048 + 1024 * b} sc1'])
        st_act.add([('mark', f'act{idx}')])
st_act.add([('after', f'B_st{OPT["opub"]}'),
            ('call', lambda: publish_flag(GFL + f's_lshl_b32 s92, {sC}, 3\ns_add_u32 s93, s93, s92\ns_add_u32 s93, s93, 32', 'O')), ('gap', OPT['ogap'])])
st_act.add(poll_item(f'v_add_u32 {vPA}, 32, {vPA}',
                     f'buffer_load_dwordx2 v[{vPF}:{vPF + 1}], {vPA}, {srd(SRD_WS)}, 0 offen sc1', 2, 'pfo', 40))
for cc in range(4):
    idx = 36 + cc
    st_act.add([f's_sub_u32 s92, {cc}, {sC}\ns_mul_i32 s92, s92, {L.G_WG}\ns_add_u32 s92, s92, {sGB}\ns_add_u32 s92, s92, {9 * 2048}'])
    for b in range(2):
        st_act.add([f'buffer_load_dwordx4 {act_regs(idx, b)}, {vLANE16}, {srd(SRD_WS)}, s92 offen offset:{1024 * b} sc1'])
    st_act.add([('mark', f'act{idx}')])
rr = QA + 8 * (40 - 9 - 18)
st_act.add([f's_lshl_b32 s92, {sR}, 2\ns_add_u32 s92, s92, {sS}\ns_lshl_b32 s92, s92, 12\ns_lshl_b32 s93, {sW}, 10\ns_add_u32 s92, s92, s93\n'
            f's_add_u32 s92, s92, {L.WS_GREM}\nv_lshrrev_b32 {vPA}, 1, {vLANE16}'])
for b in range(2):
    st_act.add([f'buffer_load_dwordx2 a[{rr + 4 * b}:{rr + 4 * b + 1}], {vPA}, {srd(SRD_WS)}, s92 offen offset:{512 * b} sc1',
                f'v_accvgpr_write_b32 a{rr + 4 * b + 2}, 0', f'v_accvgpr_write_b32 a{rr + 4 * b + 3}, 0'])
st_act.add([('mark', 'act40')])

S = Sched(E, [st_dma, st_act, st_norm, st_rp, st_misc, st_epi, st_att])
S.run(ops, D=6, WB=3, budget=3.0)
stamp()
S.drain()
stamp()

E(f"""s_lshl_b32 s84, {sR}, 2
s_add_u32 s84, s84, {sC}
s_lshl_b32 s85, s84, 2
s_add_u32 s86, s85, {sW}
s_lshl_b32 s86, s86, 2
s_add_u32 s86, s86, {sS}
s_mul_i32 s86, s86, 18432
s_add_u32 s86, s86, {L.WS_PART}""")
for u in range(18):
    n, b = u // 2, u % 2
    if u % 4 == 0 and u:
        E('s_add_u32 s86, s86, 4096')
    E(f'buffer_store_dwordx4 {acc2(n, b)}, {vLANE16}, {srd(SRD_WS)}, s86 offen offset:{(u % 4) * 1024} sc1', tag='pst')
E(f"""v_lshrrev_b32 v16, 3, v0
v_and_b32 v17, 7, v0
v_mul_u32_u24 v18, 1152, v16
v_lshl_add_u32 v18, v17, 4, v18
s_lshl_b32 s87, {sR}, 2
s_add_u32 s87, s87, {sS}
s_mul_i32 s87, s87, 36864
s_mul_i32 s88, {sC}, 288
s_add_u32 s87, s87, s88
v_lshlrev_b32 v19, 4, v17
v_cmp_gt_u32 vcc, 2, v17
v_mov_b32 v20, 0x40000000
v_cndmask_b32 v21, v20, v18, vcc
v_cndmask_b32 v22, v20, v19, vcc""")
for k in range(3):
    E(f'buffer_load_dwordx4 v[{24 + 4 * k}:{27 + 4 * k}], {"v18" if k < 2 else "v21"}, {srd(SRD_X)}, s87 offen offset:{128 * k}')
    E(f'buffer_load_dwordx4 v[{36 + 4 * k}:{39 + 4 * k}], {"v19" if k < 2 else "v22"}, {srd(SRD_B)}, s88 offen offset:{128 * k}')
E.wait_tags(['pst'])
E('s_barrier')
stamp()
publish_flag(f's_lshl_b32 s93, s84, 7\ns_add_u32 s93, s93, {L.WS_FLAG_P}\ns_lshl_b32 s92, {sS}, 3\ns_add_u32 s93, s93, s92', 'P')
E(f's_lshl_b32 s93, s84, 7\ns_add_u32 s93, s93, {L.WS_FLAG_P}\nv_and_b32 {vPA}, 3, v1\nv_lshlrev_b32 {vPA}, 3, {vPA}\nv_add_u32 {vPA}, s93, {vPA}')
PL = f'buffer_load_dwordx2 v[{vPF}:{vPF + 1}], {vPA}, {srd(SRD_WS)}, 0 offen sc1'
E(PL, tag='pfp')
poll_check(PL, vPF, flags_cmp(vPF, 2), 'pfp')
stamp()
E(f"""s_add_u32 s86, s85, {sS}
s_mul_i32 s86, s86, {4 * 18432}
s_add_u32 s86, s86, {L.WS_PART}
s_lshl_b32 s89, {sW}, 10
s_add_u32 s86, s86, s89
s_cmp_ge_u32 {sW}, 2
s_cselect_b32 s90, 0x40000000, 0""")
RB = 64
for k in range(5):
    for src in range(4):
        E(f's_add_u32 s91, s86, {src * 18432 + k * 4096}')
        if k == 4:
            E('s_add_u32 s91, s91, s90')
        r = RB + 16 * k + 4 * src
        E(f'buffer_load_dwordx4 v[{r}:{r + 3}], {vLANE16}, {srd(SRD_WS)}, s91 offen sc1')
FP = 592
E(f"""v_and_b32 v48, 15, v1
v_mul_u32_u24 v48, {FP}, v48
v_lshrrev_b32 v49, 4, v1
v_lshl_add_u32 v48, v49, 4, v48
s_and_b32 s89, {sW}, 1
s_mul_i32 s89, s89, {16 * FP}
s_lshr_b32 s91, {sW}, 1
s_lshl_b32 s91, s91, 6
s_add_u32 s89, s89, s91
v_add_u32 v48, s89, v48
v_mul_u32_u24 v49, {FP}, v16
v_lshl_add_u32 v49, v17, 5, v49""")
for k in range(5):
    r = RB + 16 * k
    for d in range(4):
        E(f'v_add_f32 v{r + d}, v{r + d}, v{r + 4 + d}')
        E(f'v_add_f32 v{r + 8 + d}, v{r + 8 + d}, v{r + 12 + d}')
    for d in range(4):
        E(f'v_add_f32 v{r + d}, v{r + d}, v{r + 8 + d}')
    if k == 4:
        E(f's_cmp_ge_u32 {sW}, 2\ns_cselect_b32 s89, {32 * FP}, 0\nv_add_u32 v48, s89, v48')
    E(f'ds_write_b128 v48, v[{r}:{r + 3}] offset:{128 * k}')
E.wait_all(vm=False)
E('s_barrier')
for k in range(3):
    r = RB + 8 * k
    E(f'ds_read_b128 v[{r}:{r + 3}], v49 offset:{256 * k}')
    E(f'ds_read_b128 v[{r + 4}:{r + 7}], v49 offset:{256 * k + 16}')
for k in range(3):
    r = RB + 8 * k
    for d in range(4):
        xs, bs = 24 + 4 * k + d, 36 + 4 * k + d
        E(f"""v_lshlrev_b32 v50, 16, v{xs}
v_and_b32 v51, {vMASKHI}, v{xs}
v_lshlrev_b32 v52, 16, v{bs}
v_and_b32 v53, {vMASKHI}, v{bs}
v_add_f32 v50, v50, v52
v_add_f32 v51, v51, v53
v_add_f32 v{r + 2 * d}, v{r + 2 * d}, v50
v_add_f32 v{r + 2 * d + 1}, v{r + 2 * d + 1}, v51
v_cvt_pk_bf16_f32 v{96 + 4 * k + d}, v{r + 2 * d}, v{r + 2 * d + 1}""")
    E(f'buffer_store_dwordx4 v[{96 + 4 * k}:{99 + 4 * k}], {"v18" if k < 2 else "v21"}, {srd(SRD_OUT)}, s87 offen offset:{128 * k}')

if OPT['stamps']:
    stamp()
    E('s_waitcnt lgkmcnt(0)')
    E(f'v_writelane_b32 {vSTAMP}, s100, {nstamp[0] - 1}')
    E(f's_mov_b32 s84, {nstamp[0]}')
    E(f'v_writelane_b32 {vSTAMP}, s84, 63')
    E(f's_lshl_b32 s84, s2, 2\ns_add_u32 s84, s84, {sW}\ns_lshl_b32 s84, s84, 8\ns_add_u32 s84, s84, {L.WS_STAMP}')
    E('v_and_b32 v1, 63, v0\nv_lshlrev_b32 v1, 2, v1')
    E(f'buffer_store_dword {vSTAMP}, v1, {srd(SRD_WS)}, s84 offen')
E('L_END:')
E('s_endpgm')
for k, load_txt in slow_paths:
    E.raw(f'''L_PS{k}:
    s_add_u32 s99, s99, 1
    s_cmp_gt_u32 s99, 400000
    s_cbranch_scc1 L_PR{k}
    s_sleep 2
    {load_txt}
    s_waitcnt vmcnt(0)
    s_branch L_PC{k}''')
E.raw('L_CODE_END:')
E.raw(KD_FMT.format(name=KN, vgpr=512, sgpr=102, accum=256, kernarg=88))
open(OUT, 'w').write(E.text())
print('insts', E.ninst, 'nops', E.n_nop, 'waits', E.n_wait)
```

```python
import sys
import struct
sys.path.insert(0, 'gen')
from kgen import *
from sched import *
import layout as L

KN = 'parallel_sum__sliding_local_dilated__dense_activation_squared_relu__prompt_kernel'
OPT = dict(stamps=0, touch=1, late0=2, latek=3, rot=1, D=6, WB=3, bA=3.5, bQ=4.0, bB=3.0, bP=3.0,
           pubgap=40, pollgap=40, stouch=1, gtouch=1)
for a in sys.argv[2:]:
    k, v = a.split('=')
    OPT[k] = float(v) if '.' in v else int(v)
OUT = sys.argv[1]

E = Emitter()
slow_paths = []
fl = lambda x: '0x%08x' % struct.unpack('<I', struct.pack('<f', x))[0]
OOB = '0x40000000'

sW, sR, sS, sC, sJ = 's4', 's5', 's6', 's7', 's8'
P_X, P_WQKV, P_WO, P_W1, P_B1, P_W2, P_B2 = 16, 18, 20, 24, 26, 28, 30
P_OUT, P_DBG, P_WS = 32, 34, 36
SRD_X, SRD_W1, SRD_WS, SRD_RP, SRD_B, SRD_OUT, SRD_DBG, SRD_CODE = 40, 44, 48, 52, 56, 60, 64, 68
SRD_RQ = 68
SEG = 72
NONCE = 82
sSLQ, sSLW, sGF, sRPF, sCA, sCB = 's9', 's10', 's11', 's13', 's12', 's14'
sGB = 's15'
sW1B = 's38'
sTW = 's39'
tD0, tD1 = 's84', 's85'
tA0, tA1, tA2, tA3 = 's86', 's87', 's88', 's89'
tR0, tR1, tR2, tR3 = 's90', 's91', 's95', 's96'
tC0, tC1 = 's92', 's93'
tE0 = 's94'
tM0, tM1 = 's97', 's98'


def srd(n):
    return f's[{n}:{n + 3}]'


XN = 16
FR = 160
NF = 9
VDA = 196
VDB = 201
vTA = 'v205'
VTB = 4
vRL = 'v206'
vF0 = 'v207'
vTCH = 'v208'
vLANE16 = 'v209'
vB1A = 'v210'
vRSTD, vNMR = 'v211', 'v212'
BONE = 214
TMP = 218
vMASKHI = 'v254'
vSTAMP = 'v255'
vNON = 12
vPF = 8
vPA = 'v15'

RING = [0, 40960, 81920]
AUX = 122880
MISC = AUX + 36864
LDS_B1 = MISC
LDS_TOTAL = 163840
QB = AUX
QB1 = QB + 4096
PITCH = 240

nstamp = [0]


def stamp():
    if not OPT['stamps']:
        return
    k = nstamp[0]
    if k > 0:
        E(f'v_writelane_b32 {vSTAMP}, s100, {k - 1}')
    E('s_memtime s[100:101]')
    nstamp[0] += 1


def mk_srd(n, p, size):
    E(f's_mov_b32 s{n}, s{p}\ns_mov_b32 s{n + 1}, s{p + 1}\ns_mov_b32 s{n + 2}, {size}\ns_mov_b32 s{n + 3}, 0x20000')


def emit_all(lst):
    for x in lst:
        if isinstance(x, str):
            E(x)
        else:
            E.emit(x)


hdr = open('parallel_sum__sliding_local_dilated__dense_activation_squared_relu__prompt.s.ref').read()
hdr = [l for l in hdr.split('\n') if l.startswith(';') and '@launch' not in l and 'Override' not in l and 'grid=ceil' not in l]
E.raw('\n'.join(hdr))
E.raw(f'; @launch grid=(256,1,1) block=(256,1,1) lds={LDS_TOTAL}')
E.raw(f'.amdgcn_target "amdgcn-amd-amdhsa--gfx950"\n.text\n.globl {KN}\n.p2align 8\n.type {KN},@function\n{KN}:')

E('s_cmp_ge_u32 s2, 256\ns_cbranch_scc1 L_END')
stamp()
E('s_load_dwordx16 s[16:31], s[0:1], 0')
E('s_load_dwordx4 s[32:35], s[0:1], 64')
E('s_load_dwordx2 s[36:37], s[0:1], 80')
E(f's_memrealtime s[{NONCE}:{NONCE + 1}]')
E('s_mov_b32 s99, 0')
E(f's_getpc_b64 s[{SRD_CODE}:{SRD_CODE + 1}]')
E('L_PCREF:')
E(f's_mov_b32 s{SRD_CODE + 2}, L_CODE_END-L_PCREF\ns_mov_b32 s{SRD_CODE + 3}, 0x20000')
E('v_lshlrev_b32 v2, 7, v0')
E('s_lshr_b32 s3, s2, 3\ns_and_b32 s3, s3, 1\ns_lshl_b32 s3, s3, 15')
E(f'buffer_load_dword v250, v2, {srd(SRD_CODE)}, s3 offen')
E('v_lshrrev_b32 v1, 6, v0')
E(f'v_readfirstlane_b32 {sW}, v1')
E('v_and_b32 v1, 63, v0')
E(f'''s_and_b32 s84, s2, 7
s_lshr_b32 s85, s2, 3
s_lshr_b32 {sS}, s84, 1
s_and_b32 {sC}, s85, 3
s_and_b32 s84, s84, 1
s_lshl_b32 s84, s84, 3
s_lshr_b32 s85, s85, 2
s_add_u32 {sR}, s84, s85
s_lshl_b32 {sJ}, {sS}, 2
s_add_u32 {sJ}, {sJ}, {sC}
s_lshl_b32 s86, {sC}, 1''')
if not OPT['rot']:
    E('s_mov_b32 s86, 0')
for q in range(9):
    E(f's_add_u32 s{SEG + q}, s86, {q}\ns_cmp_ge_u32 s{SEG + q}, 9\ns_cselect_b32 s87, 9, 0\ns_sub_u32 s{SEG + q}, s{SEG + q}, s87')
E('''v_bfe_u32 v2, v1, 2, 3
v_mul_u32_u24 v2, 4608, v2
v_lshrrev_b32 v3, 5, v1
v_lshl_add_u32 v2, v3, 6, v2
v_and_b32 v3, 3, v1
v_lshl_add_u32 v2, v3, 4, v2''')
E(f's_lshl_b32 s84, {sR}, 2\ns_add_u32 s84, s84, {sW}\ns_mul_i32 s84, s84, 36864')
E('s_waitcnt lgkmcnt(0)')
mk_srd(SRD_X, P_X, 2359296)
mk_srd(SRD_DBG, P_DBG, 256)
E(f's_or_b32 s85, s2, {sW}\ns_cmp_lg_u32 s85, 0\ns_cbranch_scc1 L_NONONCE')
E(f's_or_b32 s{NONCE}, s{NONCE}, 1')
E(f'v_mov_b32 v4, s{NONCE}\nv_mov_b32 v5, s{NONCE + 1}\nv_mov_b32 v6, 0')
E('s_mov_b64 exec, 1')
E.raw(f'    buffer_store_dwordx2 v[4:5], v6, {srd(SRD_DBG)}, 0 offen sc1')
E('s_mov_b64 exec, -1')
E('L_NONONCE:')
for q in range(9):
    E(f's_lshl_b32 s85, s{SEG + q}, 7\ns_add_u32 s85, s85, s84')
    for i in range(4):
        r = XN + 16 * q + 4 * i
        E(f'buffer_load_dwordx4 v[{r}:{r + 3}], v2, {srd(SRD_X)}, s85 offen offset:{1152 * i}', tag=f'x{q}')
mk_srd(SRD_W1, P_W1, 5308416)
mk_srd(SRD_WS, P_WS, 0x10000000)
mk_srd(SRD_B, P_B1, 9216)
mk_srd(SRD_OUT, P_OUT, 2359296)
mk_srd(SRD_RQ, P_WQKV, 1990656)
for i in range(5):
    E(f'''v_add_u32 v4, {64 * i}, v1
v_mul_u32_u24 v5, 3277, v4
v_lshrrev_b32 v5, 16, v5
v_mul_u32_u24 v6, 20, v5
v_sub_u32 v6, v4, v6
v_mul_u32_u24 v5, 9216, v5
v_lshl_add_u32 v{VDA + i}, v6, 4, v5''')
    if i % 4:
        E(f'v_subrev_u32 v{VDA + i}, {(i % 4) * 1024}, v{VDA + i}')
E(f'v_lshlrev_b32 {vLANE16}, 4, v1')
E(f'''s_mul_i32 {sW1B}, {sJ}, 576
s_and_b32 s84, {sJ}, 1
s_cmp_eq_u32 s84, 0
s_cselect_b32 {sCA}, 256, 0
s_cselect_b32 {sCB}, 0, 320''')


def seg_sel(u, dst):
    if u < 4:
        return [f's_cmp_ge_u32 {sW}, 2', f's_cselect_b32 {dst}, s{SEG + 2 * u + 1}, s{SEG + 2 * u}']
    return [f's_mov_b32 {dst}, s{SEG + 8}']


def dma_a(u):
    g = u
    base = RING[g % 3]
    out = seg_sel(u, tD0) + [f's_lshl_b32 {tD0}, {tD0}, 6']
    if u < 4:
        out += [f's_and_b32 {tD1}, {sW}, 1', f's_lshl_b32 {tD1}, {tD1}, 5', f's_add_u32 {tD0}, {tD0}, {tD1}', f's_mul_i32 {tD1}, {sW}, 10240']
        ngr = 2
    else:
        out += [f's_lshl_b32 {tD1}, {sW}, 4', f's_add_u32 {tD0}, {tD0}, {tD1}', f's_mul_i32 {tD1}, {sW}, 5120']
        ngr = 1
    out += [f's_mul_i32 {tD0}, {tD0}, 9216', f's_add_u32 {tD0}, {tD0}, {sW1B}', f's_add_u32 {tD0}, {tD0}, {sCA}']
    for gr in range(ngr):
        if gr:
            out.append(f's_add_u32 {tD0}, {tD0}, {16 * 9216}')
        for i in range(5):
            if i % 4 == 0:
                out.append(f's_add_u32 m0, {tD1}, {base + gr * 5120 + i * 1024}')
            out.append(Inst(f'buffer_load_dwordx4 v{VDA + i}, {srd(SRD_W1)}, {tD0} offen offset:{(i % 4) * 1024} lds', tag=f'st{g}'))
    return out


def dma_b(u):
    g = 10 + u
    base = RING[g % 3]
    out = seg_sel(u, tD0) + [f's_lshl_b32 {tD0}, {tD0}, 6']
    if u < 4:
        out += [f's_and_b32 {tD1}, {sW}, 1', f's_lshl_b32 {tD1}, {tD1}, 5', f's_add_u32 {tD0}, {tD0}, {tD1}', f's_lshl_b32 {tD1}, {sW}, 13']
        ngr = 2
    else:
        out += [f's_lshl_b32 {tD1}, {sW}, 4', f's_add_u32 {tD0}, {tD0}, {tD1}', f's_lshl_b32 {tD1}, {sW}, 12']
        ngr = 1
    out += [f's_mul_i32 {tD0}, {tD0}, 9216', f's_add_u32 {tD0}, {tD0}, {sW1B}', f's_add_u32 {tD0}, {tD0}, {sCB}']
    for gr in range(ngr):
        if gr:
            out.append(f's_add_u32 {tD0}, {tD0}, {16 * 9216}')
        out.append(f's_add_u32 m0, {tD1}, {base + gr * 4096}')
        for i in range(4):
            out.append(Inst(f'buffer_load_dwordx4 v{VDB + i}, {srd(SRD_W1)}, {tD0} offen offset:{i * 1024} lds', tag=f'st{g}'))
    return out


def dma_lin(g, setup, npc):
    out = list(setup)
    for i in range(npc):
        if i % 4 == 0:
            out.append(f's_add_u32 m0, {tD1}, {RING[g % 3] + i * 1024}')
            if i:
                out.append(f's_add_u32 {tD0}, {tD0}, 4096')
        out.append(Inst(f'buffer_load_dwordx4 {vLANE16}, {srd(SRD_WS)}, {tD0} offen offset:{(i % 4) * 1024} sc1 lds', tag=f'st{g}'))
    return out


def dma_q(u):
    s = seg_sel(u, tD0) + [f's_lshl_b32 {tD0}, {tD0}, 14']
    if u < 4:
        s += [f's_and_b32 {tD1}, {sW}, 1', f's_lshl_b32 {tD1}, {tD1}, 13', f's_add_u32 {tD0}, {tD0}, {tD1}', f's_lshl_b32 {tD1}, {sW}, 13']
    else:
        s += [f's_lshl_b32 {tD1}, {sW}, 12', f's_add_u32 {tD0}, {tD0}, {tD1}']
    s.append(f's_add_u32 {tD0}, {tD0}, {sSLQ}')
    return dma_lin(5 + u, s, 8 if u < 4 else 4)


RUNS = [('A', 0, 0, 5), ('A', 1, 5, 5), ('A', 2, 10, 5), ('A', 3, 15, 5), ('O', 0, 20, 5),
        ('B', 0, 25, 4), ('B', 1, 29, 4), ('B', 2, 33, 4), ('B', 3, 37, 4)]


def dma_p(p):
    kind, k, i0, nk = RUNS[p]
    g = 15 + p
    npc = 9 if nk == 5 else 7
    s = [f's_mul_i32 {tD1}, {sW}, {npc * 1024}']
    if kind == 'O':
        s += [f's_add_u32 {tD0}, {tD1}, {36 * 7168}']
    else:
        s += [f's_add_u32 {tD0}, {sC}, {k}', f's_and_b32 {tD0}, {tD0}, 3', f's_mul_i32 {tD0}, {tD0}, {9 * 7168}',
              f's_add_u32 {tD0}, {tD0}, {tD1}']
        if kind == 'B':
            s.append(f's_add_u32 {tD0}, {tD0}, {5 * 7168}')
    s.append(f's_add_u32 {tD0}, {tD0}, {sSLW}')
    return dma_lin(g, s, npc)


def dma_c(u):
    g = 24 + u
    if u < 2:
        s = [f's_lshr_b32 {tD0}, {sW}, 1', f's_add_u32 {tD0}, {tD0}, {sC}', f's_add_u32 {tD0}, {tD0}, {2 * u}', f's_and_b32 {tD0}, {tD0}, 3',
             f's_mul_i32 {tD0}, {tD0}, 18432', f's_and_b32 {tD1}, {sW}, 1', f's_mul_i32 {tD1}, {tD1}, 9216', f's_add_u32 {tD0}, {tD0}, {tD1}',
             f's_mul_i32 {tD1}, {sW}, 9216']
        npc = 9
    else:
        s = [f's_mul_i32 {tD1}, {sW}, 3072', f's_add_u32 {tD0}, {tD1}, {36 * 2048}']
        npc = 3
    s += [f's_add_u32 {tD0}, {tD0}, {sSLW}', f's_add_u32 {tD0}, {tD0}, {L.SLABW_OWN}']
    return dma_lin(g, s, npc)


E(f's_mov_b32 m0, {LDS_B1}')
E(f'buffer_load_dwordx4 {vLANE16}, {srd(SRD_B)}, {sW1B} offen lds', tag='b1')
mk_srd(SRD_B, P_B2, 1152)
emit_all(dma_a(0))
late = []
E(f'''s_sub_u32 {tR0}, s2, 164
s_mul_i32 {tR1}, {tR0}, {8 * 3456}
s_mul_i32 {tR2}, {sW}, 6912
s_add_u32 {tR1}, {tR1}, {tR2}
s_cmp_lt_u32 {tR0}, 72
s_cselect_b32 {tR1}, {tR1}, {OOB}''')
for i in range(7):
    if i % 4 == 0:
        late += [f's_add_u32 m0, {tR2}, {AUX + i * 1024}', f's_add_u32 {tR3}, {tR1}, {i * 1024}']
    late.append(Inst(f'buffer_load_dwordx4 {vLANE16}, {srd(SRD_RQ)}, {tR3} offen offset:{(i % 4) * 1024} lds', tag='rp1'))
late += dma_a(1)
E(f'''s_mov_b32 s{SRD_RP}, s{P_W2}
s_mov_b32 s{SRD_RP + 1}, s{P_W2 + 1}
s_mov_b32 s{SRD_RP + 2}, 5308416
s_mov_b32 s{SRD_RP + 3}, 0x20000
s_cmp_lt_u32 s2, 144
s_cbranch_scc1 L_RPS
s_mov_b32 s{SRD_RP}, s{P_WO}
s_mov_b32 s{SRD_RP + 1}, s{P_WO + 1}
s_mov_b32 s{SRD_RP + 2}, 663552
L_RPS:''')
if OPT['touch']:
    E(f'''v_mul_u32_u24 v4, 52, v1
v_lshrrev_b32 v4, 8, v4
v_mul_u32_u24 v5, 5, v4
v_sub_u32 v5, v1, v5
v_mul_u32_u24 v4, 9216, v4
v_lshl_add_u32 v4, v5, 7, v4
v_cmp_gt_u32 vcc, 40, v1
v_mov_b32 v5, {OOB}
v_cndmask_b32 v15, v5, v4, vcc
s_and_b32 s84, {sR}, 7
s_mul_i32 s84, s84, {8 * 9216}
s_andn2_b32 s85, {sW1B}, 127
s_add_u32 s84, s84, s85''')
    for k, (q0, dst) in enumerate(((4, tM0), (0, tM1))):
        E(f's_add_u32 s85, s{SEG + q0}, {sW}\ns_cmp_ge_u32 s85, 9\ns_cselect_b32 s86, 9, 0\ns_sub_u32 s85, s85, s86')
        E(f's_mul_i32 s85, s85, {64 * 9216}\ns_add_u32 {dst}, s85, s84')
    E(f's_mul_i32 s85, s{SEG + 8}, {64 * 9216}\ns_add_u32 {tE0}, s85, s84')
    late.append(Inst(f'buffer_load_dword v251, v15, {srd(SRD_W1)}, {tM0} offen'))
    late.append(Inst(f'buffer_load_dword v252, v15, {srd(SRD_W1)}, {tE0} offen'))
    late.append(Inst(f'buffer_load_dword v253, v15, {srd(SRD_W1)}, {tM1} offen'))
E('v_mov_b32 v14, 0')
NONL = f'buffer_load_dwordx2 v[{vNON}:{vNON + 1}], v14, {srd(SRD_DBG)}, 0 offen sc1'
late.append(Inst(NONL, tag='nonce'))

E(f'''v_lshrrev_b32 v8, 5, v1
v_lshlrev_b32 v8, 5, v8
v_bfe_u32 v9, v1, 2, 2
v_add_u32 v8, v8, v9
v_mul_u32_u24 v8, 320, v8
v_bfe_u32 v9, v1, 4, 1
v_lshlrev_b32 v9, 5, v9
v_and_b32 v10, 3, v1
v_lshl_add_u32 v9, v10, 3, v9
v_add_u32 {vTA}, v8, v9
v_add_u32 {vB1A}, {LDS_B1}, v9
v_add_u32 {vB1A}, {sCA}, {vB1A}
v_mov_b32 {vMASKHI}, 0xffff0000
v_lshlrev_b32 {vTCH}, 7, v1
v_cmp_eq_u32 vcc, 0, v1
v_mov_b32 v8, {OOB}
v_cndmask_b32 {vF0}, v8, v14, vcc
v_cmp_gt_u32 vcc, 32, v1
v_mov_b32 v8, 0x3f80
v_cndmask_b32 v{BONE}, 0, v8, vcc
v_mov_b32 v{BONE + 1}, 0
v_mov_b32 v{BONE + 2}, 0
v_mov_b32 v{BONE + 3}, 0''')
E(f's_lshl_b32 s84, {sR}, 4\ns_add_u32 s84, s84, {sJ}\ns_lshl_b32 s84, s84, 2\ns_add_u32 s84, s84, {sW}')
E(f's_mul_i32 {sGB}, s84, {L.G_WAVE}\ns_add_u32 {sGB}, {sGB}, {L.WS_G}')
E(f's_mul_i32 {sSLQ}, {sJ}, {L.SLABQ_SZ}\ns_add_u32 {sSLQ}, {sSLQ}, {L.WS_SLABQ}')
E(f's_mul_i32 {sSLW}, {sJ}, {L.SLABW_SZ}\ns_add_u32 {sSLW}, {sSLW}, {L.WS_SLABW}')
E(f's_lshl_b32 {sGF}, {sR}, 2\ns_add_u32 {sGF}, {sGF}, {sS}\ns_lshl_b32 {sGF}, {sGF}, 2\ns_add_u32 {sGF}, {sGF}, {sW}\n'
  f's_lshl_b32 {sGF}, {sGF}, 7\ns_add_u32 {sGF}, {sGF}, {L.WS_FLAG_G}')
stamp()

T = TMP
vS0, vS1, vQ0, vQ1, vONES = 'v4', 'v5', 'v6', 'v7', 'v11'
E(f'v_mov_b32 {vS0}, 0\nv_mov_b32 {vS1}, 0\nv_mov_b32 {vQ0}, 0\nv_mov_b32 {vQ1}, 0\nv_mov_b32 {vONES}, 0x3f803f80')
X1 = 'quad_perm:[1,0,3,2] row_mask:0xf bank_mask:0xf'
X2 = 'quad_perm:[2,3,0,1] row_mask:0xf bank_mask:0xf'


def setvcc(m):
    return [f's_mov_b32 vcc_lo, {m}', f's_mov_b32 vcc_hi, {m}']


def transpose_seg(q):
    R = lambda i, d: f'v{XN + 16 * q + 4 * i + d}'
    Tm = lambda i, d: f'v{T + 4 * i + d}'
    o = []
    o += setvcc('0x55555555')
    for i0 in (0, 2):
        for d in range(4):
            o.append(f'v_cndmask_b32_dpp {Tm(i0, d)}, {R(i0 + 1, d)}, {R(i0, d)}, vcc {X1}')
    o += setvcc('0xaaaaaaaa')
    for i0 in (0, 2):
        for d in range(4):
            o.append(f'v_cndmask_b32_dpp {Tm(i0 + 1, d)}, {R(i0, d)}, {R(i0 + 1, d)}, vcc {X1}')
    o += setvcc('0x33333333')
    for i0 in (0, 1):
        for d in range(4):
            o.append(f'v_cndmask_b32_dpp {R(i0, d)}, {Tm(i0 + 2, d)}, {Tm(i0, d)}, vcc {X2}')
    o += setvcc('0xcccccccc')
    for i0 in (0, 1):
        for d in range(4):
            o.append(f'v_cndmask_b32_dpp {R(i0 + 2, d)}, {Tm(i0, d)}, {Tm(i0 + 2, d)}, vcc {X2}')
    return o


def stats_seg(q):
    o = []
    for e in range(16):
        r = f'v{XN + 16 * q + e}'
        s = (vS0, vS1)[e & 1]
        qq = (vQ0, vQ1)[e & 1]
        o.append(f'v_dot2_f32_bf16 {s}, {r}, {vONES}, {s}')
        o.append(f'v_dot2_f32_bf16 {qq}, {r}, {r}, {qq}')
    return o


for q in range(10):
    tr = transpose_seg(q) if q < 9 else []
    st = stats_seg(q - 1) if q > 0 else ['v_nop'] * 32
    k = 0
    for x in tr:
        E(x)
        if x.startswith('v_') and k < len(st):
            E(st[k])
            k += 1
    for x in st[k:]:
        E(x)
    if q >= OPT['late0']:
        n = 0
        while late and (n < OPT['latek'] or q == 9):
            x = late.pop(0)
            emit_all([x])
            if isinstance(x, Inst):
                n += 1
    if OPT['stamps'] > 1 and q in (0, 4, 8):
        stamp()
E(f'''v_add_f32 {vS0}, {vS0}, {vS1}
v_add_f32 {vQ0}, {vQ0}, {vQ1}
v_mov_b32 {vS1}, {vS0}
v_mov_b32 {vQ1}, {vQ0}
v_permlane32_swap_b32 {vS0}, {vS1}
v_permlane32_swap_b32 {vQ0}, {vQ1}
v_add_f32 {vS0}, {vS0}, {vS1}
v_add_f32 {vQ0}, {vQ0}, {vQ1}
v_mul_f32 {vS0}, 0x3ae38e39, {vS0}
v_mul_f32 {vQ0}, 0x3ae38e39, {vQ0}
v_fma_f32 {vQ0}, -{vS0}, {vS0}, {vQ0}
v_max_f32 {vQ0}, 0, {vQ0}
v_cvt_pk_bf16_f32 {vS1}, {vS0}, {vQ0}
v_lshlrev_b32 {vS0}, 16, {vS1}
v_and_b32 {vQ0}, {vMASKHI}, {vS1}
v_add_f32 {vQ0}, 0x3727c5ac, {vQ0}
v_cvt_pk_bf16_f32 {vQ0}, {vQ0}, {vQ0}
v_lshlrev_b32 {vQ0}, 16, {vQ0}
v_sqrt_f32 {vQ0}, {vQ0}
v_cvt_pk_bf16_f32 {vQ0}, {vQ0}, {vQ0}
v_lshlrev_b32 {vQ0}, 16, {vQ0}
v_rcp_f32 {vRSTD}, {vQ0}
v_mul_f32 {vNMR}, {vS0}, {vRSTD}
v_sub_f32 {vNMR}, 0, {vNMR}''')


def norm_seg(q):
    o = []
    for e0 in range(0, 16, 2):
        seq = []
        for e in (e0, e0 + 1):
            r = f'v{XN + 16 * q + e}'
            a, b = f'v{T + 2 * (e % 4)}', f'v{T + 2 * (e % 4) + 1}'
            seq.append([f'v_lshlrev_b32 {a}, 16, {r}', f'v_and_b32 {b}, {vMASKHI}, {r}',
                        f'v_fma_f32 {a}, {a}, {vRSTD}, {vNMR}', f'v_fma_f32 {b}, {b}, {vRSTD}, {vNMR}',
                        f'v_cvt_pk_bf16_f32 {r}, {a}, {b}'])
        for k in range(5):
            o += [seq[0][k], seq[1][k]]
        if e0 % 4 == 2:
            o.append(('mark', f'n{q}_{e0 // 4}'))
    return o


stamp()

fragi = [0]


def newfrag():
    f = FR + 4 * (fragi[0] % NF)
    fragi[0] += 1
    return f


BAR_TAGS = {0: ['b1', 'rp1'], 2: ['rp1st'], 4: ['rp2'], 7: ['rp2st'], 11: ['kvw']}
BAR_MARKS = {1: ['rp1done'], 2: [], 3: [], 4: ['rp2dma'], 6: ['rp2done'], 11: ['kvw']}


def barrier(g, post=()):
    def f():
        E.wait_tags([f'st{g}'] + BAR_TAGS.get(g, []))
        E('s_barrier')
        if OPT['stamps'] > 1:
            stamp()
        S.marks.add(f'B{g}')
        emit_all(post)
    return f


def prereq(g):
    return ([f'dma{g}'] if g >= 2 else []) + BAR_MARKS.get(g, [])


ops = []
for lam in range(5):
    f = newfrag()
    ops.append(Op([f'ds_read_b64_tr_b16 v[{f}:{f + 1}], {vB1A} offset:{64 * lam}',
                   f'ds_read_b64_tr_b16 v[{f + 2}:{f + 3}], {vB1A} offset:{64 * lam}'],
                  [f'v_mfma_f32_32x32x16_bf16 a[{16 * lam}:{16 * lam + 15}], v[{f}:{f + 3}], v[{BONE}:{BONE + 3}], 0'],
                  pre=barrier(0) if lam == 0 else None, budget=5))
for q in range(9):
    u, sg = q // 2, q % 2
    g = u
    order = [(jj, n) for jj in range(4) for n in range(5)] if q < 8 else [(jj, n) for n in range(5) for jj in range(4)]
    for k, (jj, n) in enumerate(order):
        f = newfrag()
        off = sg * 20480 + 8 * jj * 320 + 64 * n
        x = XN + 16 * q + 4 * jj
        first = (k == 0 and sg == 0 and g > 0)
        d = RING[g % 3] - RING[(g - 1) % 3]
        post = [f'v_add_u32 {vTA}, {d}, {vTA}' if d > 0 else f'v_subrev_u32 {vTA}, {-d}, {vTA}']
        ops.append(Op([f'ds_read_b64_tr_b16 v[{f}:{f + 1}], {vTA} offset:{off}',
                       f'ds_read_b64_tr_b16 v[{f + 2}:{f + 3}], {vTA} offset:{off + 4 * 320}'],
                      [f'v_mfma_f32_32x32x16_bf16 a[{16 * n}:{16 * n + 15}], v[{f}:{f + 3}], v[{x}:{x + 3}], a[{16 * n}:{16 * n + 15}]'],
                      name=f'f{q}_{jj}_{n}', pre=barrier(g, post) if first else None, requires=[f'n{q}_{jj}'],
                      pre_requires=prereq(g) if first else [], budget=OPT['bA']))
QA = 144
for q in range(9):
    u, sg = q // 2, q % 2
    g = 5 + u
    order = [(jj, t4) for jj in range(4) for t4 in range(4)] if q < 8 else [(jj, t4) for t4 in range(4) for jj in range(4)]
    for k, (jj, t4) in enumerate(order):
        f = newfrag()
        x = XN + 16 * q + 4 * jj
        acc = f'a[{QA + 16 * t4}:{QA + 16 * t4 + 15}]'
        first = (k == 0 and sg == 0)
        post = [f'v_add_u32 {vRL}, {RING[g % 3]}, {vLANE16}']
        ops.append(Op([f'ds_read_b128 v[{f}:{f + 3}], {vRL} offset:{(sg * 16 + jj * 4 + t4) * 1024}'],
                      [f'v_mfma_f32_32x32x16_bf16 {acc}, v[{f}:{f + 3}], v[{x}:{x + 3}], {"0" if (q == 0 and jj == 0) else acc}'],
                      name=f'q{q}_{jj}_{t4}', pre=barrier(g, post) if first else None,
                      pre_requires=prereq(g) if first else [], budget=OPT['bQ']))
for t in range(4):
    f = newfrag()
    lam = 5 + t
    ops.append(Op([f'ds_read_b64_tr_b16 v[{f}:{f + 1}], {vB1A} offset:{64 * t}',
                   f'ds_read_b64_tr_b16 v[{f + 2}:{f + 3}], {vB1A} offset:{64 * t}'],
                  [f'v_mfma_f32_32x32x16_bf16 a[{16 * lam}:{16 * lam + 15}], v[{f}:{f + 3}], v[{BONE}:{BONE + 3}], 0'],
                  pre_requires=['bsetup'] if t == 0 else [], name=f'bias{lam}', budget=OPT['bB']))
for q in range(9):
    u, sg = q // 2, q % 2
    g = 10 + u
    order = [(jj, n) for jj in range(4) for n in range(4)] if q < 8 else [(jj, n) for n in range(4) for jj in range(4)]
    for k, (jj, t) in enumerate(order):
        f = newfrag()
        lam = 5 + t
        off = sg * 16384 + 8 * jj * 256
        x = XN + 16 * q + 4 * jj
        first = (k == 0 and sg == 0)
        post = []
        if u > 0:
            d = RING[g % 3] - RING[(g - 1) % 3]
            post = [(f'v_add_u32 v{VTB + i}, {d}, v{VTB + i}' if d > 0 else f'v_subrev_u32 v{VTB + i}, {-d}, v{VTB + i}') for i in range(4)]
        ops.append(Op([f'ds_read_b64_tr_b16 v[{f}:{f + 1}], v{VTB + t} offset:{off}',
                       f'ds_read_b64_tr_b16 v[{f + 2}:{f + 3}], v{VTB + t} offset:{off + 4 * 256}'],
                      [f'v_mfma_f32_32x32x16_bf16 a[{16 * lam}:{16 * lam + 15}], v[{f}:{f + 3}], v[{x}:{x + 3}], a[{16 * lam}:{16 * lam + 15}]'],
                      name=f'f{q}_{jj}_{lam}', pre=barrier(g, post) if first else None,
                      pre_requires=prereq(g) if first else [], budget=OPT['bB']))


def own_lam(idx):
    if idx < 5:
        return idx
    if 25 <= idx < 29:
        return idx - 20
    return None


foreign = [i for i in range(41) if own_lam(i) is None]
ACT = {}
for k, idx in enumerate(foreign):
    if k < 12:
        ACT[idx] = ('a', QA + 8 * k)
    elif k < 30:
        ACT[idx] = ('v', XN + 8 * (k - 12))
    else:
        ACT[idx] = ('a', 16 * (7 + k - 30) + 8)
for idx in range(41):
    if own_lam(idx) is not None:
        ACT[idx] = ('a', 16 * own_lam(idx))


def act_regs(idx, b):
    k, r = ACT[idx]
    return f'{k}[{r + 4 * b}:{r + 4 * b + 3}]'


ACC2 = [16 * i + 8 for i in range(5)] + [240, 248] + [16 * 5 + 8, 16 * 6 + 8]


def acc2(n, b):
    r = ACC2[n] + 4 * b
    return f'a[{r}:{r + 3}]'


def act_req(idx):
    return [f'h{own_lam(idx)}'] if own_lam(idx) is not None else [f'act{idx}']


for p, (kind, k, i0, nk) in enumerate(RUNS):
    g = 15 + p
    for kk in range(nk):
        idx = i0 + kk
        for n in range(7):
            f = newfrag()
            first = (kk == 0 and n == 0)
            post = [f'v_add_u32 {vRL}, {RING[g % 3]}, {vLANE16}']
            req = act_req(idx) + (['h4', 'kvw'] if idx == 0 else [])
            ops.append(Op([f'ds_read_b128 v[{f}:{f + 3}], {vRL} offset:{(kk * 7 + n) * 1024}'],
                          [f'v_mfma_f32_16x16x32_bf16 {acc2(n, b)}, v[{f}:{f + 3}], {act_regs(idx, b)}, {"0" if idx == 0 else acc2(n, b)}'
                           for b in range(2)],
                          name=f'p{idx}_{n}', pre=barrier(g, post) if first else None,
                          pre_requires=prereq(g) if first else [], requires=req, budget=OPT['bP']))
cseq = []
for u in range(2):
    for k in (2 * u, 2 * u + 1):
        for lam in range(9):
            idx = (5 * k + lam) if lam < 5 else (25 + 4 * k + lam - 5)
            cseq.append((24 + u, ((k & 1) * 9 + lam) * 2, idx))
for kk in range(5):
    cseq.append((26, kk * 2, 20 + kk))
prev_g = None
for ci, (g, pos, idx) in enumerate(cseq):
    for t in range(2):
        f = newfrag()
        first = (g != prev_g)
        prev_g = g
        post = [f'v_add_u32 {vRL}, {RING[g % 3]}, {vLANE16}']
        ops.append(Op([f'ds_read_b128 v[{f}:{f + 3}], {vRL} offset:{(pos + t) * 1024}'],
                      [f'v_mfma_f32_16x16x32_bf16 {acc2(7 + t, b)}, v[{f}:{f + 3}], {act_regs(idx, b)}, {acc2(7 + t, b)}' for b in range(2)],
                      name=f'c{ci}_{t}', pre=barrier(g, post) if first else None,
                      pre_requires=prereq(g) if first else [], requires=['owninit'] if ci == 0 else [], budget=OPT['bP']))

npoll = [0]


def poll_check(load_txt, cmp_lines, tag):
    k = npoll[0]
    npoll[0] += 1
    E.wait_tags([tag])
    E(f'L_PC{k}:')
    E(cmp_lines)
    E(f's_cbranch_vccnz L_PS{k}')
    E(f'L_PR{k}:')
    slow_paths.append((k, load_txt))


def flags_cmp(v, n):
    o = []
    for d in range(n):
        o.append(f'v_xor_b32 v{v + d}, s{NONCE + (d & 1)}, v{v + d}')
    if n == 2:
        o.append(f'v_or_b32 v{v}, v{v}, v{v + 1}')
    else:
        o.append(f'v_or3_b32 v{v}, v{v}, v{v + 1}, v{v + 2}')
        o.append(f'v_or_b32 v{v}, v{v}, v{v + 3}')
    o.append(f'v_cmp_ne_u32 vcc, 0, v{v}')
    return '\n'.join(o)


def poll_item(setup, va, vd, n, tag, gap):
    ld = f'buffer_load_dwordx{n} v[{vd}:{vd + n - 1}], {va}, {srd(SRD_WS)}, 0 offen sc1'
    return [setup, Inst(ld, tag=tag), ('gap', gap), ('call', lambda: poll_check(ld, flags_cmp(vd, n), tag))]


def get_nonce():
    poll_check(NONL, f'v_cmp_eq_u32 vcc, 0, v{vNON}', 'nonce')
    E(f'v_readfirstlane_b32 s{NONCE}, v{vNON}\nv_readfirstlane_b32 s{NONCE + 1}, v{vNON + 1}')


def wave_flag(soff, need, off=0):
    return Inst(f'buffer_store_dwordx2 v[{vNON}:{vNON + 1}], {vF0}, {srd(SRD_WS)}, {soff} offen offset:{off} sc1', need=need)


st_norm = Stream('norm')
for q in range(9):
    st_norm.add(norm_seg(q))

st_misc = Stream('misc')
st_misc.add([('after', 'B1'), ('call', get_nonce), ('mark', 'nonce_ok')])
st_misc.add([('after', 'B3'), f'''v_lshrrev_b32 v{TMP + 32}, 4, v1
v_bfe_u32 v{TMP + 33}, v1, 2, 2
v_xor_b32 v{TMP + 33}, v{TMP + 33}, v{TMP + 32}
v_mul_u32_u24 v{TMP + 32}, 9216, v{TMP + 32}
v_lshl_add_u32 v{TMP + 32}, v{TMP + 33}, 6, v{TMP + 32}
v_and_b32 v{TMP + 33}, 3, v1
v_lshl_add_u32 v{VDB}, v{TMP + 33}, 4, v{TMP + 32}''' + ''.join(f'\nv_add_u32 v{VDB + i}, {i * (4 * 9216 - 1024)}, v{VDB}' for i in range(1, 4)),
             ('mark', 'bdma'),
             f'''v_lshrrev_b32 v{TMP + 32}, 5, v1
v_lshlrev_b32 v{TMP + 32}, 5, v{TMP + 32}
v_bfe_u32 v{TMP + 33}, v1, 2, 2
v_add_u32 v{TMP + 32}, v{TMP + 32}, v{TMP + 33}
v_lshlrev_b32 v{TMP + 32}, 8, v{TMP + 32}
v_bfe_u32 v{TMP + 34}, v1, 4, 1
v_lshl_add_u32 v{TMP + 32}, v{TMP + 34}, 5, v{TMP + 32}
v_and_b32 v{TMP + 34}, 3, v1
v_lshl_add_u32 v{TMP + 32}, v{TMP + 34}, 3, v{TMP + 32}
v_add_u32 v{TMP + 32}, {RING[10 % 3]}, v{TMP + 32}''' +
             ''.join(f'\nv_xor_b32 v{TMP + 34}, {t}, v{TMP + 33}\nv_lshl_add_u32 v{VTB + t}, v{TMP + 34}, 6, v{TMP + 32}' for t in range(4)) +
             f'\nv_subrev_u32 {vB1A}, {sCA}, {vB1A}\nv_add_u32 {vB1A}, {sCB}, {vB1A}', ('mark', 'bsetup')])

RPT = TMP + 16
vA1, vA2, vS = 'v2', 'v3', 'v213'
st_rp = Stream('rp')


def rp_body(nf, step, soffs, tag):
    o = []

    def store(f2):
        t2 = RPT + 4 * (f2 % 4)
        return soffs(f2) + [Inst(f'buffer_store_dwordx4 v[{t2}:{t2 + 3}], {vS}, {srd(SRD_WS)}, {tR0} offen sc1', tag=tag)]
    for f in range(nf):
        t = RPT + 4 * (f % 4)
        o += [f'ds_read_b64_tr_b16 v[{t}:{t + 1}], {vA1} offset:{f * step}', f'ds_read_b64_tr_b16 v[{t + 2}:{t + 3}], {vA2} offset:{f * step}']
        if f >= 2:
            o += [('gap', 1)] + store(f - 2)
    o.append(('gap', 3))
    for f2 in range(nf - 2, nf):
        o += store(f2)
    return o


t0, t1, t2 = f'v{RPT}', f'v{RPT + 1}', f'v{RPT + 2}'
st_rp.add([f'''s_sub_u32 {tR1}, s2, 164
v_bfe_u32 {t0}, v1, 4, 1
v_lshlrev_b32 {t0}, 2, {t0}
v_and_b32 {t1}, 1, v1
v_lshl_add_u32 {t0}, {t1}, 1, {t0}
v_bfe_u32 {t1}, v1, 1, 1
v_add_u32 {t0}, {t0}, {t1}
s_lshl_b32 {tR2}, {sW}, 3
v_add_u32 {t0}, {tR2}, {t0}
v_min_u32 {t0}, 26, {t0}
v_mul_u32_u24 {t1}, 57, {t0}
v_lshrrev_b32 {t1}, 9, {t1}
v_mul_u32_u24 {t2}, 9, {t1}
v_sub_u32 {t0}, {t0}, {t2}
v_mul_u32_u24 {t1}, 1152, {t1}
v_lshl_add_u32 {t0}, {t0}, 3, {t1}
v_lshrrev_b32 {t1}, 5, v1
v_mul_u32_u24 {t2}, 576, {t1}
v_add_u32 {t0}, {t0}, {t2}
v_bfe_u32 {t2}, v1, 2, 2
v_mul_u32_u24 {t2}, 3456, {t2}
v_add_u32 {t0}, {t0}, {t2}
v_add_u32 {vA1}, {AUX}, {t0}
v_add_u32 {vA2}, {4 * 3456}, {vA1}
s_lshr_b32 {tR2}, {tR1}, 3
s_and_b32 {tR3}, {tR1}, 3
s_lshl_b32 {tR2}, {tR2}, 2
s_add_u32 {tR2}, {tR2}, {tR3}
s_lshl_b32 {tR2}, {tR2}, 2
s_add_u32 {tR2}, {tR2}, {sW}
s_lshl_b32 {tR2}, {tR2}, 10
s_bfe_u32 {tR3}, {tR1}, 0x10002
s_lshl_b32 {tR3}, {tR3}, 9
s_add_u32 {tR2}, {tR2}, {tR3}
s_add_u32 {tR2}, {tR2}, {L.WS_SLABQ}
s_cmp_lt_u32 {tR1}, 72
s_cselect_b32 {tR2}, {tR2}, {OOB}
s_mov_b32 {tR3}, {8 * L.SLABQ_SZ}
v_mul_lo_u32 {t1}, {t1}, {tR3}
v_and_b32 {t2}, 31, v1
v_lshl_add_u32 {vS}, {t2}, 4, {t1}''', ('after', 'B0')])
st_rp.add(rp_body(8, 72, lambda f: [f's_add_u32 {tR0}, {tR2}, {f * L.SLABQ_SZ}'], 'rp1st'))
st_rp.add([('mark', 'rp1done')])


def wg_flag(idx_lines, cond_lines):
    return [idx_lines + f'\ns_lshl_b32 {tR0}, {tR0}, 3\ns_add_u32 {tR0}, {tR0}, {L.WS_FLAG_RP}\n' + cond_lines +
            f'\ns_cselect_b32 {tR0}, {tR0}, {OOB}\ns_cmp_eq_u32 {sW}, 0\ns_cselect_b32 {tR0}, {tR0}, {OOB}',
            wave_flag(tR0, [])]


st_rp.add([('after', 'B2'), ('after', 'nonce_ok')] + wg_flag(f's_mov_b32 {tR0}, s2', 's_cmp_ge_u32 s2, 164') + [('mark', 'rp1pub')])
st_rp.add([('call', lambda: E(f'''s_mul_i32 {tR1}, s2, 1821
s_lshr_b32 {tR1}, {tR1}, 16
s_mul_i32 {tR0}, s2, 7282
s_lshr_b32 {tR0}, {tR0}, 16
s_mul_i32 {tR2}, {tR0}, 9
s_sub_u32 {tR2}, s2, {tR2}
s_add_u32 {tR3}, {tR2}, 5
s_cmp_ge_u32 {tR3}, 9
s_cselect_b32 {tM0}, 9, 0
s_sub_u32 {tR3}, {tR3}, {tM0}
s_and_b32 {tM0}, {tR0}, 1
s_cmp_eq_u32 {tM0}, 0
s_cselect_b32 {tR2}, {tR3}, {tR2}
s_and_b32 {tR0}, {tR0}, 3
s_mul_i32 {tR0}, {tR0}, 9
s_add_u32 {tR2}, {tR2}, {tR0}
s_lshl_b32 {tR3}, s2, 5
s_lshl_b32 {tR0}, {sW}, 3
s_add_u32 {tR3}, {tR3}, {tR0}
s_mov_b32 {tM0}, 16
s_mov_b32 {tM1}, 4
s_mov_b32 {sTW}, 8
s_cmp_lt_u32 s2, 144
s_cbranch_scc1 L_RP_W2C
s_sub_u32 {tR0}, s2, 144
s_lshr_b32 {tR1}, {tR0}, 2
s_and_b32 {tR2}, {tR0}, 3
s_add_u32 {tR2}, {tR2}, 36
s_mul_i32 {tR3}, {tR0}, 36
s_lshl_b32 {tR0}, {sW}, 3
s_add_u32 {tR3}, {tR3}, {tR0}
s_lshr_b32 {tR0}, {sW}, 1
s_lshl_b32 {tR0}, {tR0}, 2
s_add_u32 {tR3}, {tR3}, {tR0}
s_mov_b32 {tM0}, 4
s_mov_b32 {tM1}, 8
s_mov_b32 {sTW}, 16
s_cmp_lt_u32 s2, 160
s_cbranch_scc1 L_RP_W2C
s_sub_u32 {tR1}, s2, 160
s_mov_b32 {tR2}, 40
s_lshl_b32 {tR3}, {tR1}, 2
s_add_u32 {tR3}, {tR3}, {sW}
s_mul_i32 {tR3}, {tR3}, 36
s_add_u32 {tR3}, {tR3}, 16
s_mov_b32 {tM0}, 8
s_mov_b32 {tM1}, 16
s_mov_b32 {sTW}, 0
L_RP_W2C:
s_mul_i32 {tR3}, {tR3}, 1152
s_cmp_lt_u32 s2, 164
s_cselect_b32 {tR3}, {tR3}, {OOB}
v_bfe_u32 {t0}, v1, 4, 1
v_mul_lo_u32 {t0}, {t0}, {tM0}
v_lshrrev_b32 {t1}, 5, v1
v_mul_lo_u32 {t1}, {t1}, {tM1}
v_bfe_u32 {t2}, v1, 2, 2
v_add3_u32 {t0}, {t0}, {t1}, {t2}
v_mul_u32_u24 {t0}, 1152, {t0}
v_and_b32 {t1}, 3, v1
v_lshl_add_u32 {t0}, {t1}, 3, {t0}
s_mul_i32 {tR0}, {sW}, 288
s_add_u32 {tR0}, {tR0}, {AUX}
v_add_u32 {vA1}, {tR0}, {t0}
s_mul_i32 {sTW}, {sTW}, 1152
v_add_u32 {vA2}, {sTW}, {vA1}
s_lshl_b32 {tR0}, {tR1}, 2
s_add_u32 {tR0}, {tR0}, {sW}
s_mul_i32 {tR0}, {tR0}, {L.SLABW_SZ}
s_add_u32 {tR0}, {tR0}, {L.WS_SLABW}
s_cmp_lt_u32 s2, 164
s_cselect_b32 {tR0}, {tR0}, {OOB}
v_add_u32 {vS}, {tR0}, {vLANE16}
s_mul_i32 {sRPF}, {tR1}, 41
s_add_u32 {sRPF}, {sRPF}, {tR2}
s_mul_i32 {sTW}, {sW}, 9216'''))])


def rp2_dma():
    E(f's_mov_b32 {tM0}, m0')
    for i in range(9):
        if i % 4 == 0:
            E(f's_add_u32 m0, {sTW}, {AUX + i * 1024}\ns_add_u32 {tR0}, {tR3}, {i * 1024}')
        E(f'buffer_load_dwordx4 {vLANE16}, {srd(SRD_RP)}, {tR0} offen offset:{(i % 4) * 1024} lds', tag='rp2')
    E(f's_mov_b32 m0, {tM0}\ns_nop 0')


st_rp.add([('call', rp2_dma), ('mark', 'rp2dma'),
           f's_lshl_b32 {tR1}, {tR1}, 1\ns_sub_u32 {tR1}, 6, {tR1}\ns_mul_i32 {tR3}, {tR2}, 7168\ns_lshl_b32 {tR2}, {tR2}, 11\n'
           f's_add_u32 {tR2}, {tR2}, {L.SLABW_OWN - 6144}', ('after', 'B4')])


def rp2_off(f):
    if f == 8:
        return [f's_add_u32 {tR0}, {tR3}, 6144']
    return [f's_add_u32 {tR0}, {tR1}, {f}', f's_and_b32 {tR0}, {tR0}, 7', f's_cmp_lt_u32 {tR0}, 6', f's_cselect_b32 {sTW}, {tR3}, {tR2}',
            f's_lshl_b32 {tR0}, {tR0}, 10', f's_add_u32 {tR0}, {tR0}, {sTW}']


st_rp.add(rp_body(9, 32, rp2_off, 'rp2st'))
st_rp.add([('mark', 'rp2done'), ('after', 'B7')] + wg_flag(f's_mov_b32 {tR0}, {sRPF}', 's_cmp_lt_u32 s2, 164') + [('mark', 'rp2pub')])

st_dma = Stream('dma')
st_dma.add([('after', 'B0')] + dma_a(2) + [('mark', 'dma2')])
for u in (3, 4):
    st_dma.add([('after', f'B{u - 1}')] + dma_a(u) + [('mark', f'dma{u}')])
st_dma.add([('after', 'nonce_ok'), ('after', 'rp1pub')])
st_dma.add(poll_item(f'v_min_u32 {vPA}, {35 * 16}, {vLANE16}\nv_add_u32 {vPA}, {L.WS_FLAG_RP + 164 * 8}, {vPA}', vPA, vPF, 4, 'pfq', 25))
if OPT['stouch']:
    st_dma.add([f's_and_b32 {tD0}, {sR}, 7\ns_lshl_b32 {tD0}, {tD0}, 2\ns_add_u32 {tD0}, {tD0}, {sW}\ns_mul_i32 {tD0}, {tD0}, {36 * 128}\n'
                f's_add_u32 {tD0}, {tD0}, {sSLQ}\nv_min_u32 {vPA}, {35 * 128}, {vTCH}',
                f'buffer_load_dword v{vPF + 1}, {vPA}, {srd(SRD_WS)}, {tD0} offen sc1'])
for u in range(5):
    st_dma.add([('after', f'B{4 + u}')] + dma_q(u) + [('mark', f'dma{5 + u}')])
st_dma.add([('after', 'bdma')])
for u in range(5):
    st_dma.add([('after', f'B{9 + u}')] + dma_b(u) + [('mark', f'dma{10 + u}')])
    if u == 1:
        st_dma.add([('after', 'rp2pub')])
        st_dma.add(poll_item(f'v_lshrrev_b32 {vPA}, 1, {vLANE16}\nv_min_u32 {vPA}, {40 * 8}, {vPA}\ns_mul_i32 {tD0}, {sS}, {41 * 8}\n'
                             f'v_add_u32 {vPA}, {tD0}, {vPA}\nv_add_u32 {vPA}, {L.WS_FLAG_RP}, {vPA}', vPA, vPF, 2, 'pfw', 20))
        if OPT['stouch']:
            st_dma.add([f's_and_b32 {tD0}, {sR}, 7\ns_lshl_b32 {tD0}, {tD0}, 2\ns_add_u32 {tD0}, {tD0}, {sW}\ns_mul_i32 {tD0}, {tD0}, {47 * 128}\n'
                        f's_add_u32 {tD0}, {tD0}, {sSLW}\nv_min_u32 {vPA}, {46 * 128}, {vTCH}',
                        f'buffer_load_dword v{vPF + 1}, {vPA}, {srd(SRD_WS)}, {tD0} offen sc1', ('gap', 10),
                        f's_add_u32 {tD0}, {tD0}, {32 * 47 * 128 - 5120}',
                        f'buffer_load_dword v{vPF + 2}, {vPA}, {srd(SRD_WS)}, {tD0} offen sc1'])
        st_dma.add([('mark', 'pf_free')])
for p in range(9):
    st_dma.add([('after', f'B{14 + p}')] + dma_p(p) + [('mark', f'dma{15 + p}')])
for u in range(3):
    st_dma.add([('after', f'B{23 + u}')] + dma_c(u) + [('mark', f'dma{24 + u}')])


def ffn_epi(n, tag):
    o = [('after', f'f8_3_{n}'), ('gap', 1)]
    t = TMP
    X = TMP + 8 + 8 * (n % 2) if n < 5 else TMP + 8 + 8 * (n % 2)
    for half in range(2):
        for e in range(8):
            o.append(f'v_accvgpr_read_b32 v{t + e}, a{16 * n + 8 * half + e}')
        for e in range(8):
            o.append(f'v_max_f32 v{t + e}, 0, v{t + e}')
        for e in range(8):
            o.append(f'v_mul_f32 v{t + e}, v{t + e}, v{t + e}')
        for p in range(4):
            o.append(f'v_cvt_pk_bf16_f32 v{X + 4 * half + p}, v{t + 2 * p}, v{t + 2 * p + 1}')
    for d in range(4):
        o.append(f'v_permlane16_swap_b32 v{X + d}, v{X + 4 + d}')
    for d in range(8):
        o.append(f'v_accvgpr_write_b32 a{16 * n + d}, v{X + d}')
    o.append(f's_add_u32 {tE0}, {sGB}, {2048 * n}')
    o.append(Inst(f'buffer_store_dwordx4 v[{X}:{X + 3}], {vLANE16}, {srd(SRD_WS)}, {tE0} offen sc1', tag=tag))
    o.append(Inst(f'buffer_store_dwordx4 v[{X + 4}:{X + 7}], {vLANE16}, {srd(SRD_WS)}, {tE0} offen offset:1024 sc1', tag=tag))
    o.append(('mark', f'h{n}'))
    return o


def g_publish(ev, tag, first_kb, nlines, tmpv, tmps):
    o = [('gap', OPT['pubgap']), f's_lshl_b32 {tmps}, {sC}, 3\ns_add_u32 {tmps}, {tmps}, {sGF}', wave_flag(tmps, [tag], 32 * ev)]
    if OPT['gtouch']:
        for k in range(0, nlines, 64):
            n = min(64, nlines - k)
            o.append(f's_add_u32 {tmps}, {sGB}, {first_kb * 2048 + k * 128}\nv_min_u32 v{tmpv}, {(n - 1) * 128}, {vTCH}')
            o.append(f'buffer_load_dword v{tmpv + 1}, v{tmpv}, {srd(SRD_WS)}, {tmps} offen sc1')
    return o


st_epi = Stream('epi')
st_epi.add([('after', 'rp2done')])
for n in range(5):
    st_epi.add(ffn_epi(n, 'gsta'))
st_epi.add([('mark', 'epiA')] + g_publish(0, 'gsta', 0, 80, TMP + 34, tE0) + [('mark', 'pubA')])
st_epi.add([('after', 'odone')])
for n in range(5, 9):
    st_epi.add(ffn_epi(n, 'gstb'))
st_epi.add([('mark', 'epiB')] + g_publish(2, 'gstb', 5, 64, TMP + 34, tE0) + [('mark', 'pubB')])

vKW, vHX = 'v2', 'v3'
st_att = Stream('att')
st_att.add([('after', 'epiA'), ('after', 'B8'),
            f"""v_and_b32 v{TMP}, 31, v1
s_lshl_b32 {tA0}, {sW}, 5
v_add_u32 v{TMP + 1}, {tA0}, v{TMP}
v_mul_u32_u24 v{TMP + 1}, {PITCH}, v{TMP + 1}
v_lshrrev_b32 v{TMP + 2}, 5, v1
v_lshl_add_u32 v{TMP + 1}, v{TMP + 2}, 4, v{TMP + 1}
v_add_u32 {vKW}, {QB1}, v{TMP + 1}
v_subrev_u32 {vHX}, {112 * PITCH}, v{TMP + 1}
s_lshl_b32 {tA0}, {sR}, 4
s_add_u32 {tA0}, {tA0}, {sJ}
s_add_u32 {tA0}, {tA0}, 16
s_lshl_b32 {tA1}, {tA0}, 12
s_add_u32 {tA1}, {tA1}, {L.WS_HALO}
s_cmp_eq_u32 {sR}, 15
s_cselect_b32 {tA1}, {OOB}, {tA1}
v_mov_b32 v{TMP + 2}, {OOB}
v_cmp_gt_u32 vcc, {112 * PITCH}, v{TMP + 1}
v_cndmask_b32 {vHX}, {vHX}, v{TMP + 2}, vcc"""])
for t4 in (1, 2, 3, 0):
    t = TMP
    X = TMP + 16 + 8 * (t4 % 2)
    o = [('after', f'q8_3_{t4}'), ('gap', 2)]
    ne = 16 if t4 < 3 else 8
    for e in range(ne):
        o.append(f'v_accvgpr_read_b32 v{t + e}, a{QA + 16 * t4 + e}')
    for pp in range(ne // 2):
        o.append(f'v_cvt_pk_bf16_f32 v{X + pp}, v{t + 2 * pp}, v{t + 2 * pp + 1}')
    for hh in range(ne // 8):
        o.append(Inst(f'ds_write_b128 {vKW}, v[{X + 4 * hh}:{X + 4 * hh + 3}] offset:{64 * t4 + 32 * hh}', tag='kvw'))
        if t4:
            o.append(Inst(f'buffer_store_dwordx4 v[{X + 4 * hh}:{X + 4 * hh + 3}], {vHX}, {srd(SRD_WS)}, {tA1} offen offset:{64 * t4 + 32 * hh} sc1', tag='hxst'))
    st_att.add(o)
st_att.add([('mark', 'kvw')])
MO, MP, MP0 = 16, 24, [68, 70, 52, 54]
A0, A0R, AP, APR, VT, VTP = (f'v{TMP + i}' for i in range(6))
st_att.add([f"""v_and_b32 v{TMP + 8}, 15, v1
v_lshrrev_b32 v{TMP + 9}, 4, v1
s_lshl_b32 {tA2}, {sW}, 5
s_mul_i32 {tA2}, {tA2}, {PITCH}
s_add_u32 {tA2}, {tA2}, {QB1}
s_sub_u32 {tA3}, {tA2}, {16 * PITCH}
s_cmp_eq_u32 {sW}, 0
s_cselect_b32 {tA3}, {QB}, {tA3}
v_mul_u32_u24 v{TMP + 10}, {PITCH}, v{TMP + 8}
v_add_u32 {A0R}, {tA2}, v{TMP + 10}
v_add_u32 {APR}, {tA3}, v{TMP + 10}
v_lshl_add_u32 {A0}, v{TMP + 9}, 3, {A0R}
v_lshl_add_u32 {AP}, v{TMP + 9}, 3, {APR}
v_lshrrev_b32 v{TMP + 10}, 2, v1
v_mul_u32_u24 v{TMP + 10}, {PITCH}, v{TMP + 10}
v_and_b32 v{TMP + 11}, 3, v1
v_lshl_add_u32 v{TMP + 10}, v{TMP + 11}, 3, v{TMP + 10}
v_add_u32 {VT}, {tA2}, v{TMP + 10}
v_add_u32 {VTP}, {tA3}, v{TMP + 10}
v_lshlrev_b32 v{TMP + 9}, 2, v{TMP + 9}
v_sub_u32 v{TMP + 8}, v{TMP + 8}, v{TMP + 9}"""])
for i in range(4):
    st_att.add([f"""v_subrev_u32 v{TMP + 9}, {i}, v{TMP + 8}
v_and_b32 v{TMP + 10}, 0x80000001, v{TMP + 9}
v_cmp_eq_u32 s[{MO + 2 * i}:{MO + 2 * i + 1}], 0, v{TMP + 10}
v_xor_b32 v{TMP + 10}, 0x80000000, v{TMP + 10}
v_cmp_eq_u32 s[{MP + 2 * i}:{MP + 2 * i + 1}], 0, v{TMP + 10}"""])
st_att.add([f's_or_b32 {tA2}, {sR}, {sW}', ('gap', 2), f's_cmp_eq_u32 {tA2}, 0'] +
           [f's_cselect_b64 s[{MP0[i]}:{MP0[i] + 1}], 0, s[{MP + 2 * i}:{MP + 2 * i + 1}]' for i in range(4)] +
           ['v_cmp_gt_u32 s[32:33], 16, v1'])
st_att.add([('gap', 15), f's_lshl_b32 {tA1}, {tA0}, 7\ns_add_u32 {tA1}, {tA1}, {L.WS_FLAG_HALO}\ns_cmp_eq_u32 {sW}, 3\ns_cselect_b32 {tA1}, {tA1}, {OOB}',
            wave_flag(tA1, ['hxst'])])
KOP = TMP + 6
QOP = TMP + 18
RT = TMP + 26
SS = 196
SC = 0.2357022603955158 * 1.4426950408889634
SSR = [TMP + 32, TMP + 33, TMP + 34, TMP + 35, 196, 197, 198, 199]
SQ0, SQ1 = TMP + 32, 196
m_, t1_, t2_ = 'v200', 'v205', 'v211'
PK = [RT, RT]
vREM = 'v212'
st_att.add([f"""s_sub_u32 {tA0}, {tA0}, 16
s_add_u32 {tA2}, {sGB}, {9 * 2048}
s_lshl_b32 {tA3}, {sR}, 2
s_add_u32 {tA3}, {tA3}, {sS}
s_lshl_b32 {tA3}, {tA3}, 12
s_lshl_b32 {tA1}, {sW}, 10
s_add_u32 {tA3}, {tA3}, {tA1}
s_lshl_b32 {tA1}, {sC}, 7
s_add_u32 {tA3}, {tA3}, {tA1}
s_add_u32 {tA3}, {tA3}, {L.WS_GREM}
v_lshlrev_b32 {vREM}, 3, v1
v_mov_b32 {t1_}, {OOB}
v_cndmask_b32 {vREM}, {t1_}, {vREM}, s[32:33]""", ('after', 'B11'), ('after', 'pubA')])


def att_block(hd, b):
    mo = 0 if hd == 0 else 40
    o = []
    K0, K1, Q, V0 = KOP, KOP + 4, KOP + 8, QOP
    for wh, kr in ((0, K0), (1, K1)):
        kb = b + wh
        a, ar, off = (AP, APR, 0) if kb == 0 else (A0, A0R, (kb - 1) * 16 * PITCH)
        o.append(f'ds_read_b64 v[{kr}:{kr + 1}], {a} offset:{off + 72 + mo}')
        o.append(f'ds_read_b64 v[{kr + 2}:{kr + 3}], {ar} offset:{off + 72 + 32}')
    o.append(f'ds_read_b64 v[{Q}:{Q + 1}], {A0} offset:{b * 16 * PITCH + mo}')
    o.append(f'ds_read_b64 v[{Q + 2}:{Q + 3}], {A0R} offset:{b * 16 * PITCH + 32}')
    vo = 8 * 18 + mo
    for wh in range(2):
        kb = b + wh
        a, off = (VTP, 0) if kb == 0 else (VT, (kb - 1) * 16 * PITCH)
        o.append(f'ds_read_b64_tr_b16 v[{V0 + 2 * wh}:{V0 + 2 * wh + 1}], {a} offset:{off + vo}')
        o.append(f'ds_read_b64_tr_b16 v[{V0 + 4 + 2 * wh}:{V0 + 4 + 2 * wh + 1}], {a} offset:{off + 8 * 22}')
    o.append(('gap', 1))
    o.append(f'v_cndmask_b32 v{Q + 2 + hd}, 0, v{Q + 2 + hd}, s[32:33]')
    o.append(f'v_mov_b32 v{Q + 3 - hd}, 0')
    o.append(f'v_mov_b32 {t2_}, 0xf149f2ca')
    o.append('v_nop')
    o.append(f'v_mfma_f32_16x16x32_bf16 v[{SQ0}:{SQ0 + 3}], v[{K0}:{K0 + 3}], v[{Q}:{Q + 3}], 0')
    o.append(f'v_mfma_f32_16x16x32_bf16 v[{SQ1}:{SQ1 + 3}], v[{K1}:{K1 + 3}], v[{Q}:{Q + 3}], 0')
    o.append(('gap', 2))
    s = [f'v{r}' for r in SSR]
    for i in range(4):
        mk = MP0[i] if b == 0 else MP + 2 * i
        o.append(f'v_cndmask_b32 {s[i]}, {t2_}, {s[i]}, s[{mk}:{mk + 1}]')
    for i in range(4):
        o.append(f'v_cndmask_b32 {s[4 + i]}, {t2_}, {s[4 + i]}, s[{MO + 2 * i}:{MO + 2 * i + 1}]')
    m, t1, t2 = m_, t1_, t2_
    o += [f'v_max3_f32 {m}, {s[0]}, {s[1]}, {s[2]}', f'v_max3_f32 {t1}, {s[3]}, {s[4]}, {s[5]}',
          f'v_max3_f32 {m}, {m}, {s[6]}, {s[7]}', f'v_max_f32 {m}, {m}, {t1}', f'v_mov_b32 {t1}, {m}', f'v_mov_b32 {t2}, {fl(SC)}', 'v_nop',
          f'v_permlane16_swap_b32 {m}, {t1}', f'v_max_f32 {m}, {m}, {t1}', f'v_mov_b32 {t1}, {m}', ('gap', 1),
          f'v_permlane32_swap_b32 {m}, {t1}', f'v_max_f32 {m}, {m}, {t1}', f'v_mul_f32 {m}, {fl(-SC)}, {m}']
    for i in range(8):
        o.append(f'v_fma_f32 {s[i]}, {s[i]}, {t2}, {m}')
    for i in range(8):
        o.append(f'v_exp_f32 {s[i]}, {s[i]}')
    o += [f'v_add_f32 {m}, {s[0]}, {s[1]}', f'v_add_f32 {t1}, {s[2]}, {s[3]}', f'v_add_f32 {t2}, {s[4]}, {s[5]}',
          f'v_add_f32 {m}, {m}, {s[6]}', f'v_add_f32 {t1}, {t1}, {s[7]}', f'v_add_f32 {m}, {m}, {t2}', f'v_add_f32 {m}, {m}, {t1}',
          f'v_mov_b32 {t1}, {m}', ('gap', 1),
          f'v_permlane16_swap_b32 {m}, {t1}', f'v_add_f32 {m}, {m}, {t1}', f'v_mov_b32 {t1}, {m}', ('gap', 1),
          f'v_permlane32_swap_b32 {m}, {t1}', f'v_add_f32 {m}, {m}, {t1}', f'v_rcp_f32 {m}, {m}', 'v_nop']
    for i in range(8):
        o.append(f'v_mul_f32 {s[i]}, {s[i]}, {m}')
    for i in range(4):
        o.append(f'v_cvt_pk_bf16_f32 v{K0 + i}, {s[2 * i]}, {s[2 * i + 1]}')
    o.append(('gap', 1))
    o.append(f'v_mfma_f32_16x16x32_bf16 v[{SQ0}:{SQ0 + 3}], v[{V0}:{V0 + 3}], v[{K0}:{K0 + 3}], 0')
    o.append(f'v_mfma_f32_16x16x32_bf16 v[{SQ1}:{SQ1 + 3}], v[{V0 + 4}:{V0 + 7}], v[{K0}:{K0 + 3}], 0')
    o.append(('gap', 2))
    o.append(f'v_cvt_pk_bf16_f32 v{RT}, v{SQ0}, v{SQ0 + 1}')
    o.append(f'v_cvt_pk_bf16_f32 v{RT + 1}, v{SQ0 + 2}, v{SQ0 + 3}')
    o.append(f'v_cvt_pk_bf16_f32 v{RT + 2}, v{SQ1 + 2 * hd}, v{SQ1 + 2 * hd + 1}')
    o.append(Inst(f'buffer_store_dwordx2 v[{RT}:{RT + 1}], {vLANE16}, {srd(SRD_WS)}, {tA2} offen offset:{1024 * b + 8 * hd} sc1', tag='ost'))
    o.append(Inst(f'buffer_store_dword v{RT + 2}, {vREM}, {srd(SRD_WS)}, {tA3} offen offset:{512 * b + 4 * hd} sc1', tag='ost'))
    return o


vH = RT + 4
st_att.add(att_block(0, 1))
st_att.add([f's_lshl_b32 {tA1}, {tA0}, 7\ns_add_u32 {tA1}, {tA1}, {L.WS_FLAG_HALO}\ns_cmp_eq_u32 {sR}, 0\n'
            f's_cselect_b32 {tA1}, {L.WS_FLAG_RP + 164 * 8}, {tA1}\nv_mov_b32 v3, {tA1}'])
HL = f'buffer_load_dwordx2 v[{vH}:{vH + 1}], v3, {srd(SRD_WS)}, 0 offen sc1'
st_att.add([Inst(HL, tag='pfh')])
st_att.add(att_block(1, 1))


def halo_import():
    poll_check(HL, flags_cmp(vH, 2), 'pfh')
    E(f's_lshl_b32 {tA1}, {tA0}, 12\ns_add_u32 {tA1}, {tA1}, {L.WS_HALO}\ns_cmp_eq_u32 {sR}, 0\ns_cselect_b32 {tA1}, {OOB}, {tA1}')
    E(f's_cmp_lg_u32 {sW}, 0\ns_cbranch_scc1 L_HI')
    E(f's_mov_b32 {tM0}, m0\ns_mov_b32 m0, {QB}\ns_nop 0')
    for i in range(4):
        E.raw(f'    buffer_load_dwordx4 {vLANE16}, {srd(SRD_WS)}, {tA1} offen offset:{i * 1024} sc1 lds')
    E(f's_mov_b32 m0, {tM0}')
    E('L_HI:')
    E(f'buffer_load_dword v{vH}, v14, {srd(SRD_DBG)}, 0 offen', tag='himp')


st_att.add([('call', halo_import), ('gap', 30), ('call', lambda: E.wait_tags(['himp']))])
st_att.add(att_block(0, 0))
st_att.add(att_block(1, 0))
st_att.add([('mark', 'odone'), ('gap', OPT['pubgap']), f's_lshl_b32 {tA1}, {sC}, 3\ns_add_u32 {tA1}, {tA1}, {sGF}', wave_flag(tA1, ['ost'], 32), ('mark', 'opub')])

st_act = Stream('act')
GPA = f'v_and_b32 {vPA}, 3, v1\nv_lshlrev_b32 {vPA}, 3, {vPA}\nv_add_u32 {vPA}, {sGF}, {vPA}'


def act_load(idx, soff, off):
    o = []
    kind, r = ACT[idx]
    if kind == 'v':
        o.append(('after', 'f8_3_8'))
    elif r >= QA:
        o.append(('after', 'kvw'))
    else:
        o.append(('after', f'h{r // 16}'))
    for b in range(2):
        o.append(f'buffer_load_dwordx4 {act_regs(idx, b)}, {vLANE16}, {srd(SRD_WS)}, {soff} offen offset:{off + 1024 * b} sc1')
    o.append(('mark', f'act{idx}'))
    return o


def partner_base(k, kb0):
    return [f's_add_u32 {tC0}, {sC}, {k}\ns_and_b32 {tC0}, {tC0}, 3\ns_sub_u32 {tC0}, {tC0}, {sC}\ns_mul_i32 {tC0}, {tC0}, {L.G_WG}\n'
            f's_add_u32 {tC0}, {tC0}, {sGB}\ns_add_u32 {tC0}, {tC0}, {kb0 * 2048}']


st_act.add([('after', 'pf_free'), ('after', 'kvw'), ('after', 'B12'), ('after', 'pubA')])
st_act.add(poll_item(GPA, vPA, vPF, 2, 'pfa', OPT['pollgap']))
for k in range(1, 4):
    st_act.add(partner_base(k, 0))
    for kk in range(5):
        if kk % 2 == 0 and kk:
            st_act.add([f's_add_u32 {tC0}, {tC0}, 4096'])
        st_act.add(act_load(5 * k + kk, tC0, (kk % 2) * 2048))
st_act.add([('after', 'B16'), ('after', 'opub')])
st_act.add(poll_item(f'v_add_u32 {vPA}, 32, {vPA}', vPA, vPF, 2, 'pfo', OPT['pollgap']))
for cc in range(4):
    st_act.add([f's_sub_u32 {tC0}, {cc}, {sC}\ns_mul_i32 {tC0}, {tC0}, {L.G_WG}\ns_add_u32 {tC0}, {tC0}, {sGB}\ns_add_u32 {tC0}, {tC0}, {9 * 2048}'])
    st_act.add(act_load(20 + cc, tC0, 0))
kind, rr = ACT[24]
assert kind == 'v'
st_act.add([f's_lshl_b32 {tC0}, {sR}, 2\ns_add_u32 {tC0}, {tC0}, {sS}\ns_lshl_b32 {tC0}, {tC0}, 12\ns_lshl_b32 {tC1}, {sW}, 10\ns_add_u32 {tC0}, {tC0}, {tC1}\n'
            f's_add_u32 {tC0}, {tC0}, {L.WS_GREM}\nv_lshrrev_b32 v{vPF + 2}, 1, {vLANE16}'])
for b in range(2):
    st_act.add([f'buffer_load_dwordx2 v[{rr + 4 * b}:{rr + 4 * b + 1}], v{vPF + 2}, {srd(SRD_WS)}, {tC0} offen offset:{512 * b} sc1',
                f'v_mov_b32 v{rr + 4 * b + 2}, 0', f'v_mov_b32 v{rr + 4 * b + 3}, 0'])
st_act.add([('mark', 'act24'), ('after', 'B19'), ('after', 'pubB')])
st_act.add(poll_item(f'v_add_u32 {vPA}, 32, {vPA}', vPA, vPF, 2, 'pfb', OPT['pollgap']))
for k in range(1, 4):
    st_act.add(partner_base(k, 5))
    for kk in range(4):
        if kk == 2:
            st_act.add([f's_add_u32 {tC0}, {tC0}, 4096'])
        st_act.add(act_load(25 + 4 * k + kk, tC0, (kk % 2) * 2048))

XI = TMP
st_fin = Stream('fin')
st_fin.add([('after', 'epiB'), ('after', 'B20'),
            f"""v_and_b32 v2, 15, v1
v_mul_u32_u24 v2, 1152, v2
v_lshrrev_b32 v3, 4, v1
v_lshlrev_b32 v3, 3, v3
v_add_u32 v2, v2, v3
s_lshl_b32 {tA0}, {sR}, 2
s_add_u32 {tA0}, {tA0}, {sW}
s_mul_i32 {tA0}, {tA0}, 36864
s_mul_i32 {tA1}, {sC}, 288
s_add_u32 {tA0}, {tA0}, {tA1}
s_lshl_b32 {tA2}, {sS}, 6
s_add_u32 {tA3}, {tA0}, {tA2}
s_add_u32 {tA2}, {tA2}, {tA1}"""])
for b in range(2):
    if b:
        st_fin.add([f's_add_u32 {tA3}, {tA3}, {16 * 1152}', f's_add_u32 {tA0}, {tA0}, {16 * 1152}'])
    for t in range(2):
        st_fin.add([f'buffer_load_dwordx2 v[{XI + 4 * t + 2 * b}:{XI + 4 * t + 2 * b + 1}], v2, {srd(SRD_X)}, {tA3} offen offset:{32 * t}'])
    st_fin.add([f'buffer_load_dwordx2 v[{XI + 8 + 2 * b}:{XI + 9 + 2 * b}], v2, {srd(SRD_X)}, {tA0} offen offset:256'])
for t in range(2):
    st_fin.add([f'buffer_load_dwordx2 v[{XI + 12 + 2 * t}:{XI + 13 + 2 * t}], v3, {srd(SRD_B)}, {tA2} offen offset:{32 * t}'])
st_fin.add([f'buffer_load_dwordx2 v[{XI + 16}:{XI + 17}], v3, {srd(SRD_B)}, {tA1} offen offset:256', ('gap', 60)])
u0, u1 = f'v{TMP + 18}', f'v{TMP + 19}'
for t in range(3):
    for b in range(2):
        for d in range(2):
            xr, br = XI + 4 * t + 2 * b + d, XI + 12 + 2 * t + d
            for hi in range(2):
                un = (lambda r, dst: f'v_and_b32 {dst}, {vMASKHI}, v{r}') if hi else (lambda r, dst: f'v_lshlrev_b32 {dst}, 16, v{r}')
                if t < 2:
                    st_fin.add([un(xr, u0), un(br, u1), f'v_add_f32 {u0}, {u0}, {u1}',
                                f'v_accvgpr_write_b32 a{ACC2[7 + t] + 4 * b + 2 * d + hi}, {u0}'])
                else:
                    st_fin.add([un(xr, u0), un(br, u1), f'v_add_f32 v{TMP + 20 + 4 * b + 2 * d + hi}, {u0}, {u1}'])
st_fin.add([('mark', 'owninit')])
st_fin.add([f's_lshl_b32 {tA0}, {sR}, 2\ns_add_u32 {tA0}, {tA0}, {sC}\ns_lshl_b32 {tA0}, {tA0}, 2'])
for k in range(1, 4):
    st_fin.add([('after', f'p40_{2 * k - 1}'), ('gap', 3),
                f's_add_u32 {tA1}, {sS}, {k}\ns_and_b32 {tA1}, {tA1}, 3\ns_add_u32 {tA1}, {tA1}, {tA0}\ns_lshl_b32 {tA1}, {tA1}, 2\ns_add_u32 {tA1}, {tA1}, {sS}\n'
                f's_mul_i32 {tA1}, {tA1}, {L.PART_SRC}\ns_lshl_b32 {tA2}, {sW}, 12\ns_add_u32 {tA1}, {tA1}, {tA2}\ns_add_u32 {tA1}, {tA1}, {L.WS_PART}'])
    for t in range(2):
        for b in range(2):
            st_fin.add([Inst(f'buffer_store_dwordx4 {acc2(2 * (k - 1) + t, b)}, {vLANE16}, {srd(SRD_WS)}, {tA1} offen offset:{(2 * t + b) * 1024} sc1', tag='pst')])
st_fin.add([('after', 'p40_6'), ('gap', 3),
            f's_add_u32 {tA1}, {tA0}, {sW}\ns_lshl_b32 {tA1}, {tA1}, 2\ns_add_u32 {tA1}, {tA1}, {sS}\ns_mul_i32 {tA1}, {tA1}, {L.PART_SRC}\n'
            f's_add_u32 {tA1}, {tA1}, {L.WS_PART + 16384}\ns_cmp_eq_u32 {sW}, {sS}\ns_cselect_b32 {tA1}, {OOB}, {tA1}'])
for b in range(2):
    st_fin.add([Inst(f'buffer_store_dwordx4 {acc2(6, b)}, {vLANE16}, {srd(SRD_WS)}, {tA1} offen offset:{b * 1024} sc1', tag='pst')])
st_fin.add([f"""v_lshlrev_b32 v2, 7, v1
v_mov_b32 v3, {OOB}
v_cmp_gt_u32 vcc, 4, v1
v_cndmask_b32 v2, v3, v2, vcc
s_lshl_b32 {tA1}, {tA0}, 7
s_lshl_b32 {tA2}, {sW}, 5
s_add_u32 {tA1}, {tA1}, {tA2}
s_add_u32 {tA1}, {tA1}, {L.WS_FLAG_P}
s_lshl_b32 {tA2}, {sS}, 3
s_add_u32 {tA2}, {tA2}, {tA1}""", ('gap', OPT.get('pgap', 60)),
            Inst(f'buffer_store_dwordx2 v[{vNON}:{vNON + 1}], v2, {srd(SRD_WS)}, {tA2} offen sc1', need=['pst']),
            f's_lshl_b32 {tA2}, {sS}, 7\ns_add_u32 {tA1}, {tA1}, {tA2}\nv_and_b32 {vPA}, 3, v1\nv_lshlrev_b32 {vPA}, 3, {vPA}\nv_add_u32 {vPA}, {tA1}, {vPA}'])

S = Sched(E, [st_dma, st_act, st_misc, st_rp, st_norm, st_att, st_epi, st_fin])
S.run(ops, D=OPT['D'], WB=OPT['WB'], budget=3.0)
stamp()
S.drain()
stamp()

PL = f'buffer_load_dwordx2 v[{vPF}:{vPF + 1}], {vPA}, {srd(SRD_WS)}, 0 offen sc1'
E(PL, tag='pfp')
OA = 16
for t in range(2):
    for e in range(8):
        E(f'v_accvgpr_read_b32 v{OA + 8 * t + e}, a{ACC2[7 + t] + e}')
for e in range(8):
    E(f'v_accvgpr_read_b32 v{OA + 16 + e}, a{ACC2[6] + e}')
for e in range(8):
    E(f'v_add_f32 v{OA + 16 + e}, v{OA + 16 + e}, v{TMP + 20 + e}')
E(f"""s_add_u32 {tA1}, {tA0}, {sS}
s_mul_i32 {tA1}, {tA1}, {4 * L.PART_SRC}
s_add_u32 {tA1}, {tA1}, {L.WS_PART}
s_lshl_b32 {tA2}, {sW}, 12
s_cmp_eq_u32 {sW}, {sS}
s_cselect_b32 {tA3}, 16384, {OOB}""")
poll_check(PL, flags_cmp(vPF, 2), 'pfp')
stamp()
RB = 48
for k in range(1, 4):
    E(f's_add_u32 s84, {sS}, {k}\ns_and_b32 s84, s84, 3\ns_mul_i32 s84, s84, {L.PART_SRC}\ns_add_u32 s84, s84, {tA1}\ns_add_u32 s85, s84, {tA3}\ns_add_u32 s84, s84, {tA2}')
    for u in range(4):
        r = RB + 24 * (k - 1) + 4 * u
        E(f'buffer_load_dwordx4 v[{r}:{r + 3}], {vLANE16}, {srd(SRD_WS)}, s84 offen offset:{u * 1024} sc1')
    for u in range(2):
        r = RB + 24 * (k - 1) + 16 + 4 * u
        E(f'buffer_load_dwordx4 v[{r}:{r + 3}], {vLANE16}, {srd(SRD_WS)}, s85 offen offset:{u * 1024} sc1')
TP = 112
E(f"""v_and_b32 v2, 15, v1
v_mul_u32_u24 v2, {TP}, v2
v_lshrrev_b32 v3, 4, v1
v_lshl_add_u32 v2, v3, 3, v2
s_mul_i32 s84, {sW}, {32 * TP}
s_add_u32 s84, s84, {AUX}
v_add_u32 v2, s84, v2
v_lshrrev_b32 v3, 2, v1
v_mul_u32_u24 v4, {TP}, v3
v_and_b32 v5, 3, v1
v_lshl_add_u32 v4, v5, 4, v4
v_add_u32 v4, s84, v4
v_mul_u32_u24 v3, 1152, v3
v_lshl_add_u32 v3, v5, 4, v3
v_lshrrev_b32 v6, 1, v1
v_mul_u32_u24 v7, {TP}, v6
v_and_b32 v5, 1, v1
v_lshl_add_u32 v7, v5, 4, v7
v_add_u32 v7, s84, v7
v_mul_u32_u24 v6, 1152, v6
v_lshl_add_u32 v6, v5, 4, v6
s_lshl_b32 s84, {sR}, 2
s_add_u32 s84, s84, {sW}
s_mul_i32 s84, s84, 36864
s_mul_i32 s85, {sC}, 288
s_add_u32 s84, s84, s85
s_lshl_b32 s85, {sS}, 6
s_add_u32 s85, s85, s84
s_add_u32 s84, s84, 256
s_cmp_eq_u32 {sW}, {sS}
s_cselect_b32 s84, s84, {OOB}""")
for e in range(24):
    E(f'v_add_f32 v{OA + e}, v{OA + e}, v{RB + e}')
for e in range(24):
    E(f'v_add_f32 v{RB + 24 + e}, v{RB + 24 + e}, v{RB + 48 + e}')
for e in range(24):
    E(f'v_add_f32 v{OA + e}, v{OA + e}, v{RB + 24 + e}')
for u in range(6):
    t, b = u // 2, u % 2
    E(f'v_cvt_pk_bf16_f32 v{128 + 2 * u}, v{OA + 4 * u}, v{OA + 4 * u + 1}')
    E(f'v_cvt_pk_bf16_f32 v{129 + 2 * u}, v{OA + 4 * u + 2}, v{OA + 4 * u + 3}')
    E(f'ds_write_b64 v2, v[{128 + 2 * u}:{129 + 2 * u}] offset:{b * 16 * TP + 32 * t}', tag='tw')
E.wait_tags(['tw'])
for b in range(2):
    E(f'ds_read_b128 v[{144 + 4 * b}:{147 + 4 * b}], v4 offset:{b * 16 * TP}')
E(f'ds_read_b128 v[152:155], v7 offset:64')
E(f'buffer_store_dwordx4 v[144:147], v3, {srd(SRD_OUT)}, s85 offen')
E(f's_add_u32 s85, s85, {16 * 1152}')
E(f'buffer_store_dwordx4 v[148:151], v3, {srd(SRD_OUT)}, s85 offen')
E(f'buffer_store_dwordx4 v[152:155], v6, {srd(SRD_OUT)}, s84 offen')

if OPT['stamps']:
    stamp()
    E('s_waitcnt lgkmcnt(0)')
    E(f'v_writelane_b32 {vSTAMP}, s100, {nstamp[0] - 1}')
    E(f's_mov_b32 s84, {nstamp[0]}')
    E(f'v_writelane_b32 {vSTAMP}, s84, 63')
    E(f's_lshl_b32 s84, s2, 2\ns_add_u32 s84, s84, {sW}\ns_lshl_b32 s84, s84, 8\ns_add_u32 s84, s84, {L.WS_STAMP}')
    E('v_and_b32 v1, 63, v0\nv_lshlrev_b32 v1, 2, v1')
    E(f'buffer_store_dword {vSTAMP}, v1, {srd(SRD_WS)}, s84 offen')
E('L_END:')
E('s_endpgm')
for k, load_txt in slow_paths:
    E.raw(f'''L_PS{k}:
    s_add_u32 s99, s99, 1
    s_cmp_gt_u32 s99, 400000
    s_cbranch_scc1 L_PR{k}
    s_sleep 1
    {load_txt}
    s_waitcnt vmcnt(0)
    s_branch L_PC{k}''')
E.raw('L_CODE_END:')
E.raw(KD_FMT.format(name=KN, vgpr=512, sgpr=102, accum=256, kernarg=88))
open(OUT, 'w').write(E.text())
print('insts', E.ninst, 'nops', E.n_nop, 'waits', E.n_wait)
```

```python
from kgen import Inst, VALU_CLS, VMEM_CLS


def I(x):
    return x if isinstance(x, (Inst, tuple)) else Inst(x)


class Stream:
    def __init__(self, name, items=(), own_vcc=False):
        self.name = name
        self.own_vcc = own_vcc
        self.edf = False
        self.items = []
        self.pos = 0
        self.sleep = 0
        self.add(items)

    def add(self, items):
        for x in items:
            if isinstance(x, str):
                for line in x.split('\n'):
                    line = line.strip()
                    if line and not line.startswith(';'):
                        self.items.append(Inst(line))
            else:
                self.items.append(x)
        self.reglue()

    def reglue(self):
        it = self.items
        for k, x in enumerate(it):
            if not isinstance(x, Inst):
                continue
            if x.op.startswith(('s_cselect', 's_cbranch_scc', 's_addc', 's_subb')):
                assert k > 0 and isinstance(it[k - 1], Inst), 'scc consumer without producer'
                x.glue = True
            if ('s', 'vcc') in x.reads and not self.own_vcc:
                q = k
                while True:
                    assert isinstance(it[q], Inst) and q > 0, 'vcc consumer without producer'
                    it[q].glue = True
                    q -= 1
                    assert isinstance(it[q], Inst), 'control item inside a vcc group'
                    if ('s', 'vcc') in it[q].writes:
                        break

    def done(self):
        return self.pos >= len(self.items)


class Op:
    def __init__(self, reads, mfmas, name=None, pre=None, requires=(), pre_requires=(), budget=None):
        self.reads = [I(x) for x in reads]
        self.mfmas = [I(x) for x in mfmas]
        self.name = name
        self.pre = pre
        self.requires = list(requires)
        self.pre_requires = list(pre_requires)
        self.budget = budget


def cost(inst):
    c = inst.cls
    if c in ('trans', 'permlane'):
        return 2.0
    if c in VALU_CLS:
        return 1.0
    if c in ('ds_read', 'ds_write'):
        return 1.0
    if c in VMEM_CLS:
        return 1.0
    if c in ('mfma4',):
        return 0.0
    if c in ('mfma8',):
        return -2.0
    return 1.0


def vcost(inst):
    if inst.cls not in VMEM_CLS:
        return 0.0
    if 'dwordx4' in inst.op:
        return 1.0
    return 0.3


def is_mem(inst):
    return inst.cls in VMEM_CLS or inst.cls in ('ds_read', 'ds_write')


class Sched:
    def __init__(self, E, streams):
        self.E = E
        self.streams = streams
        self.done_names = set()
        self.marks = set()
        self.hook = None
        self.credit = 0.0
        self.vcredit = 0.0
        self.vrate = 72.0
        self.vcap = 3.0
        self.memorder = None
        self.lat = 30
        self.deadline = {}
        self.log = []
        self.cur = 0

    def _head(self, s):
        while not s.done():
            x = s.items[s.pos]
            if isinstance(x, Inst):
                if s.sleep > 0:
                    return None
                return x
            kind = x[0]
            if kind == 'mark':
                if s.sleep > 0:
                    return None
                self.marks.add(x[1])
                self.log.append((self.cur, 'mark', x[1], 0))
                s.pos += 1
            elif kind == 'gap':
                if s.sleep > 0:
                    return None
                s.sleep = x[1]
                s.pos += 1
                return None
            elif kind == 'after':
                if x[1] in self.done_names or x[1] in self.marks:
                    s.pos += 1
                else:
                    return None
            elif kind == 'call':
                if s.sleep > 0:
                    return None
                s.pos += 1
                x[1]()
            else:
                raise ValueError(x)
        return None

    def emit1(self, s):
        c = 0
        while True:
            x = s.items[s.pos]
            self.E.emit(x)
            c += cost(x)
            self.vcredit -= vcost(x)
            s.pos += 1
            if s.done() or not isinstance(s.items[s.pos], Inst) or not s.items[s.pos].glue:
                return c

    def flush_until(self, mark):
        if mark in self.marks:
            return
        for s in self.streams:
            if any(isinstance(x, tuple) and x[0] == 'mark' and x[1] == mark for x in s.items[s.pos:]):
                n0 = self.E.ninst
                self.log.append((self.cur, 'flush', mark, n0))
                while mark not in self.marks:
                    s.sleep = 0
                    x = s.items[s.pos]
                    if isinstance(x, Inst):
                        self.emit1(s)
                    elif x[0] == 'after' and not (x[1] in self.done_names or x[1] in self.marks):
                        self.flush_until(x[1])
                        if not (x[1] in self.done_names or x[1] in self.marks):
                            raise RuntimeError(f'deadlock: mark {mark} needs {x[1]}')
                    else:
                        self._head(s)
                self.log.append((self.cur, 'flushed', mark, self.E.ninst - n0))
                return
        raise RuntimeError('unknown mark ' + mark)

    def slack(self, s):
        nv = 0
        for x in s.items[s.pos:s.pos + 60]:
            if isinstance(x, Inst):
                nv += vcost(x)
            elif x[0] == 'mark' and x[1] in self.deadline:
                return self.deadline[x[1]] - self.cur - 2.0 * nv
        return 1e9

    def fill(self, budget, maxmem=1, cyc=32):
        E = self.E
        self.vcredit = max(min(self.vcredit + cyc / self.vrate, self.vcap), -2.0)
        cap = budget + 1.0
        budget = min(budget + self.credit, cap)
        nm = 0
        order = list(self.memorder or self.streams)
        edf = sorted([s for s in order if s.edf], key=self.slack)
        order = [edf.pop(0) if s.edf else s for s in order]
        for s in order:
            urgent = s.edf and self.slack(s) < self.lat
            while nm < maxmem and (budget >= 1.0 or (urgent and nm == 0)):
                h = self._head(s)
                if h is None:
                    break
                k = s.pos
                while k < len(s.items) and isinstance(s.items[k], Inst) and s.items[k].cls in ('salu', 's_nop'):
                    k += 1
                if k < len(s.items) and isinstance(s.items[k], Inst) and is_mem(s.items[k]) and k - s.pos <= 4 \
                        and (not s.edf or vcost(s.items[k]) <= self.vcredit + 1e-6 or (urgent and nm == 0)):
                    while s.pos <= k:
                        budget -= self.emit1(s)
                    nm += 1
                else:
                    break
        for s in self.streams:
            while budget > 0:
                h = self._head(s)
                if h is None or is_mem(h):
                    break
                if cost(h) > budget + 0.01:
                    break
                budget -= self.emit1(s)
        self.credit = max(budget, -8.0)
        for s in self.streams:
            if s.sleep > 0:
                s.sleep -= 1

    def run(self, ops, D, WB, budget, maxmem=1, primed=0):
        E = self.E
        N = len(ops)
        self.deadline = {}
        for i, o in enumerate(ops):
            for m in o.requires:
                self.deadline.setdefault(m, i)
            for m in o.pre_requires:
                self.deadline.setdefault(m, i - D)

        def issue_reads(j):
            o = ops[j]
            for m in o.pre_requires:
                self.flush_until(m)
            if o.pre:
                o.pre()
            for k, x in enumerate(o.reads):
                x.tag = ('frag', id(o))
                E.emit(x)

        for j in range(primed, min(D, N)):
            issue_reads(j)
        for i in range(N):
            o = ops[i]
            self.cur = i
            for m in o.requires:
                self.flush_until(m)
            if i % WB == 0:
                E.wait_tags([('frag', id(ops[q])) for q in range(i, min(N, i + WB))])
            b = o.budget if o.budget is not None else budget
            for k, m in enumerate(o.mfmas):
                E.emit(m)
                if k == 0 and i + D < N:
                    issue_reads(i + D)
                self.fill(b / len(o.mfmas), maxmem, 34 / len(o.mfmas))
            if o.name:
                self.done_names.add(o.name)
            if self.hook:
                self.hook(i)

    def drain(self):
        progress = True
        while progress:
            progress = False
            for s in self.streams:
                while True:
                    s.sleep = 0
                    h = self._head(s)
                    if h is None:
                        if s.sleep > 0:
                            progress = True
                            continue
                        break
                    self.emit1(s)
                    progress = True
        for s in self.streams:
            if not s.done():
                raise RuntimeError(f'stream {s.name} blocked at {s.items[s.pos]}')
```

```python
import sys
import struct
sys.path.insert(0, 'gen')
from kgen import *
from sched import *
import layout as L

KN = 'parallel_sum__sliding_local_dilated__dense_activation_squared_relu__prompt_kernel'
OPT = dict(stamps=0, D=6, WB=3, bA=3.5, bQ=4.5, bB=3.5, bP=4.5, pubgap=30, pollgap=30, stouch=1, gtouch=1,
           hxgap=22, higap=22, egap=20, pgap=60, dmagap=0, bx=16, maxmem=2, vrate=62, vcap=3, rp2at=5, lat=30, pfwat=14, rxat=50)
for a in sys.argv[2:]:
    k, v = a.split('=')
    OPT[k] = float(v) if '.' in v else int(v)
OUT = sys.argv[1]

E = Emitter()
slow_paths = []
fl = lambda x: '0x%08x' % struct.unpack('<I', struct.pack('<f', x))[0]
OOB = '0x40000000'

sW, sR, sS, sC, sJ = 's4', 's5', 's6', 's7', 's8'
P_X, P_WQKV, P_WO, P_W1, P_B1, P_W2, P_B2 = 16, 18, 20, 24, 26, 28, 30
P_OUT, P_DBG, P_WS = 32, 34, 36
SRD_X, SRD_W1, SRD_WS, SRD_RP, SRD_B, SRD_OUT, SRD_DBG, SRD_EU = 40, 44, 48, 52, 56, 60, 64, 68
NONCE = 82
sSLW, sGF, sRPF, sCSA, sCSB, sGB = 's9', 's10', 's11', 's12', 's13', 's14'
sUST, sUS, sUD, sUC = 's15', 's38', 's39', 's3'
sA0, sA4, sB0, sB4, sQ0, sQ4 = 's16', 's17', 's18', 's19', 's20', 's21'
sPF = ['s22', 's23', 's24', 's25']
sGP = [None, 's26', 's27', 's28']
sXB, sXB2, sSTB = 's29', 's30', 's31'
M16 = 's[32:33]'
MX1, MX2 = 's[34:35]', 's[36:37]'
sL10, sL8, sL9, sBO, sC0, sC1 = 's72', 's73', 's74', 's75', 's80', 's81'
SPOLL = 's[78:79]'
tD0, tD1 = 's84', 's85'
tA0, tA1, tA2, tA3 = 's86', 's87', 's88', 's89'
tR0, tR1, tR2, tR3, tR4 = 's90', 's91', 's95', 's96', 's77'
tC0, tC1 = 's92', 's93'
tE0 = 's94'
tM0, tM1 = 's97', 's98'


def srd(n):
    return f's[{n}:{n + 3}]'


XN = 16
FR = 160
NF = 7
BIASR = 188
VDA = 196
VDB = 201
vTA = 'v205'
VTB = 4
vRL = 'v206'
vF0 = 'v207'
vTCH = 'v208'
vLANE16 = 'v209'
vTL = 'v210'
vRSTD = 'v211'
vXO = 'v212'
vREM = 'v213'
BCOR = 214
TMP = 218
vMASKHI = 'v254'
vSTAMP = 'v255'
vNON = 12
vPF = 8
vTD = 10
vPA = 'v15'
vTW = 'v0'
QA = 144
AK = [192, 200, 208, 216]
ONESR = 220

RING = [0, 40960, 81920]
AUX = 122880
LDS_TOTAL = 163840
QB = AUX
QB1 = QB + 4096
PITCH = 240
SLOTB = {g: RING[g % 3] for g in range(18)}
DMA_AFTER = {g: g - 1 for g in range(18)}
NSTG = 25
for g in range(18, NSTG):
    SLOTB[g] = [AUX, RING[0], RING[1], RING[2]][(g - 18) % 4]
    DMA_AFTER[g] = g - 2

nstamp = [0]


def stamp():
    if not OPT['stamps']:
        return
    k = nstamp[0]
    if k > 0:
        E(f'v_writelane_b32 {vSTAMP}, s100, {k - 1}')
    E('s_memtime s[100:101]')
    nstamp[0] += 1


def mk_srd(n, p, size):
    E(f's_mov_b32 s{n}, s{p}\ns_mov_b32 s{n + 1}, s{p + 1}\ns_mov_b32 s{n + 2}, {size}\ns_mov_b32 s{n + 3}, 0x20000')


def emit_all(lst):
    for x in lst:
        if isinstance(x, str):
            E(x)
        elif isinstance(x, Inst):
            E.emit(x)


def nodep(txt):
    ld = Inst(txt)
    ld.writes = set()
    return ld


hdr = open('parallel_sum__sliding_local_dilated__dense_activation_squared_relu__prompt.s.ref').read()
hdr = [l for l in hdr.split('\n') if l.startswith(';') and '@launch' not in l and 'Override' not in l and 'grid=ceil' not in l]
E.raw('\n'.join(hdr))
E.raw(f'; @launch grid=(256,1,1) block=(256,1,1) lds={LDS_TOTAL}')
E.raw(f'.amdgcn_target "amdgcn-amd-amdhsa--gfx950"\n.text\n.globl {KN}\n.p2align 8\n.type {KN},@function\n{KN}:')

E('s_cmp_ge_u32 s2, 256\ns_cbranch_scc1 L_END')
stamp()
E('s_load_dwordx16 s[16:31], s[0:1], 0')
E('s_load_dwordx4 s[32:35], s[0:1], 64')
E('s_load_dwordx2 s[36:37], s[0:1], 80')
E(f's_memrealtime s[{NONCE}:{NONCE + 1}]')
E('s_mov_b32 s99, 0')
E(f's_getpc_b64 s[{SRD_EU}:{SRD_EU + 1}]')
E('L_PCREF:')
E(f's_mov_b32 s{SRD_EU + 2}, L_CODE_END-L_PCREF\ns_mov_b32 s{SRD_EU + 3}, 0x20000')
E('v_lshlrev_b32 v2, 7, v0')
E('s_lshr_b32 s3, s2, 3\ns_and_b32 s3, s3, 1\ns_lshl_b32 s3, s3, 15')
E.emit(nodep(f'buffer_load_dword v{vTD}, v2, {srd(SRD_EU)}, s3 offen'))
E('v_lshrrev_b32 v1, 6, v0')
E(f'v_readfirstlane_b32 {sW}, v1')
E('v_and_b32 v1, 63, v0')
E(f'''s_and_b32 s84, s2, 7
s_lshr_b32 s85, s2, 3
s_lshr_b32 {sS}, s84, 1
s_and_b32 {sC}, s85, 3
s_and_b32 s84, s84, 1
s_lshl_b32 s84, s84, 3
s_lshr_b32 s85, s85, 2
s_add_u32 {sR}, s84, s85
s_lshl_b32 {sJ}, {sS}, 2
s_add_u32 {sJ}, {sJ}, {sC}
v_bfe_u32 v2, v1, 2, 3
v_mul_u32_u24 v2, 4608, v2
v_lshrrev_b32 v3, 5, v1
v_lshl_add_u32 v2, v3, 6, v2
v_and_b32 v4, 3, v1
v_lshl_add_u32 {vXO}, v4, 4, v2
v_mul_u32_u24 v5, 1152, v3
v_and_b32 v6, 31, v1
v_lshl_add_u32 v5, v6, 4, v5
v_mov_b32 v7, {OOB}
v_cmp_gt_u32 vcc, 8, v6
v_cndmask_b32 v6, v7, v5, vcc
v_lshlrev_b32 {vLANE16}, 4, v1
s_lshl_b32 s86, {sR}, 2
s_add_u32 s86, s86, {sW}
s_mul_i32 s86, s86, 36864
s_lshl_b32 s87, {sR}, 4
s_add_u32 s87, s87, {sJ}
s_lshl_b32 s87, s87, 2
s_add_u32 s87, s87, {sW}
s_mul_i32 s88, s87, 2304''')
for i in range(5):
    E(f'''v_add_u32 v8, {64 * i}, v1
v_mul_u32_u24 v9, 3277, v8
v_lshrrev_b32 v9, 16, v9
v_mul_u32_u24 v11, 20, v9
v_sub_u32 v11, v8, v11
v_mul_u32_u24 v9, 9216, v9
v_lshl_add_u32 v{VDA + i}, v11, 4, v9''')
    if i % 4:
        E(f'v_subrev_u32 v{VDA + i}, {(i % 4) * 1024}, v{VDA + i}')
E(f'''s_mul_i32 s89, {sJ}, 576
s_and_b32 s84, {sJ}, 1
s_cmp_eq_u32 s84, 0
s_cselect_b32 s90, 256, 0
s_cselect_b32 s91, 0, 320
s_mul_i32 s92, {sW}, {32 * 9216}
s_add_u32 s92, s92, s89
s_add_u32 s93, s92, s90
s_mul_i32 {sL10}, {sW}, 10240''')
E('s_waitcnt lgkmcnt(0)')
mk_srd(SRD_X, P_X, 2359296)
mk_srd(SRD_W1, P_W1, 5308416)
E1R = TMP + 16
for k in range(3):
    E(f'buffer_load_dwordx4 v[{E1R + 4 * k}:{E1R + 4 * k + 3}], {"v5" if k < 2 else "v6"}, {srd(SRD_X)}, s88 offen offset:{512 * k}')


def xload(q, sb=None):
    o = []
    for i in range(4):
        r = XN + 16 * q + 4 * i
        b, off = (sb or sXB, 128 * q) if q < 5 else (sXB2, 128 * (q - 5))
        o.append(Inst(f'buffer_load_dwordx4 v[{r}:{r + 3}], {vXO}, {srd(SRD_X)}, {b} offen offset:{1152 * i + off}', tag=f'x{q}'))
    o.append(('mark', f'xl{q}'))
    return o


TOUCH_ONLY = [False]


def touch(fn, *a):
    TOUCH_ONLY[0] = True
    o = fn(*a)
    TOUCH_ONLY[0] = False
    return o


def dma_a(u, sb=None):
    g = u
    base = SLOTB[g]
    out = [f's_add_u32 {tD0}, {sb or sA0}, {u * 128 * 9216}' if u < 4 else f's_mov_b32 {tD0}, {sA4}']
    if TOUCH_ONLY[0]:
        return out + [nodep(f'buffer_load_dword v{vTD}, {vTW}, {srd(SRD_W1)}, {tD0} offen')]
    lw = sL10
    if u == 4:
        out.append(f's_lshr_b32 {tD1}, {sL10}, 1')
        lw = tD1
    for gr in range(2 if u < 4 else 1):
        if gr:
            out.append(f's_add_u32 {tD0}, {tD0}, {16 * 9216}')
        for i in range(5):
            if i % 4 == 0:
                out.append(f's_add_u32 m0, {lw}, {base + gr * 5120 + i * 1024}')
            out.append(Inst(f'buffer_load_dwordx4 v{VDA + i}, {srd(SRD_W1)}, {tD0} offen offset:{(i % 4) * 1024} lds', tag=f'st{g}'))
    return out


def lin_pieces(g, lw, lbase, npc):
    out = []
    for i in range(npc):
        if i % 4 == 0:
            out.append(f's_add_u32 m0, {lw}, {lbase + i * 1024}' if lw else f's_mov_b32 m0, {lbase + i * 1024}')
            if i:
                out.append(f's_add_u32 {tD0}, {tD0}, 4096')
        out.append(Inst(f'buffer_load_dwordx4 {vLANE16}, {srd(SRD_WS)}, {tD0} offen offset:{(i % 4) * 1024} sc1 lds', tag=f'st{g}'))
    return out


def cs_pieces(g, src, lofs, n):
    o = [f's_lshl_b32 {tD1}, {sW}, 10', f's_add_u32 {tD0}, {src}, {tD1}'] + lin_pieces(g, tD1, SLOTB[g] + lofs, 1)
    if n == 5:
        o += [f's_add_u32 {tD0}, {src}, 4096'] + lin_pieces(g, None, SLOTB[g] + lofs + 4096, 1)
    return o


def dma_b(u):
    g = 10 + u
    base = SLOTB[g]
    out = [f's_add_u32 {tD0}, {sB0}, {u * 128 * 9216}' if u < 4 else f's_mov_b32 {tD0}, {sB4}']
    if TOUCH_ONLY[0]:
        return out + [nodep(f'buffer_load_dword v{vTD}, {vTW}, {srd(SRD_W1)}, {tD0} offen')]
    lw = sL8
    if u == 4:
        out.append(f's_lshr_b32 {tD1}, {sL8}, 1')
        lw = tD1
    for gr in range(2 if u < 4 else 1):
        if gr:
            out.append(f's_add_u32 {tD0}, {tD0}, {16 * 9216}')
        out.append(f's_add_u32 m0, {lw}, {base + gr * 4096}')
        for i in range(4):
            out.append(Inst(f'buffer_load_dwordx4 v{VDB + i}, {srd(SRD_W1)}, {tD0} offen offset:{i * 1024} lds', tag=f'st{g}'))
    if u == 0:
        out += cs_pieces(g, sCSB, 32768, 4)
    return out


def dma_lin(g, setup, lw, npc):
    if TOUCH_ONLY[0]:
        return [setup[-1]] + [nodep(f'buffer_load_dword v{vTD}, {vTL}, {srd(SRD_WS)}, {tD0} offen sc1')]
    return list(setup) + lin_pieces(g, lw, SLOTB[g], npc)


def dma_q(u):
    g = 5 + u
    if u < 4:
        o = dma_lin(g, [f's_add_u32 {tD0}, {sQ0}, {u * 32768}'], sL8, 8)
        if u == 0 and not TOUCH_ONLY[0]:
            o = cs_pieces(g, sCSA, 32768, 5) + o
        return o
    o = dma_lin(g, [f's_lshr_b32 {tD1}, {sL8}, 1', f's_mov_b32 {tD0}, {sQ4}'], tD1, 4)
    if not TOUCH_ONLY[0]:
        o += [f's_lshl_b32 {tM1}, {sJ}, 12', f's_add_u32 {tM1}, {tM1}, {L.WS_CSQ}'] + cs_pieces(g, tM1, 16384, 4)
    return o


RUNS = [('A', k) for k in range(4)] + [('B', k) for k in range(4)]


def dma_p(p):
    kind, k = RUNS[p]
    g = 15 + p
    if k % 2 == 0:
        o = dma_lin(g, [f's_mov_b32 {tD0}, {sPF[k]}' if kind == 'A' else f's_add_u32 {tD0}, {sPF[k]}, {sBO}'], sL10, 10)
    else:
        o = dma_lin(g, [f's_mov_b32 {tD0}, {sPF[k]}' if kind == 'A' else f's_add_u32 {tD0}, {sPF[k]}, 30720'], sL8, 8)
    if p == 7 and not TOUCH_ONLY[0]:
        o += [f's_lshl_b32 {tD1}, {sW}, 10', f's_add_u32 {tD0}, {tD1}, {240 * 1024}', f's_cmp_eq_u32 {sW}, 3',
              f's_cselect_b32 {tD0}, {L.SLABW_S + 40 * 1024}, {tD0}', f's_add_u32 {tD0}, {tD0}, {sSLW}'] + lin_pieces(g, tD1, SLOTB[g] + 32768, 1)
        o += [f's_add_u32 {tD0}, {sSLW}, {L.SLABW_O + 80 * 1024}'] + lin_pieces(g, None, SLOTB[g] + 36864, 1)
    return o


def dma_c(u):
    return dma_lin(23 + u, [f's_mov_b32 {tD0}, {(sC0, sC1)[u]}'], sL10, 10)


A0L = dma_a(0, 's93')
cut = [i for i, x in enumerate(A0L) if isinstance(x, Inst)][4] + 1
emit_all(xload(0, 's86') + A0L[:cut])
E(f's_mov_b32 s97, {tD0}')
stamp()
mk_srd(SRD_DBG, P_DBG, 256)
E(f'''s_or_b32 s{NONCE}, s{NONCE}, 1
v_mov_b32 v8, s{NONCE}
v_mov_b32 v9, s{NONCE + 1}
v_mov_b32 v14, 0
v_cmp_eq_u32 vcc, 0, v1
v_cndmask_b32 {vF0}, v7, v14, vcc
s_or_b32 s85, s2, {sW}
s_cmp_eq_u32 s85, 0
s_cselect_b32 s85, 0, {OOB}''')
E(f'buffer_store_dwordx2 v[8:9], {vF0}, {srd(SRD_DBG)}, s85 offen sc1')
mk_srd(SRD_WS, P_WS, 0x10000000)
mk_srd(SRD_B, P_B1, 9216)
mk_srd(SRD_OUT, P_OUT, 2359296)
E(f'''s_cmp_lt_u32 s2, 144
s_cselect_b32 s{SRD_RP}, s{P_W2}, s{P_WO}
s_cselect_b32 s{SRD_RP + 1}, s{P_W2 + 1}, s{P_WO + 1}
s_mov_b32 s{SRD_RP + 2}, 5308416
s_cselect_b32 s{SRD_RP + 2}, s{SRD_RP + 2}, 663552
s_mov_b32 s{SRD_RP + 3}, 0x20000''')
vU, vA1, vZ = 'v2', 'v3', f'v{TMP + 32}'
E(f'''s_and_b32 s84, s2, 3
s_lshr_b32 s85, {sW}, 1
s_lshl_b32 s85, s85, 5
s_and_b32 s94, {sW}, 1
s_lshl_b32 s94, s94, 2
s_add_u32 s85, s85, s94
s_lshl_b32 s94, s84, 3
s_add_u32 s85, s85, s94
v_lshrrev_b32 v8, 4, v1
v_and_b32 v9, 15, v1
v_bfe_u32 v11, v1, 4, 1
v_lshrrev_b32 v3, 5, v1
v_lshlrev_b32 v3, 3, v3
v_bfe_u32 v15, v1, 2, 2
v_add_u32 v3, v3, v15
v_lshlrev_b32 v3, 8, v3
v_add_u32 v3, {AUX}, v3
s_cmp_ge_u32 s2, 64
s_cbranch_scc1 L_EU_W1
s_lshr_b32 s94, s2, 2
s_mov_b32 s{SRD_EU}, s{P_WQKV}
s_mov_b32 s{SRD_EU + 1}, s{P_WQKV + 1}
s_mov_b32 s{SRD_EU + 2}, 1990656
s_mov_b32 {sUST}, {64 * 3456}
s_mul_i32 {sUS}, s85, 3456
s_mul_i32 s95, s94, 72
s_add_u32 {sUS}, {sUS}, s95
s_mul_i32 {sUD}, s94, {L.SLABQ_SZ}
s_lshl_b32 s95, s84, 2
s_add_u32 s95, s95, {sW}
s_lshl_b32 s95, s95, 10
s_add_u32 {sUD}, {sUD}, s95
s_add_u32 {sUD}, {sUD}, {L.WS_SLABQ}
s_lshl_b32 {sUC}, s94, 12
s_add_u32 {sUC}, {sUC}, {L.WS_CSQ}
s_mov_b32 s96, {OOB}
v_mul_u32_u24 v8, 3456, v8
v_mul_u32_u24 v15, 13, v9
v_lshrrev_b32 v15, 6, v15
v_mul_u32_u24 v2, 5, v15
v_sub_u32 v9, v9, v2
v_mul_u32_u24 v15, 1152, v15
v_add_u32 v8, v8, v15
v_lshl_add_u32 {vU}, v9, 4, v8
v_lshlrev_b32 v11, 2, v11
v_and_b32 v8, 1, v1
v_lshl_add_u32 v11, v8, 1, v11
v_bfe_u32 v8, v1, 1, 1
v_add_u32 v11, v11, v8
s_lshl_b32 s95, {sW}, 3
v_add_u32 v11, s95, v11
v_min_u32 v11, 26, v11
v_mul_u32_u24 v8, 57, v11
v_lshrrev_b32 v8, 9, v8
v_lshl_add_u32 v11, v11, 3, v3
v_lshl_add_u32 {vA1}, v8, 3, v11
s_branch L_EU_DONE
L_EU_W1:
s_sub_u32 s94, s2, 64
s_lshr_b32 s94, s94, 2
s_mov_b32 s{SRD_EU}, s{P_W1}
s_mov_b32 s{SRD_EU + 1}, s{P_W1 + 1}
s_mov_b32 s{SRD_EU + 2}, 5308416
s_mov_b32 {sUST}, {64 * 9216}
s_mul_i32 {sUS}, s85, 9216
s_lshl_b32 s95, s94, 8
s_add_u32 {sUS}, {sUS}, s95
s_mov_b32 {sUD}, {OOB}
s_lshl_b32 {sUC}, s94, 12
s_add_u32 {sUC}, {sUC}, {L.WS_CSF}
s_lshl_b32 s96, {sW}, 6
s_add_u32 s96, s96, s95
s_cmp_eq_u32 s84, 0
s_cselect_b32 s96, s96, {OOB}
s_cmp_lt_u32 s2, 208
s_cselect_b32 {sUS}, {sUS}, {OOB}
s_cselect_b32 {sUC}, {sUC}, {OOB}
v_mul_u32_u24 v8, 9216, v8
v_lshl_add_u32 {vU}, v9, 4, v8
v_lshl_add_u32 v3, v11, 5, v3
v_lshl_add_u32 v3, v4, 3, v3
s_lshl_b32 s95, {sW}, 6
v_add_u32 {vA1}, s95, v3
L_EU_DONE:
s_lshl_b32 s95, {sW}, 10
s_add_u32 {sUC}, {sUC}, s95
s_lshl_b32 s94, s84, 2
s_add_u32 {sUC}, {sUC}, s94
v_and_b32 v8, 31, v1
v_lshlrev_b32 v8, 1, v8
s_nop 2''')
E(f's_mov_b32 {tD0}, s97')
emit_all(A0L[cut:] + xload(1, 's86'))
E(f'buffer_load_ushort {vZ}, v8, {srd(SRD_B)}, s96 offen')
mk_srd(SRD_B, P_B2, 1152)
E(f'''s_mov_b32 {sXB}, s86
s_add_u32 {sXB2}, s86, 640
s_mov_b32 {sA0}, s93
s_add_u32 {sB0}, s92, s91
s_mul_i32 s84, {sW}, {16 * 9216}
s_add_u32 s84, s84, {512 * 9216}
s_add_u32 s84, s84, s89
s_add_u32 {sA4}, s84, s90
s_add_u32 {sB4}, s84, s91
s_lshl_b32 {sL8}, {sW}, 13
s_mul_i32 {sL9}, {sW}, 9216
s_mov_b32 {sBO}, 30720
s_cmp_eq_u32 {sW}, 3
s_cselect_b32 {sBO}, 10240, {sBO}
s_mul_i32 s84, {sJ}, {L.SLABQ_SZ}
s_add_u32 s84, s84, {L.WS_SLABQ}
s_add_u32 {sQ0}, s84, {sL8}
s_lshl_b32 s85, {sW}, 12
s_add_u32 {sQ4}, s84, s85
s_add_u32 {sQ4}, {sQ4}, {8 * 16384}
s_mul_i32 s84, {sJ}, 9216
s_add_u32 s84, s84, {L.WS_CSF}
s_lshl_b32 s90, s90, 4
s_lshl_b32 s91, s91, 4
s_add_u32 {sCSA}, s84, s90
s_add_u32 {sCSB}, s84, s91
s_mul_i32 {sGB}, s87, {L.G_WAVE}
s_add_u32 {sGB}, {sGB}, {L.WS_G}
s_mul_i32 {sSLW}, {sJ}, {L.SLABW_SZ}
s_add_u32 {sSLW}, {sSLW}, {L.WS_SLABW}''')
for k in range(4):
    E(f's_add_u32 s84, {sC}, {k}\ns_and_b32 s84, s84, 3\ns_mul_i32 s85, s84, 61440\ns_add_u32 s85, s85, {sL10 if k % 2 == 0 else sL8}')
    if k % 2 == 0:
        E(f's_lshr_b32 s90, s84, 1\ns_mul_i32 s90, s90, 20480\ns_add_u32 s90, s90, {L.SLABW_S}')
        E(f's_cmp_eq_u32 {sW}, 3\ns_cselect_b32 s85, s90, s85')
    E(f's_add_u32 {sPF[k]}, s85, {sSLW}')
    if k:
        E(f's_sub_u32 s84, s84, {sC}\ns_mul_i32 s84, s84, {L.G_WG}\ns_add_u32 {sGP[k]}, s84, {sGB}')
for u, d in enumerate((sC0, sC1)):
    E(f's_lshr_b32 s84, {sW}, 1\ns_add_u32 s84, s84, {sC}\ns_add_u32 s84, s84, {2 - 2 * u}\ns_and_b32 s84, s84, 3\ns_mul_i32 s84, s84, 20480\n'
      f's_and_b32 s85, {sW}, 1\ns_mul_i32 s85, s85, 10240\ns_add_u32 s84, s84, s85\ns_add_u32 s84, s84, {sSLW}\ns_add_u32 {d}, s84, {L.SLABW_O}')
E(f'''s_lshl_b32 {sGF}, {sR}, 2
s_add_u32 {sGF}, {sGF}, {sS}
s_lshl_b32 {sGF}, {sGF}, 2
s_add_u32 {sGF}, {sGF}, {sW}
s_lshl_b32 {sGF}, {sGF}, 7
s_add_u32 {sGF}, {sGF}, {L.WS_FLAG_G}
s_lshl_b32 {sSTB}, {sR}, 2
s_add_u32 {sSTB}, {sSTB}, {sW}
s_lshl_b32 {sSTB}, {sSTB}, 7
s_add_u32 {sSTB}, {sSTB}, {L.WS_STAT}
s_mov_b64 {M16}, 0xffff
s_mov_b32 s34, 0x55555555
s_mov_b32 s35, 0x55555555
s_mov_b32 s36, 0x33333333
s_mov_b32 s37, 0x33333333''')
for i in range(9):
    E(f's_add_u32 m0, s95, {AUX + i * 4096}')
    E(f'buffer_load_dwordx4 {vU}, {srd(SRD_EU)}, {sUS} offen lds', tag='eu')
    if i < 8:
        E(f's_add_u32 {sUS}, {sUS}, {sUST}')
E(f'''s_and_b32 s84, {sR}, 7
v_mul_u32_u24 v8, 86, v1
v_lshrrev_b32 v8, 8, v8
v_mul_u32_u24 v9, 3, v8
v_sub_u32 v9, v1, v9
s_lshl_b32 s85, s84, 2
v_add_u32 v8, s85, v8
v_mul_u32_u24 v8, 9216, v8
v_lshl_add_u32 v8, v9, 7, v8
v_cmp_gt_u32 vcc, 12, v1
v_cndmask_b32 {vTW}, v7, v8, vcc
v_lshlrev_b32 {vTCH}, 7, v1
s_mul_i32 s85, s84, {10 * 128}
v_add_u32 v8, s85, {vTCH}
v_cmp_gt_u32 vcc, 10, v1
v_cndmask_b32 {vTL}, v7, v8, vcc
v_lshrrev_b32 v8, 5, v1
v_lshlrev_b32 v8, 5, v8
v_bfe_u32 v9, v1, 2, 2
v_add_u32 v8, v8, v9
v_bfe_u32 v11, v1, 4, 1
v_lshlrev_b32 v11, 5, v11
v_lshl_add_u32 v11, v4, 3, v11
v_mul_u32_u24 v15, 320, v8
v_add_u32 {vTA}, v15, v11
v_lshl_add_u32 v15, v8, 8, v11
v_add_u32 v15, {SLOTB[10]}, v15
v_lshrrev_b32 v8, 4, v1
v_xor_b32 v11, v9, v8
v_mul_u32_u24 v8, 9216, v8
v_lshl_add_u32 v8, v11, 6, v8
v_lshl_add_u32 v{VDB}, v4, 4, v8''')
for i in range(1, 4):
    E(f'v_add_u32 v{VDB + i}, {i * (4 * 9216 - 1024)}, v{VDB}')
E(f'''v_mov_b32 {vMASKHI}, 0xffff0000
v_cndmask_b32 {vREM}, v7, {vLANE16}, {M16}
v_mov_b32 v{TMP + 33}, v7''')
for t in range(4):
    E(f'v_xor_b32 v8, {t}, v9\nv_lshl_add_u32 v{TMP + t}, v8, 6, v15')
E(f'''v_and_b32 v8, 15, v1
v_lshrrev_b32 v9, 4, v1
v_lshlrev_b32 v9, 2, v9
v_sub_u32 v8, v8, v9
v_mov_b32 v15, 0xf149f2ca
v_mov_b32 v9, 0x3f803f80''')
for i in range(4):
    E(f'''v_accvgpr_write_b32 a{ONESR + i}, v9
v_subrev_u32 v11, {i}, v8
v_and_b32 v11, 0x80000001, v11
v_cmp_eq_u32 vcc, 0, v11
v_cndmask_b32 v{BIASR + 4 + i}, v15, v14, vcc
v_xor_b32 v11, 0x80000000, v11
v_cmp_eq_u32 vcc, 0, v11
v_cndmask_b32 v{BIASR + i}, v15, v14, vcc''')
E(f'''v_and_b32 v8, 31, v1
s_lshl_b32 s85, {sJ}, 2
v_add_u32 v11, s85, v8
s_mul_i32 s85, {sJ}, 9
s_andn2_b32 s85, s85, 3
s_add_u32 s85, s85, 60
v_add_u32 v15, s85, v8
v_min_u32 v15, 207, v15
v_cmp_gt_u32 vcc, 4, v8
v_cndmask_b32 v11, v15, v11, vcc
v_bfe_u32 v15, v1, 2, 2
v_lshlrev_b32 v15, 1, v15
v_lshl_add_u32 v15, v4, 3, v15
s_lshl_b32 s85, s84, 5
s_lshr_b32 s84, {sR}, 3
s_add_u32 s85, s85, s84
v_add_u32 v15, s85, v15
v_cmp_gt_u32 vcc, 16, v8
v_cndmask_b32 v11, v15, v11, vcc
v_lshlrev_b32 v11, 3, v11
v_add_u32 {vPA}, {L.WS_FLAG_E}, v11''')
for t in range(4):
    E(f'v_mov_b32 v{VTB + t}, v{TMP + t}')
stamp()
emit_all(xload(2) + xload(3))
stamp()
a0, a1, q0, q1 = (f'v{TMP + i}' for i in range(4))
E(f'v_mov_b32 {a0}, 0\nv_mov_b32 {a1}, 0\nv_mov_b32 {q0}, 0\nv_mov_b32 {q1}, 0')
for e in range(12):
    r = f'v{E1R + e}'
    E(f'v_dot2_f32_bf16 {(a0, a1)[e & 1]}, {r}, v9, {(a0, a1)[e & 1]}')
    E(f'v_dot2_f32_bf16 {(q0, q1)[e & 1]}, {r}, {r}, {(q0, q1)[e & 1]}')
E(f'v_add_f32 {a0}, {a0}, {a1}\nv_add_f32 {q0}, {q0}, {q1}')
for sh in (1, 2, 4, 8):
    E(f'v_add_f32_dpp {a0}, {a0}, {a0} row_shr:{sh} row_mask:0xf bank_mask:0xf bound_ctrl:0')
    E(f'v_add_f32_dpp {q0}, {q0}, {q0} row_shr:{sh} row_mask:0xf bank_mask:0xf bound_ctrl:0')
E(f'v_add_f32_dpp {a0}, {a0}, {a0} row_bcast:15 row_mask:0xa bank_mask:0xf')
E(f'v_add_f32_dpp {q0}, {q0}, {q0} row_bcast:15 row_mask:0xa bank_mask:0xf')
E(f'''v_mul_f32 {a0}, 0x3ae38e39, {a0}
v_mul_f32 {q0}, 0x3ae38e39, {q0}
v_fma_f32 {q0}, -{a0}, {a0}, {q0}
v_max_f32 {q0}, 0, {q0}
v_cvt_pk_bf16_f32 {q0}, {q0}, {q0}
v_lshlrev_b32 {q0}, 16, {q0}
v_add_f32 {q0}, 0x3727c5ac, {q0}
v_cvt_pk_bf16_f32 {q0}, {q0}, {q0}
v_lshlrev_b32 {q0}, 16, {q0}
v_sqrt_f32 {q0}, {q0}
v_and_b32 {a1}, 31, v1
v_cvt_pk_bf16_f32 {a0}, {a0}, {q0}
v_lshrrev_b32 {q1}, 5, v1
v_lshlrev_b32 {q1}, 2, {q1}
v_cmp_eq_u32 vcc, 31, {a1}
v_cndmask_b32 {q1}, v{TMP + 33}, {q1}, vcc
s_lshl_b32 s84, s87, 3
s_add_u32 s84, s84, {L.WS_STAT}''')
E(f'buffer_store_dword {a0}, {q1}, {srd(SRD_WS)}, s84 offen sc1', tag='eust')
NONL = f'buffer_load_dwordx2 v[{vNON}:{vNON + 1}], v14, {srd(SRD_DBG)}, 0 offen sc1'
stamp()

X1 = 'quad_perm:[1,0,3,2] row_mask:0xf bank_mask:0xf'
X2 = 'quad_perm:[2,3,0,1] row_mask:0xf bank_mask:0xf'


def transpose_seg(q):
    R = lambda i, d: f'v{XN + 16 * q + 4 * i + d}'
    Tm = lambda i, d: f'v{TMP + 4 * i + d}'
    o = [f's_mov_b64 vcc, {MX1}']
    for i0 in (0, 2):
        for d in range(4):
            o.append(f'v_cndmask_b32_dpp {Tm(i0, d)}, {R(i0 + 1, d)}, {R(i0, d)}, vcc {X1}')
    o.append('s_not_b64 vcc, vcc')
    for i0 in (0, 2):
        for d in range(4):
            o.append(f'v_cndmask_b32_dpp {Tm(i0 + 1, d)}, {R(i0, d)}, {R(i0 + 1, d)}, vcc {X1}')
    o.append(f's_mov_b64 vcc, {MX2}')
    for i0 in (0, 1):
        for d in range(4):
            o.append(f'v_cndmask_b32_dpp {R(i0, d)}, {Tm(i0 + 2, d)}, {Tm(i0, d)}, vcc {X2}')
        o.append(('mark', f't{q}_{i0}'))
    o.append('s_not_b64 vcc, vcc')
    for i0 in (0, 1):
        for d in range(4):
            o.append(f'v_cndmask_b32_dpp {R(i0 + 2, d)}, {Tm(i0, d)}, {Tm(i0 + 2, d)}, vcc {X2}')
        o.append(('mark', f't{q}_{i0 + 2}'))
    return o


k = 0
for x in transpose_seg(0):
    if isinstance(x, str):
        E(x)
        k += 1
        if k % 3 == 0:
            E('v_nop')
stamp()

fragi = [0]


def newfrag():
    f = FR + 4 * (fragi[0] % NF)
    fragi[0] += 1
    return f


RA = OPT['rp2at']
BAR_TAGS = {2: ['eust'], RA + 1: ['rp2'], RA + 4: ['rp2st']}
BAR_MARKS = {2: ['eudone'], RA + 1: ['rp2dma'], RA + 3: ['rp2done'], 17: ['odone']}


def barrier(g, post=()):
    def f():
        if OPT['stamps'] > 2:
            stamp()
        E.wait_tags([f'st{g}'] + BAR_TAGS.get(g, []))
        E('s_barrier')
        if OPT['stamps'] > 1:
            stamp()
        S.marks.add(f'B{g}')
        if 'odone' in S.marks:
            S.marks.add('Bodone')
        S.log.append((S.cur, 'BARRIER', g, 0))
        emit_all(post)
    return f


def eu_barrier():
    E.wait_tags(['eu'])
    E('s_barrier')
    S.marks.add('Bx')


def prereq(g):
    return ([f'dma{g}'] if g >= 1 else []) + BAR_MARKS.get(g, [])


def rl_post(g):
    return [f'v_add_u32 {vRL}, {SLOTB[g]}, {vLANE16}']


ops = []
for q in range(9):
    u, sg = q // 2, q % 2
    g = u
    for k, (jj, n) in enumerate([(jj, n) for jj in range(4) for n in range(5)]):
        f = newfrag()
        off = sg * 20480 + 8 * jj * 320 + 64 * n
        x = XN + 16 * q + 4 * jj
        first = (k == 0 and sg == 0)
        post = []
        if g:
            d = SLOTB[g] - SLOTB[g - 1]
            post = [f'v_add_u32 {vTA}, {d}, {vTA}' if d > 0 else f'v_subrev_u32 {vTA}, {-d}, {vTA}']
        acc = f'a[{16 * n}:{16 * n + 15}]'
        ops.append(Op([f'ds_read_b64_tr_b16 v[{f}:{f + 1}], {vTA} offset:{off}',
                       f'ds_read_b64_tr_b16 v[{f + 2}:{f + 3}], {vTA} offset:{off + 4 * 320}'],
                      [f'v_mfma_f32_32x32x16_bf16 {acc}, v[{f}:{f + 3}], v[{x}:{x + 3}], {"0" if (q == 0 and jj == 0) else acc}'],
                      name=f'a{q}' if k == 0 else None,
                      pre=barrier(g, post) if first else (eu_barrier if (q == 0 and k == OPT['bx']) else None),
                      requires=[f't{q}_{jj}'] if q else [],
                      pre_requires=prereq(g) if first else [], budget=OPT['bA']))
for n in range(5):
    f = newfrag()
    acc = f'a[{16 * n}:{16 * n + 15}]'
    ops.append(Op([f'ds_read_b128 v[{f}:{f + 3}], {vRL} offset:{32768 + 1024 * n}'],
                  [f'v_mfma_f32_32x32x16_bf16 {acc}, v[{f}:{f + 3}], v[{BCOR}:{BCOR + 3}], {acc}'],
                  name=f'fin{n}', pre=barrier(5, rl_post(5)) if n == 0 else None, pre_requires=prereq(5) if n == 0 else [],
                  requires=['bcor'], budget=OPT['bQ']))
for q in range(9):
    u, sg = q // 2, q % 2
    g = 5 + u
    for k, (jj, t4) in enumerate([(jj, t4) for jj in range(4) for t4 in range(4)]):
        f = newfrag()
        x = XN + 16 * q + 4 * jj
        acc = f'a[{QA + 16 * t4}:{QA + 16 * t4 + 15}]'
        first = (k == 0 and sg == 0 and u > 0)
        ops.append(Op([f'ds_read_b128 v[{f}:{f + 3}], {vRL} offset:{(sg * 16 + jj * 4 + t4) * 1024}'],
                      [f'v_mfma_f32_32x32x16_bf16 {acc}, v[{f}:{f + 3}], v[{x}:{x + 3}], {"0" if (q == 0 and jj == 0) else acc}'],
                      pre=barrier(g, rl_post(g)) if first else None,
                      pre_requires=prereq(g) if first else [], budget=OPT['bQ']))
for t4 in (1, 2, 3, 0):
    f = newfrag()
    acc = f'a[{QA + 16 * t4}:{QA + 16 * t4 + 15}]'
    ops.append(Op([f'ds_read_b128 v[{f}:{f + 3}], {vRL} offset:{16384 + 1024 * t4}'],
                  [f'v_mfma_f32_32x32x16_bf16 {acc}, v[{f}:{f + 3}], v[{BCOR}:{BCOR + 3}], {acc}'], name=f'qfin{t4}', budget=OPT['bQ']))
for t in range(4):
    f = newfrag()
    lam = 5 + t
    ops.append(Op([f'ds_read_b128 v[{f}:{f + 3}], {vRL} offset:{32768 + 1024 * t}'],
                  [f'v_mfma_f32_32x32x16_bf16 a[{16 * lam}:{16 * lam + 15}], v[{f}:{f + 3}], v[{BCOR}:{BCOR + 3}], 0'],
                  pre=barrier(10, rl_post(10)) if t == 0 else None, pre_requires=prereq(10) if t == 0 else [],
                  name=f'bcor{t}', budget=OPT['bQ']))
for q in range(9):
    u, sg = q // 2, q % 2
    g = 10 + u
    order = [(jj, n) for jj in range(4) for n in range(4)] if q < 8 else [(jj, n) for n in range(4) for jj in range(4)]
    for k, (jj, t) in enumerate(order):
        f = newfrag()
        lam = 5 + t
        off = sg * 16384 + 8 * jj * 256
        x = XN + 16 * q + 4 * jj
        first = (k == 0 and sg == 0 and u > 0)
        post = []
        if u > 0:
            d = SLOTB[g] - SLOTB[g - 1]
            post = [(f'v_add_u32 v{VTB + i}, {d}, v{VTB + i}' if d > 0 else f'v_subrev_u32 v{VTB + i}, {-d}, v{VTB + i}') for i in range(4)]
        ops.append(Op([f'ds_read_b64_tr_b16 v[{f}:{f + 1}], v{VTB + t} offset:{off}',
                       f'ds_read_b64_tr_b16 v[{f + 2}:{f + 3}], v{VTB + t} offset:{off + 4 * 256}'],
                      [f'v_mfma_f32_32x32x16_bf16 a[{16 * lam}:{16 * lam + 15}], v[{f}:{f + 3}], v[{x}:{x + 3}], a[{16 * lam}:{16 * lam + 15}]'],
                      name=f'fin{lam}' if (q == 8 and jj == 3) else (f'bs{q}' if k == 15 else None), pre=barrier(g, post) if first else None,
                      pre_requires=prereq(g) if first else [], budget=OPT['bB']))


def HP(lam):
    return 8 * lam if lam < 5 else 80 + 8 * (lam - 5)


ACT = {}
for ks in range(18):
    ACT[(0, ks)] = ('a', HP(ks // 2) + 4 * (ks & 1))
pool = [('a', 144 + 4 * i) for i in range(12)] + [('a', 40), ('a', 44)] + [('v', 16 + 4 * i) for i in range(18)] + \
       [('a', 192 + 4 * i) for i in range(8)] + [('v', 88 + 4 * i) for i in range(18)] + [('a', 128 + 4 * i) for i in range(4)] + [('v', BIASR)]
order = [(k, ks) for k in (1, 2, 3) for ks in range(10)] + [(0, 18), (0, 19)] + [(k, ks) for k in (1, 2, 3) for ks in range(10, 20)] + ['rem']
assert len(pool) == len(order)
for key, r in zip(order, pool):
    ACT[key] = r
ACT['remS'] = ('v', BIASR + 4)


def act_regs(key):
    k, r = ACT[key]
    return f'{k}[{r}:{r + 3}]'


def kname(key):
    return key if isinstance(key, str) else f'{key[0]}_{key[1]}'


ACC2 = [48, 64, 224, 240, 112]


def acc2(n):
    return f'a[{ACC2[n]}:{ACC2[n] + 15}]'


def act_req(key):
    if key != 'rem' and key != 'remS' and key[0] == 0 and key[1] < 18:
        return [f'h{key[1] // 2}']
    return [f'act{kname(key)}']


def p2op(g, pos, n, key, zero=False, first=False, name=None, req=()):
    f = newfrag()
    ops.append(Op([f'ds_read_b128 v[{f}:{f + 3}], {vRL} offset:{pos * 1024}'],
                  [f'v_mfma_f32_32x32x16_bf16 {acc2(n)}, v[{f}:{f + 3}], {act_regs(key)}, {"0" if zero else acc2(n)}'],
                  name=name, pre=barrier(g, rl_post(g)) if first else None, pre_requires=prereq(g) if first else [],
                  requires=act_req(key) + list(req), budget=OPT['bP']))


for p, (kind, k) in enumerate(RUNS[:7]):
    g = 15 + p
    for kk in range(10):
        key = (k, kk + (10 if kind == 'B' else 0))
        z = (p == 0 and kk == 0)
        for n in range(3):
            p2op(g, kk * 3 + n, n, key, zero=z, first=(kk == 0 and n == 0), req=['h4'] if z else [])
        if k % 2 == 0:
            p2op(g, 30 + kk, 3, key, zero=z)
p2op(22, 35, 3, 'remS', name='pend3', first=True)
for n in range(3):
    for kk in range(10):
        p2op(22, kk * 3 + n, n, (3, 10 + kk))
    p2op(22, 32 + n, n, 'rem', name=f'pend{n}')
p2op(22, 36, 4, 'rem', zero=True, name='c0')
for u, pair in enumerate(((2, 3), (1, 0))):
    for k in pair:
        for ks in (list(range(10, 20)) + list(range(10))):
            nm = 'rxfree' if (k == 1 and ks == 19) else None
            p2op(23 + u, (k & 1) * 20 + ks, 4, (k, ks), first=(k == pair[0] and ks == 10), name=nm)

npoll = [0]


def poll_check(load_txt, cmp_lines, tag):
    k = npoll[0]
    npoll[0] += 1
    E.wait_tags([tag])
    E(f'L_PC{k}:')
    E(cmp_lines)
    E(f's_cmp_lg_u64 {SPOLL}, 0')
    E(f's_cbranch_scc1 L_PS{k}')
    E(f'L_PR{k}:')
    slow_paths.append((k, load_txt))


def flags_cmp(v):
    return f'v_cmp_ne_u64 {SPOLL}, s[{NONCE}:{NONCE + 1}], v[{v}:{v + 1}]'


def poll_item(setup, va, vd, tag, gap):
    ld = f'buffer_load_dwordx2 v[{vd}:{vd + 1}], {va}, {srd(SRD_WS)}, 0 offen sc1'
    return ([setup] if setup else []) + [Inst(ld, tag=tag), ('gap', gap), ('call', lambda: poll_check(ld, flags_cmp(vd), tag))]


def get_nonce():
    poll_check(NONL, f'v_cmp_eq_u32 {SPOLL}, 0, v{vNON}', 'nonce')
    E(f'v_readfirstlane_b32 s{NONCE}, v{vNON}\nv_readfirstlane_b32 s{NONCE + 1}, v{vNON + 1}')


def wave_flag(soff, need, off=0):
    return Inst(f'buffer_store_dwordx2 v[{vNON}:{vNON + 1}], {vF0}, {srd(SRD_WS)}, {soff} offen offset:{off} sc1', need=need)


st_tr = Stream('tr', own_vcc=True)
for q in range(1, 9):
    st_tr.add([('after', f'a{q - 1}')] + ([('after', f'xl{q}')] if q > 3 else []) + transpose_seg(q))
st_tr.add([('mark', 'trdone')])

RPT = TMP + 16
st_rp = Stream('rp')
st_rp.add([Inst(NONL, tag='nonce'), ('after', 'Bx')])
CSA_ = 'a[144:159]'
for f in range(11):
    if f < 9:
        t = RPT + 4 * (f % 4)
        st_rp.add([f'ds_read_b64_tr_b16 v[{t}:{t + 1}], {vA1} offset:{f * 4096}', f'ds_read_b64_tr_b16 v[{t + 2}:{t + 3}], {vA1} offset:{f * 4096 + 1024}'])
    else:
        st_rp.add([('gap', 2)])
    if f >= 2:
        f2 = f - 2
        t2 = RPT + 4 * (f2 % 4)
        st_rp.add([Inst(f'buffer_store_dwordx4 v[{t2}:{t2 + 3}], {vLANE16}, {srd(SRD_WS)}, {sUD} offen sc1', tag='eust'),
                   f'v_mfma_f32_32x32x16_bf16 {CSA_}, a[{ONESR}:{ONESR + 3}], v[{t2}:{t2 + 3}], {"0" if f2 == 0 else CSA_}',
                   f's_add_u32 {sUD}, {sUD}, 16384'])
t0, t1, t2 = f'v{RPT}', f'v{RPT + 1}', f'v{RPT + 2}'
st_rp.add([('call', get_nonce), ('mark', 'nonce_ok'), ('gap', 1), f'''v_accvgpr_read_b32 {t0}, a144
v_cvt_pk_bf16_f32 {t1}, {t0}, {t0}
v_lshlrev_b32 {t1}, 16, {t1}
v_sub_f32 {t2}, {t0}, {t1}
v_cvt_pk_bf16_f32 {t0}, {t1}, {t2}
v_cmp_gt_u32 {SPOLL}, 32, v1
v_cndmask_b32 {t0}, {vZ}, {t0}, {SPOLL}''',
           Inst(f'buffer_store_dword {t0}, {vLANE16}, {srd(SRD_WS)}, {sUC} offen sc1', tag='eust'), ('mark', 'eudone')])
st_rp.items[-3].glue = True
st_rp.add([('after', 'B2'), f's_lshl_b32 {tR0}, s2, 3\ns_add_u32 {tR0}, {tR0}, {L.WS_FLAG_E}\ns_cmp_eq_u32 {sW}, 0\ns_cselect_b32 {tR0}, {tR0}, {OOB}',
           wave_flag(tR0, []), ('mark', 'eupub')])
vA2 = 'v2'
st_rp.add([('call', lambda: E(f"""s_mul_i32 {tR1}, s2, 1821
s_lshr_b32 {tR1}, {tR1}, 16
s_mul_i32 {tR0}, s2, 7282
s_lshr_b32 {tR0}, {tR0}, 16
s_mul_i32 {tR2}, {tR0}, 9
s_sub_u32 {tR2}, s2, {tR2}
s_add_u32 {tR3}, {tR2}, 5
s_cmp_ge_u32 {tR3}, 9
s_cselect_b32 {tM0}, 9, 0
s_sub_u32 {tR3}, {tR3}, {tM0}
s_and_b32 {tM0}, {tR0}, 1
s_cmp_eq_u32 {tM0}, 0
s_cselect_b32 {tR2}, {tR3}, {tR2}
s_and_b32 {tR0}, {tR0}, 3
s_mul_i32 {sUS}, {tR0}, 20
s_lshl_b32 {tM0}, {tR2}, 1
s_add_u32 {sUS}, {sUS}, {tM0}
s_mul_i32 {tR0}, {tR0}, 9
s_add_u32 {tR2}, {tR2}, {tR0}
s_lshl_b32 {tR3}, s2, 5
s_lshl_b32 {tR0}, {sW}, 3
s_add_u32 {tR3}, {tR3}, {tR0}
s_mov_b32 {tM0}, 4
s_mov_b32 {tR4}, 8
s_cmp_lt_u32 s2, 144
s_cbranch_scc1 L_RP_W2C
s_sub_u32 {tR0}, s2, 144
s_lshr_b32 {tR1}, {tR0}, 2
s_and_b32 {tR2}, {tR0}, 3
s_mul_i32 {sUS}, {tR2}, 20
s_add_u32 {sUS}, {sUS}, 18
s_add_u32 {tR2}, {tR2}, 36
s_mul_i32 {tR3}, {tR0}, 36
s_lshl_b32 {tR0}, {sW}, 3
s_add_u32 {tR3}, {tR3}, {tR0}
s_lshr_b32 {tR0}, {sW}, 1
s_lshl_b32 {tR0}, {tR0}, 2
s_add_u32 {tR3}, {tR3}, {tR0}
s_mov_b32 {tM0}, 8
s_mov_b32 {tR4}, 4
s_cmp_lt_u32 s2, 160
s_cbranch_scc1 L_RP_W2C
s_sub_u32 {tR1}, s2, 160
s_mov_b32 {tR2}, 40
s_mov_b32 {sUS}, 80
s_lshl_b32 {tR3}, {tR1}, 2
s_add_u32 {tR3}, {tR3}, {sW}
s_mul_i32 {tR3}, {tR3}, 36
s_add_u32 {tR3}, {tR3}, 16
s_mov_b32 {tM0}, 16
s_mov_b32 {tR4}, 8
L_RP_W2C:""")),
           f"""s_mul_i32 {tR3}, {tR3}, 1152
s_cmp_lt_u32 s2, 164
s_cselect_b32 {tR3}, {tR3}, {OOB}
s_mul_i32 {sRPF}, {tR1}, 41
s_add_u32 {sRPF}, {sRPF}, {tR2}""", ('mark', 'rp2setup'),
           f"""v_lshrrev_b32 {t1}, 5, v1
v_mul_lo_u32 {t1}, {t1}, {tM0}
v_bfe_u32 {t2}, v1, 2, 2
v_add_u32 {t0}, {t1}, {t2}
v_mul_u32_u24 {t0}, 1152, {t0}
v_bfe_u32 {t1}, v1, 4, 1
v_lshl_add_u32 {t0}, {t1}, 5, {t0}
v_and_b32 {t1}, 3, v1
v_lshl_add_u32 {t0}, {t1}, 3, {t0}
s_lshr_b32 {tR0}, {sW}, 1
s_mul_i32 {tR0}, {tR0}, 576
s_add_u32 {tR0}, {tR0}, {AUX}
v_add_u32 {vA1}, {tR0}, {t0}
s_mul_i32 {tR4}, {tR4}, 1152
v_add_u32 {vA2}, {tR4}, {vA1}""", ('after', 'rp2dma'),
           f"""s_lshl_b32 {tR2}, {tR1}, 2
s_add_u32 {tR0}, {tR2}, {sW}
s_mul_i32 {tR0}, {tR0}, {L.SLABW_SZ}
s_add_u32 {tR0}, {tR0}, {L.WS_SLABW}
s_cmp_lt_u32 s2, 164
s_cselect_b32 {tR0}, {tR0}, {OOB}
s_mul_i32 {sUD}, {sUS}, 3072
s_add_u32 {sUD}, {sUD}, {tR0}
s_lshl_b32 {tR3}, {sUS}, 10
s_add_u32 {tR3}, {tR3}, {tR0}
s_add_u32 {tR3}, {tR3}, {L.SLABW_O}
s_add_u32 {sUC}, {sUD}, 3072
s_add_u32 {tR4}, {tR3}, 1024
s_cmp_lt_u32 {sUS}, 80
s_cselect_b32 {sUC}, {sUC}, {OOB}
s_cselect_b32 {tR4}, {tR4}, {OOB}
s_mul_i32 {tM0}, {sUS}, 3277
s_lshr_b32 {tM0}, {tM0}, 16
s_mul_i32 {sUST}, {tM0}, 20
s_sub_u32 {sUST}, {sUS}, {sUST}
s_lshr_b32 {tR0}, {tM0}, 1
s_mul_i32 {tR0}, {tR0}, 20
s_add_u32 {sUST}, {sUST}, {tR0}
s_and_b32 {tR0}, {sW}, 1
s_and_b32 {tM0}, {tM0}, 1
s_cmp_lt_u32 {sUS}, 80
s_cselect_b32 {tM0}, {tM0}, {tR0}
s_cselect_b32 {sUS}, {tR0}, 0
s_add_u32 {sUST}, {sUST}, {sUS}
s_lshl_b32 {sUST}, {sUST}, 10
s_andn2_b32 {tR0}, {sW}, 1
s_add_u32 {tR0}, {tR0}, {tM0}
s_add_u32 {tR0}, {tR0}, {tR2}
s_mul_i32 {tR0}, {tR0}, {L.SLABW_SZ}
s_add_u32 {sUST}, {sUST}, {tR0}
s_add_u32 {sUST}, {sUST}, {L.WS_SLABW + L.SLABW_S}
s_cmp_lt_u32 s2, 164
s_cselect_b32 {sUST}, {sUST}, {OOB}
s_mul_i32 {sUS}, {sUS}, {16 * 1152}
s_add_u32 {sUS}, {sUS}, 256
s_and_b32 {tR2}, {sW}, 1
s_mul_i32 {tR2}, {tR2}, 320""", ('after', f'B{RA + 1}')])
vB1_, vB2_ = f'v{TMP + 32}', f'v{TMP + 33}'
frs = []
for lam in range(4):
    pre = [f's_add_u32 {tR0}, {tR1}, {lam + 1}', f's_and_b32 {tR0}, {tR0}, 3', f's_lshl_b32 {tR0}, {tR0}, 6', f's_add_u32 {tR0}, {tR0}, {tR2}',
           f'v_add_u32 {vB1_}, {tR0}, {vA1}', f'v_add_u32 {vB2_}, {tR0}, {vA2}']
    for k2 in range(2):
        dst = ((sUD, sUC)[k2], lam * 1024) if lam < 3 else ((tR3, tR4)[k2], 0)
        frs.append((pre if k2 == 0 else [], k2 * 16 * 1152, dst))
frs.append(([f'v_add_u32 {vB1_}, {sUS}, {vA1}', f'v_add_u32 {vB2_}, {sUS}, {vA2}'], 0, (sUST, 0)))
for f in range(11):
    if f < 9:
        t = RPT + 4 * (f % 4)
        pre, off, _ = frs[f]
        st_rp.add(pre + [f'ds_read_b64_tr_b16 v[{t}:{t + 1}], {vB1_} offset:{off}', f'ds_read_b64_tr_b16 v[{t + 2}:{t + 3}], {vB2_} offset:{off}'])
    else:
        st_rp.add([('gap', 2)])
    if f >= 2:
        f2 = f - 2
        t2_ = RPT + 4 * (f2 % 4)
        sb, im = frs[f2][2]
        st_rp.add([Inst(f'buffer_store_dwordx4 v[{t2_}:{t2_ + 3}], {vLANE16}, {srd(SRD_WS)}, {sb} offen offset:{im} sc1', tag='rp2st')])
st_rp.add([('mark', 'rp2done'), ('after', f'B{RA + 4}'),
           f's_lshl_b32 {tR0}, {sRPF}, 3\ns_add_u32 {tR0}, {tR0}, {L.WS_FLAG_RP}\ns_cmp_lt_u32 s2, 164\ns_cselect_b32 {tR0}, {tR0}, {OOB}\n'
           f's_cmp_eq_u32 {sW}, 0\ns_cselect_b32 {tR0}, {tR0}, {OOB}', wave_flag(tR0, []), ('mark', 'rp2pub')])

STAGE_FN = {}
for u in range(5):
    STAGE_FN[u] = (dma_a, u)
    STAGE_FN[5 + u] = (dma_q, u)
    STAGE_FN[10 + u] = (dma_b, u)
for p in range(8):
    STAGE_FN[15 + p] = (dma_p, p)
for u in range(2):
    STAGE_FN[23 + u] = (dma_c, u)
TOUCH_AT = {2: [3, 4], 3: [10], 4: [11], 5: [6, 7], 6: [8], 7: [12], 8: [13], 9: [14], 14: [15, 16, 17],
            15: [18, 19], 16: [20, 21], 17: [22], 18: [23], 19: [24]}


def paced(items):
    if not OPT['dmagap']:
        return items
    o = []
    for x in items:
        o.append(x)
        if isinstance(x, Inst):
            o.append(('gap', OPT['dmagap']))
    return o


st_dma = Stream('dma')
st_dma.add(paced(dma_a(1)) + [('mark', 'dma1')] + paced(xload(4)))
for g in range(2, NSTG):
    fn, arg = STAGE_FN[g]
    if g == 5:
        st_dma.add([('after', 'nonce_ok'), ('after', 'eupub'), ('gap', OPT['egap'])])
        st_dma.add(poll_item(None, vPA, vPF, 'pfe', 22))
        st_dma.add([f'v_and_b32 v11, 31, v1\nv_lshlrev_b32 v11, 2, v11',
                    f'buffer_load_dword v{vPF}, v11, {srd(SRD_WS)}, {sSTB} offen sc1'])
    if g == 18:
        st_dma.add([('after', 'Bodone')])
    st_dma.add([('after', f'B{max(DMA_AFTER[g], 0) if g > 2 else 0}')] + paced(fn(arg)) + [('mark', f'dma{g}')])
    if g == 2:
        st_dma.add(paced(xload(5) + xload(6)))
    if g == 3:
        st_dma.add(paced(xload(7) + xload(8)))
    if g == OPT['rp2at']:
        o = [('after', 'rp2setup')]
        for i in range(9):
            if i % 4 == 0:
                o += [f's_add_u32 m0, {sL9}, {AUX + i * 1024}'] + ([f's_add_u32 {tR3}, {tR3}, 4096'] if i else [])
            o.append(Inst(f'buffer_load_dwordx4 {vLANE16}, {srd(SRD_RP)}, {tR3} offen offset:{(i % 4) * 1024} lds', tag='rp2'))
        st_dma.add(paced(o) + [('mark', 'rp2dma')])
    if g == 5:
        st_dma.add([f'''v_xor_b32 v{vPF + 1}, 0x8000, v{vPF}
v_and_b32 v{vPF + 1}, 0xffff, v{vPF + 1}
v_lshl_or_b32 v{vPF + 1}, v{vPF + 1}, 16, v{vPF + 1}
v_lshrrev_b32 v11, 16, v{vPF}
v_and_b32 v{vPF}, {vMASKHI}, v{vPF}
v_rcp_f32 {vRSTD}, v{vPF}
s_mov_b32 {tD0}, -1
s_mov_b32 {tD1}, 0
v_cndmask_b32 v{BCOR}, v11, v{vPF + 1}, s[84:85]
v_cndmask_b32 v{BCOR + 1}, 0, v{vPF + 1}, s[84:85]
v_cndmask_b32 v{BCOR + 2}, 0, v{vPF + 1}, s[84:85]
v_cndmask_b32 v{BCOR + 3}, 0, v{vPF + 1}, s[84:85]''', ('mark', 'bcor')])
    if g == OPT['pfwat']:
        st_dma.add([('after', 'rp2pub')])
        st_dma.add(poll_item(f'v_lshrrev_b32 v11, 1, {vLANE16}\nv_min_u32 v11, {40 * 8}, v11\ns_mul_i32 {tD0}, {sS}, {41 * 8}\n'
                             f's_add_u32 {tD0}, {tD0}, {L.WS_FLAG_RP}\nv_add_u32 v11, {tD0}, v11', 'v11', 198 + 4, 'pfw', 20))
    if OPT['stouch']:
        for t in TOUCH_AT.get(g, []):
            st_dma.add(touch(*STAGE_FN[t]))


def ffn_epi(n, tag):
    o = [('after', f'fin{n}' if n < 5 else 'fin8'), ('gap', 1)]
    t = TMP if n < 5 else 136
    X = t + 8
    for half in range(2):
        for e in range(8):
            o.append(f'v_accvgpr_read_b32 v{t + e}, a{16 * n + 8 * half + e}')
        for e in range(8):
            o.append(f'v_mul_f32 v{t + e}, v{t + e}, |v{t + e}|')
        for p in range(4):
            o.append(f'v_cvt_pk_bf16_f32 v{X + 4 * half + p}, v{t + 2 * p}, v{t + 2 * p + 1}')
        for p in range(4):
            o.append(f'v_pk_max_i16 v{X + 4 * half + p}, v{X + 4 * half + p}, 0')
    o.append(f's_add_u32 {tE0}, {sGB}, {2048 * n}')
    o.append(Inst(f'buffer_store_dwordx4 v[{X}:{X + 3}], {vLANE16}, {srd(SRD_WS)}, {tE0} offen sc1', tag=tag))
    o.append(Inst(f'buffer_store_dwordx4 v[{X + 4}:{X + 7}], {vLANE16}, {srd(SRD_WS)}, {tE0} offen offset:1024 sc1', tag=tag))
    for d in range(8):
        o.append(f'v_accvgpr_write_b32 a{HP(n) + d}, v{X + d}')
    o.append(('mark', f'h{n}'))
    return o


def g_publish(ev, tag, first_kb, nlines, tmps):
    o = [('gap', OPT['pubgap']), f's_lshl_b32 {tmps}, {sC}, 3\ns_add_u32 {tmps}, {tmps}, {sGF}', wave_flag(tmps, [tag, 'ost'], 32 * ev)]
    if OPT['gtouch']:
        for k in range(0, nlines, 64):
            n = min(64, nlines - k)
            o.append(f's_add_u32 {tmps}, {sGB}, {first_kb * 2048 + k * 128}')
            if n < 64:
                o.append(f'v_min_u32 {vXO}, {(n - 1) * 128}, {vTCH}')
            o.append(nodep(f'buffer_load_dword v{vTD}, {vTCH if n == 64 else vXO}, {srd(SRD_WS)}, {tmps} offen sc1'))
    return o


st_epi = Stream('epi')
st_epi.add([('after', 'trdone')])
for n in range(5):
    st_epi.add(ffn_epi(n, 'gsta'))
st_epi.add([('mark', 'epiA')] + g_publish(0, 'gsta', 0, 80, tE0) + [('mark', 'pubA')])
for n in range(5, 9):
    st_epi.add(ffn_epi(n, 'gstb'))
st_epi.add([('mark', 'epiB'), ('after', 'odone')] + g_publish(1, 'gstb', 5, 64, tE0) + [('mark', 'pubB')])

vKW, vHX = 'v2', 'v3'
st_att = Stream('att')
T2 = TMP + 16
st_att.add([('after', 'rp2done'), ('after', 'trdone'), ('after', f'B{max(8, RA + 3)}'),
            f"""v_and_b32 v{T2}, 31, v1
s_lshl_b32 {tA0}, {sW}, 5
v_add_u32 v{T2 + 1}, {tA0}, v{T2}
v_mul_u32_u24 v{T2 + 1}, {PITCH}, v{T2 + 1}
v_lshrrev_b32 v{T2 + 2}, 5, v1
v_lshl_add_u32 v{T2 + 1}, v{T2 + 2}, 4, v{T2 + 1}
v_add_u32 {vKW}, {QB1}, v{T2 + 1}
v_subrev_u32 {vHX}, {112 * PITCH}, v{T2 + 1}
s_lshl_b32 {tA0}, {sR}, 4
s_add_u32 {tA0}, {tA0}, {sJ}
s_add_u32 {tA0}, {tA0}, 16
s_lshl_b32 {tA1}, {tA0}, 12
s_add_u32 {tA1}, {tA1}, {L.WS_HALO}
s_cmp_eq_u32 {sR}, 15
s_cselect_b32 {tA1}, {OOB}, {tA1}
v_mov_b32 v{T2 + 2}, {OOB}
v_cmp_gt_u32 vcc, {112 * PITCH}, v{T2 + 1}
v_cndmask_b32 {vHX}, {vHX}, v{T2 + 2}, vcc"""])
hcount = 0
for t4 in (1, 2, 3, 0):
    o = [('after', f'qfin{t4}'), ('gap', 2)]
    for hh in range(2 if t4 < 3 else 1):
        X = T2 + 8 + 4 * (hcount % 2)
        hcount += 1
        for e in range(8):
            o.append(f'v_accvgpr_read_b32 v{T2 + e}, a{QA + 16 * t4 + 8 * hh + e}')
        for e in range(8):
            o.append(f'v_mul_f32 v{T2 + e}, v{T2 + e}, {vRSTD}')
        for pp in range(4):
            o.append(f'v_cvt_pk_bf16_f32 v{X + pp}, v{T2 + 2 * pp}, v{T2 + 2 * pp + 1}')
        if t4:
            o.append(Inst(f'buffer_store_dwordx4 v[{X}:{X + 3}], {vHX}, {srd(SRD_WS)}, {tA1} offen offset:{64 * t4 + 32 * hh} sc1', tag='hxst'))
        o.append(Inst(f'ds_write_b128 {vKW}, v[{X}:{X + 3}] offset:{64 * t4 + 32 * hh}', tag='kvw'))
    if t4 == 3:
        o.append(('mark', 'hx'))
    st_att.add(o)


def kv_barrier():
    E.wait_tags(['kvw'])
    E('s_barrier')
    S.marks.add('Bkv')


st_att.add([('mark', 'kvw'), ('gap', 3), ('call', kv_barrier)])
st_hal = Stream('hal')
st_hal.add([('after', 'hx'), ('gap', OPT['hxgap']), f's_lshl_b32 {tA1}, {tA0}, 7\ns_add_u32 {tA1}, {tA1}, {L.WS_FLAG_HALO}\ns_cmp_eq_u32 {sW}, 3\ns_cselect_b32 {tA1}, {tA1}, {OOB}',
            wave_flag(tA1, ['hxst'])])
SC = 0.2357022603955158 * 1.4426950408889634
A0, A0R, AP, APR, VT, VTP = (f'v{TMP + i}' for i in range(6))
vSD = [f'v{TMP + 34}', f'v{TMP + 35}']
st_at2 = Stream('at2')
st_at2.add([('after', 'kvw'), ('after', 'epiA'), f"""v_and_b32 v{TMP + 8}, 15, v1
v_lshlrev_b32 v{TMP + 9}, 2, v{TMP + 8}""",
            f'buffer_load_dword {vSD[0]}, v{TMP + 9}, {srd(SRD_WS)}, {sSTB} offen sc1',
            f'buffer_load_dword {vSD[1]}, v{TMP + 9}, {srd(SRD_WS)}, {sSTB} offen offset:64 sc1',
            f"""v_lshrrev_b32 v{TMP + 9}, 4, v1
s_mul_i32 {tA2}, {sW}, {32 * PITCH}
s_add_u32 {tA2}, {tA2}, {QB1}
s_sub_u32 {tA3}, {tA2}, {16 * PITCH}
s_cmp_eq_u32 {sW}, 0
s_cselect_b32 {tA3}, {QB}, {tA3}
v_mul_u32_u24 v{TMP + 10}, {PITCH}, v{TMP + 8}
v_add_u32 {A0R}, {tA2}, v{TMP + 10}
v_add_u32 {APR}, {tA3}, v{TMP + 10}
v_lshl_add_u32 {A0}, v{TMP + 9}, 3, {A0R}
v_lshl_add_u32 {AP}, v{TMP + 9}, 3, {APR}
v_lshrrev_b32 v{TMP + 10}, 2, v1
v_mul_u32_u24 v{TMP + 10}, {PITCH}, v{TMP + 10}
v_and_b32 v{TMP + 11}, 3, v1
v_lshl_add_u32 v{TMP + 10}, v{TMP + 11}, 3, v{TMP + 10}
v_add_u32 {VT}, {tA2}, v{TMP + 10}
v_add_u32 {VTP}, {tA3}, v{TMP + 10}
s_add_u32 {tA2}, {sGB}, {9 * 2048}
s_sub_u32 {tA3}, {sGF}, {L.WS_FLAG_G}
s_lshl_b32 {tA3}, {tA3}, 3
s_lshr_b32 {tM0}, {sC}, 1
s_lshl_b32 {tM0}, {tM0}, 9
s_add_u32 {tA3}, {tA3}, {tM0}
s_and_b32 {tM0}, {sC}, 1
s_lshl_b32 {tM0}, {tM0}, 3
s_add_u32 {tA3}, {tA3}, {tM0}
s_add_u32 {tA3}, {tA3}, {L.WS_GREM}
v_lshrrev_b32 v{TMP + 10}, 5, v1
v_lshlrev_b32 v{TMP + 10}, 9, v{TMP + 10}
v_lshl_add_u32 v{TMP + 10}, v{TMP + 8}, 4, v{TMP + 10}
v_and_b32 v{TMP + 9}, 1, v{TMP + 9}
v_lshl_add_u32 v2, v{TMP + 9}, 3, v{TMP + 10}""", ('after', 'Bkv'), ('after', 'bcor3')])
QV = TMP + 6
SV = TMP + 14
PB = [196, BCOR]
m0_, m1_, t1_, t2_ = f'v{TMP + 30}', f'v{TMP + 31}', 'v200', 'v205'


def att_block(b):
    o = []
    for hd in range(2):
        mo = 0 if hd == 0 else 40
        for wh in range(2):
            kb = b + wh
            kr = AK[hd] + 4 * wh
            a, ar, off = (AP, APR, 0) if kb == 0 else (A0, A0R, (kb - 1) * 16 * PITCH)
            o.append(f'ds_read_b64 a[{kr}:{kr + 1}], {a} offset:{off + 72 + mo}')
            o.append(f'ds_read_b64 a[{kr + 2}:{kr + 3}], {ar} offset:{off + 72 + 32}')
        Q = QV + 4 * hd
        o.append(f'ds_read_b64 v[{Q}:{Q + 1}], {A0} offset:{b * 16 * PITCH + mo}')
        o.append(f'ds_read_b32 v{Q + 2 + hd}, {A0R} offset:{b * 16 * PITCH + 32 + 4 * hd}')
        o.append(f'v_mov_b32 v{Q + 3 - hd}, 0')
    for tl, ch in enumerate((18, 23, 22)):
        vr = AK[2 + tl // 2] + 4 * (tl % 2)
        for wh in range(2):
            kb = b + wh
            a, off = (VTP, 0) if kb == 0 else (VT, (kb - 1) * 16 * PITCH)
            o.append(f'ds_read_b64_tr_b16 a[{vr + 2 * wh}:{vr + 2 * wh + 1}], {a} offset:{off + 8 * ch}')
    for hd in range(2):
        Q = QV + 4 * hd
        o.append(f'v_cndmask_b32 v{Q + 2 + hd}, 0, v{Q + 2 + hd}, {M16}')
    o.append(f'v_and_b32 {vSD[b]}, {vMASKHI}, {vSD[b]}')
    o.append(f'v_mul_f32 {vSD[b]}, {vSD[b]}, {vSD[b]}')
    for hd in range(2):
        Q = QV + 4 * hd
        for wh in range(2):
            kr = AK[hd] + 4 * wh
            sr = SV + 8 * hd + 4 * wh
            bias = BIASR + 4 * wh
            o.append(f'v_mfma_f32_16x16x32_bf16 v[{sr}:{sr + 3}], a[{kr}:{kr + 3}], v[{Q}:{Q + 3}], v[{bias}:{bias + 3}]')
    o.append(('gap', 1))
    for hd, m in enumerate((m0_, m1_)):
        s = [f'v{SV + 8 * hd + i}' for i in range(8)]
        t = (t1_, t2_)[hd]
        o += [f'v_max3_f32 {m}, {s[0]}, {s[1]}, {s[2]}', f'v_max3_f32 {t}, {s[3]}, {s[4]}, {s[5]}',
              f'v_max3_f32 {m}, {m}, {s[6]}, {s[7]}', f'v_max_f32 {m}, {m}, {t}']
    o += [f'v_mov_b32 {t2_}, {fl(SC)}', ('gap', 1),
          f'v_permlane16_swap_b32 {m0_}, {m1_}', f'v_max_f32 {m0_}, {m0_}, {m1_}', f'v_mov_b32 {m1_}, {m0_}', ('gap', 1),
          f'v_permlane32_swap_b32 {m0_}, {m1_}', f'v_max_f32 {m0_}, {m0_}, {m1_}', f'v_mul_f32 {m0_}, {fl(-SC)}, {m0_}',
          f'v_mov_b32 {m1_}, {m0_}', ('gap', 1), f'v_permlane16_swap_b32 {m0_}, {m1_}']
    for hd, m in enumerate((m0_, m1_)):
        s = [f'v{SV + 8 * hd + i}' for i in range(8)]
        for i in range(8):
            o.append(f'v_fma_f32 {s[i]}, {s[i]}, {t2_}, {m}')
        for i in range(8):
            o.append(f'v_exp_f32 {s[i]}, {s[i]}')
    for hd in range(2):
        s = [f'v{SV + 8 * hd + i}' for i in range(8)]
        for i in range(4):
            o.append(f'v_cvt_pk_bf16_f32 v{PB[hd] + i}, {s[2 * i]}, {s[2 * i + 1]}')
    for hd in range(2):
        P = f'v[{PB[hd]}:{PB[hd] + 3}]'
        vm = AK[2] + 4 * hd
        o.append(f'v_mfma_f32_16x16x32_bf16 v[{QV + 4 * hd}:{QV + 4 * hd + 3}], a[{ONESR}:{ONESR + 3}], {P}, 0')
        o.append(f'v_mfma_f32_16x16x32_bf16 v[{SV + 8 * hd}:{SV + 8 * hd + 3}], a[{vm}:{vm + 3}], {P}, 0')
        o.append(f'v_mfma_f32_16x16x32_bf16 v[{SV + 8 * hd + 4}:{SV + 8 * hd + 7}], a[{AK[3]}:{AK[3] + 3}], {P}, 0')
    o.append(('gap', 1))
    for hd, m in enumerate((m0_, m1_)):
        o.append(f'v_rcp_f32 {m}, v{QV + 4 * hd}')
    for hd, m in enumerate((m0_, m1_)):
        o.append(f'v_mul_f32 {m}, {m}, {vSD[b]}')
    for hd, m in enumerate((m0_, m1_)):
        r = SV + 8 * hd
        for i in (0, 1, 2, 3, 4 + 2 * hd, 5 + 2 * hd):
            o.append(f'v_mul_f32 v{r + i}, v{r + i}, {m}')
    for hd in range(2):
        r = SV + 8 * hd
        o.append(f'v_cvt_pk_bf16_f32 v{QV + 2 * hd}, v{r}, v{r + 1}')
        o.append(f'v_cvt_pk_bf16_f32 v{QV + 2 * hd + 1}, v{r + 2}, v{r + 3}')
        o.append(f'v_cvt_pk_bf16_f32 v{QV + 4 + hd}, v{r + 4 + 2 * hd}, v{r + 5 + 2 * hd}')
    for hd in range(2):
        o.append(Inst(f'buffer_store_dwordx2 v[{QV + 2 * hd}:{QV + 2 * hd + 1}], v2, {srd(SRD_WS)}, {tA2} offen offset:{1024 * hd + 256 * b} sc1', tag='ost'))
    o.append(Inst(f'buffer_store_dwordx2 v[{QV + 4}:{QV + 5}], {vREM}, {srd(SRD_WS)}, {tA3} offen offset:{256 * b} sc1', tag='ost'))
    return o


st_at2.add(att_block(1))
vH = TMP + 32
st_hal.add([('gap', OPT['higap']),
            f's_sub_u32 {tA0}, {tA0}, 16\ns_lshl_b32 {tA1}, {tA0}, 7\ns_add_u32 {tA1}, {tA1}, {L.WS_FLAG_HALO}\ns_lshl_b32 {tM1}, {sJ}, 5\n'
            f's_add_u32 {tM1}, {tM1}, {L.WS_FLAG_E}\ns_cmp_eq_u32 {sR}, 0\ns_cselect_b32 {tA1}, {tM1}, {tA1}\nv_mov_b32 v3, {tA1}'])
HL = f'buffer_load_dwordx2 v[{vH}:{vH + 1}], v3, {srd(SRD_WS)}, 0 offen sc1'
st_hal.add([Inst(HL, tag='pfh'), ('gap', 22)])


def halo_import():
    poll_check(HL, flags_cmp(vH), 'pfh')
    E(f's_cmp_lg_u32 {sW}, 0\ns_cbranch_scc1 L_HI')
    E(f's_lshl_b32 {tA1}, {tA0}, 12\ns_add_u32 {tA1}, {tA1}, {L.WS_HALO}\ns_cmp_eq_u32 {sR}, 0\ns_cselect_b32 {tA1}, {OOB}, {tA1}')
    E(f's_mov_b32 {tM1}, m0\ns_mov_b32 m0, {QB}\ns_nop 0')
    for i in range(4):
        E.raw(f'    buffer_load_dwordx4 {vLANE16}, {srd(SRD_WS)}, {tA1} offen offset:{i * 1024} sc1 lds')
    E(f's_mov_b32 m0, {tM1}')
    E('L_HI:')
    E(f'buffer_load_dword v{vH}, v14, {srd(SRD_DBG)}, 0 offen', tag='himp')


st_hal.add([('call', halo_import), ('gap', 22), ('call', lambda: E.wait_tags(['himp'])), ('mark', 'halo_in')])
st_at2.add([f's_or_b32 {tM0}, {sR}, {sW}\ns_cmp_eq_u32 {tM0}, 0\ns_cselect_b32 {tM0}, 0xf149f2ca, 0'] +
           [f'v_min_f32 v{BIASR + i}, {tM0}, v{BIASR + i}' for i in range(4)] + [('after', 'halo_in')])
st_at2.add(att_block(0))
st_at2.add([('mark', 'odone')])

st_act = Stream('act')
GPA = f'v_and_b32 {vPA}, 3, v1\nv_lshlrev_b32 {vPA}, 3, {vPA}\nv_add_u32 {vPA}, {sGF}, {vPA}'


def act_load(key, soff, off):
    o = []
    kind, r = ACT[key]
    if kind == 'v':
        o.append(('after', 'odone' if r >= BIASR else (f'bs{(r - 16) // 16}' if r + 4 <= 136 else 'epiB')))
    elif r >= AK[0]:
        o.append(('after', 'odone'))
    elif r >= QA:
        o.append(('after', 'kvw'))
    elif r >= 128:
        o.append(('after', 'epiB'))
    else:
        o.append(('after', 'epiA'))
    o.append(f'buffer_load_dwordx4 {act_regs(key)}, {vLANE16}, {srd(SRD_WS)}, {soff} offen offset:{off} sc1')
    o.append(('mark', f'act{kname(key)}'))
    return o


st_act.add([('after', 'bcor'), ('after', 'kvw'), ('after', 'pubA'), ('gap', OPT['pollgap'])])
st_act.add(poll_item(GPA, vPA, vPF, 'pfa', 22))
for k in range(1, 4):
    for ks in range(10):
        if ks % 4 == 0:
            st_act.add([f's_add_u32 {tC0}, {sGP[k]}, {ks * 1024}'])
        st_act.add(act_load((k, ks), tC0, (ks % 4) * 1024))
st_act.add([('after', 'pubB'), f's_add_u32 {tC0}, {sGB}, {18 * 1024}'] + act_load((0, 18), tC0, 0) + act_load((0, 19), tC0, 1024))
st_act.add([('gap', OPT['pollgap'])])
st_act.add(poll_item(f'v_add_u32 {vPA}, 32, {vPA}', vPA, vPF, 'pfb', 22))
REMLD = [f's_sub_u32 {tC0}, {sGF}, {L.WS_FLAG_G}\ns_lshl_b32 {tC0}, {tC0}, 3\ns_add_u32 {tC0}, {tC0}, {L.WS_GREM}'] + act_load('rem', tC0, 0)
for k in range(1, 4):
    if k == 2:
        st_act.add(REMLD)
    for ks in range(10, 20):
        if (ks - 10) % 4 == 0:
            st_act.add([f's_add_u32 {tC0}, {sGP[k]}, {ks * 1024}'])
        st_act.add(act_load((k, ks), tC0, ((ks - 10) % 4) * 1024))
st_act.add([f's_and_b32 {tC0}, {sC}, 1\ns_sub_u32 {tC0}, {tC0}, 1\ns_not_b32 {tC1}, {tC0}'] +
           [f'v_cndmask_b32 v{BIASR + 4 + d}, 0, v{BIASR + d}, s[92:93]' for d in range(4)] + [('mark', 'actremS')])

XB = TMP
XR = TMP + 20
vOA, vOS, vRS2 = 'v4', 'v5', 'v6'
SOM, SOS = 's20', 's21'
st_fin = Stream('fin')
st_fin.add([('after', 'odone'), ('after', 'fin8'), ('after', 'B18'),
            f"""v_lshrrev_b32 v2, 2, v1
v_mul_u32_u24 v2, 1152, v2
v_and_b32 v3, 3, v1
v_lshlrev_b32 v3, 4, v3
v_add_u32 {vOA}, v2, v3
s_lshr_b32 {tA0}, {sC}, 1
s_mul_i32 {tA0}, {tA0}, 576
s_and_b32 {tA1}, {sC}, 1
s_mul_i32 {tA2}, {tA1}, 320
s_add_u32 {tA2}, {tA2}, {tA0}
s_lshl_b32 {tA3}, {sS}, 6
s_add_u32 {tA2}, {tA2}, {tA3}
s_add_u32 {SOM}, {sXB}, {tA2}""",
            f'buffer_load_dwordx4 v[{XR}:{XR + 3}], {vOA}, {srd(SRD_X)}, {SOM} offen',
            f's_add_u32 {tA3}, {SOM}, {16 * 1152}',
            f'buffer_load_dwordx4 v[{XR + 4}:{XR + 7}], {vOA}, {srd(SRD_X)}, {tA3} offen',
            f'buffer_load_dwordx4 v[{XR + 8}:{XR + 11}], v3, {srd(SRD_B)}, {tA2} offen',
            f"""v_and_b32 v2, 15, v1
v_bfe_u32 v3, v1, 4, 1
v_lshlrev_b32 v3, 3, v3
v_mul_u32_u24 v7, 1152, v2
v_add_u32 v7, v7, v3
v_mov_b32 {vOS}, {OOB}
v_cmp_gt_u32 vcc, 32, v1
v_cndmask_b32 {vOS}, {vOS}, v7, vcc
s_lshl_b32 {tA2}, {sR}, 2
s_add_u32 {tA2}, {tA2}, {sS}
s_lshl_b32 {tA2}, {tA2}, 1
s_add_u32 {tA2}, {tA2}, {tA1}
s_lshl_b32 {tA3}, {tA2}, 6
s_add_u32 {tA3}, {tA3}, {L.WS_STAT}
v_lshlrev_b32 v2, 2, v2""",
            f'buffer_load_dword {vRS2}, v2, {srd(SRD_WS)}, {tA3} offen sc1',
            f"""s_mul_i32 {tA2}, {tA2}, {16 * 1152}
s_lshl_b32 {tA3}, {sW}, 4
s_add_u32 {tA3}, {tA3}, {tA0}
s_add_u32 {tA3}, {tA3}, 256
s_add_u32 {SOS}, {tA2}, {tA3}""",
            f'buffer_load_dwordx2 v[{XR + 12}:{XR + 13}], {vOS}, {srd(SRD_X)}, {SOS} offen',
            f'buffer_load_dwordx2 v[{XR + 14}:{XR + 15}], v3, {srd(SRD_B)}, {tA3} offen', ('gap', 40)])
for d in range(4):
    for hi in range(2):
        un = (lambda r, dst: f'v_and_b32 {dst}, {vMASKHI}, v{r}') if hi else (lambda r, dst: f'v_lshlrev_b32 {dst}, 16, v{r}')
        st_fin.add([un(XR + 8 + d, 'v2')])
        for rd in range(2):
            st_fin.add([un(XR + 4 * rd + d, 'v3'), f'v_add_f32 v{XB + 8 * rd + 2 * d + hi}, v2, v3'])
for d in range(2):
    for hi in range(2):
        un = (lambda r, dst: f'v_and_b32 {dst}, {vMASKHI}, v{r}') if hi else (lambda r, dst: f'v_lshlrev_b32 {dst}, 16, v{r}')
        st_fin.add([un(XR + 12 + d, 'v2'), un(XR + 14 + d, 'v3'), f'v_add_f32 v{XB + 16 + 2 * d + hi}, v2, v3'])
SND = ['s16', 's17', 's18', 's19']
RCV = ['s12', 's13', 's15', 's38', 's39']
st_fin.add([f"""v_and_b32 {vRS2}, {vMASKHI}, {vRS2}
v_mul_f32 {vRS2}, {vRS2}, {vRS2}
v_rcp_f32 {vRS2}, {vRS2}
v_mul_f32 {vRSTD}, {vRSTD}, {vRSTD}
s_lshl_b32 {tA0}, {sR}, 2
s_add_u32 {tA0}, {tA0}, {sC}
s_lshl_b32 {tA0}, {tA0}, 18
s_add_u32 {tA0}, {tA0}, {L.WS_PART}
s_lshl_b32 {tA2}, {sW}, 12
s_add_u32 {tA0}, {tA0}, {tA2}
s_lshl_b32 {tA2}, {sS}, 14
s_add_u32 {tA2}, {tA2}, {tA0}"""])
for k in range(1, 4):
    st_fin.add([f's_add_u32 {tA3}, {sS}, {k}\ns_and_b32 {tA3}, {tA3}, 3\ns_lshl_b32 {tA3}, {tA3}, 16\ns_add_u32 {SND[k]}, {tA3}, {tA2}'])
st_fin.add([f"""s_lshl_b32 {tA2}, {sR}, 1
s_lshr_b32 {tA3}, {sC}, 1
s_add_u32 {tA2}, {tA2}, {tA3}
s_lshl_b32 {tM0}, {tA2}, 17
s_add_u32 {tM0}, {tM0}, {L.WS_PARTS}
s_lshl_b32 {tM1}, {sS}, 1
s_add_u32 {tM1}, {tM1}, {tA1}
s_lshl_b32 {tA3}, {tM1}, 11
s_add_u32 {SND[0]}, {tM0}, {tA3}
s_lshl_b32 {tA3}, {sW}, 15
s_add_u32 {SND[0]}, {SND[0]}, {tA3}
s_lshl_b32 {tA3}, {tM1}, 14
s_add_u32 {RCV[0]}, {tM0}, {tA3}
s_lshl_b32 {tA3}, {sW}, 9
s_add_u32 {RCV[0]}, {RCV[0]}, {tA3}
v_bfe_u32 v2, v1, 4, 1
v_lshlrev_b32 v2, 14, v2
v_lshrrev_b32 v3, 5, v1
v_lshl_add_u32 v2, v3, 8, v2
v_and_b32 v11, 15, v1
v_lshl_add_u32 v7, v11, 4, v2
v_lshlrev_b32 v3, 11, v3
v_and_b32 v11, 31, v1
v_lshl_add_u32 v3, v11, 4, v3
v_add_u32 v2, 8192, v3
s_lshl_b32 {tA2}, {sS}, 16
s_add_u32 {tA2}, {tA2}, {tA0}"""])
for k in range(1, 4):
    st_fin.add([f's_add_u32 {tA3}, {sS}, {k}\ns_and_b32 {tA3}, {tA3}, 3\ns_lshl_b32 {tA3}, {tA3}, 14\ns_add_u32 {RCV[k]}, {tA3}, {tA2}'])
PT = XR
PKR = 196
CH = [196, 200, XR + 8, XR + 12]
st_fin.add([f'v_mov_b32 v{c + 3}, v{vNON}' for c in CH] + [('after', f'dma{NSTG - 1}')])
for n in (3, 0, 1, 2):
    st_fin.add([('after', f'pend{n}'), ('gap', 2)])
    for half in range(2):
        st_fin.add([f'v_accvgpr_read_b32 v{PT + e}, a{ACC2[n] + 8 * half + e}' for e in range(8)])
        for d in range(4):
            dd = 4 * half + d
            dst = (CH[dd // 3] + dd % 3) if n < 3 else (CH[dd // 2] + dd % 2)
            st_fin.add([f'v_cvt_pk_bf16_f32 v{dst}, v{PT + 2 * d}, v{PT + 2 * d + 1}'])
    for q in range(3 if n < 3 else 4):
        if n < 3:
            st_fin.add([f'buffer_store_dwordx4 v[{CH[q]}:{CH[q] + 3}], {vLANE16}, {srd(SRD_WS)}, {SND[n + 1]} offen offset:{q * 1024} sc1'])
        else:
            st_fin.add([f'buffer_store_dwordx4 v[{CH[q]}:{CH[q] + 3}], v7, {srd(SRD_WS)}, {SND[0]} offen offset:{q * 512} sc1'])
RB = 88
RXL = []
for k in range(1, 4):
    for q in range(3):
        r = RB + 12 * (k - 1) + 4 * q
        RXL.append(f'buffer_load_dwordx4 v[{r}:{r + 3}], {vLANE16}, {srd(SRD_WS)}, {RCV[k]} offen offset:{q * 1024} sc1')
RS = RB + 36
for i in range(4):
    RXL.append(f'buffer_load_dwordx4 v[{RS + 4 * i}:{RS + 4 * i + 3}], {("v3", "v2")[i // 2]}, {srd(SRD_WS)}, {(RCV[0], RCV[4])[i % 2]} offen sc1')
st_fin.add([f's_add_u32 {RCV[4]}, {RCV[0]}, 4096', ('after', 'rxfree')] + [Inst(x, tag='rx') for x in RXL])

S = Sched(E, [st_dma, st_hal, st_rp, st_tr, st_att, st_at2, st_epi, st_act, st_fin])
S.vrate = OPT['vrate']
S.memorder = [st_hal, st_att, st_at2, st_epi, st_rp, st_dma, st_act, st_fin, st_tr]
S.vcap = OPT['vcap']
S.lat = OPT['lat']
st_dma.edf = True
st_act.edf = True
if OPT.get('zlo') is not None:
    def hook(i):
        if OPT['zlo'] <= i < OPT['zlo'] + 50 * OPT['zst'] and (i - OPT['zlo']) % OPT['zst'] == 0:
            E.raw(f'; ZSTAMP {nstamp[0]} op {i}')
            stamp()
    S.hook = hook
S.run(ops, D=OPT['D'], WB=OPT['WB'], budget=3.0, maxmem=OPT['maxmem'])
stamp()
S.drain()
stamp()

OA = 16
TP = 144
E(f"""v_and_b32 v8, 31, v1
v_mul_u32_u24 v8, {TP}, v8
v_lshrrev_b32 v9, 5, v1
v_lshl_add_u32 v8, v9, 4, v8
s_mul_i32 s90, {sW}, {32 * TP}
s_add_u32 s90, s90, {AUX}
v_add_u32 v8, s90, v8
v_lshrrev_b32 v11, 2, v1
v_mul_u32_u24 v11, {TP}, v11
v_and_b32 v15, 3, v1
v_lshl_add_u32 v11, v15, 5, v11
v_add_u32 v11, s90, v11""")
for e in range(16):
    E(f'v_accvgpr_read_b32 v{OA + e}, a{ACC2[4] + e}')
E.wait_tags(['rx'])
E('L_RXC:')
tags = [RB + 4 * i + 3 for i in range(13)]
E(f'v_xor_b32 v9, s{NONCE}, v{tags[0]}')
for i in range(1, 13, 2):
    E(f'v_xor_b32 v15, s{NONCE}, v{tags[i]}\nv_xor_b32 v32, s{NONCE}, v{tags[i + 1]}\nv_or3_b32 v9, v9, v15, v32')
E(f'v_cmp_ne_u32 {SPOLL}, 0, v9\ns_cmp_lg_u64 {SPOLL}, 0\ns_cbranch_scc1 L_RXS')
E('L_RXR:')
stamp()
for k in range(3):
    for dd in range(8):
        r = RB + 12 * k + 4 * (dd // 3) + dd % 3
        E(f'v_lshlrev_b32 v32, 16, v{r}\nv_and_b32 v33, {vMASKHI}, v{r}\nv_add_f32 v{OA + 2 * dd}, v{OA + 2 * dd}, v32\nv_add_f32 v{OA + 2 * dd + 1}, v{OA + 2 * dd + 1}, v33')
for q4 in range(4):
    for e in range(4):
        E(f'v_mul_f32 v{OA + 4 * q4 + e}, v{OA + 4 * q4 + e}, {vRSTD}')
    E(f'ds_write_b128 v8, v[{OA + 4 * q4}:{OA + 4 * q4 + 3}] offset:{32 * q4}', tag='tw')
SH = 40
for i in range(4):
    for d in range(2):
        r = RS + 4 * i + d
        if i == 0:
            E(f'v_lshlrev_b32 v{SH + 2 * d}, 16, v{r}\nv_and_b32 v{SH + 2 * d + 1}, {vMASKHI}, v{r}')
        else:
            E(f'v_lshlrev_b32 v32, 16, v{r}\nv_and_b32 v33, {vMASKHI}, v{r}\nv_add_f32 v{SH + 2 * d}, v{SH + 2 * d}, v32\nv_add_f32 v{SH + 2 * d + 1}, v{SH + 2 * d + 1}, v33')
    if i == 1:
        E.wait_tags(['tw'])
        for rd in range(2):
            E(f'ds_read_b128 v[{48 + 8 * rd}:{51 + 8 * rd}], v11 offset:{rd * 16 * TP}')
            E(f'ds_read_b128 v[{52 + 8 * rd}:{55 + 8 * rd}], v11 offset:{rd * 16 * TP + 16}')
for rd in range(2):
    for e in range(8):
        E(f'v_add_f32 v{48 + 8 * rd + e}, v{48 + 8 * rd + e}, v{XB + 8 * rd + e}')
    for d in range(4):
        E(f'v_cvt_pk_bf16_f32 v{64 + 4 * rd + d}, v{48 + 8 * rd + 2 * d}, v{48 + 8 * rd + 2 * d + 1}')
    E(f'buffer_store_dwordx4 v[{64 + 4 * rd}:{67 + 4 * rd}], {vOA}, {srd(SRD_OUT)}, {SOM} offen')
    if rd == 0:
        E(f's_add_u32 {SOM}, {SOM}, {16 * 1152}')
for e in range(4):
    E(f'v_mov_b32 v{SH + 4 + e}, v{SH + e}')
for e in range(4):
    E(f'v_permlane32_swap_b32 v{SH + e}, v{SH + 4 + e}')
for e in range(4):
    E(f'v_add_f32 v{SH + e}, v{SH + e}, v{SH + 4 + e}\nv_fma_f32 v{SH + e}, v{SH + e}, {vRS2}, v{XB + 16 + e}')
E(f'v_cvt_pk_bf16_f32 v72, v{SH}, v{SH + 1}\nv_cvt_pk_bf16_f32 v73, v{SH + 2}, v{SH + 3}')
E(f'buffer_store_dwordx2 v[72:73], {vOS}, {srd(SRD_OUT)}, {SOS} offen')

if OPT['stamps']:
    stamp()
    E('s_waitcnt lgkmcnt(0)')
    E(f'v_writelane_b32 {vSTAMP}, s100, {nstamp[0] - 1}')
    E(f's_mov_b32 s84, {nstamp[0]}')
    E(f'v_writelane_b32 {vSTAMP}, s84, 63')
    E(f'v_writelane_b32 {vSTAMP}, s99, 62')
    E(f's_lshl_b32 s84, s2, 2\ns_add_u32 s84, s84, {sW}\ns_lshl_b32 s84, s84, 8\ns_add_u32 s84, s84, {L.WS_STAMP}')
    E('v_lshlrev_b32 v1, 2, v1')
    E(f'buffer_store_dword {vSTAMP}, v1, {srd(SRD_WS)}, s84 offen')
E('L_END:')
E('s_endpgm')
for k, load_txt in slow_paths:
    E.raw(f'''L_PS{k}:
    s_add_u32 s99, s99, 1
    s_cmp_gt_u32 s99, 400000
    s_cbranch_scc1 L_PR{k}
    s_sleep 1
    {load_txt}
    s_waitcnt vmcnt(0)
    s_branch L_PC{k}''')
E.raw('''L_RXS:
    s_add_u32 s99, s99, 1
    s_cmp_gt_u32 s99, 400000
    s_cbranch_scc1 L_RXR
    s_sleep 1
''' + '\n'.join('    ' + x for x in RXL) + '''
    s_waitcnt vmcnt(0)
    s_branch L_RXC''')
E.raw('L_CODE_END:')
E.raw(KD_FMT.format(name=KN, vgpr=512, sgpr=102, accum=256, kernarg=88))
open(OUT, 'w').write(E.text())
if OPT.get('log'):
    for x in S.log:
        if x[1] == 'BARRIER' or (x[1] == 'flushed' and x[3] > 6) or (x[1] == 'mark' and not x[2].startswith(('t', 'act', 'dma', 'xl'))):
            print(x)
print('insts', E.ninst, 'nops', E.n_nop, 'waits', E.n_wait)
```

```python
from kgen import Inst, VALU_CLS, VMEM_CLS


def I(x):
    return x if isinstance(x, (Inst, tuple)) else Inst(x)


class Stream:
    def __init__(self, name, items=(), own_vcc=False):
        self.name = name
        self.own_vcc = own_vcc
        self.edf = False
        self.items = []
        self.pos = 0
        self.sleep = 0
        self.add(items)

    def add(self, items):
        for x in items:
            if isinstance(x, str):
                for line in x.split('\n'):
                    line = line.strip()
                    if line and not line.startswith(';'):
                        self.items.append(Inst(line))
            else:
                self.items.append(x)
        self.reglue()

    def reglue(self):
        it = self.items
        for k, x in enumerate(it):
            if not isinstance(x, Inst):
                continue
            if x.op.startswith(('s_cselect', 's_cbranch_scc', 's_addc', 's_subb')):
                assert k > 0 and isinstance(it[k - 1], Inst), 'scc consumer without producer'
                x.glue = True
            if ('s', 'vcc') in x.reads and not self.own_vcc:
                q = k
                while True:
                    assert isinstance(it[q], Inst) and q > 0, 'vcc consumer without producer'
                    it[q].glue = True
                    q -= 1
                    assert isinstance(it[q], Inst), 'control item inside a vcc group'
                    if ('s', 'vcc') in it[q].writes:
                        break

    def done(self):
        return self.pos >= len(self.items)


class Op:
    def __init__(self, reads, mfmas, name=None, pre=None, requires=(), pre_requires=(), budget=None):
        self.reads = [I(x) for x in reads]
        self.mfmas = [I(x) for x in mfmas]
        self.name = name
        self.pre = pre
        self.requires = list(requires)
        self.pre_requires = list(pre_requires)
        self.budget = budget


def cost(inst):
    c = inst.cls
    if c in ('trans', 'permlane'):
        return 2.0
    if c in VALU_CLS:
        return 1.0
    if c in ('ds_read', 'ds_write'):
        return 1.0
    if c in VMEM_CLS:
        return 1.0
    if c in ('mfma4',):
        return 0.0
    if c in ('mfma8',):
        return -2.0
    return 1.0


def vcost(inst):
    if inst.cls not in VMEM_CLS:
        return 0.0
    if 'dwordx4' in inst.op:
        return 1.0
    return 0.3


def is_mem(inst):
    return inst.cls in VMEM_CLS or inst.cls in ('ds_read', 'ds_write')


class Sched:
    def __init__(self, E, streams):
        self.E = E
        self.streams = streams
        self.done_names = set()
        self.marks = set()
        self.hook = None
        self.credit = 0.0
        self.vcredit = 0.0
        self.vrate = 72.0
        self.vcap = 3.0
        self.memorder = None
        self.lat = 30
        self.quiet_until = 0
        self.forced = False
        self.deadline = {}
        self.log = []
        self.cur = 0

    def _head(self, s):
        while not s.done():
            x = s.items[s.pos]
            if isinstance(x, Inst):
                if s.sleep > 0:
                    return None
                return x
            kind = x[0]
            if kind == 'mark':
                if s.sleep > 0:
                    return None
                self.marks.add(x[1])
                self.log.append((self.cur, 'mark', x[1], 0))
                s.pos += 1
            elif kind == 'gap':
                if s.sleep > 0:
                    return None
                s.sleep = x[1]
                s.pos += 1
                return None
            elif kind == 'after':
                if x[1] in self.done_names or x[1] in self.marks:
                    s.pos += 1
                else:
                    return None
            elif kind == 'idle':
                if s.sleep > 0:
                    return None
                o = x[1]
                if self.forced or o.done() or (isinstance(o.items[o.pos], tuple) and o.items[o.pos][0] == 'after'
                                               and not (o.items[o.pos][1] in self.done_names or o.items[o.pos][1] in self.marks)):
                    s.pos += 1
                else:
                    return None
            elif kind == 'quiet':
                if s.sleep > 0:
                    return None
                self.quiet_until = self.cur + x[1]
                s.pos += 1
            elif kind == 'call':
                if s.sleep > 0:
                    return None
                s.pos += 1
                x[1]()
            else:
                raise ValueError(x)
        return None

    def emit1(self, s):
        c = 0
        while True:
            x = s.items[s.pos]
            self.E.emit(x)
            c += cost(x)
            self.vcredit -= vcost(x)
            s.pos += 1
            if s.done() or not isinstance(s.items[s.pos], Inst) or not s.items[s.pos].glue:
                return c

    def flush_until(self, mark):
        if mark in self.marks:
            return
        for s in self.streams:
            if any(isinstance(x, tuple) and x[0] == 'mark' and x[1] == mark for x in s.items[s.pos:]):
                n0 = self.E.ninst
                self.log.append((self.cur, 'flush', mark, n0))
                while mark not in self.marks:
                    s.sleep = 0
                    x = s.items[s.pos]
                    if isinstance(x, Inst):
                        self.emit1(s)
                    elif x[0] == 'after' and not (x[1] in self.done_names or x[1] in self.marks):
                        self.flush_until(x[1])
                        if not (x[1] in self.done_names or x[1] in self.marks):
                            raise RuntimeError(f'deadlock: mark {mark} needs {x[1]}')
                    else:
                        self.forced = True
                        self._head(s)
                        self.forced = False
                self.log.append((self.cur, 'flushed', mark, self.E.ninst - n0))
                return
        raise RuntimeError('unknown mark ' + mark)

    def slack(self, s):
        nv = 0
        for x in s.items[s.pos:s.pos + 60]:
            if isinstance(x, Inst):
                nv += vcost(x)
            elif x[0] == 'mark' and x[1] in self.deadline:
                return self.deadline[x[1]] - self.cur - 2.0 * nv
        return 1e9

    def fill(self, budget, maxmem=1, cyc=32):
        E = self.E
        self.vcredit = max(min(self.vcredit + cyc / self.vrate, self.vcap), -2.0)
        cap = budget + 1.0
        budget = min(budget + self.credit, cap)
        nm = 0
        order = list(self.memorder or self.streams)
        edf = sorted([s for s in order if s.edf], key=self.slack)
        order = [edf.pop(0) if s.edf else s for s in order]
        for s in order:
            urgent = s.edf and self.slack(s) < self.lat
            while nm < maxmem and (budget >= 1.0 or (urgent and nm == 0)):
                h = self._head(s)
                if h is None:
                    break
                k = s.pos
                while k < len(s.items) and isinstance(s.items[k], Inst) and s.items[k].cls in ('salu', 's_nop'):
                    k += 1
                if k < len(s.items) and isinstance(s.items[k], Inst) and is_mem(s.items[k]) and k - s.pos <= 4 \
                        and (not s.edf or (vcost(s.items[k]) <= self.vcredit + 1e-6 and self.cur >= self.quiet_until) or (urgent and nm == 0)):
                    while s.pos <= k:
                        budget -= self.emit1(s)
                    nm += 1
                else:
                    break
        for s in self.streams:
            while budget > 0:
                h = self._head(s)
                if h is None or is_mem(h):
                    break
                if cost(h) > budget + 0.01:
                    break
                budget -= self.emit1(s)
        self.credit = max(budget, -8.0)
        for s in self.streams:
            if s.sleep > 0:
                s.sleep -= 1

    def run(self, ops, D, WB, budget, maxmem=1, primed=0):
        E = self.E
        N = len(ops)
        self.deadline = dict(getattr(self, 'extra_deadline', {}))
        for i, o in enumerate(ops):
            for m in o.requires:
                self.deadline.setdefault(m, i)
            for m in o.pre_requires:
                self.deadline.setdefault(m, i - D)

        def issue_reads(j):
            o = ops[j]
            for m in o.pre_requires:
                self.flush_until(m)
            if o.pre:
                o.pre()
            for k, x in enumerate(o.reads):
                x.tag = ('frag', id(o))
                E.emit(x)

        for j in range(primed, min(D, N)):
            issue_reads(j)
        for i in range(N):
            o = ops[i]
            self.cur = i
            for m in o.requires:
                self.flush_until(m)
            if i % WB == 0:
                E.wait_tags([('frag', id(ops[q])) for q in range(i, min(N, i + WB))])
            b = o.budget if o.budget is not None else budget
            for k, m in enumerate(o.mfmas):
                E.emit(m)
                if k == 0 and i + D < N:
                    issue_reads(i + D)
                self.fill(b / len(o.mfmas), maxmem, 34 / len(o.mfmas))
            if o.name:
                self.done_names.add(o.name)
            if self.hook:
                self.hook(i)

    def drain(self):
        self.forced = True
        progress = True
        while progress:
            progress = False
            for s in self.streams:
                while True:
                    s.sleep = 0
                    h = self._head(s)
                    if h is None:
                        if s.sleep > 0:
                            progress = True
                            continue
                        break
                    self.emit1(s)
                    progress = True
        for s in self.streams:
            if not s.done():
                raise RuntimeError(f'stream {s.name} blocked at {s.items[s.pos]}')
```

```python
import sys
import struct
sys.path.insert(0, 'gen')
from kgen import *
from sched import *
import layout as L

KN = 'parallel_sum__sliding_local_dilated__dense_activation_squared_relu__prompt_kernel'
OPT = dict(stamps=0, D=6, WB=3, bA=3.5, bQ=4.5, bB=4.0, bP=4.5, pubgap=50, pollgap=20, stouch=1, gtouch=0,
           hxgap=30, higap=60, egap=5, pgap=60, dmagap=0, bx=16, maxmem=2, vrate=55, vcap=3, rp2at=4, lat=30, pfwat=11, auxat=21, rxks=17, ogap=40, btouch=2, hbatch=1, drain=1, eat=6, quiet=0, tfirst=0, pchk=30, rxat=50, etouch=0, x23=0)
for a in sys.argv[2:]:
    k, v = a.split('=')
    OPT[k] = float(v) if '.' in v else int(v)
OUT = sys.argv[1]
OPT_E = f"a{OPT['eat']}"
GS = '' if OPT.get('gplain') else ' sc1'

E = Emitter()
slow_paths = []
fl = lambda x: '0x%08x' % struct.unpack('<I', struct.pack('<f', x))[0]
OOB = '0x40000000'

sW, sR, sS, sC, sJ = 's4', 's5', 's6', 's7', 's8'
P_X, P_WQKV, P_WO, P_W1, P_B1, P_W2, P_B2 = 16, 18, 20, 24, 26, 28, 30
P_OUT, P_DBG, P_WS = 32, 34, 36
SRD_X, SRD_W1, SRD_WS, SRD_RP, SRD_B, SRD_OUT, SRD_DBG, SRD_EU = 40, 44, 48, 52, 56, 60, 64, 68
NONCE = 82
sSLW, sGF, sRPF, sCSA, sCSB, sGB = 's9', 's10', 's11', 's12', 's13', 's14'
sUST, sUS, sUD, sUC = 's15', 's38', 's39', 's3'
sA0, sA4, sB0, sB4, sQ0, sQ4 = 's16', 's17', 's18', 's19', 's20', 's21'
sPF = ['s22', 's23', 's24', 's25']
sGP = [None, 's26', 's27', 's28']
sXB, sXB2, sSTB = 's29', 's30', 's31'
M16 = 's[32:33]'
MX1, MX2 = 's[34:35]', 's[36:37]'
sL10, sL8, sL9, sBO, sC0, sC1 = 's72', 's73', 's74', 's75', 's80', 's81'
sBO2, sL6, sP8 = 's76', 's0', 's1'
SPOLL = 's[78:79]'
tD0, tD1 = 's84', 's85'
tA0, tA1, tA2, tA3 = 's86', 's87', 's88', 's89'
tR0, tR1, tR2, tR3, tR4 = 's90', 's91', 's95', 's96', 's77'
tC0, tC1 = 's92', 's93'
tE0 = 's94'
tM0, tM1 = 's97', 's98'


def srd(n):
    return f's[{n}:{n + 3}]'


XN = 16
FR = 160
NF = 7
BIASR = 188
VDA = 196
VDB = 201
vTA = 'v205'
VTB = 4
vRL = 'v206'
vF0 = 'v207'
vTCH = 'v208'
vLANE16 = 'v209'
vTL = 'v210'
vRSTD = 'v211'
vXO = 'v212'
vREM = 'v213'
BCOR = 214
TMP = 218
vMASKHI = 'v254'
vSTAMP = 'v255'
vNON = 12
vPF = 8
vTD = 10
vPA = 'v15'
vTW = 'v0'
QA = 144
AK = [192, 200, 208, 216]
ONESR = 220

RING = [0, 40960, 81920]
AUX = 122880
LDS_TOTAL = 163840
QB = AUX
QB1 = QB + 4096
PITCH = 240
SLOTB = {g: RING[g % 3] for g in range(18)}
DMA_AFTER = {g: g - 1 for g in range(18)}
NSTG = 26
AUXAT = OPT['auxat']
for g in range(18, AUXAT):
    SLOTB[g] = RING[g % 3]
    DMA_AFTER[g] = g - 1
for g in range(AUXAT, NSTG):
    SLOTB[g] = [AUX, RING[AUXAT % 3], RING[(AUXAT + 1) % 3], RING[(AUXAT + 2) % 3]][(g - AUXAT) % 4]
    DMA_AFTER[g] = g - 2

if OPT['drain']:
    DMA_AFTER = {g: v - 1 for g, v in DMA_AFTER.items()}
nstamp = [0]


def stamp():
    if not OPT['stamps']:
        return
    k = nstamp[0]
    if k > 0:
        E(f'v_writelane_b32 {vSTAMP}, s100, {k - 1}')
    E('s_memrealtime s[100:101]' if OPT.get('rt') else 's_memtime s[100:101]')
    nstamp[0] += 1


def mk_srd(n, p, size):
    E(f's_mov_b32 s{n}, s{p}\ns_mov_b32 s{n + 1}, s{p + 1}\ns_mov_b32 s{n + 2}, {size}\ns_mov_b32 s{n + 3}, 0x20000')


def emit_all(lst):
    for x in lst:
        if isinstance(x, str):
            E(x)
        elif isinstance(x, Inst):
            E.emit(x)


def nodep(txt):
    ld = Inst(txt)
    ld.writes = set()
    return ld


hdr = open('parallel_sum__sliding_local_dilated__dense_activation_squared_relu__prompt.s.ref').read()
hdr = [l for l in hdr.split('\n') if l.startswith(';') and '@launch' not in l and 'Override' not in l and 'grid=ceil' not in l]
E.raw('\n'.join(hdr))
E.raw(f'; @launch grid=(256,1,1) block=(256,1,1) lds={LDS_TOTAL}')
E.raw(f'.amdgcn_target "amdgcn-amd-amdhsa--gfx950"\n.text\n.globl {KN}\n.p2align 8\n.type {KN},@function\n{KN}:')

E('s_cmp_ge_u32 s2, 256\ns_cbranch_scc1 L_END')
stamp()
E('s_load_dwordx16 s[16:31], s[0:1], 0')
E('s_load_dwordx4 s[32:35], s[0:1], 64')
E('s_load_dwordx2 s[36:37], s[0:1], 80')
E(f's_memrealtime s[{NONCE}:{NONCE + 1}]')
E('s_mov_b32 s99, 0')
E(f's_getpc_b64 s[{SRD_EU}:{SRD_EU + 1}]')
E('L_PCREF:')
E(f's_mov_b32 s{SRD_EU + 2}, L_CODE_END-L_PCREF\ns_mov_b32 s{SRD_EU + 3}, 0x20000')
E('v_lshlrev_b32 v2, 7, v0')
E('s_lshr_b32 s3, s2, 3\ns_and_b32 s3, s3, 1\ns_lshl_b32 s3, s3, 15')
E.emit(nodep(f'buffer_load_dword v{vTD}, v2, {srd(SRD_EU)}, s3 offen'))
E('v_lshrrev_b32 v1, 6, v0')
E(f'v_readfirstlane_b32 {sW}, v1')
E('v_and_b32 v1, 63, v0')
E(f'''s_and_b32 s84, s2, 7
s_lshr_b32 s85, s2, 3
s_lshr_b32 {sS}, s84, 1
s_and_b32 {sC}, s85, 3
s_and_b32 s84, s84, 1
s_lshl_b32 s84, s84, 3
s_lshr_b32 s85, s85, 2
s_add_u32 {sR}, s84, s85
s_lshl_b32 {sJ}, {sS}, 2
s_add_u32 {sJ}, {sJ}, {sC}
v_bfe_u32 v2, v1, 2, 3
v_mul_u32_u24 v2, 4608, v2
v_lshrrev_b32 v3, 5, v1
v_lshl_add_u32 v2, v3, 6, v2
v_and_b32 v4, 3, v1
v_lshl_add_u32 {vXO}, v4, 4, v2
v_mul_u32_u24 v5, 1152, v3
v_and_b32 v6, 31, v1
v_lshl_add_u32 v5, v6, 4, v5
v_mov_b32 v7, {OOB}
v_cmp_gt_u32 vcc, 8, v6
v_cndmask_b32 v6, v7, v5, vcc
v_lshlrev_b32 {vLANE16}, 4, v1
s_lshl_b32 s86, {sR}, 2
s_add_u32 s86, s86, {sW}
s_mul_i32 s86, s86, 36864
s_lshl_b32 s87, {sR}, 4
s_add_u32 s87, s87, {sJ}
s_lshl_b32 s87, s87, 2
s_add_u32 s87, s87, {sW}
s_mul_i32 s88, s87, 2304''')
for i in range(5):
    E(f'''v_add_u32 v8, {64 * i}, v1
v_mul_u32_u24 v9, 3277, v8
v_lshrrev_b32 v9, 16, v9
v_mul_u32_u24 v11, 20, v9
v_sub_u32 v11, v8, v11
v_mul_u32_u24 v9, 9216, v9
v_lshl_add_u32 v{VDA + i}, v11, 4, v9''')
    if i % 4:
        E(f'v_subrev_u32 v{VDA + i}, {(i % 4) * 1024}, v{VDA + i}')
E(f'''s_mul_i32 s89, {sJ}, 576
s_and_b32 s84, {sJ}, 1
s_cmp_eq_u32 s84, 0
s_cselect_b32 s90, 256, 0
s_cselect_b32 s91, 0, 320
s_mul_i32 s92, {sW}, {32 * 9216}
s_add_u32 s92, s92, s89
s_add_u32 s93, s92, s90
s_mul_i32 {sL10}, {sW}, 10240''')
E('s_waitcnt lgkmcnt(0)')
mk_srd(SRD_X, P_X, 2359296)
mk_srd(SRD_W1, P_W1, 5308416)
E1R = TMP + 16
for k in range(3):
    E(f'buffer_load_dwordx4 v[{E1R + 4 * k}:{E1R + 4 * k + 3}], {"v5" if k < 2 else "v6"}, {srd(SRD_X)}, s88 offen offset:{512 * k}')


def xload(q, sb=None):
    o = []
    for i in range(4):
        r = XN + 16 * q + 4 * i
        b, off = (sb or sXB, 128 * q) if q < 5 else (sXB2, 128 * (q - 5))
        o.append(Inst(f'buffer_load_dwordx4 v[{r}:{r + 3}], {vXO}, {srd(SRD_X)}, {b} offen offset:{1152 * i + off}', tag=f'x{q}'))
    o.append(('mark', f'xl{q}'))
    return o


TOUCH_ONLY = [False]


def touch(fn, *a):
    TOUCH_ONLY[0] = True
    o = fn(*a)
    TOUCH_ONLY[0] = False
    return o


def dma_a(u, sb=None):
    g = u
    base = SLOTB[g]
    out = [f's_add_u32 {tD0}, {sb or sA0}, {u * 128 * 9216}' if u < 4 else f's_mov_b32 {tD0}, {sA4}']
    if TOUCH_ONLY[0]:
        return out + [nodep(f'buffer_load_dword v{vTD}, {vTW}, {srd(SRD_W1)}, {tD0} offen')]
    lw = sL10
    if u == 4:
        out.append(f's_lshr_b32 {tD1}, {sL10}, 1')
        lw = tD1
    for gr in range(2 if u < 4 else 1):
        if gr:
            out.append(f's_add_u32 {tD0}, {tD0}, {16 * 9216}')
        for i in range(5):
            if i % 4 == 0:
                out.append(f's_add_u32 m0, {lw}, {base + gr * 5120 + i * 1024}')
            out.append(Inst(f'buffer_load_dwordx4 v{VDA + i}, {srd(SRD_W1)}, {tD0} offen offset:{(i % 4) * 1024} lds', tag=f'st{g}'))
    return out


def lin_pieces(g, lw, lbase, npc):
    out = []
    for i in range(npc):
        if i % 4 == 0:
            out.append(f's_add_u32 m0, {lw}, {lbase + i * 1024}' if lw else f's_mov_b32 m0, {lbase + i * 1024}')
            if i:
                out.append(f's_add_u32 {tD0}, {tD0}, 4096')
        out.append(Inst(f'buffer_load_dwordx4 {vLANE16}, {srd(SRD_WS)}, {tD0} offen offset:{(i % 4) * 1024} sc1 lds', tag=f'st{g}'))
    return out


def cs_pieces(g, src, lofs, n):
    o = [f's_lshl_b32 {tD1}, {sW}, 10', f's_add_u32 {tD0}, {src}, {tD1}'] + lin_pieces(g, tD1, SLOTB[g] + lofs, 1)
    if n == 5:
        o += [f's_add_u32 {tD0}, {src}, 4096'] + lin_pieces(g, None, SLOTB[g] + lofs + 4096, 1)
    return o


def dma_b(u):
    g = 10 + u
    base = SLOTB[g]
    out = [f's_add_u32 {tD0}, {sB0}, {u * 128 * 9216}' if u < 4 else f's_mov_b32 {tD0}, {sB4}']
    if TOUCH_ONLY[0]:
        return out + [nodep(f'buffer_load_dword v{vTD}, {vTW}, {srd(SRD_W1)}, {tD0} offen')]
    lw = sL8
    if u == 4:
        out.append(f's_lshr_b32 {tD1}, {sL8}, 1')
        lw = tD1
    for gr in range(2 if u < 4 else 1):
        if gr:
            out.append(f's_add_u32 {tD0}, {tD0}, {16 * 9216}')
        out.append(f's_add_u32 m0, {lw}, {base + gr * 4096}')
        for i in range(4):
            out.append(Inst(f'buffer_load_dwordx4 v{VDB + i}, {srd(SRD_W1)}, {tD0} offen offset:{i * 1024} lds', tag=f'st{g}'))
    if u == 0:
        out += cs_pieces(g, sCSB, 32768, 4)
    return out


def dma_lin(g, setup, lw, npc):
    if TOUCH_ONLY[0]:
        return [setup[-1]] + [nodep(f'buffer_load_dword v{vTD}, {vTL}, {srd(SRD_WS)}, {tD0} offen sc1')]
    return list(setup) + lin_pieces(g, lw, SLOTB[g], npc)


def dma_q(u):
    g = 5 + u
    if u < 4:
        o = dma_lin(g, [f's_add_u32 {tD0}, {sQ0}, {u * 32768}'], sL8, 8)
        if u == 0 and not TOUCH_ONLY[0]:
            o = cs_pieces(g, sCSA, 32768, 5) + o
        return o
    o = dma_lin(g, [f's_lshr_b32 {tD1}, {sL8}, 1', f's_mov_b32 {tD0}, {sQ4}'], tD1, 4)
    if not TOUCH_ONLY[0]:
        o += [f's_lshl_b32 {tM1}, {sJ}, 12', f's_add_u32 {tM1}, {tM1}, {L.WS_CSQ}'] + cs_pieces(g, tM1, 16384, 4)
    return o


RUNS = [('A', k) for k in range(4)] + [('B', k) for k in range(4)]


def dma_p(p):
    kind, k = RUNS[p]
    g = 15 + p
    if kind == 'A':
        return dma_lin(g, [f's_mov_b32 {tD0}, {sPF[k]}'], (sL10, sL8)[k % 2], (10, 8)[k % 2])
    return dma_lin(g, [f's_add_u32 {tD0}, {sPF[k]}, {(sBO, sBO2)[k % 2]}'], (sL8, sL6)[k % 2], (8, 6)[k % 2])


def dma_o(_):
    g = 23
    if TOUCH_ONLY[0]:
        return []
    o = [f's_add_u32 {tD0}, {sC}, {sW}', f's_and_b32 {tD1}, {tD0}, 3', f's_mul_i32 {tD0}, {tD1}, 61440', f's_add_u32 {tD0}, {tD0}, {sSLW}',
         f's_add_u32 {tD0}, {tD0}, {54 * 1024}'] + lin_pieces(g, sL6, SLOTB[g], 6)
    o += [f's_lshr_b32 {tD0}, {tD1}, 1', f's_mul_i32 {tD0}, {tD0}, 20480', f's_add_u32 {tD0}, {tD0}, {sSLW}',
          f's_add_u32 {tD0}, {tD0}, {L.SLABW_S + 18 * 1024}', f's_lshl_b32 {tD1}, {sW}, 11'] + lin_pieces(g, tD1, SLOTB[g] + 24576, 2)
    o += [f's_lshl_b32 {tD1}, {sW}, 10', f's_add_u32 {tD0}, {tD1}, {240 * 1024}', f's_cmp_eq_u32 {sW}, 3',
          f's_cselect_b32 {tD0}, {L.SLABW_S + 40 * 1024}, {tD0}', f's_add_u32 {tD0}, {tD0}, {sSLW}'] + lin_pieces(g, tD1, SLOTB[g] + 32768, 1)
    o += [f's_add_u32 {tD0}, {sSLW}, {L.SLABW_O + 80 * 1024}'] + lin_pieces(g, None, SLOTB[g] + 36864, 1)
    return o


def dma_c(u):
    return dma_lin(24 + u, [f's_mov_b32 {tD0}, {(sC0, sC1)[u]}'], sL10, 10)


A0L = dma_a(0, 's93')
cut = [i for i, x in enumerate(A0L) if isinstance(x, Inst)][4] + 1
def early_touch(first_seg, first_stage):
    E(f'''v_and_b32 v8, 7, v1
s_lshl_b32 s84, {sC}, 3
v_add_u32 v8, s84, v8
v_mul_u32_u24 v8, 1152, v8
v_lshrrev_b32 v9, 3, v1
v_lshl_add_u32 v11, v9, 7, v8''')
    E.emit(nodep(f'buffer_load_dword v{vTD}, v11, {srd(SRD_X)}, s86 offen offset:{128 * first_seg}'))
    E(f'''v_mul_u32_u24 v11, 86, v1
v_lshrrev_b32 v11, 8, v11
v_mul_u32_u24 v9, 3, v11
v_sub_u32 v9, v1, v9
v_lshrrev_b32 v15, 2, v11
v_and_b32 v11, 3, v11
v_lshl_add_u32 v11, v15, 7, v11
s_and_b32 s84, {sR}, 7
s_lshl_b32 s84, s84, 2
s_add_u32 s84, s84, {128 * first_stage}
v_add_u32 v11, s84, v11
v_mul_u32_u24 v11, 9216, v11
v_lshl_add_u32 v11, v9, 7, v11
v_cmp_gt_u32 vcc, {12 * (4 - first_stage)}, v1
v_cndmask_b32 v11, v7, v11, vcc''')
    E.emit(nodep(f'buffer_load_dword v{vTD}, v11, {srd(SRD_W1)}, s93 offen'))
    if first_seg == 0:
        E.emit(nodep(f'buffer_load_dword v{vTD}, v8, {srd(SRD_X)}, s86 offen offset:1024'))


if OPT['tfirst']:
    early_touch(0, 0)
else:
    emit_all(xload(0, 's86') + A0L[:cut])
    E(f's_mov_b32 s97, {tD0}')
stamp()
mk_srd(SRD_DBG, P_DBG, 256)
E(f'''s_or_b32 s{NONCE}, s{NONCE}, 1
v_mov_b32 v8, s{NONCE}
v_mov_b32 v9, s{NONCE + 1}
v_mov_b32 v14, 0
v_cmp_eq_u32 vcc, 0, v1
v_cndmask_b32 {vF0}, v7, v14, vcc
s_or_b32 s85, s2, {sW}
s_cmp_eq_u32 s85, 0
s_cselect_b32 s85, 0, {OOB}''')
E(f'buffer_store_dwordx2 v[8:9], {vF0}, {srd(SRD_DBG)}, s85 offen sc1')
mk_srd(SRD_WS, P_WS, 0x10000000)
mk_srd(SRD_B, P_B1, 9216)
mk_srd(SRD_OUT, P_OUT, 2359296)
E(f'''s_cmp_lt_u32 s2, 236
s_cselect_b32 s{SRD_RP}, s{P_W2}, s{P_WO}
s_cselect_b32 s{SRD_RP + 1}, s{P_W2 + 1}, s{P_WO + 1}
s_mov_b32 s{SRD_RP + 2}, 5308416
s_cselect_b32 s{SRD_RP + 2}, s{SRD_RP + 2}, 663552
s_mov_b32 s{SRD_RP + 3}, 0x20000''')
vU, vA1, vZ = 'v2', 'v3', f'v{TMP + 32}'
E(f'''s_and_b32 s84, s2, 3
s_lshr_b32 s85, {sW}, 1
s_lshl_b32 s85, s85, 5
s_and_b32 s94, {sW}, 1
s_lshl_b32 s94, s94, 2
s_add_u32 s85, s85, s94
s_lshl_b32 s94, s84, 3
s_add_u32 s85, s85, s94
v_lshrrev_b32 v8, 4, v1
v_and_b32 v9, 15, v1
v_bfe_u32 v11, v1, 4, 1
v_lshrrev_b32 v3, 5, v1
v_lshlrev_b32 v3, 3, v3
v_bfe_u32 v15, v1, 2, 2
v_add_u32 v3, v3, v15
v_lshlrev_b32 v3, 8, v3
v_add_u32 v3, {AUX}, v3
s_cmp_ge_u32 s2, 64
s_cbranch_scc1 L_EU_W1
s_lshr_b32 s94, s2, 2
s_mov_b32 s{SRD_EU}, s{P_WQKV}
s_mov_b32 s{SRD_EU + 1}, s{P_WQKV + 1}
s_mov_b32 s{SRD_EU + 2}, 1990656
s_mov_b32 {sUST}, {64 * 3456}
s_mul_i32 {sUS}, s85, 3456
s_mul_i32 s95, s94, 72
s_add_u32 {sUS}, {sUS}, s95
s_mul_i32 {sUD}, s94, {L.SLABQ_SZ}
s_lshl_b32 s95, s84, 2
s_add_u32 s95, s95, {sW}
s_lshl_b32 s95, s95, 10
s_add_u32 {sUD}, {sUD}, s95
s_add_u32 {sUD}, {sUD}, {L.WS_SLABQ}
s_lshl_b32 {sUC}, s94, 12
s_add_u32 {sUC}, {sUC}, {L.WS_CSQ}
s_mov_b32 s96, {OOB}
v_mul_u32_u24 v8, 3456, v8
v_mul_u32_u24 v15, 13, v9
v_lshrrev_b32 v15, 6, v15
v_mul_u32_u24 v2, 5, v15
v_sub_u32 v9, v9, v2
v_mul_u32_u24 v15, 1152, v15
v_add_u32 v8, v8, v15
v_lshl_add_u32 {vU}, v9, 4, v8
v_lshlrev_b32 v11, 2, v11
v_and_b32 v8, 1, v1
v_lshl_add_u32 v11, v8, 1, v11
v_bfe_u32 v8, v1, 1, 1
v_add_u32 v11, v11, v8
s_lshl_b32 s95, {sW}, 3
v_add_u32 v11, s95, v11
v_min_u32 v11, 26, v11
v_mul_u32_u24 v8, 57, v11
v_lshrrev_b32 v8, 9, v8
v_lshl_add_u32 v11, v11, 3, v3
v_lshl_add_u32 {vA1}, v8, 3, v11
s_branch L_EU_DONE
L_EU_W1:
s_sub_u32 s94, s2, 64
s_lshr_b32 s94, s94, 2
s_mov_b32 s{SRD_EU}, s{P_W1}
s_mov_b32 s{SRD_EU + 1}, s{P_W1 + 1}
s_mov_b32 s{SRD_EU + 2}, 5308416
s_mov_b32 {sUST}, {64 * 9216}
s_mul_i32 {sUS}, s85, 9216
s_lshl_b32 s95, s94, 8
s_add_u32 {sUS}, {sUS}, s95
s_mov_b32 {sUD}, {OOB}
s_lshl_b32 {sUC}, s94, 12
s_add_u32 {sUC}, {sUC}, {L.WS_CSF}
s_lshl_b32 s96, {sW}, 6
s_add_u32 s96, s96, s95
s_cmp_eq_u32 s84, 0
s_cselect_b32 s96, s96, {OOB}
s_cmp_lt_u32 s2, 208
s_cselect_b32 {sUS}, {sUS}, {OOB}
s_cselect_b32 {sUC}, {sUC}, {OOB}
v_mul_u32_u24 v8, 9216, v8
v_lshl_add_u32 {vU}, v9, 4, v8
v_lshl_add_u32 v3, v11, 5, v3
v_lshl_add_u32 v3, v4, 3, v3
s_lshl_b32 s95, {sW}, 6
v_add_u32 {vA1}, s95, v3
L_EU_DONE:
s_lshl_b32 s95, {sW}, 10
s_add_u32 {sUC}, {sUC}, s95
s_lshl_b32 s94, s84, 2
s_add_u32 {sUC}, {sUC}, s94
v_and_b32 v8, 31, v1
v_lshlrev_b32 v8, 1, v8
s_nop 2''')
if not OPT['tfirst']:
    E(f's_mov_b32 {tD0}, s97')
    emit_all(A0L[cut:] + xload(1, 's86'))
E(f'buffer_load_ushort {vZ}, v8, {srd(SRD_B)}, s96 offen')
mk_srd(SRD_B, P_B2, 1152)
def eu_dma():
    for i in range(9):
        E(f's_add_u32 m0, s95, {AUX + i * 4096}')
        E(f'buffer_load_dwordx4 {vU}, {srd(SRD_EU)}, {sUS} offen lds', tag='eu')
        if i < 8:
            E(f's_add_u32 {sUS}, {sUS}, {sUST}')


if OPT['tfirst']:
    eu_dma()
E(f'''s_mov_b32 {sXB}, s86
s_add_u32 {sXB2}, s86, 640
s_mov_b32 {sA0}, s93
s_add_u32 {sB0}, s92, s91
s_mul_i32 s84, {sW}, {16 * 9216}
s_add_u32 s84, s84, {512 * 9216}
s_add_u32 s84, s84, s89
s_add_u32 {sA4}, s84, s90
s_add_u32 {sB4}, s84, s91
s_lshl_b32 {sL8}, {sW}, 13
s_mul_i32 {sL9}, {sW}, 9216
s_lshl_b32 {sBO2}, {sW}, 11
s_sub_u32 {sBO2}, 30720, {sBO2}
s_cmp_eq_u32 {sW}, 3
s_cselect_b32 {sBO}, 10240, {sBO2}
s_mul_i32 {sL6}, {sW}, 6144
s_mul_i32 s84, {sJ}, {L.SLABQ_SZ}
s_add_u32 s84, s84, {L.WS_SLABQ}
s_add_u32 {sQ0}, s84, {sL8}
s_lshl_b32 s85, {sW}, 12
s_add_u32 {sQ4}, s84, s85
s_add_u32 {sQ4}, {sQ4}, {8 * 16384}
s_mul_i32 s84, {sJ}, 9216
s_add_u32 s84, s84, {L.WS_CSF}
s_lshl_b32 s90, s90, 4
s_lshl_b32 s91, s91, 4
s_add_u32 {sCSA}, s84, s90
s_add_u32 {sCSB}, s84, s91
s_mul_i32 {sGB}, s87, {L.G_WAVE}
s_add_u32 {sGB}, {sGB}, {L.WS_G}
s_mul_i32 {sSLW}, {sJ}, {L.SLABW_SZ}
s_add_u32 {sSLW}, {sSLW}, {L.WS_SLABW}''')
for k in range(4):
    E(f's_add_u32 s84, {sC}, {k}\ns_and_b32 s84, s84, 3\ns_mul_i32 s85, s84, 61440\ns_add_u32 s85, s85, {sL10 if k % 2 == 0 else sL8}')
    if k % 2 == 0:
        E(f's_lshr_b32 s90, s84, 1\ns_mul_i32 s90, s90, 20480\ns_add_u32 s90, s90, {L.SLABW_S}')
        E(f's_cmp_eq_u32 {sW}, 3\ns_cselect_b32 s85, s90, s85')
    E(f's_add_u32 {sPF[k]}, s85, {sSLW}')
    if k:
        E(f's_sub_u32 s84, s84, {sC}\ns_mul_i32 s84, s84, {L.G_WG}\ns_add_u32 {sGP[k]}, s84, {sGB}')
for u, d in enumerate((sC0, sC1)):
    E(f's_lshr_b32 s84, {sW}, 1\ns_add_u32 s84, s84, {sC}\ns_add_u32 s84, s84, {2 - 2 * u}\ns_and_b32 s84, s84, 3\ns_mul_i32 s84, s84, 20480\n'
      f's_and_b32 s85, {sW}, 1\ns_mul_i32 s85, s85, 10240\ns_add_u32 s84, s84, s85\ns_add_u32 s84, s84, {sSLW}\ns_add_u32 {d}, s84, {L.SLABW_O}')
E(f'''s_lshl_b32 {sGF}, {sR}, 2
s_add_u32 {sGF}, {sGF}, {sS}
s_lshl_b32 {sGF}, {sGF}, 2
s_add_u32 {sGF}, {sGF}, {sW}
s_lshl_b32 {sGF}, {sGF}, 7
s_add_u32 {sGF}, {sGF}, {L.WS_FLAG_G}
s_lshl_b32 {sSTB}, {sR}, 2
s_add_u32 {sSTB}, {sSTB}, {sW}
s_lshl_b32 {sSTB}, {sSTB}, 7
s_add_u32 {sSTB}, {sSTB}, {L.WS_STAT}
s_mov_b64 {M16}, 0xffff
s_mov_b32 s34, 0x55555555
s_mov_b32 s35, 0x55555555
s_mov_b32 s36, 0x33333333
s_mov_b32 s37, 0x33333333''')
if not OPT['tfirst']:
    eu_dma()
E(f'''s_and_b32 s84, {sR}, 7
v_mul_u32_u24 v8, 86, v1
v_lshrrev_b32 v8, 8, v8
v_mul_u32_u24 v9, 3, v8
v_sub_u32 v9, v1, v9
s_lshl_b32 s85, s84, 2
v_add_u32 v8, s85, v8
v_mul_u32_u24 v8, 9216, v8
v_lshl_add_u32 v8, v9, 7, v8
v_cmp_gt_u32 vcc, 12, v1
v_cndmask_b32 {vTW}, v7, v8, vcc
v_lshlrev_b32 {vTCH}, 7, v1
s_mul_i32 s85, s84, {10 * 128}
v_add_u32 v8, s85, {vTCH}
v_cmp_gt_u32 vcc, 10, v1
v_cndmask_b32 {vTL}, v7, v8, vcc
v_lshrrev_b32 v8, 5, v1
v_lshlrev_b32 v8, 5, v8
v_bfe_u32 v9, v1, 2, 2
v_add_u32 v8, v8, v9
v_bfe_u32 v11, v1, 4, 1
v_lshlrev_b32 v11, 5, v11
v_lshl_add_u32 v11, v4, 3, v11
v_mul_u32_u24 v15, 320, v8
v_add_u32 {vTA}, v15, v11
v_lshl_add_u32 v15, v8, 8, v11
v_add_u32 v15, {SLOTB[10]}, v15
v_lshrrev_b32 v8, 4, v1
v_xor_b32 v11, v9, v8
v_mul_u32_u24 v8, 9216, v8
v_lshl_add_u32 v8, v11, 6, v8
v_lshl_add_u32 v{VDB}, v4, 4, v8''')
for i in range(1, 4):
    E(f'v_add_u32 v{VDB + i}, {i * (4 * 9216 - 1024)}, v{VDB}')
E(f'''v_mov_b32 {vMASKHI}, 0xffff0000
v_cndmask_b32 {vREM}, v7, {vLANE16}, {M16}
v_mov_b32 v{TMP + 33}, v7''')
for t in range(4):
    E(f'v_xor_b32 v8, {t}, v9\nv_lshl_add_u32 v{TMP + t}, v8, 6, v15')
E(f'''v_and_b32 v8, 15, v1
v_lshrrev_b32 v9, 4, v1
v_lshlrev_b32 v9, 2, v9
v_sub_u32 v8, v8, v9
v_mov_b32 v15, 0xf149f2ca
v_mov_b32 v9, 0x3f803f80''')
for i in range(4):
    E(f'''v_accvgpr_write_b32 a{ONESR + i}, v9
v_subrev_u32 v11, {i}, v8
v_and_b32 v11, 0x80000001, v11
v_cmp_eq_u32 vcc, 0, v11
v_cndmask_b32 v{BIASR + 4 + i}, v15, v14, vcc
v_xor_b32 v11, 0x80000000, v11
v_cmp_eq_u32 vcc, 0, v11
v_cndmask_b32 v{BIASR + i}, v15, v14, vcc''')
E(f'''v_and_b32 v8, 31, v1
s_lshl_b32 s85, {sJ}, 2
v_add_u32 v11, s85, v8
s_mul_i32 s85, {sJ}, 9
s_andn2_b32 s85, s85, 3
s_add_u32 s85, s85, 60
v_add_u32 v15, s85, v8
v_min_u32 v15, 207, v15
v_cmp_gt_u32 vcc, 4, v8
v_cndmask_b32 v11, v15, v11, vcc
v_bfe_u32 v15, v1, 2, 2
v_lshlrev_b32 v15, 1, v15
v_lshl_add_u32 v15, v4, 3, v15
s_lshl_b32 s85, s84, 5
s_lshr_b32 s84, {sR}, 3
s_add_u32 s85, s85, s84
v_add_u32 v15, s85, v15
v_cmp_gt_u32 vcc, 16, v8
v_cndmask_b32 v11, v15, v11, vcc
v_lshlrev_b32 v11, 3, v11
v_add_u32 {vPA}, {L.WS_FLAG_E}, v11''')
for t in range(4):
    E(f'v_mov_b32 v{VTB + t}, v{TMP + t}')
stamp()
if OPT['tfirst']:
    emit_all(xload(0) + dma_a(0) + xload(1))
if OPT['x23']:
    emit_all(xload(2) + xload(3))
stamp()
a0, a1, q0, q1 = (f'v{TMP + i}' for i in range(4))
E(f'v_mov_b32 {a0}, 0\nv_mov_b32 {a1}, 0\nv_mov_b32 {q0}, 0\nv_mov_b32 {q1}, 0')
for e in range(12):
    r = f'v{E1R + e}'
    E(f'v_dot2_f32_bf16 {(a0, a1)[e & 1]}, {r}, v9, {(a0, a1)[e & 1]}')
    E(f'v_dot2_f32_bf16 {(q0, q1)[e & 1]}, {r}, {r}, {(q0, q1)[e & 1]}')
E(f'v_add_f32 {a0}, {a0}, {a1}\nv_add_f32 {q0}, {q0}, {q1}')
for sh in (1, 2, 4, 8):
    E(f'v_add_f32_dpp {a0}, {a0}, {a0} row_shr:{sh} row_mask:0xf bank_mask:0xf bound_ctrl:0')
    E(f'v_add_f32_dpp {q0}, {q0}, {q0} row_shr:{sh} row_mask:0xf bank_mask:0xf bound_ctrl:0')
E(f'v_add_f32_dpp {a0}, {a0}, {a0} row_bcast:15 row_mask:0xa bank_mask:0xf')
E(f'v_add_f32_dpp {q0}, {q0}, {q0} row_bcast:15 row_mask:0xa bank_mask:0xf')
E(f'''v_mul_f32 {a0}, 0x3ae38e39, {a0}
v_mul_f32 {q0}, 0x3ae38e39, {q0}
v_fma_f32 {q0}, -{a0}, {a0}, {q0}
v_max_f32 {q0}, 0, {q0}
v_cvt_pk_bf16_f32 {q0}, {q0}, {q0}
v_lshlrev_b32 {q0}, 16, {q0}
v_add_f32 {q0}, 0x3727c5ac, {q0}
v_cvt_pk_bf16_f32 {q0}, {q0}, {q0}
v_lshlrev_b32 {q0}, 16, {q0}
v_sqrt_f32 {q0}, {q0}
v_and_b32 {a1}, 31, v1
v_cvt_pk_bf16_f32 {a0}, {a0}, {q0}
v_lshrrev_b32 {q1}, 5, v1
v_lshlrev_b32 {q1}, 2, {q1}
v_cmp_eq_u32 vcc, 31, {a1}
v_cndmask_b32 {q1}, v{TMP + 33}, {q1}, vcc
s_lshl_b32 s84, s87, 3
s_add_u32 s84, s84, {L.WS_STAT}''')
E(f'buffer_store_dword {a0}, {q1}, {srd(SRD_WS)}, s84 offen sc1', tag='eust')
NONL = f'buffer_load_dwordx2 v[{vNON}:{vNON + 1}], v14, {srd(SRD_DBG)}, 0 offen sc1'
stamp()

X1 = 'quad_perm:[1,0,3,2] row_mask:0xf bank_mask:0xf'
X2 = 'quad_perm:[2,3,0,1] row_mask:0xf bank_mask:0xf'


def transpose_seg(q):
    R = lambda i, d: f'v{XN + 16 * q + 4 * i + d}'
    Tm = lambda i, d: f'v{TMP + 4 * i + d}'
    o = [f's_mov_b64 vcc, {MX1}']
    for i0 in (0, 2):
        for d in range(4):
            o.append(f'v_cndmask_b32_dpp {Tm(i0, d)}, {R(i0 + 1, d)}, {R(i0, d)}, vcc {X1}')
    o.append('s_not_b64 vcc, vcc')
    for i0 in (0, 2):
        for d in range(4):
            o.append(f'v_cndmask_b32_dpp {Tm(i0 + 1, d)}, {R(i0, d)}, {R(i0 + 1, d)}, vcc {X1}')
    o.append(f's_mov_b64 vcc, {MX2}')
    for i0 in (0, 1):
        for d in range(4):
            o.append(f'v_cndmask_b32_dpp {R(i0, d)}, {Tm(i0 + 2, d)}, {Tm(i0, d)}, vcc {X2}')
        o.append(('mark', f't{q}_{i0}'))
    o.append('s_not_b64 vcc, vcc')
    for i0 in (0, 1):
        for d in range(4):
            o.append(f'v_cndmask_b32_dpp {R(i0 + 2, d)}, {Tm(i0, d)}, {Tm(i0 + 2, d)}, vcc {X2}')
        o.append(('mark', f't{q}_{i0 + 2}'))
    return o


k = 0
for x in transpose_seg(0):
    if isinstance(x, str):
        E(x)
        k += 1
        if k % 3 == 0:
            E('v_nop')
stamp()

fragi = [0]


def newfrag():
    f = FR + 4 * (fragi[0] % NF)
    fragi[0] += 1
    return f


RA = OPT['rp2at']
BAR_TAGS = {2: ['eust'], RA + 1: ['rp2'], RA + 4: ['rp2st']}
BAR_MARKS = {2: ['eudone'], RA + 1: ['rp2dma'], RA + 3: ['rp2done'], OPT['auxat'] - 1: ['odone']}


def barrier(g, post=()):
    def f():
        if OPT['stamps'] > 2:
            stamp()
        E.wait_tags([f'st{g}'] + BAR_TAGS.get(g, []))
        if OPT['drain']:
            E.wait_all(vm=False)
        E('s_barrier')
        if OPT['stamps'] > 1:
            stamp()
        S.marks.add(f'B{g}')
        if 'odone' in S.marks:
            S.marks.add('Bodone')
        S.log.append((S.cur, 'BARRIER', g, 0))
        emit_all(post)
    return f


def eu_barrier():
    E.wait_tags(['eu'])
    E('s_barrier')
    S.marks.add('Bx')


def prereq(g):
    return ([f'dma{g}'] if g >= 1 else []) + BAR_MARKS.get(g, [])


def rl_post(g):
    return [f'v_add_u32 {vRL}, {SLOTB[g]}, {vLANE16}']


ops = []
for q in range(9):
    u, sg = q // 2, q % 2
    g = u
    for k, (jj, n) in enumerate([(jj, n) for jj in range(4) for n in range(5)]):
        f = newfrag()
        off = sg * 20480 + 8 * jj * 320 + 64 * n
        x = XN + 16 * q + 4 * jj
        first = (k == 0 and sg == 0)
        post = []
        if g:
            d = SLOTB[g] - SLOTB[g - 1]
            post = [f'v_add_u32 {vTA}, {d}, {vTA}' if d > 0 else f'v_subrev_u32 {vTA}, {-d}, {vTA}']
        acc = f'a[{16 * n}:{16 * n + 15}]'
        ops.append(Op([f'ds_read_b64_tr_b16 v[{f}:{f + 1}], {vTA} offset:{off}',
                       f'ds_read_b64_tr_b16 v[{f + 2}:{f + 3}], {vTA} offset:{off + 4 * 320}'],
                      [f'v_mfma_f32_32x32x16_bf16 {acc}, v[{f}:{f + 3}], v[{x}:{x + 3}], {"0" if (q == 0 and jj == 0) else acc}'],
                      name=f'a{q}' if k == 0 else None,
                      pre=barrier(g, post) if first else (eu_barrier if (q == 0 and k == OPT['bx']) else None),
                      requires=[f't{q}_{jj}'] if q else [],
                      pre_requires=prereq(g) if first else [], budget=OPT['bA']))
for n in range(5):
    f = newfrag()
    acc = f'a[{16 * n}:{16 * n + 15}]'
    ops.append(Op([f'ds_read_b128 v[{f}:{f + 3}], {vRL} offset:{32768 + 1024 * n}'],
                  [f'v_mfma_f32_32x32x16_bf16 {acc}, v[{f}:{f + 3}], v[{BCOR}:{BCOR + 3}], {acc}'],
                  name=f'fin{n}', pre=barrier(5, rl_post(5)) if n == 0 else None, pre_requires=prereq(5) if n == 0 else [],
                  requires=['bcor'], budget=OPT['bQ']))
for q in range(9):
    u, sg = q // 2, q % 2
    g = 5 + u
    for k, (jj, t4) in enumerate([(jj, t4) for jj in range(4) for t4 in range(4)]):
        f = newfrag()
        x = XN + 16 * q + 4 * jj
        acc = f'a[{QA + 16 * t4}:{QA + 16 * t4 + 15}]'
        first = (k == 0 and sg == 0 and u > 0)
        ops.append(Op([f'ds_read_b128 v[{f}:{f + 3}], {vRL} offset:{(sg * 16 + jj * 4 + t4) * 1024}'],
                      [f'v_mfma_f32_32x32x16_bf16 {acc}, v[{f}:{f + 3}], v[{x}:{x + 3}], {"0" if (q == 0 and jj == 0) else acc}'],
                      pre=barrier(g, rl_post(g)) if first else None,
                      pre_requires=prereq(g) if first else [], budget=OPT['bQ']))
for t4 in (1, 2, 3, 0):
    f = newfrag()
    acc = f'a[{QA + 16 * t4}:{QA + 16 * t4 + 15}]'
    ops.append(Op([f'ds_read_b128 v[{f}:{f + 3}], {vRL} offset:{16384 + 1024 * t4}'],
                  [f'v_mfma_f32_32x32x16_bf16 {acc}, v[{f}:{f + 3}], v[{BCOR}:{BCOR + 3}], {acc}'], name=f'qfin{t4}', budget=OPT['bQ']))
for t in range(4):
    f = newfrag()
    lam = 5 + t
    ops.append(Op([f'ds_read_b128 v[{f}:{f + 3}], {vRL} offset:{32768 + 1024 * t}'],
                  [f'v_mfma_f32_32x32x16_bf16 a[{16 * lam}:{16 * lam + 15}], v[{f}:{f + 3}], v[{BCOR}:{BCOR + 3}], 0'],
                  pre=barrier(10, rl_post(10)) if t == 0 else None, pre_requires=prereq(10) if t == 0 else [],
                  name=f'bcor{t}', budget=OPT['bQ']))
for q in range(9):
    u, sg = q // 2, q % 2
    g = 10 + u
    order = [(jj, n) for jj in range(4) for n in range(4)] if q < 8 else [(jj, n) for n in range(4) for jj in range(4)]
    for k, (jj, t) in enumerate(order):
        f = newfrag()
        lam = 5 + t
        off = sg * 16384 + 8 * jj * 256
        x = XN + 16 * q + 4 * jj
        first = (k == 0 and sg == 0 and u > 0)
        post = []
        if u > 0:
            d = SLOTB[g] - SLOTB[g - 1]
            post = [(f'v_add_u32 v{VTB + i}, {d}, v{VTB + i}' if d > 0 else f'v_subrev_u32 v{VTB + i}, {-d}, v{VTB + i}') for i in range(4)]
        ops.append(Op([f'ds_read_b64_tr_b16 v[{f}:{f + 1}], v{VTB + t} offset:{off}',
                       f'ds_read_b64_tr_b16 v[{f + 2}:{f + 3}], v{VTB + t} offset:{off + 4 * 256}'],
                      [f'v_mfma_f32_32x32x16_bf16 a[{16 * lam}:{16 * lam + 15}], v[{f}:{f + 3}], v[{x}:{x + 3}], a[{16 * lam}:{16 * lam + 15}]'],
                      name=f'fin{lam}' if (q == 8 and jj == 3) else (f'bs{q}' if k == 15 else None), pre=barrier(g, post) if first else None,
                      pre_requires=prereq(g) if first else [], budget=OPT['bB']))


def HP(lam):
    return 8 * lam if lam < 5 else 80 + 8 * (lam - 5)


ACT = {}
for ks in range(18):
    ACT[(0, ks)] = ('a', HP(ks // 2) + 4 * (ks & 1))
pool = [('a', 144 + 4 * i) for i in range(12)] + [('a', 40), ('a', 44)] + [('v', 16 + 4 * i) for i in range(36)] + \
       [('a', 128 + 4 * i) for i in range(4)] + [('a', 192 + 4 * i) for i in range(8)] + [('v', BIASR)]
order = [(k, ks) for k in (1, 2, 3) for ks in range(10)] + [(k, ks) for k in (1, 2, 3) for ks in range(10, 18)] + \
        [(k, ks) for k in range(4) for ks in (18, 19)] + ['rem']
assert len(pool) == len(order)
for key, r in zip(order, pool):
    ACT[key] = r
ACT['remS'] = ('v', BIASR + 4)


def act_regs(key):
    k, r = ACT[key]
    return f'{k}[{r}:{r + 3}]'


def kname(key):
    return key if isinstance(key, str) else f'{key[0]}_{key[1]}'


ACC2 = [48, 64, 224, 240, 112]


def acc2(n):
    return f'a[{ACC2[n]}:{ACC2[n] + 15}]'


def act_req(key):
    if key != 'rem' and key != 'remS' and key[0] == 0 and key[1] < 18:
        return [f'h{key[1] // 2}']
    return [f'act{kname(key)}']


def p2op(g, pos, n, key, zero=False, first=False, name=None, req=()):
    f = newfrag()
    ops.append(Op([f'ds_read_b128 v[{f}:{f + 3}], {vRL} offset:{pos * 1024}'],
                  [f'v_mfma_f32_32x32x16_bf16 {acc2(n)}, v[{f}:{f + 3}], {act_regs(key)}, {"0" if zero else acc2(n)}'],
                  name=name, pre=barrier(g, rl_post(g)) if first else None, pre_requires=prereq(g) if first else [],
                  requires=act_req(key) + list(req), budget=OPT['bP']))


for p, (kind, k) in enumerate(RUNS):
    g = 15 + p
    nk = 10 if kind == 'A' else 8
    for kk in range(nk):
        key = (k, kk + (10 if kind == 'B' else 0))
        z = (p == 0 and kk == 0)
        for n in range(3):
            p2op(g, kk * 3 + n, n, key, zero=z, first=(kk == 0 and n == 0), req=['h4'] if z else [])
        if k % 2 == 0:
            p2op(g, 3 * nk + kk, 3, key, zero=z)
for i, (k, ks) in enumerate(((0, 18), (0, 19), (2, 18), (2, 19))):
    p2op(23, 24 + 2 * k + (ks - 18), 3, (k, ks), first=(i == 0))
p2op(23, 35, 3, 'remS', name='pend3')
for n in range(3):
    for k in range(4):
        for ks in (18, 19):
            p2op(23, 6 * k + 3 * (ks - 18) + n, n, (k, ks))
    p2op(23, 32 + n, n, 'rem', name=f'pend{n}')
p2op(23, 36, 4, 'rem', zero=True, name='c0')
for u, pair in enumerate(((2, 3), (1, 0))):
    for k in pair:
        for ks in (list(range(10, 20)) + list(range(10))):
            nm = 'rxfree' if (k == 1 and ks == OPT['rxks']) else None
            p2op(24 + u, (k & 1) * 20 + ks, 4, (k, ks), first=(k == pair[0] and ks == 10), name=nm)

npoll = [0]


def poll_check(load_txt, cmp_lines, tag):
    k = npoll[0]
    npoll[0] += 1
    E.wait_tags([tag])
    E(f'L_PC{k}:')
    E(cmp_lines)
    E(f's_cmp_lg_u64 {SPOLL}, 0')
    E(f's_cbranch_scc1 L_PS{k}')
    E(f'L_PR{k}:')
    slow_paths.append((k, load_txt))


def flags_cmp(v):
    return f'v_cmp_ne_u64 {SPOLL}, s[{NONCE}:{NONCE + 1}], v[{v}:{v + 1}]'


def poll_item(setup, va, vd, tag, gap):
    fl_ = ' nt' if (OPT.get('gplain') and tag in ('pfa', 'pfb', 'pfo')) else ' sc1'
    ld = f'buffer_load_dwordx2 v[{vd}:{vd + 1}], {va}, {srd(SRD_WS)}, 0 offen{fl_}'
    return ([setup] if setup else []) + [Inst(ld, tag=tag), ('gap', gap), ('call', lambda: poll_check(ld, flags_cmp(vd), tag))]


def get_nonce():
    poll_check(NONL, f'v_cmp_eq_u32 {SPOLL}, 0, v{vNON}', 'nonce')
    E(f'v_readfirstlane_b32 s{NONCE}, v{vNON}\nv_readfirstlane_b32 s{NONCE + 1}, v{vNON + 1}')


def wave_flag(soff, need, off=0):
    fl_ = GS if (need and need[0] in ('gsta', 'gstb', 'ost')) else ' sc1'
    return Inst(f'buffer_store_dwordx2 v[{vNON}:{vNON + 1}], {vF0}, {srd(SRD_WS)}, {soff} offen offset:{off}{fl_}', need=need)


st_tr = Stream('tr', own_vcc=True)
for q in range(1, 9):
    st_tr.add([('after', f'a{q - 1}')] + ([('after', f'xl{q}')] if q > (3 if OPT['x23'] else 1) else []) + transpose_seg(q))
st_tr.add([('mark', 'trdone')])

RPT = TMP + 16
st_rp = Stream('rp')
st_rp.add([Inst(NONL, tag='nonce'), ('after', 'Bx')])
CSA_ = 'a[144:159]'
for f in range(11):
    if f < 9:
        t = RPT + 4 * (f % 4)
        st_rp.add([f'ds_read_b64_tr_b16 v[{t}:{t + 1}], {vA1} offset:{f * 4096}', f'ds_read_b64_tr_b16 v[{t + 2}:{t + 3}], {vA1} offset:{f * 4096 + 1024}'])
    else:
        st_rp.add([('gap', 2)])
    if f >= 2:
        f2 = f - 2
        t2 = RPT + 4 * (f2 % 4)
        st_rp.add([Inst(f'buffer_store_dwordx4 v[{t2}:{t2 + 3}], {vLANE16}, {srd(SRD_WS)}, {sUD} offen sc1', tag='eust'),
                   f'v_mfma_f32_32x32x16_bf16 {CSA_}, a[{ONESR}:{ONESR + 3}], v[{t2}:{t2 + 3}], {"0" if f2 == 0 else CSA_}',
                   f's_add_u32 {sUD}, {sUD}, 16384'])
t0, t1, t2 = f'v{RPT}', f'v{RPT + 1}', f'v{RPT + 2}'
st_rp.add([('call', get_nonce), ('mark', 'nonce_ok'), ('gap', 1), f'''v_accvgpr_read_b32 {t0}, a144
v_cvt_pk_bf16_f32 {t1}, {t0}, {t0}
v_lshlrev_b32 {t1}, 16, {t1}
v_sub_f32 {t2}, {t0}, {t1}
v_cvt_pk_bf16_f32 {t0}, {t1}, {t2}
v_cmp_gt_u32 {SPOLL}, 32, v1
v_cndmask_b32 {t0}, {vZ}, {t0}, {SPOLL}''',
           Inst(f'buffer_store_dword {t0}, {vLANE16}, {srd(SRD_WS)}, {sUC} offen sc1', tag='eust'), ('mark', 'eudone')])
st_rp.items[-3].glue = True
st_rp.add([('after', 'B2'), f's_lshl_b32 {tR0}, s2, 3\ns_add_u32 {tR0}, {tR0}, {L.WS_FLAG_E}\ns_cmp_eq_u32 {sW}, 0\ns_cselect_b32 {tR0}, {tR0}, {OOB}',
           wave_flag(tR0, []), ('mark', 'eupub')])
sU2 = 's71'
st_rp.add([f's_sub_u32 {sU2}, s2, 92'])
vA2 = 'v2'
st_rp.add([('call', lambda: E(f"""s_mul_i32 {tR1}, {sU2}, 1821
s_lshr_b32 {tR1}, {tR1}, 16
s_mul_i32 {tR0}, {sU2}, 7282
s_lshr_b32 {tR0}, {tR0}, 16
s_mul_i32 {tR2}, {tR0}, 9
s_sub_u32 {tR2}, {sU2}, {tR2}
s_add_u32 {tR3}, {tR2}, 5
s_cmp_ge_u32 {tR3}, 9
s_cselect_b32 {tM0}, 9, 0
s_sub_u32 {tR3}, {tR3}, {tM0}
s_and_b32 {tM0}, {tR0}, 1
s_cmp_eq_u32 {tM0}, 0
s_cselect_b32 {tR2}, {tR3}, {tR2}
s_and_b32 {tR0}, {tR0}, 3
s_mul_i32 {sUS}, {tR0}, 20
s_lshl_b32 {tM0}, {tR2}, 1
s_add_u32 {sUS}, {sUS}, {tM0}
s_mul_i32 {tR0}, {tR0}, 9
s_add_u32 {tR2}, {tR2}, {tR0}
s_lshl_b32 {tR3}, {sU2}, 5
s_lshl_b32 {tR0}, {sW}, 3
s_add_u32 {tR3}, {tR3}, {tR0}
s_mov_b32 {tM0}, 4
s_mov_b32 {tR4}, 8
s_cmp_lt_u32 {sU2}, 144
s_cbranch_scc1 L_RP_W2C
s_sub_u32 {tR0}, {sU2}, 144
s_lshr_b32 {tR1}, {tR0}, 2
s_and_b32 {tR2}, {tR0}, 3
s_mul_i32 {sUS}, {tR2}, 20
s_add_u32 {sUS}, {sUS}, 18
s_add_u32 {tR2}, {tR2}, 36
s_mul_i32 {tR3}, {tR0}, 36
s_lshl_b32 {tR0}, {sW}, 3
s_add_u32 {tR3}, {tR3}, {tR0}
s_lshr_b32 {tR0}, {sW}, 1
s_lshl_b32 {tR0}, {tR0}, 2
s_add_u32 {tR3}, {tR3}, {tR0}
s_mov_b32 {tM0}, 8
s_mov_b32 {tR4}, 4
s_cmp_lt_u32 {sU2}, 160
s_cbranch_scc1 L_RP_W2C
s_sub_u32 {tR1}, {sU2}, 160
s_mov_b32 {tR2}, 40
s_mov_b32 {sUS}, 80
s_lshl_b32 {tR3}, {tR1}, 2
s_add_u32 {tR3}, {tR3}, {sW}
s_mul_i32 {tR3}, {tR3}, 36
s_add_u32 {tR3}, {tR3}, 16
s_mov_b32 {tM0}, 16
s_mov_b32 {tR4}, 8
L_RP_W2C:""")),
           f"""s_mul_i32 {tR3}, {tR3}, 1152
s_cmp_lt_u32 {sU2}, 164
s_cselect_b32 {tR3}, {tR3}, {OOB}
s_mul_i32 {sRPF}, {tR1}, 41
s_add_u32 {sRPF}, {sRPF}, {tR2}""", ('mark', 'rp2setup'),
           f"""v_lshrrev_b32 {t1}, 5, v1
v_mul_lo_u32 {t1}, {t1}, {tM0}
v_bfe_u32 {t2}, v1, 2, 2
v_add_u32 {t0}, {t1}, {t2}
v_mul_u32_u24 {t0}, 1152, {t0}
v_bfe_u32 {t1}, v1, 4, 1
v_lshl_add_u32 {t0}, {t1}, 5, {t0}
v_and_b32 {t1}, 3, v1
v_lshl_add_u32 {t0}, {t1}, 3, {t0}
s_lshr_b32 {tR0}, {sW}, 1
s_mul_i32 {tR0}, {tR0}, 576
s_add_u32 {tR0}, {tR0}, {AUX}
v_add_u32 {vA1}, {tR0}, {t0}
s_mul_i32 {tR4}, {tR4}, 1152
v_add_u32 {vA2}, {tR4}, {vA1}""", ('after', 'rp2dma'),
           f"""s_lshl_b32 {tR2}, {tR1}, 2
s_add_u32 {tR0}, {tR2}, {sW}
s_mul_i32 {tR0}, {tR0}, {L.SLABW_SZ}
s_add_u32 {tR0}, {tR0}, {L.WS_SLABW}
s_cmp_lt_u32 {sU2}, 164
s_cselect_b32 {tR0}, {tR0}, {OOB}
s_mul_i32 {sUD}, {sUS}, 3072
s_add_u32 {sUD}, {sUD}, {tR0}
s_lshl_b32 {tR3}, {sUS}, 10
s_add_u32 {tR3}, {tR3}, {tR0}
s_add_u32 {tR3}, {tR3}, {L.SLABW_O}
s_add_u32 {sUC}, {sUD}, 3072
s_add_u32 {tR4}, {tR3}, 1024
s_cmp_lt_u32 {sUS}, 80
s_cselect_b32 {sUC}, {sUC}, {OOB}
s_cselect_b32 {tR4}, {tR4}, {OOB}
s_mul_i32 {tM0}, {sUS}, 3277
s_lshr_b32 {tM0}, {tM0}, 16
s_mul_i32 {sUST}, {tM0}, 20
s_sub_u32 {sUST}, {sUS}, {sUST}
s_lshr_b32 {tR0}, {tM0}, 1
s_mul_i32 {tR0}, {tR0}, 20
s_add_u32 {sUST}, {sUST}, {tR0}
s_and_b32 {tR0}, {sW}, 1
s_and_b32 {tM0}, {tM0}, 1
s_cmp_lt_u32 {sUS}, 80
s_cselect_b32 {tM0}, {tM0}, {tR0}
s_cselect_b32 {sUS}, {tR0}, 0
s_add_u32 {sUST}, {sUST}, {sUS}
s_lshl_b32 {sUST}, {sUST}, 10
s_andn2_b32 {tR0}, {sW}, 1
s_add_u32 {tR0}, {tR0}, {tM0}
s_add_u32 {tR0}, {tR0}, {tR2}
s_mul_i32 {tR0}, {tR0}, {L.SLABW_SZ}
s_add_u32 {sUST}, {sUST}, {tR0}
s_add_u32 {sUST}, {sUST}, {L.WS_SLABW + L.SLABW_S}
s_cmp_lt_u32 {sU2}, 164
s_cselect_b32 {sUST}, {sUST}, {OOB}
s_mul_i32 {sUS}, {sUS}, {16 * 1152}
s_add_u32 {sUS}, {sUS}, 256
s_and_b32 {tR2}, {sW}, 1
s_mul_i32 {tR2}, {tR2}, 320""", ('after', f'B{RA + 1}')])
vB1_, vB2_ = f'v{TMP + 32}', f'v{TMP + 33}'
frs = []
for lam in range(4):
    pre = [f's_add_u32 {tR0}, {tR1}, {lam + 1}', f's_and_b32 {tR0}, {tR0}, 3', f's_lshl_b32 {tR0}, {tR0}, 6', f's_add_u32 {tR0}, {tR0}, {tR2}',
           f'v_add_u32 {vB1_}, {tR0}, {vA1}', f'v_add_u32 {vB2_}, {tR0}, {vA2}']
    for k2 in range(2):
        dst = ((sUD, sUC)[k2], lam * 1024) if lam < 3 else ((tR3, tR4)[k2], 0)
        frs.append((pre if k2 == 0 else [], k2 * 16 * 1152, dst))
frs.append(([f'v_add_u32 {vB1_}, {sUS}, {vA1}', f'v_add_u32 {vB2_}, {sUS}, {vA2}'], 0, (sUST, 0)))
for f in range(11):
    if f < 9:
        t = RPT + 4 * (f % 4)
        pre, off, _ = frs[f]
        st_rp.add(pre + [f'ds_read_b64_tr_b16 v[{t}:{t + 1}], {vB1_} offset:{off}', f'ds_read_b64_tr_b16 v[{t + 2}:{t + 3}], {vB2_} offset:{off}'])
    else:
        st_rp.add([('gap', 2)])
    if f >= 2:
        f2 = f - 2
        t2_ = RPT + 4 * (f2 % 4)
        sb, im = frs[f2][2]
        st_rp.add([Inst(f'buffer_store_dwordx4 v[{t2_}:{t2_ + 3}], {vLANE16}, {srd(SRD_WS)}, {sb} offen offset:{im} sc1', tag='rp2st')])
st_rp.add([('mark', 'rp2done'), ('after', f'B{RA + 4}'),
           f's_lshl_b32 {tR0}, {sRPF}, 3\ns_add_u32 {tR0}, {tR0}, {L.WS_FLAG_RP}\ns_cmp_lt_u32 {sU2}, 164\ns_cselect_b32 {tR0}, {tR0}, {OOB}\n'
           f's_cmp_eq_u32 {sW}, 0\ns_cselect_b32 {tR0}, {tR0}, {OOB}', wave_flag(tR0, []), ('mark', 'rp2pub')])

STAGE_FN = {}
for u in range(5):
    STAGE_FN[u] = (dma_a, u)
    STAGE_FN[5 + u] = (dma_q, u)
    STAGE_FN[10 + u] = (dma_b, u)
for p in range(8):
    STAGE_FN[15 + p] = (dma_p, p)
STAGE_FN[23] = (dma_o, 0)
for u in range(2):
    STAGE_FN[24 + u] = (dma_c, u)
TOUCH_AT = {2: [4] if OPT['tfirst'] else [3, 4], 3: [10], 4: [11], 5: [6, 7], 6: [8], 7: [12], 8: [13], 9: [14], 12: [15, 16], 13: [17], 14: [18],
            15: [19], 16: [20], 17: [21], 18: [22], 19: [24], 20: [25]}


STAG_AT = {4: [10], 5: [6, 7, 11], 6: [8, 9], 7: [12], 8: [13], 9: [14], 14: [15, 16, 17, 18], 15: [19], 16: [20], 17: [21], 18: [22],
           19: [24], 20: [25]}


def stag_touch(t):
    fn, arg = STAGE_FN[t]
    o = touch(fn, arg)[:-1]
    o += [f's_cmp_eq_u32 {sP8}, {t % 8}', f's_cselect_b32 {tD0}, {tD0}, {OOB}']
    if fn is dma_b:
        o.append(nodep(f'buffer_load_dword v{vTD}, {vTW}, {srd(SRD_W1)}, {tD0} offen'))
    else:
        npc = {dma_q: 8 if arg < 4 else 4, dma_c: 10}.get(fn) or ((10, 8) if RUNS[arg][0] == 'A' else (8, 6))[RUNS[arg][1] % 2]
        if npc < 8:
            o.append(f'v_min_u32 v11, {(8 * npc - 1) * 128}, {vTCH}')
        o.append(nodep(f'buffer_load_dword v{vTD}, {vTCH if npc >= 8 else "v11"}, {srd(SRD_WS)}, {tD0} offen sc1'))
        if npc > 8:
            o += [f's_add_u32 {tD0}, {tD0}, 8192', nodep(f'buffer_load_dword v{vTD}, {vTL}, {srd(SRD_WS)}, {tD0} offen sc1')]
    return o


def paced(items):
    if not OPT['dmagap']:
        return items
    o = []
    for x in items:
        o.append(x)
        if isinstance(x, Inst):
            o.append(('gap', OPT['dmagap']))
    return o


st_dma = Stream('dma')
st_dma.add(([] if OPT['x23'] else xload(2)) + paced(dma_a(1)) + [('mark', 'dma1')] + ([] if OPT['x23'] else xload(3)) + paced(xload(4)))
for g in range(2, NSTG):
    fn, arg = STAGE_FN[g]
    if g == 5:
        st_dma.add([('after', 'e_ok')])
        if OPT['btouch'] == 1:
            def bt1():
                E(f's_and_b32 {tD0}, {sR}, 7\ns_lshl_b32 {tD0}, {tD0}, 2\ns_add_u32 {tD0}, {tD0}, {sW}\ns_mul_i32 {tD1}, {tD0}, {36 * 128}\n'
                  f's_add_u32 {tD1}, {tD1}, {sQ0}\ns_sub_u32 {tD1}, {tD1}, {sL8}\nv_min_u32 v11, {35 * 128}, {vTCH}')
                E.emit(nodep(f'buffer_load_dword v{vTD}, v11, {srd(SRD_WS)}, {tD1} offen sc1'))
                E(f's_mul_i32 {tD1}, {tD0}, {18 * 9216}\ns_add_u32 {tD1}, {tD1}, {sB0}\ns_mul_i32 {tD0}, {sW}, {32 * 9216}\ns_sub_u32 {tD1}, {tD1}, {tD0}\n'
                  f'v_min_u32 v11, 35, v1\nv_lshrrev_b32 {vTW}, 1, v11\nv_mul_u32_u24 {vTW}, 9216, {vTW}\nv_and_b32 v11, 1, v11\nv_lshl_add_u32 v11, v11, 7, {vTW}')
                E.emit(nodep(f'buffer_load_dword v{vTD}, v11, {srd(SRD_W1)}, {tD1} offen'))
            st_dma.add([('call', bt1)])
    if g == AUXAT:
        st_dma.add([('after', 'Bodone')])
    st_dma.add([('after', f'B{max(DMA_AFTER[g], 0) if g > 2 else 0}')] + paced(fn(arg)) + [('mark', f'dma{g}')])
    if g == 2:
        st_dma.add(paced(xload(5) + xload(6)))
    if g == 3:
        st_dma.add(paced(xload(7) + xload(8)))
    if g == 3 and OPT['btouch'] == 2:
        st_dma.add([f's_and_b32 {sP8}, {sR}, 7\nv_lshrrev_b32 {vTW}, 1, v1\nv_mul_u32_u24 {vTW}, 9216, {vTW}\nv_and_b32 v11, 1, v1\n'
                    f'v_lshl_add_u32 {vTW}, v11, 7, {vTW}\nv_min_u32 {vTL}, {15 * 128}, {vTCH}'])
    if g == OPT['rp2at']:
        o = [('after', 'rp2setup')]
        for i in range(9):
            if i % 4 == 0:
                o += [f's_add_u32 m0, {sL9}, {AUX + i * 1024}'] + ([f's_add_u32 {tR3}, {tR3}, 4096'] if i else [])
            o.append(Inst(f'buffer_load_dwordx4 {vLANE16}, {srd(SRD_RP)}, {tR3} offen offset:{(i % 4) * 1024} lds', tag='rp2'))
        st_dma.add(paced(o) + [('mark', 'rp2dma')])
    if g == 14:
        st_dma.add([('after', 'w_ok')])
    if OPT['btouch'] == 2:
        for t in STAG_AT.get(g, []):
            st_dma.add(stag_touch(t))
    if OPT['stouch'] and not (OPT['btouch'] and g > 2):
        for t in TOUCH_AT.get(g, []):
            st_dma.add(touch(*STAGE_FN[t]))


st_pol = Stream('pol')
st_pol.add([('after', 'nonce_ok'), ('after', 'eupub'), ('after', OPT_E)])
st_pol.add(poll_item(None, vPA, vPF, 'pfe', OPT['pchk']) + [('mark', 'e_ok')])
st_pol.add([f'v_and_b32 {vPA}, 31, v1\nv_lshlrev_b32 {vPA}, 2, {vPA}',
            f'buffer_load_dword v{vPF}, {vPA}, {srd(SRD_WS)}, {sSTB} offen sc1', ('gap', 22),
            f"""v_xor_b32 v{vPF + 1}, 0x8000, v{vPF}
v_and_b32 v{vPF + 1}, 0xffff, v{vPF + 1}
v_lshl_or_b32 v{vPF + 1}, v{vPF + 1}, 16, v{vPF + 1}
v_lshrrev_b32 {vPA}, 16, v{vPF}
v_and_b32 v{vPF}, {vMASKHI}, v{vPF}
v_rcp_f32 {vRSTD}, v{vPF}
s_mov_b32 {tC0}, -1
s_mov_b32 {tC1}, 0
v_cndmask_b32 v{BCOR}, {vPA}, v{vPF + 1}, s[92:93]
v_cndmask_b32 v{BCOR + 1}, 0, v{vPF + 1}, s[92:93]
v_cndmask_b32 v{BCOR + 2}, 0, v{vPF + 1}, s[92:93]
v_cndmask_b32 v{BCOR + 3}, 0, v{vPF + 1}, s[92:93]""", ('mark', 'bcor')])
st_pol.add([('after', 'rp2pub'), ('after', 'pubA'), ('after', 'trdone'), ('after', f'B{OPT["pfwat"]}')])
st_pol.add(poll_item(f'v_lshrrev_b32 {vPA}, 1, {vLANE16}\nv_min_u32 {vPA}, {40 * 8}, {vPA}\ns_mul_i32 {tC0}, {sS}, {41 * 8}\n'
                     f's_add_u32 {tC0}, {tC0}, {L.WS_FLAG_RP}\nv_add_u32 {vPA}, {tC0}, {vPA}\n'
                     f'v_and_b32 v{vPF}, 3, v1\nv_lshlrev_b32 v{vPF}, 3, v{vPF}\nv_add_u32 v{vPF}, {sGF}, v{vPF}\n'
                     f'v_cmp_gt_u32 vcc, 48, v1\nv_cndmask_b32 {vPA}, v{vPF}, {vPA}, vcc', vPA, vPF, 'pfw', OPT['pchk']) + [('mark', 'w_ok'), ('mark', 'pf_free')])


def ffn_epi(n, tag):
    o = [('after', f'fin{n}' if n < 5 else 'fin8'), ('gap', 1)]
    t = TMP if n < 5 else 136
    X = t + 8
    for half in range(2):
        for e in range(8):
            o.append(f'v_accvgpr_read_b32 v{t + e}, a{16 * n + 8 * half + e}')
        for e in range(8):
            o.append(f'v_mul_f32 v{t + e}, v{t + e}, |v{t + e}|')
        for p in range(4):
            o.append(f'v_cvt_pk_bf16_f32 v{X + 4 * half + p}, v{t + 2 * p}, v{t + 2 * p + 1}')
        for p in range(4):
            o.append(f'v_pk_max_i16 v{X + 4 * half + p}, v{X + 4 * half + p}, 0')
    if not OPT['hbatch']:
        o.append(f's_add_u32 {tE0}, {sGB}, {2048 * n}')
        o.append(Inst(f'buffer_store_dwordx4 v[{X}:{X + 3}], {vLANE16}, {srd(SRD_WS)}, {tE0} offen{GS}', tag=tag))
        o.append(Inst(f'buffer_store_dwordx4 v[{X + 4}:{X + 7}], {vLANE16}, {srd(SRD_WS)}, {tE0} offen offset:1024{GS}', tag=tag))
    for d in range(8):
        o.append(f'v_accvgpr_write_b32 a{HP(n) + d}, v{X + d}')
    o.append(('mark', f'h{n}'))
    if OPT['hbatch'] and n in (4, 8):
        if OPT['quiet']:
            o += [('idle', st_dma), ('quiet', OPT['quiet'])]
        for i, ks in enumerate(range(0, 10) if n == 4 else range(10, 18)):
            if i % 4 == 0:
                o.append(f's_add_u32 {tE0}, {sGB}, {1024 * ks}')
            r = HP(ks // 2) + 4 * (ks & 1)
            o.append(Inst(f'buffer_store_dwordx4 a[{r}:{r + 3}], {vLANE16}, {srd(SRD_WS)}, {tE0} offen offset:{(i % 4) * 1024}{GS}', tag=tag))
    return o


def g_publish(ev, tag, first_kb, nlines, tmps):
    o = [('gap', OPT['pubgap'])] + ([('idle', st_dma), ('quiet', OPT['quiet'])] if (OPT['quiet'] and OPT['gtouch']) else []) + [f's_lshl_b32 {tmps}, {sC}, 3\ns_add_u32 {tmps}, {tmps}, {sGF}', wave_flag(tmps, [tag], 32 * ev)]
    if OPT['gtouch']:
        for k in range(0, nlines, 64):
            n = min(64, nlines - k)
            o.append(f's_add_u32 {tmps}, {sGB}, {first_kb * 2048 + k * 128}')
            if n < 64:
                o.append(f'v_min_u32 {vXO}, {(n - 1) * 128}, {vTCH}')
            o.append(nodep(f'buffer_load_dword v{vTD}, {vTCH if n == 64 else vXO}, {srd(SRD_WS)}, {tmps} offen sc1'))
    return o


st_epi = Stream('epi')
st_epi.add([('after', 'trdone')])
for n in range(5):
    st_epi.add(ffn_epi(n, 'gsta'))
st_epi.add([('mark', 'epiA')] + g_publish(0, 'gsta', 0, 80, tE0) + [('mark', 'pubA')])
for n in range(5, 9):
    st_epi.add(ffn_epi(n, 'gstb'))
st_epi.add([('mark', 'epiB')] + g_publish(1, 'gstb', 5, 64, tE0) + [('mark', 'pubB')])

vKW, vHX = 'v2', 'v3'
st_att = Stream('att')
T2 = TMP + 16
st_att.add([('after', 'rp2done'), ('after', 'trdone'), ('after', f'B{max(8, RA + 3)}'),
            f"""v_and_b32 v{T2}, 31, v1
s_lshl_b32 {tA0}, {sW}, 5
v_add_u32 v{T2 + 1}, {tA0}, v{T2}
v_mul_u32_u24 v{T2 + 1}, {PITCH}, v{T2 + 1}
v_lshrrev_b32 v{T2 + 2}, 5, v1
v_lshl_add_u32 v{T2 + 1}, v{T2 + 2}, 4, v{T2 + 1}
v_add_u32 {vKW}, {QB1}, v{T2 + 1}
v_subrev_u32 {vHX}, {112 * PITCH}, v{T2 + 1}
s_lshl_b32 {tA0}, {sR}, 4
s_add_u32 {tA0}, {tA0}, {sJ}
s_add_u32 {tA0}, {tA0}, 16
s_lshl_b32 {tA1}, {tA0}, 12
s_add_u32 {tA1}, {tA1}, {L.WS_HALO}
s_cmp_eq_u32 {sR}, 15
s_cselect_b32 {tA1}, {OOB}, {tA1}
v_mov_b32 v{T2 + 2}, {OOB}
v_cmp_gt_u32 vcc, {112 * PITCH}, v{T2 + 1}
v_cndmask_b32 {vHX}, {vHX}, v{T2 + 2}, vcc"""])
hcount = 0
for t4 in (1, 2, 3, 0):
    o = [('after', f'qfin{t4}'), ('gap', 2)]
    for hh in range(2 if t4 < 3 else 1):
        X = T2 + 8 + 4 * (hcount % 2)
        hcount += 1
        for e in range(8):
            o.append(f'v_accvgpr_read_b32 v{T2 + e}, a{QA + 16 * t4 + 8 * hh + e}')
        for e in range(8):
            o.append(f'v_mul_f32 v{T2 + e}, v{T2 + e}, {vRSTD}')
        for pp in range(4):
            o.append(f'v_cvt_pk_bf16_f32 v{X + pp}, v{T2 + 2 * pp}, v{T2 + 2 * pp + 1}')
        if t4:
            o.append(Inst(f'buffer_store_dwordx4 v[{X}:{X + 3}], {vHX}, {srd(SRD_WS)}, {tA1} offen offset:{64 * t4 + 32 * hh} sc1', tag='hxst'))
        o.append(Inst(f'ds_write_b128 {vKW}, v[{X}:{X + 3}] offset:{64 * t4 + 32 * hh}', tag='kvw'))
    if t4 == 3:
        o.append(('mark', 'hx'))
    st_att.add(o)


def kv_barrier():
    E.wait_tags(['kvw'])
    E('s_barrier')
    S.marks.add('Bkv')


st_att.add([('mark', 'kvw'), ('gap', 3), ('call', kv_barrier)])
st_hal = Stream('hal')
st_hal.add([('after', 'hx'), ('gap', OPT['hxgap']), f's_lshl_b32 {tA1}, {tA0}, 7\ns_add_u32 {tA1}, {tA1}, {L.WS_FLAG_HALO}\ns_cmp_eq_u32 {sW}, 3\ns_cselect_b32 {tA1}, {tA1}, {OOB}',
            wave_flag(tA1, ['hxst'])])
SC = 0.2357022603955158 * 1.4426950408889634
A0, A0R, AP, APR, VT, VTP = (f'v{TMP + i}' for i in range(6))
vSD = [f'v{TMP + 34}', f'v{TMP + 35}']
st_at2 = Stream('at2')
st_at2.add([('after', 'kvw'), ('after', 'epiA'), f"""v_and_b32 v{TMP + 8}, 15, v1
v_lshlrev_b32 v{TMP + 9}, 2, v{TMP + 8}""",
            f'buffer_load_dword {vSD[0]}, v{TMP + 9}, {srd(SRD_WS)}, {sSTB} offen sc1',
            f'buffer_load_dword {vSD[1]}, v{TMP + 9}, {srd(SRD_WS)}, {sSTB} offen offset:64 sc1',
            f"""v_lshrrev_b32 v{TMP + 9}, 4, v1
s_mul_i32 {tA2}, {sW}, {32 * PITCH}
s_add_u32 {tA2}, {tA2}, {QB1}
s_sub_u32 {tA3}, {tA2}, {16 * PITCH}
s_cmp_eq_u32 {sW}, 0
s_cselect_b32 {tA3}, {QB}, {tA3}
v_mul_u32_u24 v{TMP + 10}, {PITCH}, v{TMP + 8}
v_add_u32 {A0R}, {tA2}, v{TMP + 10}
v_add_u32 {APR}, {tA3}, v{TMP + 10}
v_lshl_add_u32 {A0}, v{TMP + 9}, 3, {A0R}
v_lshl_add_u32 {AP}, v{TMP + 9}, 3, {APR}
v_lshrrev_b32 v{TMP + 10}, 2, v1
v_mul_u32_u24 v{TMP + 10}, {PITCH}, v{TMP + 10}
v_and_b32 v{TMP + 11}, 3, v1
v_lshl_add_u32 v{TMP + 10}, v{TMP + 11}, 3, v{TMP + 10}
v_add_u32 {VT}, {tA2}, v{TMP + 10}
v_add_u32 {VTP}, {tA3}, v{TMP + 10}
s_add_u32 {tA2}, {sGB}, {9 * 2048}
s_sub_u32 {tA3}, {sGF}, {L.WS_FLAG_G}
s_lshl_b32 {tA3}, {tA3}, 3
s_lshr_b32 {tM0}, {sC}, 1
s_lshl_b32 {tM0}, {tM0}, 9
s_add_u32 {tA3}, {tA3}, {tM0}
s_and_b32 {tM0}, {sC}, 1
s_lshl_b32 {tM0}, {tM0}, 3
s_add_u32 {tA3}, {tA3}, {tM0}
s_add_u32 {tA3}, {tA3}, {L.WS_GREM}
v_lshrrev_b32 v{TMP + 10}, 5, v1
v_lshlrev_b32 v{TMP + 10}, 9, v{TMP + 10}
v_lshl_add_u32 v{TMP + 10}, v{TMP + 8}, 4, v{TMP + 10}
v_and_b32 v{TMP + 9}, 1, v{TMP + 9}
v_lshl_add_u32 v2, v{TMP + 9}, 3, v{TMP + 10}""", ('after', 'Bkv'), ('after', 'bcor3')])
QV = TMP + 6
SV = TMP + 14
PB = [196, BCOR]
m0_, m1_, t1_, t2_ = f'v{TMP + 30}', f'v{TMP + 31}', 'v200', 'v205'


def att_block(b):
    o = []
    for hd in range(2):
        mo = 0 if hd == 0 else 40
        for wh in range(2):
            kb = b + wh
            kr = AK[hd] + 4 * wh
            a, ar, off = (AP, APR, 0) if kb == 0 else (A0, A0R, (kb - 1) * 16 * PITCH)
            o.append(f'ds_read_b64 a[{kr}:{kr + 1}], {a} offset:{off + 72 + mo}')
            o.append(f'ds_read_b64 a[{kr + 2}:{kr + 3}], {ar} offset:{off + 72 + 32}')
        Q = QV + 4 * hd
        o.append(f'ds_read_b64 v[{Q}:{Q + 1}], {A0} offset:{b * 16 * PITCH + mo}')
        o.append(f'ds_read_b32 v{Q + 2 + hd}, {A0R} offset:{b * 16 * PITCH + 32 + 4 * hd}')
        o.append(f'v_mov_b32 v{Q + 3 - hd}, 0')
    for tl, ch in enumerate((18, 23, 22)):
        vr = AK[2 + tl // 2] + 4 * (tl % 2)
        for wh in range(2):
            kb = b + wh
            a, off = (VTP, 0) if kb == 0 else (VT, (kb - 1) * 16 * PITCH)
            o.append(f'ds_read_b64_tr_b16 a[{vr + 2 * wh}:{vr + 2 * wh + 1}], {a} offset:{off + 8 * ch}')
    for hd in range(2):
        Q = QV + 4 * hd
        o.append(f'v_cndmask_b32 v{Q + 2 + hd}, 0, v{Q + 2 + hd}, {M16}')
    o.append(f'v_and_b32 {vSD[b]}, {vMASKHI}, {vSD[b]}')
    o.append(f'v_mul_f32 {vSD[b]}, {vSD[b]}, {vSD[b]}')
    for hd in range(2):
        Q = QV + 4 * hd
        for wh in range(2):
            kr = AK[hd] + 4 * wh
            sr = SV + 8 * hd + 4 * wh
            bias = BIASR + 4 * wh
            o.append(f'v_mfma_f32_16x16x32_bf16 v[{sr}:{sr + 3}], a[{kr}:{kr + 3}], v[{Q}:{Q + 3}], v[{bias}:{bias + 3}]')
    o.append(('gap', 1))
    for hd, m in enumerate((m0_, m1_)):
        s = [f'v{SV + 8 * hd + i}' for i in range(8)]
        t = (t1_, t2_)[hd]
        o += [f'v_max3_f32 {m}, {s[0]}, {s[1]}, {s[2]}', f'v_max3_f32 {t}, {s[3]}, {s[4]}, {s[5]}',
              f'v_max3_f32 {m}, {m}, {s[6]}, {s[7]}', f'v_max_f32 {m}, {m}, {t}']
    o += [f'v_mov_b32 {t2_}, {fl(SC)}', ('gap', 1),
          f'v_permlane16_swap_b32 {m0_}, {m1_}', f'v_max_f32 {m0_}, {m0_}, {m1_}', f'v_mov_b32 {m1_}, {m0_}', ('gap', 1),
          f'v_permlane32_swap_b32 {m0_}, {m1_}', f'v_max_f32 {m0_}, {m0_}, {m1_}', f'v_mul_f32 {m0_}, {fl(-SC)}, {m0_}',
          f'v_mov_b32 {m1_}, {m0_}', ('gap', 1), f'v_permlane16_swap_b32 {m0_}, {m1_}']
    for hd, m in enumerate((m0_, m1_)):
        s = [f'v{SV + 8 * hd + i}' for i in range(8)]
        for i in range(8):
            o.append(f'v_fma_f32 {s[i]}, {s[i]}, {t2_}, {m}')
        for i in range(8):
            o.append(f'v_exp_f32 {s[i]}, {s[i]}')
    for hd in range(2):
        s = [f'v{SV + 8 * hd + i}' for i in range(8)]
        for i in range(4):
            o.append(f'v_cvt_pk_bf16_f32 v{PB[hd] + i}, {s[2 * i]}, {s[2 * i + 1]}')
    for hd in range(2):
        P = f'v[{PB[hd]}:{PB[hd] + 3}]'
        vm = AK[2] + 4 * hd
        o.append(f'v_mfma_f32_16x16x32_bf16 v[{QV + 4 * hd}:{QV + 4 * hd + 3}], a[{ONESR}:{ONESR + 3}], {P}, 0')
        o.append(f'v_mfma_f32_16x16x32_bf16 v[{SV + 8 * hd}:{SV + 8 * hd + 3}], a[{vm}:{vm + 3}], {P}, 0')
        o.append(f'v_mfma_f32_16x16x32_bf16 v[{SV + 8 * hd + 4}:{SV + 8 * hd + 7}], a[{AK[3]}:{AK[3] + 3}], {P}, 0')
    o.append(('gap', 1))
    for hd, m in enumerate((m0_, m1_)):
        o.append(f'v_rcp_f32 {m}, v{QV + 4 * hd}')
    for hd, m in enumerate((m0_, m1_)):
        o.append(f'v_mul_f32 {m}, {m}, {vSD[b]}')
    for hd, m in enumerate((m0_, m1_)):
        r = SV + 8 * hd
        for i in (0, 1, 2, 3, 4 + 2 * hd, 5 + 2 * hd):
            o.append(f'v_mul_f32 v{r + i}, v{r + i}, {m}')
    for hd in range(2):
        r = SV + 8 * hd
        o.append(f'v_cvt_pk_bf16_f32 v{QV + 2 * hd}, v{r}, v{r + 1}')
        o.append(f'v_cvt_pk_bf16_f32 v{QV + 2 * hd + 1}, v{r + 2}, v{r + 3}')
        o.append(f'v_cvt_pk_bf16_f32 v{QV + 4 + hd}, v{r + 4 + 2 * hd}, v{r + 5 + 2 * hd}')
    for hd in range(2):
        o.append(Inst(f'buffer_store_dwordx2 v[{QV + 2 * hd}:{QV + 2 * hd + 1}], v2, {srd(SRD_WS)}, {tA2} offen offset:{1024 * hd + 256 * b}{GS}', tag='ost'))
    o.append(Inst(f'buffer_store_dwordx2 v[{QV + 4}:{QV + 5}], {vREM}, {srd(SRD_WS)}, {tA3} offen offset:{256 * b}{GS}', tag='ost'))
    return o


st_at2.add(att_block(1))
vH = TMP + 32
st_hal.add([('gap', OPT['higap']),
            f's_sub_u32 {tA0}, {tA0}, 16\ns_lshl_b32 {tA1}, {tA0}, 7\ns_add_u32 {tA1}, {tA1}, {L.WS_FLAG_HALO}\ns_lshl_b32 {tM1}, {sJ}, 5\n'
            f's_add_u32 {tM1}, {tM1}, {L.WS_FLAG_E}\ns_cmp_eq_u32 {sR}, 0\ns_cselect_b32 {tA1}, {tM1}, {tA1}\nv_mov_b32 v3, {tA1}'])
HL = f'buffer_load_dwordx2 v[{vH}:{vH + 1}], v3, {srd(SRD_WS)}, 0 offen sc1'
st_hal.add([Inst(HL, tag='pfh'), ('gap', 22)])


def halo_import():
    poll_check(HL, flags_cmp(vH), 'pfh')
    E(f's_cmp_lg_u32 {sW}, 0\ns_cbranch_scc1 L_HI')
    E(f's_lshl_b32 {tA1}, {tA0}, 12\ns_add_u32 {tA1}, {tA1}, {L.WS_HALO}\ns_cmp_eq_u32 {sR}, 0\ns_cselect_b32 {tA1}, {OOB}, {tA1}')
    E(f's_mov_b32 {tM1}, m0\ns_mov_b32 m0, {QB}\ns_nop 0')
    for i in range(4):
        E.raw(f'    buffer_load_dwordx4 {vLANE16}, {srd(SRD_WS)}, {tA1} offen offset:{i * 1024} sc1 lds')
    E(f's_mov_b32 m0, {tM1}')
    E('L_HI:')
    E(f'buffer_load_dword v{vH}, v14, {srd(SRD_DBG)}, 0 offen', tag='himp')


st_hal.add([('call', halo_import), ('gap', 22), ('call', lambda: E.wait_tags(['himp'])), ('mark', 'halo_in')])
st_at2.add([f's_or_b32 {tM0}, {sR}, {sW}\ns_cmp_eq_u32 {tM0}, 0\ns_cselect_b32 {tM0}, 0xf149f2ca, 0'] +
           [f'v_min_f32 v{BIASR + i}, {tM0}, v{BIASR + i}' for i in range(4)] + [('after', 'halo_in')])
st_at2.add(att_block(0))
st_at2.add([('mark', 'odone'), ('gap', OPT['pubgap']), f's_lshl_b32 {tA2}, {sC}, 3\ns_add_u32 {tA2}, {tA2}, {sGF}', wave_flag(tA2, ['ost'], 64), ('mark', 'opub')])

st_act = Stream('act')
GPA = f'v_and_b32 {vPA}, 3, v1\nv_lshlrev_b32 {vPA}, 3, {vPA}\nv_add_u32 {vPA}, {sGF}, {vPA}'


def act_load(key, soff, off):
    o = []
    kind, r = ACT[key]
    if kind == 'v':
        o.append(('after', 'odone' if r >= BIASR else (f'bs{(r - 16) // 16}' if r + 4 <= 136 else 'epiB')))
    elif r >= AK[0]:
        o.append(('after', 'odone'))
    elif r >= QA:
        o.append(('after', 'kvw'))
    elif r >= 128:
        o.append(('after', 'epiB'))
    else:
        o.append(('after', 'epiA'))
    o.append(f'buffer_load_dwordx4 {act_regs(key)}, {vLANE16}, {srd(SRD_WS)}, {soff} offen offset:{off}{GS}')
    o.append(('mark', f'act{kname(key)}'))
    return o


st_act.add([('after', 'pf_free'), ('after', 'kvw'), GPA])
for k in range(1, 4):
    for ks in range(10):
        if ks % 4 == 0:
            st_act.add([f's_add_u32 {tC0}, {sGP[k]}, {ks * 1024}'])
        st_act.add(act_load((k, ks), tC0, (ks % 4) * 1024))
st_act.add([('after', 'pubB'), ('gap', OPT['pollgap'])])
st_act.add(poll_item(f'v_add_u32 {vPA}, 32, {vPA}', vPA, vPF, 'pfb', OPT['pchk']))
for k in range(1, 4):
    for ks in range(10, 18):
        if (ks - 10) % 4 == 0:
            st_act.add([f's_add_u32 {tC0}, {sGP[k]}, {ks * 1024}'])
        st_act.add(act_load((k, ks), tC0, ((ks - 10) % 4) * 1024))
st_ao = Stream('ao')
tO0, tO1 = 's90', 's91'
st_ao.add([('after', 'opub'), ('gap', OPT['ogap'])])
st_ao.add(poll_item(f'v_and_b32 v{BCOR + 2}, 3, v1\nv_lshlrev_b32 v{BCOR + 2}, 3, v{BCOR + 2}\ns_add_u32 {tO0}, {sGF}, 64\nv_add_u32 v{BCOR + 2}, {tO0}, v{BCOR + 2}',
                    f'v{BCOR + 2}', BCOR, 'pfo', OPT['pchk']))
st_ao.add([f's_sub_u32 {tO0}, {sGF}, {L.WS_FLAG_G}\ns_lshl_b32 {tO0}, {tO0}, 3\ns_add_u32 {tO0}, {tO0}, {L.WS_GREM}'] + act_load('rem', tO0, 0))
for k in (0, 2, 1, 3):
    st_ao.add([f's_add_u32 {tO0}, {sGP[k] if k else sGB}, {18 * 1024}'] + act_load((k, 18), tO0, 0) + act_load((k, 19), tO0, 1024))
st_ao.add([('gap', 15), f's_and_b32 {tO0}, {sC}, 1\ns_sub_u32 {tO0}, {tO0}, 1\ns_not_b32 {tO1}, {tO0}'] +
          [f'v_cndmask_b32 v{BIASR + 4 + d}, 0, v{BIASR + d}, s[90:91]' for d in range(4)] + [('mark', 'actremS')])

XB = TMP
XR = TMP + 20
vOA, vOS, vRS2 = 'v4', 'v5', 'v6'
SOM, SOS = 's20', 's21'
st_fin = Stream('fin')
st_fin.add([('after', 'opub'), ('after', 'fin8'), ('after', 'B18'),
            f"""v_lshrrev_b32 v2, 2, v1
v_mul_u32_u24 v2, 1152, v2
v_and_b32 v3, 3, v1
v_lshlrev_b32 v3, 4, v3
v_add_u32 {vOA}, v2, v3
s_lshr_b32 {tA0}, {sC}, 1
s_mul_i32 {tA0}, {tA0}, 576
s_and_b32 {tA1}, {sC}, 1
s_mul_i32 {tA2}, {tA1}, 320
s_add_u32 {tA2}, {tA2}, {tA0}
s_lshl_b32 {tA3}, {sS}, 6
s_add_u32 {tA2}, {tA2}, {tA3}
s_add_u32 {SOM}, {sXB}, {tA2}""",
            f'buffer_load_dwordx4 v[{XR}:{XR + 3}], {vOA}, {srd(SRD_X)}, {SOM} offen',
            f's_add_u32 {tA3}, {SOM}, {16 * 1152}',
            f'buffer_load_dwordx4 v[{XR + 4}:{XR + 7}], {vOA}, {srd(SRD_X)}, {tA3} offen',
            f'buffer_load_dwordx4 v[{XR + 8}:{XR + 11}], v3, {srd(SRD_B)}, {tA2} offen',
            f"""v_and_b32 v2, 15, v1
v_bfe_u32 v3, v1, 4, 1
v_lshlrev_b32 v3, 3, v3
v_mul_u32_u24 v7, 1152, v2
v_add_u32 v7, v7, v3
v_mov_b32 {vOS}, {OOB}
v_cmp_gt_u32 vcc, 32, v1
v_cndmask_b32 {vOS}, {vOS}, v7, vcc
s_lshl_b32 {tA2}, {sR}, 2
s_add_u32 {tA2}, {tA2}, {sS}
s_lshl_b32 {tA2}, {tA2}, 1
s_add_u32 {tA2}, {tA2}, {tA1}
s_lshl_b32 {tA3}, {tA2}, 6
s_add_u32 {tA3}, {tA3}, {L.WS_STAT}
v_lshlrev_b32 v2, 2, v2""",
            f'buffer_load_dword {vRS2}, v2, {srd(SRD_WS)}, {tA3} offen sc1',
            f"""s_mul_i32 {tA2}, {tA2}, {16 * 1152}
s_lshl_b32 {tA3}, {sW}, 4
s_add_u32 {tA3}, {tA3}, {tA0}
s_add_u32 {tA3}, {tA3}, 256
s_add_u32 {SOS}, {tA2}, {tA3}""",
            f'buffer_load_dwordx2 v[{XR + 12}:{XR + 13}], {vOS}, {srd(SRD_X)}, {SOS} offen',
            f'buffer_load_dwordx2 v[{XR + 14}:{XR + 15}], v3, {srd(SRD_B)}, {tA3} offen', ('gap', 40)])
for d in range(4):
    for hi in range(2):
        un = (lambda r, dst: f'v_and_b32 {dst}, {vMASKHI}, v{r}') if hi else (lambda r, dst: f'v_lshlrev_b32 {dst}, 16, v{r}')
        st_fin.add([un(XR + 8 + d, 'v2')])
        for rd in range(2):
            st_fin.add([un(XR + 4 * rd + d, 'v3'), f'v_add_f32 v{XB + 8 * rd + 2 * d + hi}, v2, v3'])
for d in range(2):
    for hi in range(2):
        un = (lambda r, dst: f'v_and_b32 {dst}, {vMASKHI}, v{r}') if hi else (lambda r, dst: f'v_lshlrev_b32 {dst}, 16, v{r}')
        st_fin.add([un(XR + 12 + d, 'v2'), un(XR + 14 + d, 'v3'), f'v_add_f32 v{XB + 16 + 2 * d + hi}, v2, v3'])
SND = ['s16', 's17', 's18', 's19']
RCV = ['s12', 's13', 's15', 's38', 's39']
st_fin.add([f"""v_and_b32 {vRS2}, {vMASKHI}, {vRS2}
v_mul_f32 {vRS2}, {vRS2}, {vRS2}
v_rcp_f32 {vRS2}, {vRS2}
v_mul_f32 {vRSTD}, {vRSTD}, {vRSTD}
s_lshl_b32 {tA0}, {sR}, 2
s_add_u32 {tA0}, {tA0}, {sC}
s_lshl_b32 {tA0}, {tA0}, 18
s_add_u32 {tA0}, {tA0}, {L.WS_PART}
s_lshl_b32 {tA2}, {sW}, 12
s_add_u32 {tA0}, {tA0}, {tA2}
s_lshl_b32 {tA2}, {sS}, 14
s_add_u32 {tA2}, {tA2}, {tA0}"""])
for k in range(1, 4):
    st_fin.add([f's_add_u32 {tA3}, {sS}, {k}\ns_and_b32 {tA3}, {tA3}, 3\ns_lshl_b32 {tA3}, {tA3}, 16\ns_add_u32 {SND[k]}, {tA3}, {tA2}'])
st_fin.add([f"""s_lshl_b32 {tA2}, {sR}, 1
s_lshr_b32 {tA3}, {sC}, 1
s_add_u32 {tA2}, {tA2}, {tA3}
s_lshl_b32 {tM0}, {tA2}, 17
s_add_u32 {tM0}, {tM0}, {L.WS_PARTS}
s_lshl_b32 {tM1}, {sS}, 1
s_add_u32 {tM1}, {tM1}, {tA1}
s_lshl_b32 {tA3}, {tM1}, 11
s_add_u32 {SND[0]}, {tM0}, {tA3}
s_lshl_b32 {tA3}, {sW}, 15
s_add_u32 {SND[0]}, {SND[0]}, {tA3}
s_lshl_b32 {tA3}, {tM1}, 14
s_add_u32 {RCV[0]}, {tM0}, {tA3}
s_lshl_b32 {tA3}, {sW}, 9
s_add_u32 {RCV[0]}, {RCV[0]}, {tA3}
v_bfe_u32 v2, v1, 4, 1
v_lshlrev_b32 v2, 14, v2
v_lshrrev_b32 v3, 5, v1
v_lshl_add_u32 v2, v3, 8, v2
v_and_b32 v11, 15, v1
v_lshl_add_u32 v7, v11, 4, v2
v_lshlrev_b32 v3, 11, v3
v_and_b32 v11, 31, v1
v_lshl_add_u32 v3, v11, 4, v3
v_add_u32 v2, 8192, v3
s_lshl_b32 {tA2}, {sS}, 16
s_add_u32 {tA2}, {tA2}, {tA0}"""])
for k in range(1, 4):
    st_fin.add([f's_add_u32 {tA3}, {sS}, {k}\ns_and_b32 {tA3}, {tA3}, 3\ns_lshl_b32 {tA3}, {tA3}, 14\ns_add_u32 {RCV[k]}, {tA3}, {tA2}'])
PT = XR
PKR = 196
CH = [196, 200, XR + 8, XR + 12]
st_fin.add([f'v_mov_b32 v{c + 3}, v{vNON}' for c in CH] + [('after', f'dma{NSTG - 1}')])
for n in (3, 0, 1, 2):
    st_fin.add([('after', f'pend{n}'), ('gap', 2)])
    for half in range(2):
        st_fin.add([f'v_accvgpr_read_b32 v{PT + e}, a{ACC2[n] + 8 * half + e}' for e in range(8)])
        for d in range(4):
            dd = 4 * half + d
            dst = (CH[dd // 3] + dd % 3) if n < 3 else (CH[dd // 2] + dd % 2)
            st_fin.add([f'v_cvt_pk_bf16_f32 v{dst}, v{PT + 2 * d}, v{PT + 2 * d + 1}'])
    for q in range(3 if n < 3 else 4):
        if n < 3:
            st_fin.add([f'buffer_store_dwordx4 v[{CH[q]}:{CH[q] + 3}], {vLANE16}, {srd(SRD_WS)}, {SND[n + 1]} offen offset:{q * 1024} sc1'])
        else:
            st_fin.add([f'buffer_store_dwordx4 v[{CH[q]}:{CH[q] + 3}], v7, {srd(SRD_WS)}, {SND[0]} offen offset:{q * 512} sc1'])
RB = 80
RXL = []
for k in range(1, 4):
    for q in range(3):
        r = RB + 12 * (k - 1) + 4 * q
        RXL.append(f'buffer_load_dwordx4 v[{r}:{r + 3}], {vLANE16}, {srd(SRD_WS)}, {RCV[k]} offen offset:{q * 1024} sc1')
RS = RB + 36
for i in range(4):
    RXL.append(f'buffer_load_dwordx4 v[{RS + 4 * i}:{RS + 4 * i + 3}], {("v3", "v2")[i // 2]}, {srd(SRD_WS)}, {(RCV[0], RCV[4])[i % 2]} offen sc1')
st_fin.add([f's_add_u32 {RCV[4]}, {RCV[0]}, 4096', ('after', 'rxfree')] + [Inst(x, tag='rx') for x in RXL])

S = Sched(E, [st_dma, st_pol, st_hal, st_rp, st_tr, st_att, st_epi, st_at2, st_act, st_ao, st_fin])
S.vrate = OPT['vrate']
S.memorder = [st_pol, st_hal, st_att, st_at2, st_epi, st_rp, st_dma, st_act, st_ao, st_fin, st_tr]
S.vcap = OPT['vcap']
S.lat = OPT['lat']
st_dma.edf = True
st_act.edf = True
st_ao.edf = True
if OPT.get('zlo') is not None:
    def hook(i):
        if OPT['zlo'] <= i < OPT['zlo'] + 50 * OPT['zst'] and (i - OPT['zlo']) % OPT['zst'] == 0:
            E.raw(f'; ZSTAMP {nstamp[0]} op {i}')
            stamp()
    S.hook = hook
S.extra_deadline = {f'xl{q}': 20 * (q - 1) for q in range(2, 9)}
S.run(ops, D=OPT['D'], WB=OPT['WB'], budget=3.0, maxmem=OPT['maxmem'])
stamp()
S.drain()
stamp()

OA = 16
TP = 144
E(f"""v_and_b32 v8, 31, v1
v_mul_u32_u24 v8, {TP}, v8
v_lshrrev_b32 v9, 5, v1
v_lshl_add_u32 v8, v9, 4, v8
s_mul_i32 s90, {sW}, {32 * TP}
s_add_u32 s90, s90, {SLOTB[23]}
v_add_u32 v8, s90, v8
v_lshrrev_b32 v11, 2, v1
v_mul_u32_u24 v11, {TP}, v11
v_and_b32 v15, 3, v1
v_lshl_add_u32 v11, v15, 5, v11
v_add_u32 v11, s90, v11""")
for e in range(16):
    E(f'v_accvgpr_read_b32 v{OA + e}, a{ACC2[4] + e}')
E.wait_tags(['rx'])
E('L_RXC:')
tags = [RB + 4 * i + 3 for i in range(13)]
E(f'v_xor_b32 v9, s{NONCE}, v{tags[0]}')
for i in range(1, 13, 2):
    E(f'v_xor_b32 v15, s{NONCE}, v{tags[i]}\nv_xor_b32 v32, s{NONCE}, v{tags[i + 1]}\nv_or3_b32 v9, v9, v15, v32')
E(f'v_cmp_ne_u32 {SPOLL}, 0, v9\ns_cmp_lg_u64 {SPOLL}, 0\ns_cbranch_scc1 L_RXS')
E('L_RXR:')
stamp()
for k in range(3):
    for dd in range(8):
        r = RB + 12 * k + 4 * (dd // 3) + dd % 3
        E(f'v_lshlrev_b32 v32, 16, v{r}\nv_and_b32 v33, {vMASKHI}, v{r}\nv_add_f32 v{OA + 2 * dd}, v{OA + 2 * dd}, v32\nv_add_f32 v{OA + 2 * dd + 1}, v{OA + 2 * dd + 1}, v33')
for q4 in range(4):
    for e in range(4):
        E(f'v_mul_f32 v{OA + 4 * q4 + e}, v{OA + 4 * q4 + e}, {vRSTD}')
    E(f'ds_write_b128 v8, v[{OA + 4 * q4}:{OA + 4 * q4 + 3}] offset:{32 * q4}', tag='tw')
SH = 40
for i in range(4):
    for d in range(2):
        r = RS + 4 * i + d
        if i == 0:
            E(f'v_lshlrev_b32 v{SH + 2 * d}, 16, v{r}\nv_and_b32 v{SH + 2 * d + 1}, {vMASKHI}, v{r}')
        else:
            E(f'v_lshlrev_b32 v32, 16, v{r}\nv_and_b32 v33, {vMASKHI}, v{r}\nv_add_f32 v{SH + 2 * d}, v{SH + 2 * d}, v32\nv_add_f32 v{SH + 2 * d + 1}, v{SH + 2 * d + 1}, v33')
    if i == 1:
        E.wait_tags(['tw'])
        for rd in range(2):
            E(f'ds_read_b128 v[{48 + 8 * rd}:{51 + 8 * rd}], v11 offset:{rd * 16 * TP}')
            E(f'ds_read_b128 v[{52 + 8 * rd}:{55 + 8 * rd}], v11 offset:{rd * 16 * TP + 16}')
for rd in range(2):
    for e in range(8):
        E(f'v_add_f32 v{48 + 8 * rd + e}, v{48 + 8 * rd + e}, v{XB + 8 * rd + e}')
    for d in range(4):
        E(f'v_cvt_pk_bf16_f32 v{64 + 4 * rd + d}, v{48 + 8 * rd + 2 * d}, v{48 + 8 * rd + 2 * d + 1}')
    E(f'buffer_store_dwordx4 v[{64 + 4 * rd}:{67 + 4 * rd}], {vOA}, {srd(SRD_OUT)}, {SOM} offen')
    if rd == 0:
        E(f's_add_u32 {SOM}, {SOM}, {16 * 1152}')
for e in range(4):
    E(f'v_mov_b32 v{SH + 4 + e}, v{SH + e}')
for e in range(4):
    E(f'v_permlane32_swap_b32 v{SH + e}, v{SH + 4 + e}')
for e in range(4):
    E(f'v_add_f32 v{SH + e}, v{SH + e}, v{SH + 4 + e}\nv_fma_f32 v{SH + e}, v{SH + e}, {vRS2}, v{XB + 16 + e}')
E(f'v_cvt_pk_bf16_f32 v72, v{SH}, v{SH + 1}\nv_cvt_pk_bf16_f32 v73, v{SH + 2}, v{SH + 3}')
E(f'buffer_store_dwordx2 v[72:73], {vOS}, {srd(SRD_OUT)}, {SOS} offen')

if OPT['stamps']:
    stamp()
    E('s_waitcnt lgkmcnt(0)')
    E(f'v_writelane_b32 {vSTAMP}, s100, {nstamp[0] - 1}')
    E(f's_mov_b32 s84, {nstamp[0]}')
    E(f'v_writelane_b32 {vSTAMP}, s84, 63')
    E(f'v_writelane_b32 {vSTAMP}, s99, 62')
    E(f's_lshl_b32 s84, s2, 2\ns_add_u32 s84, s84, {sW}\ns_lshl_b32 s84, s84, 8\ns_add_u32 s84, s84, {L.WS_STAMP}')
    E('v_lshlrev_b32 v1, 2, v1')
    E(f'buffer_store_dword {vSTAMP}, v1, {srd(SRD_WS)}, s84 offen')
E('L_END:')
E('s_endpgm')
for k, load_txt in slow_paths:
    E.raw(f'''L_PS{k}:
    s_add_u32 s99, s99, 1
    s_cmp_gt_u32 s99, 400000
    s_cbranch_scc1 L_PR{k}
    s_sleep 1
    {load_txt}
    s_waitcnt vmcnt(0)
    s_branch L_PC{k}''')
E.raw('''L_RXS:
    s_add_u32 s99, s99, 1
    s_cmp_gt_u32 s99, 400000
    s_cbranch_scc1 L_RXR
    s_sleep 1
''' + '\n'.join('    ' + x for x in RXL) + '''
    s_waitcnt vmcnt(0)
    s_branch L_RXC''')
E.raw('L_CODE_END:')
E.raw(KD_FMT.format(name=KN, vgpr=512, sgpr=102, accum=256, kernarg=88))
txt = E.text()
if OPT.get('hot'):
    import re
    lines = []
    for l in txt.split('\n'):
        if (OPT['hot'] & 1) and 'buffer_store' in l and 's[48:51]' in l and 'v255' not in l:
            l = l.replace('s[48:51]', 's[64:67]')
        if 's_cbranch_scc1 L_PS' in l or 's_cbranch_scc1 L_RXS' in l:
            l = '    s_nop 0'
        lines.append(l)
    txt = '\n'.join(lines)
    if OPT['hot'] & 2:
        txt = txt.replace('    s_and_b32 s84, s2, 7\n    s_lshr_b32 s85, s2, 3\n', '    s_mov_b32 s84, 0\n    s_mov_b32 s85, 0\n', 1)
open(OUT, 'w').write(txt)
if OPT.get('log'):
    for x in S.log:
        if x[1] == 'BARRIER' or (x[1] == 'flushed' and x[3] > 6) or (x[1] == 'mark' and not x[2].startswith(('t', 'act', 'dma', 'xl'))):
            print(x)
print('insts', E.ninst, 'nops', E.n_nop, 'waits', E.n_wait)
```

```python
import sys
import struct
sys.path.insert(0, 'gen')
from kgen import *
from sched import *
import layout as L

KN = 'parallel_sum__sliding_local_dilated__dense_activation_squared_relu__prompt_kernel'
OPT = dict(stamps=0, D=6, WB=3, bA=3.5, bQ=4.5, bB=4.0, bP=4.5, pubgap=50, pollgap=20, stouch=1, gtouch=1,
           hxgap=30, higap=60, egap=5, pgap=60, dmagap=0, bx=16, maxmem=2, vrate=55, vcap=3, rp2at=4, lat=30, pfwat=11, auxat=21, rxks=17, ogap=40, btouch=2, hbatch=1, drain=1, eat=6, quiet=0, tfirst=0, pchk=30, sgap=0, rgap=0, rxat=50, etouch=0, x23=0)
for a in sys.argv[2:]:
    k, v = a.split('=')
    OPT[k] = float(v) if '.' in v else int(v)
OUT = sys.argv[1]
OPT_E = f"a{OPT['eat']}"
GS = '' if OPT.get('gplain') else ' sc1'

E = Emitter()
slow_paths = []
fl = lambda x: '0x%08x' % struct.unpack('<I', struct.pack('<f', x))[0]
OOB = '0x40000000'

sW, sR, sS, sC, sJ = 's4', 's5', 's6', 's7', 's8'
P_X, P_WQKV, P_WO, P_W1, P_B1, P_W2, P_B2 = 16, 18, 20, 24, 26, 28, 30
P_OUT, P_DBG, P_WS = 32, 34, 36
SRD_X, SRD_W1, SRD_WS, SRD_RP, SRD_B, SRD_OUT, SRD_DBG, SRD_EU = 40, 44, 48, 52, 56, 60, 64, 68
NONCE = 82
sSLW, sGF, sRPF, sCSA, sCSB, sGB = 's9', 's10', 's11', 's12', 's13', 's14'
sUST, sUS, sUD, sUC = 's15', 's38', 's39', 's3'
sA0, sA4, sB0, sB4, sQ0, sQ4 = 's16', 's17', 's18', 's19', 's20', 's21'
sPF = ['s22', 's23', 's24', 's25']
sGP = [None, 's26', 's27', 's28']
sXB, sXB2, sSTB = 's29', 's30', 's31'
M16 = 's[32:33]'
MX1, MX2 = 's[34:35]', 's[36:37]'
sL10, sL8, sL9, sBO, sC0, sC1 = 's72', 's73', 's74', 's75', 's80', 's81'
sBO2, sL6, sP8 = 's76', 's0', 's1'
SPOLL = 's[78:79]'
tD0, tD1 = 's84', 's85'
tA0, tA1, tA2, tA3 = 's86', 's87', 's88', 's89'
tR0, tR1, tR2, tR3, tR4 = 's90', 's91', 's95', 's96', 's77'
tC0, tC1 = 's92', 's93'
tE0 = 's94'
tM0, tM1 = 's97', 's98'


def srd(n):
    return f's[{n}:{n + 3}]'


XN = 16
FR = 160
NF = 7
BIASR = 188
VDA = 196
VDB = 201
vTA = 'v205'
VTB = 4
vRL = 'v206'
vF0 = 'v207'
vTCH = 'v208'
vLANE16 = 'v209'
vTL = 'v210'
vRSTD = 'v211'
vXO = 'v212'
vREM = 'v213'
BCOR = 214
TMP = 218
vMASKHI = 'v254'
vSTAMP = 'v255'
vNON = 12
vPF = 8
vTD = 10
vPA = 'v15'
vTW = 'v0'
QA = 144
AK = [192, 200, 208, 216]
ONESR = 220

RING = [0, 40960, 81920]
AUX = 122880
LDS_TOTAL = 163840
QB = AUX
QB1 = QB + 4096
PITCH = 240
SLOTB = {g: RING[g % 3] for g in range(18)}
DMA_AFTER = {g: g - 1 for g in range(18)}
NSTG = 26
AUXAT = OPT['auxat']
for g in range(18, AUXAT):
    SLOTB[g] = RING[g % 3]
    DMA_AFTER[g] = g - 1
for g in range(AUXAT, NSTG):
    SLOTB[g] = [AUX, RING[AUXAT % 3], RING[(AUXAT + 1) % 3], RING[(AUXAT + 2) % 3]][(g - AUXAT) % 4]
    DMA_AFTER[g] = g - 2

if OPT['drain']:
    DMA_AFTER = {g: v - 1 for g, v in DMA_AFTER.items()}
nstamp = [0]


def stamp():
    if not OPT['stamps']:
        return
    k = nstamp[0]
    if k > 0:
        E(f'v_writelane_b32 {vSTAMP}, s100, {k - 1}')
    E('s_memrealtime s[100:101]' if OPT.get('rt') else 's_memtime s[100:101]')
    nstamp[0] += 1


def mk_srd(n, p, size):
    E(f's_mov_b32 s{n}, s{p}\ns_mov_b32 s{n + 1}, s{p + 1}\ns_mov_b32 s{n + 2}, {size}\ns_mov_b32 s{n + 3}, 0x20000')


def emit_all(lst):
    for x in lst:
        if isinstance(x, str):
            E(x)
        elif isinstance(x, Inst):
            E.emit(x)


def nodep(txt):
    ld = Inst(txt)
    ld.writes = set()
    return ld


hdr = open('parallel_sum__sliding_local_dilated__dense_activation_squared_relu__prompt.s.ref').read()
hdr = [l for l in hdr.split('\n') if l.startswith(';') and '@launch' not in l and 'Override' not in l and 'grid=ceil' not in l]
E.raw('\n'.join(hdr))
E.raw(f'; @launch grid=(256,1,1) block=(256,1,1) lds={LDS_TOTAL}')
E.raw(f'.amdgcn_target "amdgcn-amd-amdhsa--gfx950"\n.text\n.globl {KN}\n.p2align 8\n.type {KN},@function\n{KN}:')

E('s_cmp_ge_u32 s2, 256\ns_cbranch_scc1 L_END')
stamp()
E('s_load_dwordx16 s[16:31], s[0:1], 0')
E('s_load_dwordx4 s[32:35], s[0:1], 64')
E('s_load_dwordx2 s[36:37], s[0:1], 80')
E(f's_memrealtime s[{NONCE}:{NONCE + 1}]')
E('s_mov_b32 s99, 0')
E(f's_getpc_b64 s[{SRD_EU}:{SRD_EU + 1}]')
E('L_PCREF:')
E(f's_mov_b32 s{SRD_EU + 2}, L_CODE_END-L_PCREF\ns_mov_b32 s{SRD_EU + 3}, 0x20000')
E('v_lshlrev_b32 v2, 7, v0')
E('s_lshr_b32 s3, s2, 3\ns_and_b32 s3, s3, 1\ns_lshl_b32 s3, s3, 15')
E.emit(nodep(f'buffer_load_dword v{vTD}, v2, {srd(SRD_EU)}, s3 offen'))
E('v_lshrrev_b32 v1, 6, v0')
E(f'v_readfirstlane_b32 {sW}, v1')
E('v_and_b32 v1, 63, v0')
E(f'''s_and_b32 s84, s2, 7
s_lshr_b32 s85, s2, 3
s_lshr_b32 {sS}, s84, 1
s_and_b32 {sC}, s85, 3
s_and_b32 s84, s84, 1
s_lshl_b32 s84, s84, 3
s_lshr_b32 s85, s85, 2
s_add_u32 {sR}, s84, s85
s_lshl_b32 {sJ}, {sS}, 2
s_add_u32 {sJ}, {sJ}, {sC}
v_bfe_u32 v2, v1, 2, 3
v_mul_u32_u24 v2, 4608, v2
v_lshrrev_b32 v3, 5, v1
v_lshl_add_u32 v2, v3, 6, v2
v_and_b32 v4, 3, v1
v_lshl_add_u32 {vXO}, v4, 4, v2
v_mul_u32_u24 v5, 1152, v3
v_and_b32 v6, 31, v1
v_lshl_add_u32 v5, v6, 4, v5
v_mov_b32 v7, {OOB}
v_cmp_gt_u32 vcc, 8, v6
v_cndmask_b32 v6, v7, v5, vcc
v_lshlrev_b32 {vLANE16}, 4, v1
s_lshl_b32 s86, {sR}, 2
s_add_u32 s86, s86, {sW}
s_mul_i32 s86, s86, 36864
s_lshl_b32 s87, {sR}, 4
s_add_u32 s87, s87, {sJ}
s_lshl_b32 s87, s87, 2
s_add_u32 s87, s87, {sW}
s_mul_i32 s88, s87, 2304''')
for i in range(5):
    E(f'''v_add_u32 v8, {64 * i}, v1
v_mul_u32_u24 v9, 3277, v8
v_lshrrev_b32 v9, 16, v9
v_mul_u32_u24 v11, 20, v9
v_sub_u32 v11, v8, v11
v_mul_u32_u24 v9, 9216, v9
v_lshl_add_u32 v{VDA + i}, v11, 4, v9''')
    if i % 4:
        E(f'v_subrev_u32 v{VDA + i}, {(i % 4) * 1024}, v{VDA + i}')
E(f'''s_mul_i32 s89, {sJ}, 576
s_and_b32 s84, {sJ}, 1
s_cmp_eq_u32 s84, 0
s_cselect_b32 s90, 256, 0
s_cselect_b32 s91, 0, 320
s_mul_i32 s92, {sW}, {32 * 9216}
s_add_u32 s92, s92, s89
s_add_u32 s93, s92, s90
s_mul_i32 {sL10}, {sW}, 10240''')
E('s_waitcnt lgkmcnt(0)')
mk_srd(SRD_X, P_X, 2359296)
mk_srd(SRD_W1, P_W1, 5308416)
E1R = TMP + 16
for k in range(3):
    E(f'buffer_load_dwordx4 v[{E1R + 4 * k}:{E1R + 4 * k + 3}], {"v5" if k < 2 else "v6"}, {srd(SRD_X)}, s88 offen offset:{512 * k}')


def xload(q, sb=None):
    o = []
    for i in range(4):
        r = XN + 16 * q + 4 * i
        b, off = (sb or sXB, 128 * q) if q < 5 else (sXB2, 128 * (q - 5))
        o.append(Inst(f'buffer_load_dwordx4 v[{r}:{r + 3}], {vXO}, {srd(SRD_X)}, {b} offen offset:{1152 * i + off}', tag=f'x{q}'))
    o.append(('mark', f'xl{q}'))
    return o


TOUCH_ONLY = [False]


def touch(fn, *a):
    TOUCH_ONLY[0] = True
    o = fn(*a)
    TOUCH_ONLY[0] = False
    return o


def dma_a(u, sb=None):
    g = u
    base = SLOTB[g]
    out = [f's_add_u32 {tD0}, {sb or sA0}, {u * 128 * 9216}' if u < 4 else f's_mov_b32 {tD0}, {sA4}']
    if TOUCH_ONLY[0]:
        return out + [nodep(f'buffer_load_dword v{vTD}, {vTW}, {srd(SRD_W1)}, {tD0} offen')]
    lw = sL10
    if u == 4:
        out.append(f's_lshr_b32 {tD1}, {sL10}, 1')
        lw = tD1
    for gr in range(2 if u < 4 else 1):
        if gr:
            out.append(f's_add_u32 {tD0}, {tD0}, {16 * 9216}')
        for i in range(5):
            if i % 4 == 0:
                out.append(f's_add_u32 m0, {lw}, {base + gr * 5120 + i * 1024}')
            out.append(Inst(f'buffer_load_dwordx4 v{VDA + i}, {srd(SRD_W1)}, {tD0} offen offset:{(i % 4) * 1024} lds', tag=f'st{g}'))
    return out


def lin_pieces(g, lw, lbase, npc):
    out = []
    for i in range(npc):
        if i % 4 == 0:
            out.append(f's_add_u32 m0, {lw}, {lbase + i * 1024}' if lw else f's_mov_b32 m0, {lbase + i * 1024}')
            if i:
                out.append(f's_add_u32 {tD0}, {tD0}, 4096')
        out.append(Inst(f'buffer_load_dwordx4 {vLANE16}, {srd(SRD_WS)}, {tD0} offen offset:{(i % 4) * 1024} sc1 lds', tag=f'st{g}'))
    return out


def cs_pieces(g, src, lofs, n):
    o = [f's_lshl_b32 {tD1}, {sW}, 10', f's_add_u32 {tD0}, {src}, {tD1}'] + lin_pieces(g, tD1, SLOTB[g] + lofs, 1)
    if n == 5:
        o += [f's_add_u32 {tD0}, {src}, 4096'] + lin_pieces(g, None, SLOTB[g] + lofs + 4096, 1)
    return o


def dma_b(u):
    g = 10 + u
    base = SLOTB[g]
    out = [f's_add_u32 {tD0}, {sB0}, {u * 128 * 9216}' if u < 4 else f's_mov_b32 {tD0}, {sB4}']
    if TOUCH_ONLY[0]:
        return out + [nodep(f'buffer_load_dword v{vTD}, {vTW}, {srd(SRD_W1)}, {tD0} offen')]
    lw = sL8
    if u == 4:
        out.append(f's_lshr_b32 {tD1}, {sL8}, 1')
        lw = tD1
    for gr in range(2 if u < 4 else 1):
        if gr:
            out.append(f's_add_u32 {tD0}, {tD0}, {16 * 9216}')
        out.append(f's_add_u32 m0, {lw}, {base + gr * 4096}')
        for i in range(4):
            out.append(Inst(f'buffer_load_dwordx4 v{VDB + i}, {srd(SRD_W1)}, {tD0} offen offset:{i * 1024} lds', tag=f'st{g}'))
    if u == 0:
        out += cs_pieces(g, sCSB, 32768, 4)
    return out


def dma_lin(g, setup, lw, npc):
    if TOUCH_ONLY[0]:
        return [setup[-1]] + [nodep(f'buffer_load_dword v{vTD}, {vTL}, {srd(SRD_WS)}, {tD0} offen sc1')]
    return list(setup) + lin_pieces(g, lw, SLOTB[g], npc)


def dma_q(u):
    g = 5 + u
    if u < 4:
        o = dma_lin(g, [f's_add_u32 {tD0}, {sQ0}, {u * 32768}'], sL8, 8)
        if u == 0 and not TOUCH_ONLY[0]:
            o = cs_pieces(g, sCSA, 32768, 5) + o
        return o
    o = dma_lin(g, [f's_lshr_b32 {tD1}, {sL8}, 1', f's_mov_b32 {tD0}, {sQ4}'], tD1, 4)
    if not TOUCH_ONLY[0]:
        o += [f's_lshl_b32 {tM1}, {sJ}, 12', f's_add_u32 {tM1}, {tM1}, {L.WS_CSQ}'] + cs_pieces(g, tM1, 16384, 4)
    return o


RUNS = [('A', k) for k in range(4)] + [('B', k) for k in range(4)]


def dma_p(p):
    kind, k = RUNS[p]
    g = 15 + p
    if kind == 'A':
        return dma_lin(g, [f's_mov_b32 {tD0}, {sPF[k]}'], (sL10, sL8)[k % 2], (10, 8)[k % 2])
    return dma_lin(g, [f's_add_u32 {tD0}, {sPF[k]}, {(sBO, sBO2)[k % 2]}'], (sL8, sL6)[k % 2], (8, 6)[k % 2])


def dma_o(_):
    g = 23
    if TOUCH_ONLY[0]:
        return []
    o = [f's_add_u32 {tD0}, {sC}, {sW}', f's_and_b32 {tD1}, {tD0}, 3', f's_mul_i32 {tD0}, {tD1}, 61440', f's_add_u32 {tD0}, {tD0}, {sSLW}',
         f's_add_u32 {tD0}, {tD0}, {54 * 1024}'] + lin_pieces(g, sL6, SLOTB[g], 6)
    o += [f's_lshr_b32 {tD0}, {tD1}, 1', f's_mul_i32 {tD0}, {tD0}, 20480', f's_add_u32 {tD0}, {tD0}, {sSLW}',
          f's_add_u32 {tD0}, {tD0}, {L.SLABW_S + 18 * 1024}', f's_lshl_b32 {tD1}, {sW}, 11'] + lin_pieces(g, tD1, SLOTB[g] + 24576, 2)
    o += [f's_lshl_b32 {tD1}, {sW}, 10', f's_add_u32 {tD0}, {tD1}, {240 * 1024}', f's_cmp_eq_u32 {sW}, 3',
          f's_cselect_b32 {tD0}, {L.SLABW_S + 40 * 1024}, {tD0}', f's_add_u32 {tD0}, {tD0}, {sSLW}'] + lin_pieces(g, tD1, SLOTB[g] + 32768, 1)
    o += [f's_add_u32 {tD0}, {sSLW}, {L.SLABW_O + 80 * 1024}'] + lin_pieces(g, None, SLOTB[g] + 36864, 1)
    return o


def dma_c(u):
    return dma_lin(24 + u, [f's_mov_b32 {tD0}, {(sC0, sC1)[u]}'], sL10, 10)


A0L = dma_a(0, 's93')
cut = [i for i, x in enumerate(A0L) if isinstance(x, Inst)][4] + 1
def early_touch(first_seg, first_stage):
    E(f'''v_and_b32 v8, 7, v1
s_lshl_b32 s84, {sC}, 3
v_add_u32 v8, s84, v8
v_mul_u32_u24 v8, 1152, v8
v_lshrrev_b32 v9, 3, v1
v_lshl_add_u32 v11, v9, 7, v8''')
    E.emit(nodep(f'buffer_load_dword v{vTD}, v11, {srd(SRD_X)}, s86 offen offset:{128 * first_seg}'))
    E(f'''v_mul_u32_u24 v11, 86, v1
v_lshrrev_b32 v11, 8, v11
v_mul_u32_u24 v9, 3, v11
v_sub_u32 v9, v1, v9
v_lshrrev_b32 v15, 2, v11
v_and_b32 v11, 3, v11
v_lshl_add_u32 v11, v15, 7, v11
s_and_b32 s84, {sR}, 7
s_lshl_b32 s84, s84, 2
s_add_u32 s84, s84, {128 * first_stage}
v_add_u32 v11, s84, v11
v_mul_u32_u24 v11, 9216, v11
v_lshl_add_u32 v11, v9, 7, v11
v_cmp_gt_u32 vcc, {12 * (4 - first_stage)}, v1
v_cndmask_b32 v11, v7, v11, vcc''')
    E.emit(nodep(f'buffer_load_dword v{vTD}, v11, {srd(SRD_W1)}, s93 offen'))
    if first_seg == 0:
        E.emit(nodep(f'buffer_load_dword v{vTD}, v8, {srd(SRD_X)}, s86 offen offset:1024'))


if OPT['tfirst']:
    early_touch(0, 0)
else:
    emit_all(xload(0, 's86') + A0L[:cut])
    E(f's_mov_b32 s97, {tD0}')
stamp()
mk_srd(SRD_DBG, P_DBG, 256)
E(f'''s_or_b32 s{NONCE}, s{NONCE}, 1
v_mov_b32 v8, s{NONCE}
v_mov_b32 v9, s{NONCE + 1}
v_mov_b32 v14, 0
v_cmp_eq_u32 vcc, 0, v1
v_cndmask_b32 {vF0}, v7, v14, vcc
s_or_b32 s85, s2, {sW}
s_cmp_eq_u32 s85, 0
s_cselect_b32 s85, 0, {OOB}''')
E(f'buffer_store_dwordx2 v[8:9], {vF0}, {srd(SRD_DBG)}, s85 offen sc1')
mk_srd(SRD_WS, P_WS, 0x10000000)
mk_srd(SRD_B, P_B1, 9216)
mk_srd(SRD_OUT, P_OUT, 2359296)
E(f'''s_cmp_lt_u32 s2, 236
s_cselect_b32 s{SRD_RP}, s{P_W2}, s{P_WO}
s_cselect_b32 s{SRD_RP + 1}, s{P_W2 + 1}, s{P_WO + 1}
s_mov_b32 s{SRD_RP + 2}, 5308416
s_cselect_b32 s{SRD_RP + 2}, s{SRD_RP + 2}, 663552
s_mov_b32 s{SRD_RP + 3}, 0x20000''')
vU, vA1, vZ = 'v2', 'v3', f'v{TMP + 32}'
E(f'''s_and_b32 s84, s2, 3
s_lshr_b32 s85, {sW}, 1
s_lshl_b32 s85, s85, 5
s_and_b32 s94, {sW}, 1
s_lshl_b32 s94, s94, 2
s_add_u32 s85, s85, s94
s_lshl_b32 s94, s84, 3
s_add_u32 s85, s85, s94
v_lshrrev_b32 v8, 4, v1
v_and_b32 v9, 15, v1
v_bfe_u32 v11, v1, 4, 1
v_lshrrev_b32 v3, 5, v1
v_lshlrev_b32 v3, 3, v3
v_bfe_u32 v15, v1, 2, 2
v_add_u32 v3, v3, v15
v_lshlrev_b32 v3, 8, v3
v_add_u32 v3, {AUX}, v3
s_cmp_ge_u32 s2, 64
s_cbranch_scc1 L_EU_W1
s_lshr_b32 s94, s2, 2
s_mov_b32 s{SRD_EU}, s{P_WQKV}
s_mov_b32 s{SRD_EU + 1}, s{P_WQKV + 1}
s_mov_b32 s{SRD_EU + 2}, 1990656
s_mov_b32 {sUST}, {64 * 3456}
s_mul_i32 {sUS}, s85, 3456
s_mul_i32 s95, s94, 72
s_add_u32 {sUS}, {sUS}, s95
s_mul_i32 {sUD}, s94, {L.SLABQ_SZ}
s_lshl_b32 s95, s84, 2
s_add_u32 s95, s95, {sW}
s_lshl_b32 s95, s95, 10
s_add_u32 {sUD}, {sUD}, s95
s_add_u32 {sUD}, {sUD}, {L.WS_SLABQ}
s_lshl_b32 {sUC}, s94, 12
s_add_u32 {sUC}, {sUC}, {L.WS_CSQ}
s_mov_b32 s96, {OOB}
v_mul_u32_u24 v8, 3456, v8
v_mul_u32_u24 v15, 13, v9
v_lshrrev_b32 v15, 6, v15
v_mul_u32_u24 v2, 5, v15
v_sub_u32 v9, v9, v2
v_mul_u32_u24 v15, 1152, v15
v_add_u32 v8, v8, v15
v_lshl_add_u32 {vU}, v9, 4, v8
v_lshlrev_b32 v11, 2, v11
v_and_b32 v8, 1, v1
v_lshl_add_u32 v11, v8, 1, v11
v_bfe_u32 v8, v1, 1, 1
v_add_u32 v11, v11, v8
s_lshl_b32 s95, {sW}, 3
v_add_u32 v11, s95, v11
v_min_u32 v11, 26, v11
v_mul_u32_u24 v8, 57, v11
v_lshrrev_b32 v8, 9, v8
v_lshl_add_u32 v11, v11, 3, v3
v_lshl_add_u32 {vA1}, v8, 3, v11
s_branch L_EU_DONE
L_EU_W1:
s_sub_u32 s94, s2, 64
s_lshr_b32 s94, s94, 2
s_mov_b32 s{SRD_EU}, s{P_W1}
s_mov_b32 s{SRD_EU + 1}, s{P_W1 + 1}
s_mov_b32 s{SRD_EU + 2}, 5308416
s_mov_b32 {sUST}, {64 * 9216}
s_mul_i32 {sUS}, s85, 9216
s_lshl_b32 s95, s94, 8
s_add_u32 {sUS}, {sUS}, s95
s_mov_b32 {sUD}, {OOB}
s_lshl_b32 {sUC}, s94, 12
s_add_u32 {sUC}, {sUC}, {L.WS_CSF}
s_lshl_b32 s96, {sW}, 6
s_add_u32 s96, s96, s95
s_cmp_eq_u32 s84, 0
s_cselect_b32 s96, s96, {OOB}
s_cmp_lt_u32 s2, 208
s_cselect_b32 {sUS}, {sUS}, {OOB}
s_cselect_b32 {sUC}, {sUC}, {OOB}
v_mul_u32_u24 v8, 9216, v8
v_lshl_add_u32 {vU}, v9, 4, v8
v_lshl_add_u32 v3, v11, 5, v3
v_lshl_add_u32 v3, v4, 3, v3
s_lshl_b32 s95, {sW}, 6
v_add_u32 {vA1}, s95, v3
L_EU_DONE:
s_lshl_b32 s95, {sW}, 10
s_add_u32 {sUC}, {sUC}, s95
s_lshl_b32 s94, s84, 2
s_add_u32 {sUC}, {sUC}, s94
v_and_b32 v8, 31, v1
v_lshlrev_b32 v8, 1, v8
s_nop 2''')
if not OPT['tfirst']:
    E(f's_mov_b32 {tD0}, s97')
    emit_all(A0L[cut:] + xload(1, 's86'))
E(f'buffer_load_ushort {vZ}, v8, {srd(SRD_B)}, s96 offen')
mk_srd(SRD_B, P_B2, 1152)
def eu_dma():
    for i in range(9):
        E(f's_add_u32 m0, s95, {AUX + i * 4096}')
        E(f'buffer_load_dwordx4 {vU}, {srd(SRD_EU)}, {sUS} offen lds', tag='eu')
        if i < 8:
            E(f's_add_u32 {sUS}, {sUS}, {sUST}')


if OPT['tfirst']:
    eu_dma()
E(f'''s_mov_b32 {sXB}, s86
s_add_u32 {sXB2}, s86, 640
s_mov_b32 {sA0}, s93
s_add_u32 {sB0}, s92, s91
s_mul_i32 s84, {sW}, {16 * 9216}
s_add_u32 s84, s84, {512 * 9216}
s_add_u32 s84, s84, s89
s_add_u32 {sA4}, s84, s90
s_add_u32 {sB4}, s84, s91
s_lshl_b32 {sL8}, {sW}, 13
s_mul_i32 {sL9}, {sW}, 9216
s_lshl_b32 {sBO2}, {sW}, 11
s_sub_u32 {sBO2}, 30720, {sBO2}
s_cmp_eq_u32 {sW}, 3
s_cselect_b32 {sBO}, 10240, {sBO2}
s_mul_i32 {sL6}, {sW}, 6144
s_mul_i32 s84, {sJ}, {L.SLABQ_SZ}
s_add_u32 s84, s84, {L.WS_SLABQ}
s_add_u32 {sQ0}, s84, {sL8}
s_lshl_b32 s85, {sW}, 12
s_add_u32 {sQ4}, s84, s85
s_add_u32 {sQ4}, {sQ4}, {8 * 16384}
s_mul_i32 s84, {sJ}, 9216
s_add_u32 s84, s84, {L.WS_CSF}
s_lshl_b32 s90, s90, 4
s_lshl_b32 s91, s91, 4
s_add_u32 {sCSA}, s84, s90
s_add_u32 {sCSB}, s84, s91
s_mul_i32 {sGB}, s87, {L.G_WAVE}
s_add_u32 {sGB}, {sGB}, {L.WS_G}
s_mul_i32 {sSLW}, {sJ}, {L.SLABW_SZ}
s_add_u32 {sSLW}, {sSLW}, {L.WS_SLABW}''')
for k in range(4):
    E(f's_add_u32 s84, {sC}, {k}\ns_and_b32 s84, s84, 3\ns_mul_i32 s85, s84, 61440\ns_add_u32 s85, s85, {sL10 if k % 2 == 0 else sL8}')
    if k % 2 == 0:
        E(f's_lshr_b32 s90, s84, 1\ns_mul_i32 s90, s90, 20480\ns_add_u32 s90, s90, {L.SLABW_S}')
        E(f's_cmp_eq_u32 {sW}, 3\ns_cselect_b32 s85, s90, s85')
    E(f's_add_u32 {sPF[k]}, s85, {sSLW}')
    if k:
        E(f's_sub_u32 s84, s84, {sC}\ns_mul_i32 s84, s84, {L.G_WG}\ns_add_u32 {sGP[k]}, s84, {sGB}')
for u, d in enumerate((sC0, sC1)):
    E(f's_lshr_b32 s84, {sW}, 1\ns_add_u32 s84, s84, {sC}\ns_add_u32 s84, s84, {2 - 2 * u}\ns_and_b32 s84, s84, 3\ns_mul_i32 s84, s84, 20480\n'
      f's_and_b32 s85, {sW}, 1\ns_mul_i32 s85, s85, 10240\ns_add_u32 s84, s84, s85\ns_add_u32 s84, s84, {sSLW}\ns_add_u32 {d}, s84, {L.SLABW_O}')
E(f'''s_lshl_b32 {sGF}, {sR}, 2
s_add_u32 {sGF}, {sGF}, {sS}
s_lshl_b32 {sGF}, {sGF}, 2
s_add_u32 {sGF}, {sGF}, {sW}
s_lshl_b32 {sGF}, {sGF}, 7
s_add_u32 {sGF}, {sGF}, {L.WS_FLAG_G}
s_lshl_b32 {sSTB}, {sR}, 2
s_add_u32 {sSTB}, {sSTB}, {sW}
s_lshl_b32 {sSTB}, {sSTB}, 7
s_add_u32 {sSTB}, {sSTB}, {L.WS_STAT}
s_mov_b64 {M16}, 0xffff
s_mov_b32 s34, 0x55555555
s_mov_b32 s35, 0x55555555
s_mov_b32 s36, 0x33333333
s_mov_b32 s37, 0x33333333''')
if not OPT['tfirst']:
    eu_dma()
E(f'''s_and_b32 s84, {sR}, 7
v_mul_u32_u24 v8, 86, v1
v_lshrrev_b32 v8, 8, v8
v_mul_u32_u24 v9, 3, v8
v_sub_u32 v9, v1, v9
s_lshl_b32 s85, s84, 2
v_add_u32 v8, s85, v8
v_mul_u32_u24 v8, 9216, v8
v_lshl_add_u32 v8, v9, 7, v8
v_cmp_gt_u32 vcc, 12, v1
v_cndmask_b32 {vTW}, v7, v8, vcc
v_lshlrev_b32 {vTCH}, 7, v1
s_mul_i32 s85, s84, {10 * 128}
v_add_u32 v8, s85, {vTCH}
v_cmp_gt_u32 vcc, 10, v1
v_cndmask_b32 {vTL}, v7, v8, vcc
v_lshrrev_b32 v8, 5, v1
v_lshlrev_b32 v8, 5, v8
v_bfe_u32 v9, v1, 2, 2
v_add_u32 v8, v8, v9
v_bfe_u32 v11, v1, 4, 1
v_lshlrev_b32 v11, 5, v11
v_lshl_add_u32 v11, v4, 3, v11
v_mul_u32_u24 v15, 320, v8
v_add_u32 {vTA}, v15, v11
v_lshl_add_u32 v15, v8, 8, v11
v_add_u32 v15, {SLOTB[10]}, v15
v_lshrrev_b32 v8, 4, v1
v_xor_b32 v11, v9, v8
v_mul_u32_u24 v8, 9216, v8
v_lshl_add_u32 v8, v11, 6, v8
v_lshl_add_u32 v{VDB}, v4, 4, v8''')
for i in range(1, 4):
    E(f'v_add_u32 v{VDB + i}, {i * (4 * 9216 - 1024)}, v{VDB}')
E(f'''v_mov_b32 {vMASKHI}, 0xffff0000
v_cndmask_b32 {vREM}, v7, {vLANE16}, {M16}
v_mov_b32 v{TMP + 33}, v7''')
for t in range(4):
    E(f'v_xor_b32 v8, {t}, v9\nv_lshl_add_u32 v{TMP + t}, v8, 6, v15')
E(f'''v_and_b32 v8, 15, v1
v_lshrrev_b32 v9, 4, v1
v_lshlrev_b32 v9, 2, v9
v_sub_u32 v8, v8, v9
v_mov_b32 v15, 0xf149f2ca
v_mov_b32 v9, 0x3f803f80''')
for i in range(4):
    E(f'''v_accvgpr_write_b32 a{ONESR + i}, v9
v_subrev_u32 v11, {i}, v8
v_and_b32 v11, 0x80000001, v11
v_cmp_eq_u32 vcc, 0, v11
v_cndmask_b32 v{BIASR + 4 + i}, v15, v14, vcc
v_xor_b32 v11, 0x80000000, v11
v_cmp_eq_u32 vcc, 0, v11
v_cndmask_b32 v{BIASR + i}, v15, v14, vcc''')
E(f'''v_and_b32 v8, 31, v1
s_lshl_b32 s85, {sJ}, 2
v_add_u32 v11, s85, v8
s_mul_i32 s85, {sJ}, 9
s_andn2_b32 s85, s85, 3
s_add_u32 s85, s85, 60
v_add_u32 v15, s85, v8
v_min_u32 v15, 207, v15
v_cmp_gt_u32 vcc, 4, v8
v_cndmask_b32 v11, v15, v11, vcc
v_bfe_u32 v15, v1, 2, 2
v_lshlrev_b32 v15, 1, v15
v_lshl_add_u32 v15, v4, 3, v15
s_lshl_b32 s85, s84, 5
s_lshr_b32 s84, {sR}, 3
s_add_u32 s85, s85, s84
v_add_u32 v15, s85, v15
v_cmp_gt_u32 vcc, 16, v8
v_cndmask_b32 v11, v15, v11, vcc
v_lshlrev_b32 v11, 3, v11
v_add_u32 {vPA}, {L.WS_FLAG_E}, v11''')
for t in range(4):
    E(f'v_mov_b32 v{VTB + t}, v{TMP + t}')
stamp()
if OPT['tfirst']:
    emit_all(xload(0) + dma_a(0) + xload(1))
if OPT['x23']:
    emit_all(xload(2) + xload(3))
stamp()
a0, a1, q0, q1 = (f'v{TMP + i}' for i in range(4))
E(f'v_mov_b32 {a0}, 0\nv_mov_b32 {a1}, 0\nv_mov_b32 {q0}, 0\nv_mov_b32 {q1}, 0')
for e in range(12):
    r = f'v{E1R + e}'
    E(f'v_dot2_f32_bf16 {(a0, a1)[e & 1]}, {r}, v9, {(a0, a1)[e & 1]}')
    E(f'v_dot2_f32_bf16 {(q0, q1)[e & 1]}, {r}, {r}, {(q0, q1)[e & 1]}')
E(f'v_add_f32 {a0}, {a0}, {a1}\nv_add_f32 {q0}, {q0}, {q1}')
for sh in (1, 2, 4, 8):
    E(f'v_add_f32_dpp {a0}, {a0}, {a0} row_shr:{sh} row_mask:0xf bank_mask:0xf bound_ctrl:0')
    E(f'v_add_f32_dpp {q0}, {q0}, {q0} row_shr:{sh} row_mask:0xf bank_mask:0xf bound_ctrl:0')
E(f'v_add_f32_dpp {a0}, {a0}, {a0} row_bcast:15 row_mask:0xa bank_mask:0xf')
E(f'v_add_f32_dpp {q0}, {q0}, {q0} row_bcast:15 row_mask:0xa bank_mask:0xf')
E(f'''v_mul_f32 {a0}, 0x3ae38e39, {a0}
v_mul_f32 {q0}, 0x3ae38e39, {q0}
v_fma_f32 {q0}, -{a0}, {a0}, {q0}
v_max_f32 {q0}, 0, {q0}
v_cvt_pk_bf16_f32 {q0}, {q0}, {q0}
v_lshlrev_b32 {q0}, 16, {q0}
v_add_f32 {q0}, 0x3727c5ac, {q0}
v_cvt_pk_bf16_f32 {q0}, {q0}, {q0}
v_lshlrev_b32 {q0}, 16, {q0}
v_sqrt_f32 {q0}, {q0}
v_and_b32 {a1}, 31, v1
v_cvt_pk_bf16_f32 {a0}, {a0}, {q0}
v_lshrrev_b32 {q1}, 5, v1
v_lshlrev_b32 {q1}, 2, {q1}
v_cmp_eq_u32 vcc, 31, {a1}
v_cndmask_b32 {q1}, v{TMP + 33}, {q1}, vcc
s_lshl_b32 s84, s87, 3
s_add_u32 s84, s84, {L.WS_STAT}''')
E(f'buffer_store_dword {a0}, {q1}, {srd(SRD_WS)}, s84 offen sc1', tag='eust')
NONL = f'buffer_load_dwordx2 v[{vNON}:{vNON + 1}], v14, {srd(SRD_DBG)}, 0 offen sc1'
stamp()

X1 = 'quad_perm:[1,0,3,2] row_mask:0xf bank_mask:0xf'
X2 = 'quad_perm:[2,3,0,1] row_mask:0xf bank_mask:0xf'


def transpose_seg(q):
    R = lambda i, d: f'v{XN + 16 * q + 4 * i + d}'
    Tm = lambda i, d: f'v{TMP + 4 * i + d}'
    o = [f's_mov_b64 vcc, {MX1}']
    for i0 in (0, 2):
        for d in range(4):
            o.append(f'v_cndmask_b32_dpp {Tm(i0, d)}, {R(i0 + 1, d)}, {R(i0, d)}, vcc {X1}')
    o.append('s_not_b64 vcc, vcc')
    for i0 in (0, 2):
        for d in range(4):
            o.append(f'v_cndmask_b32_dpp {Tm(i0 + 1, d)}, {R(i0, d)}, {R(i0 + 1, d)}, vcc {X1}')
    o.append(f's_mov_b64 vcc, {MX2}')
    for i0 in (0, 1):
        for d in range(4):
            o.append(f'v_cndmask_b32_dpp {R(i0, d)}, {Tm(i0 + 2, d)}, {Tm(i0, d)}, vcc {X2}')
        o.append(('mark', f't{q}_{i0}'))
    o.append('s_not_b64 vcc, vcc')
    for i0 in (0, 1):
        for d in range(4):
            o.append(f'v_cndmask_b32_dpp {R(i0 + 2, d)}, {Tm(i0, d)}, {Tm(i0 + 2, d)}, vcc {X2}')
        o.append(('mark', f't{q}_{i0 + 2}'))
    return o


k = 0
for x in transpose_seg(0):
    if isinstance(x, str):
        E(x)
        k += 1
        if k % 3 == 0:
            E('v_nop')
stamp()

fragi = [0]


def newfrag():
    f = FR + 4 * (fragi[0] % NF)
    fragi[0] += 1
    return f


RA = OPT['rp2at']
BAR_TAGS = {2: ['eust'], RA + 1: ['rp2'], RA + 4: ['rp2st']}
BAR_MARKS = {2: ['eudone'], RA + 1: ['rp2dma'], RA + 3: ['rp2done'], OPT['auxat'] - 1: ['odone']}


def barrier(g, post=()):
    def f():
        if OPT['stamps'] > 2:
            stamp()
        E.wait_tags([f'st{g}'] + BAR_TAGS.get(g, []))
        if OPT['drain']:
            E.wait_all(vm=False)
        E('s_barrier')
        if OPT['stamps'] > 1:
            stamp()
        S.marks.add(f'B{g}')
        if 'odone' in S.marks:
            S.marks.add('Bodone')
        S.log.append((S.cur, 'BARRIER', g, 0))
        emit_all(post)
    return f


def eu_barrier():
    E.wait_tags(['eu'])
    E('s_barrier')
    S.marks.add('Bx')


def prereq(g):
    return ([f'dma{g}'] if g >= 1 else []) + BAR_MARKS.get(g, [])


def rl_post(g):
    return [f'v_add_u32 {vRL}, {SLOTB[g]}, {vLANE16}']


ops = []
for q in range(9):
    u, sg = q // 2, q % 2
    g = u
    for k, (jj, n) in enumerate([(jj, n) for jj in range(4) for n in range(5)]):
        f = newfrag()
        off = sg * 20480 + 8 * jj * 320 + 64 * n
        x = XN + 16 * q + 4 * jj
        first = (k == 0 and sg == 0)
        post = []
        if g:
            d = SLOTB[g] - SLOTB[g - 1]
            post = [f'v_add_u32 {vTA}, {d}, {vTA}' if d > 0 else f'v_subrev_u32 {vTA}, {-d}, {vTA}']
        acc = f'a[{16 * n}:{16 * n + 15}]'
        ops.append(Op([f'ds_read_b64_tr_b16 v[{f}:{f + 1}], {vTA} offset:{off}',
                       f'ds_read_b64_tr_b16 v[{f + 2}:{f + 3}], {vTA} offset:{off + 4 * 320}'],
                      [f'v_mfma_f32_32x32x16_bf16 {acc}, v[{f}:{f + 3}], v[{x}:{x + 3}], {"0" if (q == 0 and jj == 0) else acc}'],
                      name=f'a{q}' if k == 0 else None,
                      pre=barrier(g, post) if first else (eu_barrier if (q == 0 and k == OPT['bx']) else None),
                      requires=[f't{q}_{jj}'] if q else [],
                      pre_requires=prereq(g) if first else [], budget=OPT['bA']))
for n in range(5):
    f = newfrag()
    acc = f'a[{16 * n}:{16 * n + 15}]'
    ops.append(Op([f'ds_read_b128 v[{f}:{f + 3}], {vRL} offset:{32768 + 1024 * n}'],
                  [f'v_mfma_f32_32x32x16_bf16 {acc}, v[{f}:{f + 3}], v[{BCOR}:{BCOR + 3}], {acc}'],
                  name=f'fin{n}', pre=barrier(5, rl_post(5)) if n == 0 else None, pre_requires=prereq(5) if n == 0 else [],
                  requires=['bcor'], budget=OPT['bQ']))
for q in range(9):
    u, sg = q // 2, q % 2
    g = 5 + u
    for k, (jj, t4) in enumerate([(jj, t4) for jj in range(4) for t4 in range(4)]):
        f = newfrag()
        x = XN + 16 * q + 4 * jj
        acc = f'a[{QA + 16 * t4}:{QA + 16 * t4 + 15}]'
        first = (k == 0 and sg == 0 and u > 0)
        ops.append(Op([f'ds_read_b128 v[{f}:{f + 3}], {vRL} offset:{(sg * 16 + jj * 4 + t4) * 1024}'],
                      [f'v_mfma_f32_32x32x16_bf16 {acc}, v[{f}:{f + 3}], v[{x}:{x + 3}], {"0" if (q == 0 and jj == 0) else acc}'],
                      pre=barrier(g, rl_post(g)) if first else None,
                      pre_requires=prereq(g) if first else [], budget=OPT['bQ']))
for t4 in (1, 2, 3, 0):
    f = newfrag()
    acc = f'a[{QA + 16 * t4}:{QA + 16 * t4 + 15}]'
    ops.append(Op([f'ds_read_b128 v[{f}:{f + 3}], {vRL} offset:{16384 + 1024 * t4}'],
                  [f'v_mfma_f32_32x32x16_bf16 {acc}, v[{f}:{f + 3}], v[{BCOR}:{BCOR + 3}], {acc}'], name=f'qfin{t4}', budget=OPT['bQ']))
for t in range(4):
    f = newfrag()
    lam = 5 + t
    ops.append(Op([f'ds_read_b128 v[{f}:{f + 3}], {vRL} offset:{32768 + 1024 * t}'],
                  [f'v_mfma_f32_32x32x16_bf16 a[{16 * lam}:{16 * lam + 15}], v[{f}:{f + 3}], v[{BCOR}:{BCOR + 3}], 0'],
                  pre=barrier(10, rl_post(10)) if t == 0 else None, pre_requires=prereq(10) if t == 0 else [],
                  name=f'bcor{t}', budget=OPT['bQ']))
for q in range(9):
    u, sg = q // 2, q % 2
    g = 10 + u
    order = [(jj, n) for jj in range(4) for n in range(4)] if q < 8 else [(jj, n) for n in range(4) for jj in range(4)]
    for k, (jj, t) in enumerate(order):
        f = newfrag()
        lam = 5 + t
        off = sg * 16384 + 8 * jj * 256
        x = XN + 16 * q + 4 * jj
        first = (k == 0 and sg == 0 and u > 0)
        post = []
        if u > 0:
            d = SLOTB[g] - SLOTB[g - 1]
            post = [(f'v_add_u32 v{VTB + i}, {d}, v{VTB + i}' if d > 0 else f'v_subrev_u32 v{VTB + i}, {-d}, v{VTB + i}') for i in range(4)]
        ops.append(Op([f'ds_read_b64_tr_b16 v[{f}:{f + 1}], v{VTB + t} offset:{off}',
                       f'ds_read_b64_tr_b16 v[{f + 2}:{f + 3}], v{VTB + t} offset:{off + 4 * 256}'],
                      [f'v_mfma_f32_32x32x16_bf16 a[{16 * lam}:{16 * lam + 15}], v[{f}:{f + 3}], v[{x}:{x + 3}], a[{16 * lam}:{16 * lam + 15}]'],
                      name=f'fin{lam}' if (q == 8 and jj == 3) else (f'bs{q}' if k == 15 else None), pre=barrier(g, post) if first else None,
                      pre_requires=prereq(g) if first else [], budget=OPT['bB']))


def HP(lam):
    return 8 * lam if lam < 5 else 80 + 8 * (lam - 5)


ACT = {}
for ks in range(18):
    ACT[(0, ks)] = ('a', HP(ks // 2) + 4 * (ks & 1))
pool = [('a', 144 + 4 * i) for i in range(12)] + [('a', 40), ('a', 44)] + [('v', 16 + 4 * i) for i in range(36)] + \
       [('a', 128 + 4 * i) for i in range(4)] + [('a', 192 + 4 * i) for i in range(8)] + [('v', BIASR)]
order = [(k, ks) for k in (1, 2, 3) for ks in range(10)] + [(k, ks) for k in (1, 2, 3) for ks in range(10, 18)] + \
        [(k, ks) for k in range(4) for ks in (18, 19)] + ['rem']
assert len(pool) == len(order)
for key, r in zip(order, pool):
    ACT[key] = r
ACT['remS'] = ('v', BIASR + 4)


def act_regs(key):
    k, r = ACT[key]
    return f'{k}[{r}:{r + 3}]'


def kname(key):
    return key if isinstance(key, str) else f'{key[0]}_{key[1]}'


ACC2 = [48, 64, 224, 240, 112]


def acc2(n):
    return f'a[{ACC2[n]}:{ACC2[n] + 15}]'


def act_req(key):
    if key != 'rem' and key != 'remS' and key[0] == 0 and key[1] < 18:
        return [f'h{key[1] // 2}']
    return [f'act{kname(key)}']


def p2op(g, pos, n, key, zero=False, first=False, name=None, req=()):
    f = newfrag()
    ops.append(Op([f'ds_read_b128 v[{f}:{f + 3}], {vRL} offset:{pos * 1024}'],
                  [f'v_mfma_f32_32x32x16_bf16 {acc2(n)}, v[{f}:{f + 3}], {act_regs(key)}, {"0" if zero else acc2(n)}'],
                  name=name, pre=barrier(g, rl_post(g)) if first else None, pre_requires=prereq(g) if first else [],
                  requires=act_req(key) + list(req), budget=OPT['bP']))


for p, (kind, k) in enumerate(RUNS):
    g = 15 + p
    nk = 10 if kind == 'A' else 8
    for kk in range(nk):
        key = (k, kk + (10 if kind == 'B' else 0))
        z = (p == 0 and kk == 0)
        for n in range(3):
            p2op(g, kk * 3 + n, n, key, zero=z, first=(kk == 0 and n == 0), req=['h4'] if z else [])
        if k % 2 == 0:
            p2op(g, 3 * nk + kk, 3, key, zero=z)
for i, (k, ks) in enumerate(((0, 18), (0, 19), (2, 18), (2, 19))):
    p2op(23, 24 + 2 * k + (ks - 18), 3, (k, ks), first=(i == 0))
p2op(23, 35, 3, 'remS', name='pend3')
for n in range(3):
    for k in range(4):
        for ks in (18, 19):
            p2op(23, 6 * k + 3 * (ks - 18) + n, n, (k, ks))
    p2op(23, 32 + n, n, 'rem', name=f'pend{n}')
p2op(23, 36, 4, 'rem', zero=True, name='c0')
for u, pair in enumerate(((2, 3), (1, 0))):
    for k in pair:
        for ks in (list(range(10, 20)) + list(range(10))):
            nm = 'rxfree' if (k == 1 and ks == OPT['rxks']) else None
            p2op(24 + u, (k & 1) * 20 + ks, 4, (k, ks), first=(k == pair[0] and ks == 10), name=nm)

npoll = [0]


def poll_check(load_txt, cmp_lines, tag):
    k = npoll[0]
    npoll[0] += 1
    E.wait_tags([tag])
    E(f'L_PC{k}:')
    E(cmp_lines)
    E(f's_cmp_lg_u64 {SPOLL}, 0')
    E(f's_cbranch_scc1 L_PS{k}')
    E(f'L_PR{k}:')
    slow_paths.append((k, load_txt))


def flags_cmp(v):
    return f'v_cmp_ne_u64 {SPOLL}, s[{NONCE}:{NONCE + 1}], v[{v}:{v + 1}]'


def poll_item(setup, va, vd, tag, gap):
    fl_ = ' nt' if (OPT.get('gplain') and tag in ('pfa', 'pfb', 'pfo')) else ' sc1'
    ld = f'buffer_load_dwordx2 v[{vd}:{vd + 1}], {va}, {srd(SRD_WS)}, 0 offen{fl_}'
    return ([setup] if setup else []) + [Inst(ld, tag=tag), ('gap', gap), ('call', lambda: poll_check(ld, flags_cmp(vd), tag))]


def get_nonce():
    poll_check(NONL, f'v_cmp_eq_u32 {SPOLL}, 0, v{vNON}', 'nonce')
    E(f'v_readfirstlane_b32 s{NONCE}, v{vNON}\nv_readfirstlane_b32 s{NONCE + 1}, v{vNON + 1}')


def wave_flag(soff, need, off=0):
    fl_ = GS if (need and need[0] in ('gsta', 'gstb', 'ost')) else ' sc1'
    return Inst(f'buffer_store_dwordx2 v[{vNON}:{vNON + 1}], {vF0}, {srd(SRD_WS)}, {soff} offen offset:{off}{fl_}', need=need)


st_tr = Stream('tr', own_vcc=True)
for q in range(1, 9):
    st_tr.add([('after', f'a{q - 1}')] + ([('after', f'xl{q}')] if q > (3 if OPT['x23'] else 1) else []) + transpose_seg(q))
st_tr.add([('mark', 'trdone')])

RPT = TMP + 16
st_rp = Stream('rp')
st_rp.add([Inst(NONL, tag='nonce'), ('after', 'Bx')])
CSA_ = 'a[144:159]'
for f in range(11):
    if f < 9:
        t = RPT + 4 * (f % 4)
        st_rp.add([f'ds_read_b64_tr_b16 v[{t}:{t + 1}], {vA1} offset:{f * 4096}', f'ds_read_b64_tr_b16 v[{t + 2}:{t + 3}], {vA1} offset:{f * 4096 + 1024}'])
    else:
        st_rp.add([('gap', 2)])
    if f >= 2:
        f2 = f - 2
        t2 = RPT + 4 * (f2 % 4)
        st_rp.add([Inst(f'buffer_store_dwordx4 v[{t2}:{t2 + 3}], {vLANE16}, {srd(SRD_WS)}, {sUD} offen sc1', tag='eust'),
                   f'v_mfma_f32_32x32x16_bf16 {CSA_}, a[{ONESR}:{ONESR + 3}], v[{t2}:{t2 + 3}], {"0" if f2 == 0 else CSA_}',
                   f's_add_u32 {sUD}, {sUD}, 16384'])
t0, t1, t2 = f'v{RPT}', f'v{RPT + 1}', f'v{RPT + 2}'
st_rp.add([('call', get_nonce), ('mark', 'nonce_ok'), ('gap', 1), f'''v_accvgpr_read_b32 {t0}, a144
v_cvt_pk_bf16_f32 {t1}, {t0}, {t0}
v_lshlrev_b32 {t1}, 16, {t1}
v_sub_f32 {t2}, {t0}, {t1}
v_cvt_pk_bf16_f32 {t0}, {t1}, {t2}
v_cmp_gt_u32 {SPOLL}, 32, v1
v_cndmask_b32 {t0}, {vZ}, {t0}, {SPOLL}''',
           Inst(f'buffer_store_dword {t0}, {vLANE16}, {srd(SRD_WS)}, {sUC} offen sc1', tag='eust'), ('mark', 'eudone')])
st_rp.items[-3].glue = True
st_rp.add([('after', 'B2'), f's_lshl_b32 {tR0}, s2, 3\ns_add_u32 {tR0}, {tR0}, {L.WS_FLAG_E}\ns_cmp_eq_u32 {sW}, 0\ns_cselect_b32 {tR0}, {tR0}, {OOB}',
           wave_flag(tR0, []), ('mark', 'eupub')])
sU2 = 's71'
st_rp.add([f's_sub_u32 {sU2}, s2, 92'])
vA2 = 'v2'
st_rp.add([('call', lambda: E(f"""s_mul_i32 {tR1}, {sU2}, 1821
s_lshr_b32 {tR1}, {tR1}, 16
s_mul_i32 {tR0}, {sU2}, 7282
s_lshr_b32 {tR0}, {tR0}, 16
s_mul_i32 {tR2}, {tR0}, 9
s_sub_u32 {tR2}, {sU2}, {tR2}
s_add_u32 {tR3}, {tR2}, 5
s_cmp_ge_u32 {tR3}, 9
s_cselect_b32 {tM0}, 9, 0
s_sub_u32 {tR3}, {tR3}, {tM0}
s_and_b32 {tM0}, {tR0}, 1
s_cmp_eq_u32 {tM0}, 0
s_cselect_b32 {tR2}, {tR3}, {tR2}
s_and_b32 {tR0}, {tR0}, 3
s_mul_i32 {sUS}, {tR0}, 20
s_lshl_b32 {tM0}, {tR2}, 1
s_add_u32 {sUS}, {sUS}, {tM0}
s_mul_i32 {tR0}, {tR0}, 9
s_add_u32 {tR2}, {tR2}, {tR0}
s_lshl_b32 {tR3}, {sU2}, 5
s_lshl_b32 {tR0}, {sW}, 3
s_add_u32 {tR3}, {tR3}, {tR0}
s_mov_b32 {tM0}, 4
s_mov_b32 {tR4}, 8
s_cmp_lt_u32 {sU2}, 144
s_cbranch_scc1 L_RP_W2C
s_sub_u32 {tR0}, {sU2}, 144
s_lshr_b32 {tR1}, {tR0}, 2
s_and_b32 {tR2}, {tR0}, 3
s_mul_i32 {sUS}, {tR2}, 20
s_add_u32 {sUS}, {sUS}, 18
s_add_u32 {tR2}, {tR2}, 36
s_mul_i32 {tR3}, {tR0}, 36
s_lshl_b32 {tR0}, {sW}, 3
s_add_u32 {tR3}, {tR3}, {tR0}
s_lshr_b32 {tR0}, {sW}, 1
s_lshl_b32 {tR0}, {tR0}, 2
s_add_u32 {tR3}, {tR3}, {tR0}
s_mov_b32 {tM0}, 8
s_mov_b32 {tR4}, 4
s_cmp_lt_u32 {sU2}, 160
s_cbranch_scc1 L_RP_W2C
s_sub_u32 {tR1}, {sU2}, 160
s_mov_b32 {tR2}, 40
s_mov_b32 {sUS}, 80
s_lshl_b32 {tR3}, {tR1}, 2
s_add_u32 {tR3}, {tR3}, {sW}
s_mul_i32 {tR3}, {tR3}, 36
s_add_u32 {tR3}, {tR3}, 16
s_mov_b32 {tM0}, 16
s_mov_b32 {tR4}, 8
L_RP_W2C:""")),
           f"""s_mul_i32 {tR3}, {tR3}, 1152
s_cmp_lt_u32 {sU2}, 164
s_cselect_b32 {tR3}, {tR3}, {OOB}
s_mul_i32 {sRPF}, {tR1}, 41
s_add_u32 {sRPF}, {sRPF}, {tR2}""", ('mark', 'rp2setup'),
           f"""v_lshrrev_b32 {t1}, 5, v1
v_mul_lo_u32 {t1}, {t1}, {tM0}
v_bfe_u32 {t2}, v1, 2, 2
v_add_u32 {t0}, {t1}, {t2}
v_mul_u32_u24 {t0}, 1152, {t0}
v_bfe_u32 {t1}, v1, 4, 1
v_lshl_add_u32 {t0}, {t1}, 5, {t0}
v_and_b32 {t1}, 3, v1
v_lshl_add_u32 {t0}, {t1}, 3, {t0}
s_lshr_b32 {tR0}, {sW}, 1
s_mul_i32 {tR0}, {tR0}, 576
s_add_u32 {tR0}, {tR0}, {AUX}
v_add_u32 {vA1}, {tR0}, {t0}
s_mul_i32 {tR4}, {tR4}, 1152
v_add_u32 {vA2}, {tR4}, {vA1}""", ('after', 'rp2dma'),
           f"""s_lshl_b32 {tR2}, {tR1}, 2
s_add_u32 {tR0}, {tR2}, {sW}
s_mul_i32 {tR0}, {tR0}, {L.SLABW_SZ}
s_add_u32 {tR0}, {tR0}, {L.WS_SLABW}
s_cmp_lt_u32 {sU2}, 164
s_cselect_b32 {tR0}, {tR0}, {OOB}
s_mul_i32 {sUD}, {sUS}, 3072
s_add_u32 {sUD}, {sUD}, {tR0}
s_lshl_b32 {tR3}, {sUS}, 10
s_add_u32 {tR3}, {tR3}, {tR0}
s_add_u32 {tR3}, {tR3}, {L.SLABW_O}
s_add_u32 {sUC}, {sUD}, 3072
s_add_u32 {tR4}, {tR3}, 1024
s_cmp_lt_u32 {sUS}, 80
s_cselect_b32 {sUC}, {sUC}, {OOB}
s_cselect_b32 {tR4}, {tR4}, {OOB}
s_mul_i32 {tM0}, {sUS}, 3277
s_lshr_b32 {tM0}, {tM0}, 16
s_mul_i32 {sUST}, {tM0}, 20
s_sub_u32 {sUST}, {sUS}, {sUST}
s_lshr_b32 {tR0}, {tM0}, 1
s_mul_i32 {tR0}, {tR0}, 20
s_add_u32 {sUST}, {sUST}, {tR0}
s_and_b32 {tR0}, {sW}, 1
s_and_b32 {tM0}, {tM0}, 1
s_cmp_lt_u32 {sUS}, 80
s_cselect_b32 {tM0}, {tM0}, {tR0}
s_cselect_b32 {sUS}, {tR0}, 0
s_add_u32 {sUST}, {sUST}, {sUS}
s_lshl_b32 {sUST}, {sUST}, 10
s_andn2_b32 {tR0}, {sW}, 1
s_add_u32 {tR0}, {tR0}, {tM0}
s_add_u32 {tR0}, {tR0}, {tR2}
s_mul_i32 {tR0}, {tR0}, {L.SLABW_SZ}
s_add_u32 {sUST}, {sUST}, {tR0}
s_add_u32 {sUST}, {sUST}, {L.WS_SLABW + L.SLABW_S}
s_cmp_lt_u32 {sU2}, 164
s_cselect_b32 {sUST}, {sUST}, {OOB}
s_mul_i32 {sUS}, {sUS}, {16 * 1152}
s_add_u32 {sUS}, {sUS}, 256
s_and_b32 {tR2}, {sW}, 1
s_mul_i32 {tR2}, {tR2}, 320""", ('after', f'B{RA + 1}')])
vB1_, vB2_ = f'v{TMP + 32}', f'v{TMP + 33}'
frs = []
for lam in range(4):
    pre = [f's_add_u32 {tR0}, {tR1}, {lam + 1}', f's_and_b32 {tR0}, {tR0}, 3', f's_lshl_b32 {tR0}, {tR0}, 6', f's_add_u32 {tR0}, {tR0}, {tR2}',
           f'v_add_u32 {vB1_}, {tR0}, {vA1}', f'v_add_u32 {vB2_}, {tR0}, {vA2}']
    for k2 in range(2):
        dst = ((sUD, sUC)[k2], lam * 1024) if lam < 3 else ((tR3, tR4)[k2], 0)
        frs.append((pre if k2 == 0 else [], k2 * 16 * 1152, dst))
frs.append(([f'v_add_u32 {vB1_}, {sUS}, {vA1}', f'v_add_u32 {vB2_}, {sUS}, {vA2}'], 0, (sUST, 0)))
for f in range(11):
    if f < 9:
        t = RPT + 4 * (f % 4)
        pre, off, _ = frs[f]
        st_rp.add(pre + [f'ds_read_b64_tr_b16 v[{t}:{t + 1}], {vB1_} offset:{off}', f'ds_read_b64_tr_b16 v[{t + 2}:{t + 3}], {vB2_} offset:{off}'])
    else:
        st_rp.add([('gap', 2)])
    if f >= 2:
        f2 = f - 2
        t2_ = RPT + 4 * (f2 % 4)
        sb, im = frs[f2][2]
        st_rp.add([Inst(f'buffer_store_dwordx4 v[{t2_}:{t2_ + 3}], {vLANE16}, {srd(SRD_WS)}, {sb} offen offset:{im} sc1', tag='rp2st')] + ([('gap', OPT['rgap'])] if OPT['rgap'] else []))
st_rp.add([('mark', 'rp2done'), ('after', f'B{RA + 4}'),
           f's_lshl_b32 {tR0}, {sRPF}, 3\ns_add_u32 {tR0}, {tR0}, {L.WS_FLAG_RP}\ns_cmp_lt_u32 {sU2}, 164\ns_cselect_b32 {tR0}, {tR0}, {OOB}\n'
           f's_cmp_eq_u32 {sW}, 0\ns_cselect_b32 {tR0}, {tR0}, {OOB}', wave_flag(tR0, []), ('mark', 'rp2pub')])

STAGE_FN = {}
for u in range(5):
    STAGE_FN[u] = (dma_a, u)
    STAGE_FN[5 + u] = (dma_q, u)
    STAGE_FN[10 + u] = (dma_b, u)
for p in range(8):
    STAGE_FN[15 + p] = (dma_p, p)
STAGE_FN[23] = (dma_o, 0)
for u in range(2):
    STAGE_FN[24 + u] = (dma_c, u)
TOUCH_AT = {2: [4] if OPT['tfirst'] else [3, 4], 3: [10], 4: [11], 5: [6, 7], 6: [8], 7: [12], 8: [13], 9: [14], 12: [15, 16], 13: [17], 14: [18],
            15: [19], 16: [20], 17: [21], 18: [22], 19: [24], 20: [25]}


STAG_AT = {4: [10], 5: [6, 7, 11], 6: [8, 9], 7: [12], 8: [13], 9: [14], 14: [15, 16, 17, 18], 15: [19], 16: [20], 17: [21], 18: [22],
           19: [24], 20: [25]}


def stag_touch(t):
    fn, arg = STAGE_FN[t]
    o = touch(fn, arg)[:-1]
    o += [f's_cmp_eq_u32 {sP8}, {t % 8}', f's_cselect_b32 {tD0}, {tD0}, {OOB}']
    if fn is dma_b:
        o.append(nodep(f'buffer_load_dword v{vTD}, {vTW}, {srd(SRD_W1)}, {tD0} offen'))
    else:
        npc = {dma_q: 8 if arg < 4 else 4, dma_c: 10}.get(fn) or ((10, 8) if RUNS[arg][0] == 'A' else (8, 6))[RUNS[arg][1] % 2]
        if npc < 8:
            o.append(f'v_min_u32 v11, {(8 * npc - 1) * 128}, {vTCH}')
        o.append(nodep(f'buffer_load_dword v{vTD}, {vTCH if npc >= 8 else "v11"}, {srd(SRD_WS)}, {tD0} offen sc1'))
        if npc > 8:
            o += [f's_add_u32 {tD0}, {tD0}, 8192', nodep(f'buffer_load_dword v{vTD}, {vTL}, {srd(SRD_WS)}, {tD0} offen sc1')]
    return o


def paced(items):
    if not OPT['dmagap']:
        return items
    o = []
    for x in items:
        o.append(x)
        if isinstance(x, Inst):
            o.append(('gap', OPT['dmagap']))
    return o


st_dma = Stream('dma')
st_dma.add(([] if OPT['x23'] else xload(2)) + paced(dma_a(1)) + [('mark', 'dma1')] + ([] if OPT['x23'] else xload(3)) + paced(xload(4)))
for g in range(2, NSTG):
    fn, arg = STAGE_FN[g]
    if g == 5:
        st_dma.add([('after', 'e_ok')])
        if OPT['btouch'] == 1:
            def bt1():
                E(f's_and_b32 {tD0}, {sR}, 7\ns_lshl_b32 {tD0}, {tD0}, 2\ns_add_u32 {tD0}, {tD0}, {sW}\ns_mul_i32 {tD1}, {tD0}, {36 * 128}\n'
                  f's_add_u32 {tD1}, {tD1}, {sQ0}\ns_sub_u32 {tD1}, {tD1}, {sL8}\nv_min_u32 v11, {35 * 128}, {vTCH}')
                E.emit(nodep(f'buffer_load_dword v{vTD}, v11, {srd(SRD_WS)}, {tD1} offen sc1'))
                E(f's_mul_i32 {tD1}, {tD0}, {18 * 9216}\ns_add_u32 {tD1}, {tD1}, {sB0}\ns_mul_i32 {tD0}, {sW}, {32 * 9216}\ns_sub_u32 {tD1}, {tD1}, {tD0}\n'
                  f'v_min_u32 v11, 35, v1\nv_lshrrev_b32 {vTW}, 1, v11\nv_mul_u32_u24 {vTW}, 9216, {vTW}\nv_and_b32 v11, 1, v11\nv_lshl_add_u32 v11, v11, 7, {vTW}')
                E.emit(nodep(f'buffer_load_dword v{vTD}, v11, {srd(SRD_W1)}, {tD1} offen'))
            st_dma.add([('call', bt1)])
    if g == AUXAT:
        st_dma.add([('after', 'Bodone')])
    st_dma.add([('after', f'B{max(DMA_AFTER[g], 0) if g > 2 else 0}')] + paced(fn(arg)) + [('mark', f'dma{g}')])
    if g == 2:
        st_dma.add(paced(xload(5) + xload(6)))
    if g == 3:
        st_dma.add(paced(xload(7) + xload(8)))
    if g == 3 and OPT['btouch'] == 2:
        st_dma.add([f's_and_b32 {sP8}, {sR}, 7\nv_lshrrev_b32 {vTW}, 1, v1\nv_mul_u32_u24 {vTW}, 9216, {vTW}\nv_and_b32 v11, 1, v1\n'
                    f'v_lshl_add_u32 {vTW}, v11, 7, {vTW}\nv_min_u32 {vTL}, {15 * 128}, {vTCH}'])
    if g == OPT['rp2at']:
        o = [('after', 'rp2setup')]
        for i in range(9):
            if i % 4 == 0:
                o += [f's_add_u32 m0, {sL9}, {AUX + i * 1024}'] + ([f's_add_u32 {tR3}, {tR3}, 4096'] if i else [])
            o.append(Inst(f'buffer_load_dwordx4 {vLANE16}, {srd(SRD_RP)}, {tR3} offen offset:{(i % 4) * 1024} lds', tag='rp2'))
        st_dma.add(paced(o) + [('mark', 'rp2dma')])
    if g == 14:
        st_dma.add([('after', 'w_ok')])
    if OPT['btouch'] == 2:
        for t in STAG_AT.get(g, []):
            st_dma.add(stag_touch(t))
    if OPT['stouch'] and not (OPT['btouch'] and g > 2):
        for t in TOUCH_AT.get(g, []):
            st_dma.add(touch(*STAGE_FN[t]))


st_pol = Stream('pol')
st_pol.add([('after', 'nonce_ok'), ('after', 'eupub'), ('after', OPT_E)])
st_pol.add(poll_item(None, vPA, vPF, 'pfe', OPT['pchk']) + [('mark', 'e_ok')])
st_pol.add([f'v_and_b32 {vPA}, 31, v1\nv_lshlrev_b32 {vPA}, 2, {vPA}',
            f'buffer_load_dword v{vPF}, {vPA}, {srd(SRD_WS)}, {sSTB} offen sc1', ('gap', 22),
            f"""v_xor_b32 v{vPF + 1}, 0x8000, v{vPF}
v_and_b32 v{vPF + 1}, 0xffff, v{vPF + 1}
v_lshl_or_b32 v{vPF + 1}, v{vPF + 1}, 16, v{vPF + 1}
v_lshrrev_b32 {vPA}, 16, v{vPF}
v_and_b32 v{vPF}, {vMASKHI}, v{vPF}
v_rcp_f32 {vRSTD}, v{vPF}
s_mov_b32 {tC0}, -1
s_mov_b32 {tC1}, 0
v_cndmask_b32 v{BCOR}, {vPA}, v{vPF + 1}, s[92:93]
v_cndmask_b32 v{BCOR + 1}, 0, v{vPF + 1}, s[92:93]
v_cndmask_b32 v{BCOR + 2}, 0, v{vPF + 1}, s[92:93]
v_cndmask_b32 v{BCOR + 3}, 0, v{vPF + 1}, s[92:93]""", ('mark', 'bcor')])
st_pol.add([('after', 'rp2pub'), ('after', 'pubA'), ('after', 'trdone'), ('after', f'B{OPT["pfwat"]}')])
st_pol.add(poll_item(f'v_lshrrev_b32 {vPA}, 1, {vLANE16}\nv_min_u32 {vPA}, {40 * 8}, {vPA}\ns_mul_i32 {tC0}, {sS}, {41 * 8}\n'
                     f's_add_u32 {tC0}, {tC0}, {L.WS_FLAG_RP}\nv_add_u32 {vPA}, {tC0}, {vPA}\n'
                     f'v_and_b32 v{vPF}, 3, v1\nv_lshlrev_b32 v{vPF}, 3, v{vPF}\nv_add_u32 v{vPF}, {sGF}, v{vPF}\n'
                     f'v_cmp_gt_u32 vcc, 48, v1\nv_cndmask_b32 {vPA}, v{vPF}, {vPA}, vcc', vPA, vPF, 'pfw', OPT['pchk']) + [('mark', 'w_ok'), ('mark', 'pf_free')])


def ffn_epi(n, tag):
    o = [('after', f'fin{n}' if n < 5 else 'fin8'), ('gap', 1)]
    t = TMP if n < 5 else 136
    X = t + 8
    for half in range(2):
        for e in range(8):
            o.append(f'v_accvgpr_read_b32 v{t + e}, a{16 * n + 8 * half + e}')
        for e in range(8):
            o.append(f'v_mul_f32 v{t + e}, v{t + e}, |v{t + e}|')
        for p in range(4):
            o.append(f'v_cvt_pk_bf16_f32 v{X + 4 * half + p}, v{t + 2 * p}, v{t + 2 * p + 1}')
        for p in range(4):
            o.append(f'v_pk_max_i16 v{X + 4 * half + p}, v{X + 4 * half + p}, 0')
    if not OPT['hbatch']:
        o.append(f's_add_u32 {tE0}, {sGB}, {2048 * n}')
        o.append(Inst(f'buffer_store_dwordx4 v[{X}:{X + 3}], {vLANE16}, {srd(SRD_WS)}, {tE0} offen{GS}', tag=tag))
        o.append(Inst(f'buffer_store_dwordx4 v[{X + 4}:{X + 7}], {vLANE16}, {srd(SRD_WS)}, {tE0} offen offset:1024{GS}', tag=tag))
    for d in range(8):
        o.append(f'v_accvgpr_write_b32 a{HP(n) + d}, v{X + d}')
    o.append(('mark', f'h{n}'))
    if OPT['hbatch'] and (n == 8 or (n == 4 and not OPT['sgap'])):
        if OPT['quiet']:
            o += [('idle', st_dma), ('quiet', OPT['quiet'])]
        for i, ks in enumerate(range(0, 10) if n == 4 else range(10, 18)):
            if i % 4 == 0:
                o.append(f's_add_u32 {tE0}, {sGB}, {1024 * ks}')
            r = HP(ks // 2) + 4 * (ks & 1)
            o.append(Inst(f'buffer_store_dwordx4 a[{r}:{r + 3}], {vLANE16}, {srd(SRD_WS)}, {tE0} offen offset:{(i % 4) * 1024}{GS}', tag=tag))
    return o


def g_publish(ev, tag, first_kb, nlines, tmps):
    o = [('gap', OPT['pubgap'])] + ([('idle', st_dma), ('quiet', OPT['quiet'])] if (OPT['quiet'] and OPT['gtouch']) else []) + [f's_lshl_b32 {tmps}, {sC}, 3\ns_add_u32 {tmps}, {tmps}, {sGF}', wave_flag(tmps, [tag], 32 * ev)]
    if OPT['gtouch']:
        for k in range(0, nlines, 64):
            n = min(64, nlines - k)
            o.append(f's_add_u32 {tmps}, {sGB}, {first_kb * 2048 + k * 128}')
            if n < 64:
                o.append(f'v_min_u32 {vXO}, {(n - 1) * 128}, {vTCH}')
            o.append(nodep(f'buffer_load_dword v{vTD}, {vTCH if n == 64 else vXO}, {srd(SRD_WS)}, {tmps} offen sc1'))
    return o


st_epi = Stream('epi')
st_epi.add([('after', 'trdone')])
for n in range(5):
    st_epi.add(ffn_epi(n, 'gsta'))
st_hs = Stream('hs')
if OPT['sgap']:
    st_epi.add([('mark', 'epiA')])
    tH = 's70'
    for ks in range(10):
        r = HP(ks // 2) + 4 * (ks & 1)
        st_hs.add([('after', f'h{ks // 2}')] + ([f's_add_u32 {tH}, {sGB}, {1024 * ks}'] if ks % 4 == 0 else []) +
                  [Inst(f'buffer_store_dwordx4 a[{r}:{r + 3}], {vLANE16}, {srd(SRD_WS)}, {tH} offen offset:{(ks % 4) * 1024}{GS}', tag='gsta'),
                   ('gap', OPT['sgap'])])
    st_hs.add(g_publish(0, 'gsta', 0, 80, tH) + [('mark', 'pubA')])
else:
    st_epi.add([('mark', 'epiA')] + g_publish(0, 'gsta', 0, 80, tE0) + [('mark', 'pubA')])
for n in range(5, 9):
    st_epi.add(ffn_epi(n, 'gstb'))
st_epi.add([('mark', 'epiB')] + g_publish(1, 'gstb', 5, 64, tE0) + [('mark', 'pubB')])

vKW, vHX = 'v2', 'v3'
st_att = Stream('att')
T2 = TMP + 16
st_att.add([('after', 'rp2done'), ('after', 'trdone'), ('after', f'B{max(8, RA + 3)}'),
            f"""v_and_b32 v{T2}, 31, v1
s_lshl_b32 {tA0}, {sW}, 5
v_add_u32 v{T2 + 1}, {tA0}, v{T2}
v_mul_u32_u24 v{T2 + 1}, {PITCH}, v{T2 + 1}
v_lshrrev_b32 v{T2 + 2}, 5, v1
v_lshl_add_u32 v{T2 + 1}, v{T2 + 2}, 4, v{T2 + 1}
v_add_u32 {vKW}, {QB1}, v{T2 + 1}
v_subrev_u32 {vHX}, {112 * PITCH}, v{T2 + 1}
s_lshl_b32 {tA0}, {sR}, 4
s_add_u32 {tA0}, {tA0}, {sJ}
s_add_u32 {tA0}, {tA0}, 16
s_lshl_b32 {tA1}, {tA0}, 12
s_add_u32 {tA1}, {tA1}, {L.WS_HALO}
s_cmp_eq_u32 {sR}, 15
s_cselect_b32 {tA1}, {OOB}, {tA1}
v_mov_b32 v{T2 + 2}, {OOB}
v_cmp_gt_u32 vcc, {112 * PITCH}, v{T2 + 1}
v_cndmask_b32 {vHX}, {vHX}, v{T2 + 2}, vcc"""])
hcount = 0
for t4 in (1, 2, 3, 0):
    o = [('after', f'qfin{t4}'), ('gap', 2)]
    for hh in range(2 if t4 < 3 else 1):
        X = T2 + 8 + 4 * (hcount % 2)
        hcount += 1
        for e in range(8):
            o.append(f'v_accvgpr_read_b32 v{T2 + e}, a{QA + 16 * t4 + 8 * hh + e}')
        for e in range(8):
            o.append(f'v_mul_f32 v{T2 + e}, v{T2 + e}, {vRSTD}')
        for pp in range(4):
            o.append(f'v_cvt_pk_bf16_f32 v{X + pp}, v{T2 + 2 * pp}, v{T2 + 2 * pp + 1}')
        if t4:
            o.append(Inst(f'buffer_store_dwordx4 v[{X}:{X + 3}], {vHX}, {srd(SRD_WS)}, {tA1} offen offset:{64 * t4 + 32 * hh} sc1', tag='hxst'))
        o.append(Inst(f'ds_write_b128 {vKW}, v[{X}:{X + 3}] offset:{64 * t4 + 32 * hh}', tag='kvw'))
    if t4 == 3:
        o.append(('mark', 'hx'))
    st_att.add(o)


def kv_barrier():
    E.wait_tags(['kvw'])
    E('s_barrier')
    S.marks.add('Bkv')


st_att.add([('mark', 'kvw'), ('gap', 3), ('call', kv_barrier)])
st_hal = Stream('hal')
st_hal.add([('after', 'hx'), ('gap', OPT['hxgap']), f's_lshl_b32 {tA1}, {tA0}, 7\ns_add_u32 {tA1}, {tA1}, {L.WS_FLAG_HALO}\ns_cmp_eq_u32 {sW}, 3\ns_cselect_b32 {tA1}, {tA1}, {OOB}',
            wave_flag(tA1, ['hxst'])])
SC = 0.2357022603955158 * 1.4426950408889634
A0, A0R, AP, APR, VT, VTP = (f'v{TMP + i}' for i in range(6))
vSD = [f'v{TMP + 34}', f'v{TMP + 35}']
st_at2 = Stream('at2')
st_at2.add([('after', 'kvw'), ('after', 'epiA'), f"""v_and_b32 v{TMP + 8}, 15, v1
v_lshlrev_b32 v{TMP + 9}, 2, v{TMP + 8}""",
            f'buffer_load_dword {vSD[0]}, v{TMP + 9}, {srd(SRD_WS)}, {sSTB} offen sc1',
            f'buffer_load_dword {vSD[1]}, v{TMP + 9}, {srd(SRD_WS)}, {sSTB} offen offset:64 sc1',
            f"""v_lshrrev_b32 v{TMP + 9}, 4, v1
s_mul_i32 {tA2}, {sW}, {32 * PITCH}
s_add_u32 {tA2}, {tA2}, {QB1}
s_sub_u32 {tA3}, {tA2}, {16 * PITCH}
s_cmp_eq_u32 {sW}, 0
s_cselect_b32 {tA3}, {QB}, {tA3}
v_mul_u32_u24 v{TMP + 10}, {PITCH}, v{TMP + 8}
v_add_u32 {A0R}, {tA2}, v{TMP + 10}
v_add_u32 {APR}, {tA3}, v{TMP + 10}
v_lshl_add_u32 {A0}, v{TMP + 9}, 3, {A0R}
v_lshl_add_u32 {AP}, v{TMP + 9}, 3, {APR}
v_lshrrev_b32 v{TMP + 10}, 2, v1
v_mul_u32_u24 v{TMP + 10}, {PITCH}, v{TMP + 10}
v_and_b32 v{TMP + 11}, 3, v1
v_lshl_add_u32 v{TMP + 10}, v{TMP + 11}, 3, v{TMP + 10}
v_add_u32 {VT}, {tA2}, v{TMP + 10}
v_add_u32 {VTP}, {tA3}, v{TMP + 10}
s_add_u32 {tA2}, {sGB}, {9 * 2048}
s_sub_u32 {tA3}, {sGF}, {L.WS_FLAG_G}
s_lshl_b32 {tA3}, {tA3}, 3
s_lshr_b32 {tM0}, {sC}, 1
s_lshl_b32 {tM0}, {tM0}, 9
s_add_u32 {tA3}, {tA3}, {tM0}
s_and_b32 {tM0}, {sC}, 1
s_lshl_b32 {tM0}, {tM0}, 3
s_add_u32 {tA3}, {tA3}, {tM0}
s_add_u32 {tA3}, {tA3}, {L.WS_GREM}
v_lshrrev_b32 v{TMP + 10}, 5, v1
v_lshlrev_b32 v{TMP + 10}, 9, v{TMP + 10}
v_lshl_add_u32 v{TMP + 10}, v{TMP + 8}, 4, v{TMP + 10}
v_and_b32 v{TMP + 9}, 1, v{TMP + 9}
v_lshl_add_u32 v2, v{TMP + 9}, 3, v{TMP + 10}""", ('after', 'Bkv'), ('after', 'bcor3')])
QV = TMP + 6
SV = TMP + 14
PB = [196, BCOR]
m0_, m1_, t1_, t2_ = f'v{TMP + 30}', f'v{TMP + 31}', 'v200', 'v205'


def att_block(b):
    o = []
    for hd in range(2):
        mo = 0 if hd == 0 else 40
        for wh in range(2):
            kb = b + wh
            kr = AK[hd] + 4 * wh
            a, ar, off = (AP, APR, 0) if kb == 0 else (A0, A0R, (kb - 1) * 16 * PITCH)
            o.append(f'ds_read_b64 a[{kr}:{kr + 1}], {a} offset:{off + 72 + mo}')
            o.append(f'ds_read_b64 a[{kr + 2}:{kr + 3}], {ar} offset:{off + 72 + 32}')
        Q = QV + 4 * hd
        o.append(f'ds_read_b64 v[{Q}:{Q + 1}], {A0} offset:{b * 16 * PITCH + mo}')
        o.append(f'ds_read_b32 v{Q + 2 + hd}, {A0R} offset:{b * 16 * PITCH + 32 + 4 * hd}')
        o.append(f'v_mov_b32 v{Q + 3 - hd}, 0')
    for tl, ch in enumerate((18, 23, 22)):
        vr = AK[2 + tl // 2] + 4 * (tl % 2)
        for wh in range(2):
            kb = b + wh
            a, off = (VTP, 0) if kb == 0 else (VT, (kb - 1) * 16 * PITCH)
            o.append(f'ds_read_b64_tr_b16 a[{vr + 2 * wh}:{vr + 2 * wh + 1}], {a} offset:{off + 8 * ch}')
    for hd in range(2):
        Q = QV + 4 * hd
        o.append(f'v_cndmask_b32 v{Q + 2 + hd}, 0, v{Q + 2 + hd}, {M16}')
    o.append(f'v_and_b32 {vSD[b]}, {vMASKHI}, {vSD[b]}')
    o.append(f'v_mul_f32 {vSD[b]}, {vSD[b]}, {vSD[b]}')
    for hd in range(2):
        Q = QV + 4 * hd
        for wh in range(2):
            kr = AK[hd] + 4 * wh
            sr = SV + 8 * hd + 4 * wh
            bias = BIASR + 4 * wh
            o.append(f'v_mfma_f32_16x16x32_bf16 v[{sr}:{sr + 3}], a[{kr}:{kr + 3}], v[{Q}:{Q + 3}], v[{bias}:{bias + 3}]')
    o.append(('gap', 1))
    for hd, m in enumerate((m0_, m1_)):
        s = [f'v{SV + 8 * hd + i}' for i in range(8)]
        t = (t1_, t2_)[hd]
        o += [f'v_max3_f32 {m}, {s[0]}, {s[1]}, {s[2]}', f'v_max3_f32 {t}, {s[3]}, {s[4]}, {s[5]}',
              f'v_max3_f32 {m}, {m}, {s[6]}, {s[7]}', f'v_max_f32 {m}, {m}, {t}']
    o += [f'v_mov_b32 {t2_}, {fl(SC)}', ('gap', 1),
          f'v_permlane16_swap_b32 {m0_}, {m1_}', f'v_max_f32 {m0_}, {m0_}, {m1_}', f'v_mov_b32 {m1_}, {m0_}', ('gap', 1),
          f'v_permlane32_swap_b32 {m0_}, {m1_}', f'v_max_f32 {m0_}, {m0_}, {m1_}', f'v_mul_f32 {m0_}, {fl(-SC)}, {m0_}',
          f'v_mov_b32 {m1_}, {m0_}', ('gap', 1), f'v_permlane16_swap_b32 {m0_}, {m1_}']
    for hd, m in enumerate((m0_, m1_)):
        s = [f'v{SV + 8 * hd + i}' for i in range(8)]
        for i in range(8):
            o.append(f'v_fma_f32 {s[i]}, {s[i]}, {t2_}, {m}')
        for i in range(8):
            o.append(f'v_exp_f32 {s[i]}, {s[i]}')
    for hd in range(2):
        s = [f'v{SV + 8 * hd + i}' for i in range(8)]
        for i in range(4):
            o.append(f'v_cvt_pk_bf16_f32 v{PB[hd] + i}, {s[2 * i]}, {s[2 * i + 1]}')
    for hd in range(2):
        P = f'v[{PB[hd]}:{PB[hd] + 3}]'
        vm = AK[2] + 4 * hd
        o.append(f'v_mfma_f32_16x16x32_bf16 v[{QV + 4 * hd}:{QV + 4 * hd + 3}], a[{ONESR}:{ONESR + 3}], {P}, 0')
        o.append(f'v_mfma_f32_16x16x32_bf16 v[{SV + 8 * hd}:{SV + 8 * hd + 3}], a[{vm}:{vm + 3}], {P}, 0')
        o.append(f'v_mfma_f32_16x16x32_bf16 v[{SV + 8 * hd + 4}:{SV + 8 * hd + 7}], a[{AK[3]}:{AK[3] + 3}], {P}, 0')
    o.append(('gap', 1))
    for hd, m in enumerate((m0_, m1_)):
        o.append(f'v_rcp_f32 {m}, v{QV + 4 * hd}')
    for hd, m in enumerate((m0_, m1_)):
        o.append(f'v_mul_f32 {m}, {m}, {vSD[b]}')
    for hd, m in enumerate((m0_, m1_)):
        r = SV + 8 * hd
        for i in (0, 1, 2, 3, 4 + 2 * hd, 5 + 2 * hd):
            o.append(f'v_mul_f32 v{r + i}, v{r + i}, {m}')
    for hd in range(2):
        r = SV + 8 * hd
        o.append(f'v_cvt_pk_bf16_f32 v{QV + 2 * hd}, v{r}, v{r + 1}')
        o.append(f'v_cvt_pk_bf16_f32 v{QV + 2 * hd + 1}, v{r + 2}, v{r + 3}')
        o.append(f'v_cvt_pk_bf16_f32 v{QV + 4 + hd}, v{r + 4 + 2 * hd}, v{r + 5 + 2 * hd}')
    for hd in range(2):
        o.append(Inst(f'buffer_store_dwordx2 v[{QV + 2 * hd}:{QV + 2 * hd + 1}], v2, {srd(SRD_WS)}, {tA2} offen offset:{1024 * hd + 256 * b}{GS}', tag='ost'))
    o.append(Inst(f'buffer_store_dwordx2 v[{QV + 4}:{QV + 5}], {vREM}, {srd(SRD_WS)}, {tA3} offen offset:{256 * b}{GS}', tag='ost'))
    return o


st_at2.add(att_block(1))
vH = TMP + 32
st_hal.add([('gap', OPT['higap']),
            f's_sub_u32 {tA0}, {tA0}, 16\ns_lshl_b32 {tA1}, {tA0}, 7\ns_add_u32 {tA1}, {tA1}, {L.WS_FLAG_HALO}\ns_lshl_b32 {tM1}, {sJ}, 5\n'
            f's_add_u32 {tM1}, {tM1}, {L.WS_FLAG_E}\ns_cmp_eq_u32 {sR}, 0\ns_cselect_b32 {tA1}, {tM1}, {tA1}\nv_mov_b32 v3, {tA1}'])
HL = f'buffer_load_dwordx2 v[{vH}:{vH + 1}], v3, {srd(SRD_WS)}, 0 offen sc1'
st_hal.add([Inst(HL, tag='pfh'), ('gap', 22)])


def halo_import():
    poll_check(HL, flags_cmp(vH), 'pfh')
    E(f's_cmp_lg_u32 {sW}, 0\ns_cbranch_scc1 L_HI')
    E(f's_lshl_b32 {tA1}, {tA0}, 12\ns_add_u32 {tA1}, {tA1}, {L.WS_HALO}\ns_cmp_eq_u32 {sR}, 0\ns_cselect_b32 {tA1}, {OOB}, {tA1}')
    E(f's_mov_b32 {tM1}, m0\ns_mov_b32 m0, {QB}\ns_nop 0')
    for i in range(4):
        E.raw(f'    buffer_load_dwordx4 {vLANE16}, {srd(SRD_WS)}, {tA1} offen offset:{i * 1024} sc1 lds')
    E(f's_mov_b32 m0, {tM1}')
    E('L_HI:')
    E(f'buffer_load_dword v{vH}, v14, {srd(SRD_DBG)}, 0 offen', tag='himp')


st_hal.add([('call', halo_import), ('gap', 22), ('call', lambda: E.wait_tags(['himp'])), ('mark', 'halo_in')])
st_at2.add([f's_or_b32 {tM0}, {sR}, {sW}\ns_cmp_eq_u32 {tM0}, 0\ns_cselect_b32 {tM0}, 0xf149f2ca, 0'] +
           [f'v_min_f32 v{BIASR + i}, {tM0}, v{BIASR + i}' for i in range(4)] + [('after', 'halo_in')])
st_at2.add(att_block(0))
st_at2.add([('mark', 'odone'), ('gap', OPT['pubgap']), f's_lshl_b32 {tA2}, {sC}, 3\ns_add_u32 {tA2}, {tA2}, {sGF}', wave_flag(tA2, ['ost'], 64), ('mark', 'opub')])

st_act = Stream('act')
GPA = f'v_and_b32 {vPA}, 3, v1\nv_lshlrev_b32 {vPA}, 3, {vPA}\nv_add_u32 {vPA}, {sGF}, {vPA}'


def act_load(key, soff, off):
    o = []
    kind, r = ACT[key]
    if kind == 'v':
        o.append(('after', 'odone' if r >= BIASR else (f'bs{(r - 16) // 16}' if r + 4 <= 136 else 'epiB')))
    elif r >= AK[0]:
        o.append(('after', 'odone'))
    elif r >= QA:
        o.append(('after', 'kvw'))
    elif r >= 128:
        o.append(('after', 'epiB'))
    else:
        o.append(('after', 'epiA'))
    o.append(f'buffer_load_dwordx4 {act_regs(key)}, {vLANE16}, {srd(SRD_WS)}, {soff} offen offset:{off}{GS}')
    o.append(('mark', f'act{kname(key)}'))
    return o


st_act.add([('after', 'pf_free'), ('after', 'kvw'), GPA])
for k in range(1, 4):
    for ks in range(10):
        if ks % 4 == 0:
            st_act.add([f's_add_u32 {tC0}, {sGP[k]}, {ks * 1024}'])
        st_act.add(act_load((k, ks), tC0, (ks % 4) * 1024))
st_act.add([('after', 'pubB'), ('gap', OPT['pollgap'])])
st_act.add(poll_item(f'v_add_u32 {vPA}, 32, {vPA}', vPA, vPF, 'pfb', OPT['pchk']))
for k in range(1, 4):
    for ks in range(10, 18):
        if (ks - 10) % 4 == 0:
            st_act.add([f's_add_u32 {tC0}, {sGP[k]}, {ks * 1024}'])
        st_act.add(act_load((k, ks), tC0, ((ks - 10) % 4) * 1024))
st_ao = Stream('ao')
tO0, tO1 = 's90', 's91'
st_ao.add([('after', 'opub'), ('gap', OPT['ogap'])])
st_ao.add(poll_item(f'v_and_b32 v{BCOR + 2}, 3, v1\nv_lshlrev_b32 v{BCOR + 2}, 3, v{BCOR + 2}\ns_add_u32 {tO0}, {sGF}, 64\nv_add_u32 v{BCOR + 2}, {tO0}, v{BCOR + 2}',
                    f'v{BCOR + 2}', BCOR, 'pfo', OPT['pchk']))
st_ao.add([f's_sub_u32 {tO0}, {sGF}, {L.WS_FLAG_G}\ns_lshl_b32 {tO0}, {tO0}, 3\ns_add_u32 {tO0}, {tO0}, {L.WS_GREM}'] + act_load('rem', tO0, 0))
for k in (0, 2, 1, 3):
    st_ao.add([f's_add_u32 {tO0}, {sGP[k] if k else sGB}, {18 * 1024}'] + act_load((k, 18), tO0, 0) + act_load((k, 19), tO0, 1024))
st_ao.add([('gap', 15), f's_and_b32 {tO0}, {sC}, 1\ns_sub_u32 {tO0}, {tO0}, 1\ns_not_b32 {tO1}, {tO0}'] +
          [f'v_cndmask_b32 v{BIASR + 4 + d}, 0, v{BIASR + d}, s[90:91]' for d in range(4)] + [('mark', 'actremS')])

XB = TMP
XR = TMP + 20
vOA, vOS, vRS2 = 'v4', 'v5', 'v6'
SOM, SOS = 's20', 's21'
st_fin = Stream('fin')
st_fin.add([('after', 'opub'), ('after', 'fin8'), ('after', 'B18'),
            f"""v_lshrrev_b32 v2, 2, v1
v_mul_u32_u24 v2, 1152, v2
v_and_b32 v3, 3, v1
v_lshlrev_b32 v3, 4, v3
v_add_u32 {vOA}, v2, v3
s_lshr_b32 {tA0}, {sC}, 1
s_mul_i32 {tA0}, {tA0}, 576
s_and_b32 {tA1}, {sC}, 1
s_mul_i32 {tA2}, {tA1}, 320
s_add_u32 {tA2}, {tA2}, {tA0}
s_lshl_b32 {tA3}, {sS}, 6
s_add_u32 {tA2}, {tA2}, {tA3}
s_add_u32 {SOM}, {sXB}, {tA2}""",
            f'buffer_load_dwordx4 v[{XR}:{XR + 3}], {vOA}, {srd(SRD_X)}, {SOM} offen',
            f's_add_u32 {tA3}, {SOM}, {16 * 1152}',
            f'buffer_load_dwordx4 v[{XR + 4}:{XR + 7}], {vOA}, {srd(SRD_X)}, {tA3} offen',
            f'buffer_load_dwordx4 v[{XR + 8}:{XR + 11}], v3, {srd(SRD_B)}, {tA2} offen',
            f"""v_and_b32 v2, 15, v1
v_bfe_u32 v3, v1, 4, 1
v_lshlrev_b32 v3, 3, v3
v_mul_u32_u24 v7, 1152, v2
v_add_u32 v7, v7, v3
v_mov_b32 {vOS}, {OOB}
v_cmp_gt_u32 vcc, 32, v1
v_cndmask_b32 {vOS}, {vOS}, v7, vcc
s_lshl_b32 {tA2}, {sR}, 2
s_add_u32 {tA2}, {tA2}, {sS}
s_lshl_b32 {tA2}, {tA2}, 1
s_add_u32 {tA2}, {tA2}, {tA1}
s_lshl_b32 {tA3}, {tA2}, 6
s_add_u32 {tA3}, {tA3}, {L.WS_STAT}
v_lshlrev_b32 v2, 2, v2""",
            f'buffer_load_dword {vRS2}, v2, {srd(SRD_WS)}, {tA3} offen sc1',
            f"""s_mul_i32 {tA2}, {tA2}, {16 * 1152}
s_lshl_b32 {tA3}, {sW}, 4
s_add_u32 {tA3}, {tA3}, {tA0}
s_add_u32 {tA3}, {tA3}, 256
s_add_u32 {SOS}, {tA2}, {tA3}""",
            f'buffer_load_dwordx2 v[{XR + 12}:{XR + 13}], {vOS}, {srd(SRD_X)}, {SOS} offen',
            f'buffer_load_dwordx2 v[{XR + 14}:{XR + 15}], v3, {srd(SRD_B)}, {tA3} offen', ('gap', 40)])
for d in range(4):
    for hi in range(2):
        un = (lambda r, dst: f'v_and_b32 {dst}, {vMASKHI}, v{r}') if hi else (lambda r, dst: f'v_lshlrev_b32 {dst}, 16, v{r}')
        st_fin.add([un(XR + 8 + d, 'v2')])
        for rd in range(2):
            st_fin.add([un(XR + 4 * rd + d, 'v3'), f'v_add_f32 v{XB + 8 * rd + 2 * d + hi}, v2, v3'])
for d in range(2):
    for hi in range(2):
        un = (lambda r, dst: f'v_and_b32 {dst}, {vMASKHI}, v{r}') if hi else (lambda r, dst: f'v_lshlrev_b32 {dst}, 16, v{r}')
        st_fin.add([un(XR + 12 + d, 'v2'), un(XR + 14 + d, 'v3'), f'v_add_f32 v{XB + 16 + 2 * d + hi}, v2, v3'])
SND = ['s16', 's17', 's18', 's19']
RCV = ['s12', 's13', 's15', 's38', 's39']
st_fin.add([f"""v_and_b32 {vRS2}, {vMASKHI}, {vRS2}
v_mul_f32 {vRS2}, {vRS2}, {vRS2}
v_rcp_f32 {vRS2}, {vRS2}
v_mul_f32 {vRSTD}, {vRSTD}, {vRSTD}
s_lshl_b32 {tA0}, {sR}, 2
s_add_u32 {tA0}, {tA0}, {sC}
s_lshl_b32 {tA0}, {tA0}, 18
s_add_u32 {tA0}, {tA0}, {L.WS_PART}
s_lshl_b32 {tA2}, {sW}, 12
s_add_u32 {tA0}, {tA0}, {tA2}
s_lshl_b32 {tA2}, {sS}, 14
s_add_u32 {tA2}, {tA2}, {tA0}"""])
for k in range(1, 4):
    st_fin.add([f's_add_u32 {tA3}, {sS}, {k}\ns_and_b32 {tA3}, {tA3}, 3\ns_lshl_b32 {tA3}, {tA3}, 16\ns_add_u32 {SND[k]}, {tA3}, {tA2}'])
st_fin.add([f"""s_lshl_b32 {tA2}, {sR}, 1
s_lshr_b32 {tA3}, {sC}, 1
s_add_u32 {tA2}, {tA2}, {tA3}
s_lshl_b32 {tM0}, {tA2}, 17
s_add_u32 {tM0}, {tM0}, {L.WS_PARTS}
s_lshl_b32 {tM1}, {sS}, 1
s_add_u32 {tM1}, {tM1}, {tA1}
s_lshl_b32 {tA3}, {tM1}, 11
s_add_u32 {SND[0]}, {tM0}, {tA3}
s_lshl_b32 {tA3}, {sW}, 15
s_add_u32 {SND[0]}, {SND[0]}, {tA3}
s_lshl_b32 {tA3}, {tM1}, 14
s_add_u32 {RCV[0]}, {tM0}, {tA3}
s_lshl_b32 {tA3}, {sW}, 9
s_add_u32 {RCV[0]}, {RCV[0]}, {tA3}
v_bfe_u32 v2, v1, 4, 1
v_lshlrev_b32 v2, 14, v2
v_lshrrev_b32 v3, 5, v1
v_lshl_add_u32 v2, v3, 8, v2
v_and_b32 v11, 15, v1
v_lshl_add_u32 v7, v11, 4, v2
v_lshlrev_b32 v3, 11, v3
v_and_b32 v11, 31, v1
v_lshl_add_u32 v3, v11, 4, v3
v_add_u32 v2, 8192, v3
s_lshl_b32 {tA2}, {sS}, 16
s_add_u32 {tA2}, {tA2}, {tA0}"""])
for k in range(1, 4):
    st_fin.add([f's_add_u32 {tA3}, {sS}, {k}\ns_and_b32 {tA3}, {tA3}, 3\ns_lshl_b32 {tA3}, {tA3}, 14\ns_add_u32 {RCV[k]}, {tA3}, {tA2}'])
PT = XR
PKR = 196
CH = [196, 200, XR + 8, XR + 12]
st_fin.add([f'v_mov_b32 v{c + 3}, v{vNON}' for c in CH] + [('after', f'dma{NSTG - 1}')])
for n in (3, 0, 1, 2):
    st_fin.add([('after', f'pend{n}'), ('gap', 2)])
    for half in range(2):
        st_fin.add([f'v_accvgpr_read_b32 v{PT + e}, a{ACC2[n] + 8 * half + e}' for e in range(8)])
        for d in range(4):
            dd = 4 * half + d
            dst = (CH[dd // 3] + dd % 3) if n < 3 else (CH[dd // 2] + dd % 2)
            st_fin.add([f'v_cvt_pk_bf16_f32 v{dst}, v{PT + 2 * d}, v{PT + 2 * d + 1}'])
    for q in range(3 if n < 3 else 4):
        if n < 3:
            st_fin.add([f'buffer_store_dwordx4 v[{CH[q]}:{CH[q] + 3}], {vLANE16}, {srd(SRD_WS)}, {SND[n + 1]} offen offset:{q * 1024} sc1'])
        else:
            st_fin.add([f'buffer_store_dwordx4 v[{CH[q]}:{CH[q] + 3}], v7, {srd(SRD_WS)}, {SND[0]} offen offset:{q * 512} sc1'])
RB = 80
RXL = []
for k in range(1, 4):
    for q in range(3):
        r = RB + 12 * (k - 1) + 4 * q
        RXL.append(f'buffer_load_dwordx4 v[{r}:{r + 3}], {vLANE16}, {srd(SRD_WS)}, {RCV[k]} offen offset:{q * 1024} sc1')
RS = RB + 36
for i in range(4):
    RXL.append(f'buffer_load_dwordx4 v[{RS + 4 * i}:{RS + 4 * i + 3}], {("v3", "v2")[i // 2]}, {srd(SRD_WS)}, {(RCV[0], RCV[4])[i % 2]} offen sc1')
st_fin.add([f's_add_u32 {RCV[4]}, {RCV[0]}, 4096', ('after', 'rxfree')] + [Inst(x, tag='rx') for x in RXL])

S = Sched(E, [st_dma, st_pol, st_hs, st_hal, st_rp, st_tr, st_att, st_epi, st_at2, st_act, st_ao, st_fin])
S.vrate = OPT['vrate']
S.memorder = [st_pol, st_hs, st_hal, st_att, st_at2, st_epi, st_rp, st_dma, st_act, st_ao, st_fin, st_tr]
S.vcap = OPT['vcap']
S.lat = OPT['lat']
st_dma.edf = True
st_act.edf = True
st_ao.edf = True
if OPT.get('zlo') is not None:
    def hook(i):
        if OPT['zlo'] <= i < OPT['zlo'] + 50 * OPT['zst'] and (i - OPT['zlo']) % OPT['zst'] == 0:
            E.raw(f'; ZSTAMP {nstamp[0]} op {i}')
            stamp()
    S.hook = hook
S.extra_deadline = {f'xl{q}': 20 * (q - 1) for q in range(2, 9)}
S.run(ops, D=OPT['D'], WB=OPT['WB'], budget=3.0, maxmem=OPT['maxmem'])
stamp()
S.drain()
stamp()

OA = 16
TP = 144
E(f"""v_and_b32 v8, 31, v1
v_mul_u32_u24 v8, {TP}, v8
v_lshrrev_b32 v9, 5, v1
v_lshl_add_u32 v8, v9, 4, v8
s_mul_i32 s90, {sW}, {32 * TP}
s_add_u32 s90, s90, {SLOTB[23]}
v_add_u32 v8, s90, v8
v_lshrrev_b32 v11, 2, v1
v_mul_u32_u24 v11, {TP}, v11
v_and_b32 v15, 3, v1
v_lshl_add_u32 v11, v15, 5, v11
v_add_u32 v11, s90, v11""")
for e in range(16):
    E(f'v_accvgpr_read_b32 v{OA + e}, a{ACC2[4] + e}')
E.wait_tags(['rx'])
E('L_RXC:')
tags = [RB + 4 * i + 3 for i in range(13)]
E(f'v_xor_b32 v9, s{NONCE}, v{tags[0]}')
for i in range(1, 13, 2):
    E(f'v_xor_b32 v15, s{NONCE}, v{tags[i]}\nv_xor_b32 v32, s{NONCE}, v{tags[i + 1]}\nv_or3_b32 v9, v9, v15, v32')
E(f'v_cmp_ne_u32 {SPOLL}, 0, v9\ns_cmp_lg_u64 {SPOLL}, 0\ns_cbranch_scc1 L_RXS')
E('L_RXR:')
stamp()
for k in range(3):
    for dd in range(8):
        r = RB + 12 * k + 4 * (dd // 3) + dd % 3
        E(f'v_lshlrev_b32 v32, 16, v{r}\nv_and_b32 v33, {vMASKHI}, v{r}\nv_add_f32 v{OA + 2 * dd}, v{OA + 2 * dd}, v32\nv_add_f32 v{OA + 2 * dd + 1}, v{OA + 2 * dd + 1}, v33')
for q4 in range(4):
    for e in range(4):
        E(f'v_mul_f32 v{OA + 4 * q4 + e}, v{OA + 4 * q4 + e}, {vRSTD}')
    E(f'ds_write_b128 v8, v[{OA + 4 * q4}:{OA + 4 * q4 + 3}] offset:{32 * q4}', tag='tw')
SH = 40
for i in range(4):
    for d in range(2):
        r = RS + 4 * i + d
        if i == 0:
            E(f'v_lshlrev_b32 v{SH + 2 * d}, 16, v{r}\nv_and_b32 v{SH + 2 * d + 1}, {vMASKHI}, v{r}')
        else:
            E(f'v_lshlrev_b32 v32, 16, v{r}\nv_and_b32 v33, {vMASKHI}, v{r}\nv_add_f32 v{SH + 2 * d}, v{SH + 2 * d}, v32\nv_add_f32 v{SH + 2 * d + 1}, v{SH + 2 * d + 1}, v33')
    if i == 1:
        E.wait_tags(['tw'])
        for rd in range(2):
            E(f'ds_read_b128 v[{48 + 8 * rd}:{51 + 8 * rd}], v11 offset:{rd * 16 * TP}')
            E(f'ds_read_b128 v[{52 + 8 * rd}:{55 + 8 * rd}], v11 offset:{rd * 16 * TP + 16}')
for rd in range(2):
    for e in range(8):
        E(f'v_add_f32 v{48 + 8 * rd + e}, v{48 + 8 * rd + e}, v{XB + 8 * rd + e}')
    for d in range(4):
        E(f'v_cvt_pk_bf16_f32 v{64 + 4 * rd + d}, v{48 + 8 * rd + 2 * d}, v{48 + 8 * rd + 2 * d + 1}')
    E(f'buffer_store_dwordx4 v[{64 + 4 * rd}:{67 + 4 * rd}], {vOA}, {srd(SRD_OUT)}, {SOM} offen')
    if rd == 0:
        E(f's_add_u32 {SOM}, {SOM}, {16 * 1152}')
for e in range(4):
    E(f'v_mov_b32 v{SH + 4 + e}, v{SH + e}')
for e in range(4):
    E(f'v_permlane32_swap_b32 v{SH + e}, v{SH + 4 + e}')
for e in range(4):
    E(f'v_add_f32 v{SH + e}, v{SH + e}, v{SH + 4 + e}\nv_fma_f32 v{SH + e}, v{SH + e}, {vRS2}, v{XB + 16 + e}')
E(f'v_cvt_pk_bf16_f32 v72, v{SH}, v{SH + 1}\nv_cvt_pk_bf16_f32 v73, v{SH + 2}, v{SH + 3}')
E(f'buffer_store_dwordx2 v[72:73], {vOS}, {srd(SRD_OUT)}, {SOS} offen')

if OPT['stamps']:
    stamp()
    E('s_waitcnt lgkmcnt(0)')
    E(f'v_writelane_b32 {vSTAMP}, s100, {nstamp[0] - 1}')
    E(f's_mov_b32 s84, {nstamp[0]}')
    E(f'v_writelane_b32 {vSTAMP}, s84, 63')
    E(f'v_writelane_b32 {vSTAMP}, s99, 62')
    E(f's_lshl_b32 s84, s2, 2\ns_add_u32 s84, s84, {sW}\ns_lshl_b32 s84, s84, 8\ns_add_u32 s84, s84, {L.WS_STAMP}')
    E('v_lshlrev_b32 v1, 2, v1')
    E(f'buffer_store_dword {vSTAMP}, v1, {srd(SRD_WS)}, s84 offen')
E('L_END:')
E('s_endpgm')
for k, load_txt in slow_paths:
    E.raw(f'''L_PS{k}:
    s_add_u32 s99, s99, 1
    s_cmp_gt_u32 s99, 400000
    s_cbranch_scc1 L_PR{k}
    s_sleep 1
    {load_txt}
    s_waitcnt vmcnt(0)
    s_branch L_PC{k}''')
E.raw('''L_RXS:
    s_add_u32 s99, s99, 1
    s_cmp_gt_u32 s99, 400000
    s_cbranch_scc1 L_RXR
    s_sleep 1
''' + '\n'.join('    ' + x for x in RXL) + '''
    s_waitcnt vmcnt(0)
    s_branch L_RXC''')
E.raw('L_CODE_END:')
E.raw(KD_FMT.format(name=KN, vgpr=512, sgpr=102, accum=256, kernarg=88))
txt = E.text()
if OPT.get('hot'):
    import re
    lines = []
    for l in txt.split('\n'):
        if (OPT['hot'] & 1) and 'buffer_store' in l and 's[48:51]' in l and 'v255' not in l:
            l = l.replace('s[48:51]', 's[64:67]')
        if 's_cbranch_scc1 L_PS' in l or 's_cbranch_scc1 L_RXS' in l:
            l = '    s_nop 0'
        lines.append(l)
    txt = '\n'.join(lines)
    if OPT['hot'] & 2:
        txt = txt.replace('    s_and_b32 s84, s2, 7\n    s_lshr_b32 s85, s2, 3\n', '    s_mov_b32 s84, 0\n    s_mov_b32 s85, 0\n', 1)
open(OUT, 'w').write(txt)
if OPT.get('log'):
    for x in S.log:
        if x[1] == 'BARRIER' or (x[1] == 'flushed' and x[3] > 6) or (x[1] == 'mark' and not x[2].startswith(('t', 'act', 'dma', 'xl'))):
            print(x)
print('insts', E.ninst, 'nops', E.n_nop, 'waits', E.n_wait)
```

```python
import sys
import struct
sys.path.insert(0, 'gen')
from kgen import *
from sched import *
import layout as L

KN = 'parallel_sum__sliding_local_dilated__dense_activation_squared_relu__prompt_kernel'
OPT = dict(stamps=0, D=6, WB=3, bA=3.5, bQ=4.5, bB=4.0, bP=4.5, pubgap=35, pollgap=20, stouch=1, gtouch=1,
           hxgap=30, higap=60, egap=5, pgap=60, dmagap=0, bx=16, maxmem=2, vrate=55, vcap=3, rp2at=4, lat=30, pfwat=11, auxat=21, rxks=17, ogap=40, btouch=2, hbatch=0, drain=1, eat=6, quiet=0, tfirst=0, pchk=24, umap=0, sgap=0, rgap=0, rxat=50, etouch=0, x23=0)
for a in sys.argv[2:]:
    k, v = a.split('=')
    OPT[k] = float(v) if '.' in v else int(v)
OUT = sys.argv[1]
OPT_E = f"a{OPT['eat']}"
GS = '' if OPT.get('gplain') else ' sc1'

E = Emitter()
slow_paths = []
fl = lambda x: '0x%08x' % struct.unpack('<I', struct.pack('<f', x))[0]
OOB = '0x40000000'

sW, sR, sS, sC, sJ = 's4', 's5', 's6', 's7', 's8'
P_X, P_WQKV, P_WO, P_W1, P_B1, P_W2, P_B2 = 16, 18, 20, 24, 26, 28, 30
P_OUT, P_DBG, P_WS = 32, 34, 36
SRD_X, SRD_W1, SRD_WS, SRD_RP, SRD_B, SRD_OUT, SRD_DBG, SRD_EU = 40, 44, 48, 52, 56, 60, 64, 68
NONCE = 82
sSLW, sGF, sRPF, sCSA, sCSB, sGB = 's9', 's10', 's11', 's12', 's13', 's14'
sUST, sUS, sUD, sUC = 's15', 's38', 's39', 's3'
sA0, sA4, sB0, sB4, sQ0, sQ4 = 's16', 's17', 's18', 's19', 's20', 's21'
sPF = ['s22', 's23', 's24', 's25']
sGP = [None, 's26', 's27', 's28']
sXB, sXB2, sSTB = 's29', 's30', 's31'
M16 = 's[32:33]'
MX1, MX2 = 's[34:35]', 's[36:37]'
sL10, sL8, sL9, sBO, sC0, sC1 = 's72', 's73', 's74', 's75', 's80', 's81'
sBO2, sL6, sP8 = 's76', 's0', 's1'
SPOLL = 's[78:79]'
tD0, tD1 = 's84', 's85'
tA0, tA1, tA2, tA3 = 's86', 's87', 's88', 's89'
tR0, tR1, tR2, tR3, tR4 = 's90', 's91', 's95', 's96', 's77'
tC0, tC1 = 's92', 's93'
tE0 = 's94'
tM0, tM1 = 's97', 's98'


def srd(n):
    return f's[{n}:{n + 3}]'


XN = 16
FR = 160
NF = 7
BIASR = 188
VDA = 196
VDB = 201
vTA = 'v205'
VTB = 4
vRL = 'v206'
vF0 = 'v207'
vTCH = 'v208'
vLANE16 = 'v209'
vTL = 'v210'
vRSTD = 'v211'
vXO = 'v212'
vREM = 'v213'
BCOR = 214
TMP = 218
vMASKHI = 'v254'
vSTAMP = 'v255'
vNON = 12
vPF = 8
vTD = 10
vPA = 'v15'
vTW = 'v0'
QA = 144
AK = [192, 200, 208, 216]
ONESR = 220

RING = [0, 40960, 81920]
AUX = 122880
LDS_TOTAL = 163840
QB = AUX
QB1 = QB + 4096
PITCH = 240
SLOTB = {g: RING[g % 3] for g in range(18)}
DMA_AFTER = {g: g - 1 for g in range(18)}
NSTG = 26
AUXAT = OPT['auxat']
for g in range(18, AUXAT):
    SLOTB[g] = RING[g % 3]
    DMA_AFTER[g] = g - 1
for g in range(AUXAT, NSTG):
    SLOTB[g] = [AUX, RING[AUXAT % 3], RING[(AUXAT + 1) % 3], RING[(AUXAT + 2) % 3]][(g - AUXAT) % 4]
    DMA_AFTER[g] = g - 2

if OPT['drain']:
    DMA_AFTER = {g: v - 1 for g, v in DMA_AFTER.items()}
nstamp = [0]


def stamp():
    if not OPT['stamps']:
        return
    k = nstamp[0]
    if k > 0:
        E(f'v_writelane_b32 {vSTAMP}, s100, {k - 1}')
    E('s_memrealtime s[100:101]' if OPT.get('rt') else 's_memtime s[100:101]')
    nstamp[0] += 1


def mk_srd(n, p, size):
    E(f's_mov_b32 s{n}, s{p}\ns_mov_b32 s{n + 1}, s{p + 1}\ns_mov_b32 s{n + 2}, {size}\ns_mov_b32 s{n + 3}, 0x20000')


def emit_all(lst):
    for x in lst:
        if isinstance(x, str):
            E(x)
        elif isinstance(x, Inst):
            E.emit(x)


def nodep(txt):
    ld = Inst(txt)
    ld.writes = set()
    return ld


hdr = open('parallel_sum__sliding_local_dilated__dense_activation_squared_relu__prompt.s.ref').read()
hdr = [l for l in hdr.split('\n') if l.startswith(';') and '@launch' not in l and 'Override' not in l and 'grid=ceil' not in l]
E.raw('\n'.join(hdr))
E.raw(f'; @launch grid=(256,1,1) block=(256,1,1) lds={LDS_TOTAL}')
E.raw(f'.amdgcn_target "amdgcn-amd-amdhsa--gfx950"\n.text\n.globl {KN}\n.p2align 8\n.type {KN},@function\n{KN}:')

E('s_cmp_ge_u32 s2, 256\ns_cbranch_scc1 L_END')
stamp()
E('s_load_dwordx16 s[16:31], s[0:1], 0')
E('s_load_dwordx4 s[32:35], s[0:1], 64')
E('s_load_dwordx2 s[36:37], s[0:1], 80')
E(f's_memrealtime s[{NONCE}:{NONCE + 1}]')
E('s_mov_b32 s99, 0')
E(f's_getpc_b64 s[{SRD_EU}:{SRD_EU + 1}]')
E('L_PCREF:')
E(f's_mov_b32 s{SRD_EU + 2}, L_CODE_END-L_PCREF\ns_mov_b32 s{SRD_EU + 3}, 0x20000')
E('v_lshlrev_b32 v2, 7, v0')
E('s_lshr_b32 s3, s2, 3\ns_and_b32 s3, s3, 1\ns_lshl_b32 s3, s3, 15')
E.emit(nodep(f'buffer_load_dword v{vTD}, v2, {srd(SRD_EU)}, s3 offen'))
E('v_lshrrev_b32 v1, 6, v0')
E(f'v_readfirstlane_b32 {sW}, v1')
E('v_and_b32 v1, 63, v0')
E(f'''s_and_b32 s84, s2, 7
s_lshr_b32 s85, s2, 3
s_lshr_b32 {sS}, s84, 1
s_and_b32 {sC}, s85, 3
s_and_b32 s84, s84, 1
s_lshl_b32 s84, s84, 3
s_lshr_b32 s85, s85, 2
s_add_u32 {sR}, s84, s85
s_lshl_b32 {sJ}, {sS}, 2
s_add_u32 {sJ}, {sJ}, {sC}
v_bfe_u32 v2, v1, 2, 3
v_mul_u32_u24 v2, 4608, v2
v_lshrrev_b32 v3, 5, v1
v_lshl_add_u32 v2, v3, 6, v2
v_and_b32 v4, 3, v1
v_lshl_add_u32 {vXO}, v4, 4, v2
v_mul_u32_u24 v5, 1152, v3
v_and_b32 v6, 31, v1
v_lshl_add_u32 v5, v6, 4, v5
v_mov_b32 v7, {OOB}
v_cmp_gt_u32 vcc, 8, v6
v_cndmask_b32 v6, v7, v5, vcc
v_lshlrev_b32 {vLANE16}, 4, v1
s_lshl_b32 s86, {sR}, 2
s_add_u32 s86, s86, {sW}
s_mul_i32 s86, s86, 36864
s_lshl_b32 s87, {sR}, 4
s_add_u32 s87, s87, {sJ}
s_lshl_b32 s87, s87, 2
s_add_u32 s87, s87, {sW}
s_mul_i32 s88, s87, 2304''')
if OPT.get('stag'):
    E(f's_and_b32 s94, {sR}, {OPT["stagm"]}')
    E('L_STG:')
    E('s_cmp_eq_u32 s94, 0\ns_cbranch_scc1 L_STGD')
    E(f's_sleep {OPT["stag"]}\ns_sub_u32 s94, s94, 1\ns_branch L_STG')
    E('L_STGD:')
for i in range(5):
    E(f'''v_add_u32 v8, {64 * i}, v1
v_mul_u32_u24 v9, 3277, v8
v_lshrrev_b32 v9, 16, v9
v_mul_u32_u24 v11, 20, v9
v_sub_u32 v11, v8, v11
v_mul_u32_u24 v9, 9216, v9
v_lshl_add_u32 v{VDA + i}, v11, 4, v9''')
    if i % 4:
        E(f'v_subrev_u32 v{VDA + i}, {(i % 4) * 1024}, v{VDA + i}')
E(f'''s_mul_i32 s89, {sJ}, 576
s_and_b32 s84, {sJ}, 1
s_cmp_eq_u32 s84, 0
s_cselect_b32 s90, 256, 0
s_cselect_b32 s91, 0, 320
s_mul_i32 s92, {sW}, {32 * 9216}
s_add_u32 s92, s92, s89
s_add_u32 s93, s92, s90
s_mul_i32 {sL10}, {sW}, 10240''')
E('s_waitcnt lgkmcnt(0)')
mk_srd(SRD_X, P_X, 2359296)
mk_srd(SRD_W1, P_W1, 5308416)
E1R = TMP + 16
for k in range(3):
    E(f'buffer_load_dwordx4 v[{E1R + 4 * k}:{E1R + 4 * k + 3}], {"v5" if k < 2 else "v6"}, {srd(SRD_X)}, s88 offen offset:{512 * k}')


def xload(q, sb=None):
    o = []
    for i in range(4):
        r = XN + 16 * q + 4 * i
        b, off = (sb or sXB, 128 * q) if q < 5 else (sXB2, 128 * (q - 5))
        o.append(Inst(f'buffer_load_dwordx4 v[{r}:{r + 3}], {vXO}, {srd(SRD_X)}, {b} offen offset:{1152 * i + off}', tag=f'x{q}'))
    o.append(('mark', f'xl{q}'))
    return o


TOUCH_ONLY = [False]


def touch(fn, *a):
    TOUCH_ONLY[0] = True
    o = fn(*a)
    TOUCH_ONLY[0] = False
    return o


def dma_a(u, sb=None):
    g = u
    base = SLOTB[g]
    out = [f's_add_u32 {tD0}, {sb or sA0}, {u * 128 * 9216}' if u < 4 else f's_mov_b32 {tD0}, {sA4}']
    if TOUCH_ONLY[0]:
        return out + [nodep(f'buffer_load_dword v{vTD}, {vTW}, {srd(SRD_W1)}, {tD0} offen')]
    lw = sL10
    if u == 4:
        out.append(f's_lshr_b32 {tD1}, {sL10}, 1')
        lw = tD1
    for gr in range(2 if u < 4 else 1):
        if gr:
            out.append(f's_add_u32 {tD0}, {tD0}, {16 * 9216}')
        for i in range(5):
            if i % 4 == 0:
                out.append(f's_add_u32 m0, {lw}, {base + gr * 5120 + i * 1024}')
            out.append(Inst(f'buffer_load_dwordx4 v{VDA + i}, {srd(SRD_W1)}, {tD0} offen offset:{(i % 4) * 1024} lds', tag=f'st{g}'))
    return out


def lin_pieces(g, lw, lbase, npc):
    out = []
    for i in range(npc):
        if i % 4 == 0:
            out.append(f's_add_u32 m0, {lw}, {lbase + i * 1024}' if lw else f's_mov_b32 m0, {lbase + i * 1024}')
            if i:
                out.append(f's_add_u32 {tD0}, {tD0}, 4096')
        out.append(Inst(f'buffer_load_dwordx4 {vLANE16}, {srd(SRD_WS)}, {tD0} offen offset:{(i % 4) * 1024} sc1 lds', tag=f'st{g}'))
    return out


def cs_pieces(g, src, lofs, n):
    o = [f's_lshl_b32 {tD1}, {sW}, 10', f's_add_u32 {tD0}, {src}, {tD1}'] + lin_pieces(g, tD1, SLOTB[g] + lofs, 1)
    if n == 5:
        o += [f's_add_u32 {tD0}, {src}, 4096'] + lin_pieces(g, None, SLOTB[g] + lofs + 4096, 1)
    return o


def dma_b(u):
    g = 10 + u
    base = SLOTB[g]
    out = [f's_add_u32 {tD0}, {sB0}, {u * 128 * 9216}' if u < 4 else f's_mov_b32 {tD0}, {sB4}']
    if TOUCH_ONLY[0]:
        return out + [nodep(f'buffer_load_dword v{vTD}, {vTW}, {srd(SRD_W1)}, {tD0} offen')]
    lw = sL8
    if u == 4:
        out.append(f's_lshr_b32 {tD1}, {sL8}, 1')
        lw = tD1
    for gr in range(2 if u < 4 else 1):
        if gr:
            out.append(f's_add_u32 {tD0}, {tD0}, {16 * 9216}')
        out.append(f's_add_u32 m0, {lw}, {base + gr * 4096}')
        for i in range(4):
            out.append(Inst(f'buffer_load_dwordx4 v{VDB + i}, {srd(SRD_W1)}, {tD0} offen offset:{i * 1024} lds', tag=f'st{g}'))
    if u == 0:
        out += cs_pieces(g, sCSB, 32768, 4)
    return out


def dma_lin(g, setup, lw, npc):
    if TOUCH_ONLY[0]:
        return [setup[-1]] + [nodep(f'buffer_load_dword v{vTD}, {vTL}, {srd(SRD_WS)}, {tD0} offen sc1')]
    return list(setup) + lin_pieces(g, lw, SLOTB[g], npc)


def dma_q(u):
    g = 5 + u
    if u < 4:
        o = dma_lin(g, [f's_add_u32 {tD0}, {sQ0}, {u * 32768}'], sL8, 8)
        if u == 0 and not TOUCH_ONLY[0]:
            o = cs_pieces(g, sCSA, 32768, 5) + o
        return o
    o = dma_lin(g, [f's_lshr_b32 {tD1}, {sL8}, 1', f's_mov_b32 {tD0}, {sQ4}'], tD1, 4)
    if not TOUCH_ONLY[0]:
        o += [f's_lshl_b32 {tM1}, {sJ}, 12', f's_add_u32 {tM1}, {tM1}, {L.WS_CSQ}'] + cs_pieces(g, tM1, 16384, 4)
    return o


RUNS = [('A', k) for k in range(4)] + [('B', k) for k in range(4)]


def dma_p(p):
    kind, k = RUNS[p]
    g = 15 + p
    if kind == 'A':
        return dma_lin(g, [f's_mov_b32 {tD0}, {sPF[k]}'], (sL10, sL8)[k % 2], (10, 8)[k % 2])
    return dma_lin(g, [f's_add_u32 {tD0}, {sPF[k]}, {(sBO, sBO2)[k % 2]}'], (sL8, sL6)[k % 2], (8, 6)[k % 2])


def dma_o(_):
    g = 23
    if TOUCH_ONLY[0]:
        return []
    o = [f's_add_u32 {tD0}, {sC}, {sW}', f's_and_b32 {tD1}, {tD0}, 3', f's_mul_i32 {tD0}, {tD1}, 61440', f's_add_u32 {tD0}, {tD0}, {sSLW}',
         f's_add_u32 {tD0}, {tD0}, {54 * 1024}'] + lin_pieces(g, sL6, SLOTB[g], 6)
    o += [f's_lshr_b32 {tD0}, {tD1}, 1', f's_mul_i32 {tD0}, {tD0}, 20480', f's_add_u32 {tD0}, {tD0}, {sSLW}',
          f's_add_u32 {tD0}, {tD0}, {L.SLABW_S + 18 * 1024}', f's_lshl_b32 {tD1}, {sW}, 11'] + lin_pieces(g, tD1, SLOTB[g] + 24576, 2)
    o += [f's_lshl_b32 {tD1}, {sW}, 10', f's_add_u32 {tD0}, {tD1}, {240 * 1024}', f's_cmp_eq_u32 {sW}, 3',
          f's_cselect_b32 {tD0}, {L.SLABW_S + 40 * 1024}, {tD0}', f's_add_u32 {tD0}, {tD0}, {sSLW}'] + lin_pieces(g, tD1, SLOTB[g] + 32768, 1)
    o += [f's_add_u32 {tD0}, {sSLW}, {L.SLABW_O + 80 * 1024}'] + lin_pieces(g, None, SLOTB[g] + 36864, 1)
    return o


def dma_c(u):
    return dma_lin(24 + u, [f's_mov_b32 {tD0}, {(sC0, sC1)[u]}'], sL10, 10)


A0L = dma_a(0, 's93')
cut = [i for i, x in enumerate(A0L) if isinstance(x, Inst)][4] + 1
def early_touch(first_seg, first_stage):
    E(f'''v_and_b32 v8, 7, v1
s_lshl_b32 s84, {sC}, 3
v_add_u32 v8, s84, v8
v_mul_u32_u24 v8, 1152, v8
v_lshrrev_b32 v9, 3, v1
v_lshl_add_u32 v11, v9, 7, v8''')
    E.emit(nodep(f'buffer_load_dword v{vTD}, v11, {srd(SRD_X)}, s86 offen offset:{128 * first_seg}'))
    E(f'''v_mul_u32_u24 v11, 86, v1
v_lshrrev_b32 v11, 8, v11
v_mul_u32_u24 v9, 3, v11
v_sub_u32 v9, v1, v9
v_lshrrev_b32 v15, 2, v11
v_and_b32 v11, 3, v11
v_lshl_add_u32 v11, v15, 7, v11
s_and_b32 s84, {sR}, 7
s_lshl_b32 s84, s84, 2
s_add_u32 s84, s84, {128 * first_stage}
v_add_u32 v11, s84, v11
v_mul_u32_u24 v11, 9216, v11
v_lshl_add_u32 v11, v9, 7, v11
v_cmp_gt_u32 vcc, {12 * (4 - first_stage)}, v1
v_cndmask_b32 v11, v7, v11, vcc''')
    E.emit(nodep(f'buffer_load_dword v{vTD}, v11, {srd(SRD_W1)}, s93 offen'))
    if first_seg == 0:
        E.emit(nodep(f'buffer_load_dword v{vTD}, v8, {srd(SRD_X)}, s86 offen offset:1024'))


if OPT['tfirst']:
    early_touch(0, 0)
else:
    emit_all(xload(0, 's86') + A0L[:cut])
    E(f's_mov_b32 s97, {tD0}')
stamp()
mk_srd(SRD_DBG, P_DBG, 256)
E(f'''s_or_b32 s{NONCE}, s{NONCE}, 1
v_mov_b32 v8, s{NONCE}
v_mov_b32 v9, s{NONCE + 1}
v_mov_b32 v14, 0
v_cmp_eq_u32 vcc, 0, v1
v_cndmask_b32 {vF0}, v7, v14, vcc
s_or_b32 s85, s2, {sW}
s_cmp_eq_u32 s85, 0
s_cselect_b32 s85, 0, {OOB}''')
E(f'buffer_store_dwordx2 v[8:9], {vF0}, {srd(SRD_DBG)}, s85 offen sc1')
mk_srd(SRD_WS, P_WS, 0x10000000)
mk_srd(SRD_B, P_B1, 9216)
mk_srd(SRD_OUT, P_OUT, 2359296)
U2C = '''s_add_u32 {d}, s2, 48
s_cmp_ge_u32 s2, 144
s_cselect_b32 {d}, 255, {d}
s_sub_u32 {t}, s2, 208
s_cmp_ge_u32 s2, 208
s_cselect_b32 {d}, {t}, {d}'''
E(U2C.format(d='s84', t='s85') if OPT['umap'] else 's_sub_u32 s84, s2, 92')
E(f'''s_cmp_lt_u32 s84, 144
s_cselect_b32 s{SRD_RP}, s{P_W2}, s{P_WO}
s_cselect_b32 s{SRD_RP + 1}, s{P_W2 + 1}, s{P_WO + 1}
s_mov_b32 s{SRD_RP + 2}, 5308416
s_cselect_b32 s{SRD_RP + 2}, s{SRD_RP + 2}, 663552
s_mov_b32 s{SRD_RP + 3}, 0x20000''')
vU, vA1, vZ = 'v2', 'v3', f'v{TMP + 32}'
sU1 = 's98'
E(f'''s_lshr_b32 s85, s2, 3
s_and_b32 s84, s2, 1
s_lshl_b32 s84, s84, 1
s_cmp_ge_u32 s85, 9
s_cselect_b32 s94, 9, 0
s_cselect_b32 s95, 1, 0
s_sub_u32 s94, s85, s94
s_mul_i32 s96, {sS}, 9
s_add_u32 s94, s94, s96
s_lshl_b32 s94, s94, 2
s_add_u32 s94, s94, s84
s_add_u32 s94, s94, s95
s_add_u32 {sU1}, s94, 64
s_sub_u32 s94, s85, 18
s_and_b32 s95, s94, 3
s_lshl_b32 s96, {sS}, 2
s_add_u32 s95, s95, s96
s_lshl_b32 s95, s95, 2
s_add_u32 s95, s95, s84
s_lshr_b32 s94, s94, 2
s_add_u32 s95, s95, s94
s_cmp_ge_u32 s85, 18
s_cselect_b32 {sU1}, s95, {sU1}
s_cmp_ge_u32 s85, 26
s_cselect_b32 {sU1}, 255, {sU1}''')
if not OPT['umap']:
    E(f's_mov_b32 {sU1}, s2')
E(f'''s_and_b32 s84, {sU1}, 3
s_lshr_b32 s85, {sW}, 1
s_lshl_b32 s85, s85, 5
s_and_b32 s94, {sW}, 1
s_lshl_b32 s94, s94, 2
s_add_u32 s85, s85, s94
s_lshl_b32 s94, s84, 3
s_add_u32 s85, s85, s94
v_lshrrev_b32 v8, 4, v1
v_and_b32 v9, 15, v1
v_bfe_u32 v11, v1, 4, 1
v_lshrrev_b32 v3, 5, v1
v_lshlrev_b32 v3, 3, v3
v_bfe_u32 v15, v1, 2, 2
v_add_u32 v3, v3, v15
v_lshlrev_b32 v3, 8, v3
v_add_u32 v3, {AUX}, v3
s_cmp_ge_u32 {sU1}, 64
s_cbranch_scc1 L_EU_W1
s_lshr_b32 s94, {sU1}, 2
s_mov_b32 s{SRD_EU}, s{P_WQKV}
s_mov_b32 s{SRD_EU + 1}, s{P_WQKV + 1}
s_mov_b32 s{SRD_EU + 2}, 1990656
s_mov_b32 {sUST}, {64 * 3456}
s_mul_i32 {sUS}, s85, 3456
s_mul_i32 s95, s94, 72
s_add_u32 {sUS}, {sUS}, s95
s_mul_i32 {sUD}, s94, {L.SLABQ_SZ}
s_lshl_b32 s95, s84, 2
s_add_u32 s95, s95, {sW}
s_lshl_b32 s95, s95, 10
s_add_u32 {sUD}, {sUD}, s95
s_add_u32 {sUD}, {sUD}, {L.WS_SLABQ}
s_lshl_b32 {sUC}, s94, 12
s_add_u32 {sUC}, {sUC}, {L.WS_CSQ}
s_mov_b32 s96, {OOB}
v_mul_u32_u24 v8, 3456, v8
v_mul_u32_u24 v15, 13, v9
v_lshrrev_b32 v15, 6, v15
v_mul_u32_u24 v2, 5, v15
v_sub_u32 v9, v9, v2
v_mul_u32_u24 v15, 1152, v15
v_add_u32 v8, v8, v15
v_lshl_add_u32 {vU}, v9, 4, v8
v_lshlrev_b32 v11, 2, v11
v_and_b32 v8, 1, v1
v_lshl_add_u32 v11, v8, 1, v11
v_bfe_u32 v8, v1, 1, 1
v_add_u32 v11, v11, v8
s_lshl_b32 s95, {sW}, 3
v_add_u32 v11, s95, v11
v_min_u32 v11, 26, v11
v_mul_u32_u24 v8, 57, v11
v_lshrrev_b32 v8, 9, v8
v_lshl_add_u32 v11, v11, 3, v3
v_lshl_add_u32 {vA1}, v8, 3, v11
s_branch L_EU_DONE
L_EU_W1:
s_sub_u32 s94, {sU1}, 64
s_lshr_b32 s94, s94, 2
s_mov_b32 s{SRD_EU}, s{P_W1}
s_mov_b32 s{SRD_EU + 1}, s{P_W1 + 1}
s_mov_b32 s{SRD_EU + 2}, 5308416
s_mov_b32 {sUST}, {64 * 9216}
s_mul_i32 {sUS}, s85, 9216
s_lshl_b32 s95, s94, 8
s_add_u32 {sUS}, {sUS}, s95
s_mov_b32 {sUD}, {OOB}
s_lshl_b32 {sUC}, s94, 12
s_add_u32 {sUC}, {sUC}, {L.WS_CSF}
s_lshl_b32 s96, {sW}, 6
s_add_u32 s96, s96, s95
s_cmp_eq_u32 s84, 0
s_cselect_b32 s96, s96, {OOB}
s_cmp_lt_u32 {sU1}, 208
s_cselect_b32 {sUS}, {sUS}, {OOB}
s_cselect_b32 {sUC}, {sUC}, {OOB}
v_mul_u32_u24 v8, 9216, v8
v_lshl_add_u32 {vU}, v9, 4, v8
v_lshl_add_u32 v3, v11, 5, v3
v_lshl_add_u32 v3, v4, 3, v3
s_lshl_b32 s95, {sW}, 6
v_add_u32 {vA1}, s95, v3
L_EU_DONE:
s_lshl_b32 s95, {sW}, 10
s_add_u32 {sUC}, {sUC}, s95
s_lshl_b32 s94, s84, 2
s_add_u32 {sUC}, {sUC}, s94
v_and_b32 v8, 31, v1
v_lshlrev_b32 v8, 1, v8
s_nop 2''')
if not OPT['tfirst']:
    E(f's_mov_b32 {tD0}, s97')
    emit_all(A0L[cut:] + xload(1, 's86'))
E(f'buffer_load_ushort {vZ}, v8, {srd(SRD_B)}, s96 offen')
mk_srd(SRD_B, P_B2, 1152)
def eu_dma():
    for i in range(9):
        E(f's_add_u32 m0, s95, {AUX + i * 4096}')
        E(f'buffer_load_dwordx4 {vU}, {srd(SRD_EU)}, {sUS} offen lds', tag='eu')
        if i < 8:
            E(f's_add_u32 {sUS}, {sUS}, {sUST}')


if OPT['tfirst']:
    eu_dma()
E(f'''s_mov_b32 {sXB}, s86
s_add_u32 {sXB2}, s86, 640
s_mov_b32 {sA0}, s93
s_add_u32 {sB0}, s92, s91
s_mul_i32 s84, {sW}, {16 * 9216}
s_add_u32 s84, s84, {512 * 9216}
s_add_u32 s84, s84, s89
s_add_u32 {sA4}, s84, s90
s_add_u32 {sB4}, s84, s91
s_lshl_b32 {sL8}, {sW}, 13
s_mul_i32 {sL9}, {sW}, 9216
s_lshl_b32 {sBO2}, {sW}, 11
s_sub_u32 {sBO2}, 30720, {sBO2}
s_cmp_eq_u32 {sW}, 3
s_cselect_b32 {sBO}, 10240, {sBO2}
s_mul_i32 {sL6}, {sW}, 6144
s_mul_i32 s84, {sJ}, {L.SLABQ_SZ}
s_add_u32 s84, s84, {L.WS_SLABQ}
s_add_u32 {sQ0}, s84, {sL8}
s_lshl_b32 s85, {sW}, 12
s_add_u32 {sQ4}, s84, s85
s_add_u32 {sQ4}, {sQ4}, {8 * 16384}
s_mul_i32 s84, {sJ}, 9216
s_add_u32 s84, s84, {L.WS_CSF}
s_lshl_b32 s90, s90, 4
s_lshl_b32 s91, s91, 4
s_add_u32 {sCSA}, s84, s90
s_add_u32 {sCSB}, s84, s91
s_mul_i32 {sGB}, s87, {L.G_WAVE}
s_add_u32 {sGB}, {sGB}, {L.WS_G}
s_mul_i32 {sSLW}, {sJ}, {L.SLABW_SZ}
s_add_u32 {sSLW}, {sSLW}, {L.WS_SLABW}''')
for k in range(4):
    E(f's_add_u32 s84, {sC}, {k}\ns_and_b32 s84, s84, 3\ns_mul_i32 s85, s84, 61440\ns_add_u32 s85, s85, {sL10 if k % 2 == 0 else sL8}')
    if k % 2 == 0:
        E(f's_lshr_b32 s90, s84, 1\ns_mul_i32 s90, s90, 20480\ns_add_u32 s90, s90, {L.SLABW_S}')
        E(f's_cmp_eq_u32 {sW}, 3\ns_cselect_b32 s85, s90, s85')
    E(f's_add_u32 {sPF[k]}, s85, {sSLW}')
    if k:
        E(f's_sub_u32 s84, s84, {sC}\ns_mul_i32 s84, s84, {L.G_WG}\ns_add_u32 {sGP[k]}, s84, {sGB}')
for u, d in enumerate((sC0, sC1)):
    E(f's_lshr_b32 s84, {sW}, 1\ns_add_u32 s84, s84, {sC}\ns_add_u32 s84, s84, {2 - 2 * u}\ns_and_b32 s84, s84, 3\ns_mul_i32 s84, s84, 20480\n'
      f's_and_b32 s85, {sW}, 1\ns_mul_i32 s85, s85, 10240\ns_add_u32 s84, s84, s85\ns_add_u32 s84, s84, {sSLW}\ns_add_u32 {d}, s84, {L.SLABW_O}')
E(f'''s_lshl_b32 {sGF}, {sR}, 2
s_add_u32 {sGF}, {sGF}, {sS}
s_lshl_b32 {sGF}, {sGF}, 2
s_add_u32 {sGF}, {sGF}, {sW}
s_lshl_b32 {sGF}, {sGF}, 7
s_add_u32 {sGF}, {sGF}, {L.WS_FLAG_G}
s_lshl_b32 {sSTB}, {sR}, 2
s_add_u32 {sSTB}, {sSTB}, {sW}
s_lshl_b32 {sSTB}, {sSTB}, 7
s_add_u32 {sSTB}, {sSTB}, {L.WS_STAT}
s_mov_b64 {M16}, 0xffff
s_mov_b32 s34, 0x55555555
s_mov_b32 s35, 0x55555555
s_mov_b32 s36, 0x33333333
s_mov_b32 s37, 0x33333333''')
if not OPT['tfirst']:
    eu_dma()
E(f'''s_and_b32 s84, {sR}, 7
v_mul_u32_u24 v8, 86, v1
v_lshrrev_b32 v8, 8, v8
v_mul_u32_u24 v9, 3, v8
v_sub_u32 v9, v1, v9
s_lshl_b32 s85, s84, 2
v_add_u32 v8, s85, v8
v_mul_u32_u24 v8, 9216, v8
v_lshl_add_u32 v8, v9, 7, v8
v_cmp_gt_u32 vcc, 12, v1
v_cndmask_b32 {vTW}, v7, v8, vcc
v_lshlrev_b32 {vTCH}, 7, v1
s_mul_i32 s85, s84, {10 * 128}
v_add_u32 v8, s85, {vTCH}
v_cmp_gt_u32 vcc, 10, v1
v_cndmask_b32 {vTL}, v7, v8, vcc
v_lshrrev_b32 v8, 5, v1
v_lshlrev_b32 v8, 5, v8
v_bfe_u32 v9, v1, 2, 2
v_add_u32 v8, v8, v9
v_bfe_u32 v11, v1, 4, 1
v_lshlrev_b32 v11, 5, v11
v_lshl_add_u32 v11, v4, 3, v11
v_mul_u32_u24 v15, 320, v8
v_add_u32 {vTA}, v15, v11
v_lshl_add_u32 v15, v8, 8, v11
v_add_u32 v15, {SLOTB[10]}, v15
v_lshrrev_b32 v8, 4, v1
v_xor_b32 v11, v9, v8
v_mul_u32_u24 v8, 9216, v8
v_lshl_add_u32 v8, v11, 6, v8
v_lshl_add_u32 v{VDB}, v4, 4, v8''')
for i in range(1, 4):
    E(f'v_add_u32 v{VDB + i}, {i * (4 * 9216 - 1024)}, v{VDB}')
E(f'''v_mov_b32 {vMASKHI}, 0xffff0000
v_cndmask_b32 {vREM}, v7, {vLANE16}, {M16}
v_mov_b32 v{TMP + 33}, v7''')
for t in range(4):
    E(f'v_xor_b32 v8, {t}, v9\nv_lshl_add_u32 v{TMP + t}, v8, 6, v15')
E(f'''v_and_b32 v8, 15, v1
v_lshrrev_b32 v9, 4, v1
v_lshlrev_b32 v9, 2, v9
v_sub_u32 v8, v8, v9
v_mov_b32 v15, 0xf149f2ca
v_mov_b32 v9, 0x3f803f80''')
for i in range(4):
    E(f'''v_accvgpr_write_b32 a{ONESR + i}, v9
v_subrev_u32 v11, {i}, v8
v_and_b32 v11, 0x80000001, v11
v_cmp_eq_u32 vcc, 0, v11
v_cndmask_b32 v{BIASR + 4 + i}, v15, v14, vcc
v_xor_b32 v11, 0x80000000, v11
v_cmp_eq_u32 vcc, 0, v11
v_cndmask_b32 v{BIASR + i}, v15, v14, vcc''')
E(f'''v_and_b32 v8, 31, v1
s_lshl_b32 s85, {sJ}, 2
v_add_u32 v11, s85, v8
s_mul_i32 s85, {sJ}, 9
s_andn2_b32 s85, s85, 3
s_add_u32 s85, s85, 60
v_add_u32 v15, s85, v8
v_min_u32 v15, 207, v15
v_cmp_gt_u32 vcc, 4, v8
v_cndmask_b32 v11, v15, v11, vcc
v_bfe_u32 v15, v1, 2, 2
v_lshlrev_b32 v15, 1, v15
v_lshl_add_u32 v15, v4, 3, v15
s_lshl_b32 s85, s84, 5
s_lshr_b32 s84, {sR}, 3
s_add_u32 s85, s85, s84
v_add_u32 v15, s85, v15
v_add_u32 v11, {(L.WS_FLAG_U - L.WS_FLAG_E) // 8}, v11
v_cmp_gt_u32 vcc, 16, v8
v_cndmask_b32 v11, v15, v11, vcc
v_lshlrev_b32 v11, 3, v11
v_add_u32 {vPA}, {L.WS_FLAG_E}, v11''')
for t in range(4):
    E(f'v_mov_b32 v{VTB + t}, v{TMP + t}')
stamp()
if OPT['tfirst']:
    emit_all(xload(0) + dma_a(0) + xload(1))
if OPT['x23']:
    emit_all(xload(2) + xload(3))
stamp()
a0, a1, q0, q1 = (f'v{TMP + i}' for i in range(4))
E(f'v_mov_b32 {a0}, 0\nv_mov_b32 {a1}, 0\nv_mov_b32 {q0}, 0\nv_mov_b32 {q1}, 0')
for e in range(12):
    r = f'v{E1R + e}'
    E(f'v_dot2_f32_bf16 {(a0, a1)[e & 1]}, {r}, v9, {(a0, a1)[e & 1]}')
    E(f'v_dot2_f32_bf16 {(q0, q1)[e & 1]}, {r}, {r}, {(q0, q1)[e & 1]}')
E(f'v_add_f32 {a0}, {a0}, {a1}\nv_add_f32 {q0}, {q0}, {q1}')
for sh in (1, 2, 4, 8):
    E(f'v_add_f32_dpp {a0}, {a0}, {a0} row_shr:{sh} row_mask:0xf bank_mask:0xf bound_ctrl:0')
    E(f'v_add_f32_dpp {q0}, {q0}, {q0} row_shr:{sh} row_mask:0xf bank_mask:0xf bound_ctrl:0')
E(f'v_add_f32_dpp {a0}, {a0}, {a0} row_bcast:15 row_mask:0xa bank_mask:0xf')
E(f'v_add_f32_dpp {q0}, {q0}, {q0} row_bcast:15 row_mask:0xa bank_mask:0xf')
E(f'''v_mul_f32 {a0}, 0x3ae38e39, {a0}
v_mul_f32 {q0}, 0x3ae38e39, {q0}
v_fma_f32 {q0}, -{a0}, {a0}, {q0}
v_max_f32 {q0}, 0, {q0}
v_cvt_pk_bf16_f32 {q0}, {q0}, {q0}
v_lshlrev_b32 {q0}, 16, {q0}
v_add_f32 {q0}, 0x3727c5ac, {q0}
v_cvt_pk_bf16_f32 {q0}, {q0}, {q0}
v_lshlrev_b32 {q0}, 16, {q0}
v_sqrt_f32 {q0}, {q0}
v_and_b32 {a1}, 31, v1
v_cvt_pk_bf16_f32 {a0}, {a0}, {q0}
v_lshrrev_b32 {q1}, 5, v1
v_lshlrev_b32 {q1}, 2, {q1}
v_cmp_eq_u32 vcc, 31, {a1}
v_cndmask_b32 {q1}, v{TMP + 33}, {q1}, vcc
s_lshl_b32 s84, s87, 3
s_add_u32 s84, s84, {L.WS_STAT}''')
E(f'buffer_store_dword {a0}, {q1}, {srd(SRD_WS)}, s84 offen sc1', tag='eust')
NONL = f'buffer_load_dwordx2 v[{vNON}:{vNON + 1}], v14, {srd(SRD_DBG)}, 0 offen sc1'
stamp()

X1 = 'quad_perm:[1,0,3,2] row_mask:0xf bank_mask:0xf'
X2 = 'quad_perm:[2,3,0,1] row_mask:0xf bank_mask:0xf'


def transpose_seg(q):
    R = lambda i, d: f'v{XN + 16 * q + 4 * i + d}'
    Tm = lambda i, d: f'v{TMP + 4 * i + d}'
    o = [f's_mov_b64 vcc, {MX1}']
    for i0 in (0, 2):
        for d in range(4):
            o.append(f'v_cndmask_b32_dpp {Tm(i0, d)}, {R(i0 + 1, d)}, {R(i0, d)}, vcc {X1}')
    o.append('s_not_b64 vcc, vcc')
    for i0 in (0, 2):
        for d in range(4):
            o.append(f'v_cndmask_b32_dpp {Tm(i0 + 1, d)}, {R(i0, d)}, {R(i0 + 1, d)}, vcc {X1}')
    o.append(f's_mov_b64 vcc, {MX2}')
    for i0 in (0, 1):
        for d in range(4):
            o.append(f'v_cndmask_b32_dpp {R(i0, d)}, {Tm(i0 + 2, d)}, {Tm(i0, d)}, vcc {X2}')
        o.append(('mark', f't{q}_{i0}'))
    o.append('s_not_b64 vcc, vcc')
    for i0 in (0, 1):
        for d in range(4):
            o.append(f'v_cndmask_b32_dpp {R(i0 + 2, d)}, {Tm(i0, d)}, {Tm(i0 + 2, d)}, vcc {X2}')
        o.append(('mark', f't{q}_{i0 + 2}'))
    return o


k = 0
for x in transpose_seg(0):
    if isinstance(x, str):
        E(x)
        k += 1
        if k % 3 == 0:
            E('v_nop')
stamp()

fragi = [0]


def newfrag():
    f = FR + 4 * (fragi[0] % NF)
    fragi[0] += 1
    return f


RA = OPT['rp2at']
BAR_TAGS = {2: ['eust'], RA + 1: ['rp2'], RA + 4: ['rp2st']}
BAR_MARKS = {2: ['eudone'], RA + 1: ['rp2dma'], RA + 3: ['rp2done'], OPT['auxat'] - 1: ['odone']}


def barrier(g, post=()):
    def f():
        if OPT['stamps'] > 2:
            stamp()
        E.wait_tags([f'st{g}'] + BAR_TAGS.get(g, []))
        if OPT['drain']:
            E.wait_all(vm=False)
        E('s_barrier')
        if OPT['stamps'] > 1:
            stamp()
        S.marks.add(f'B{g}')
        if 'odone' in S.marks:
            S.marks.add('Bodone')
        S.log.append((S.cur, 'BARRIER', g, 0))
        emit_all(post)
    return f


def eu_barrier():
    E.wait_tags(['eu'])
    E('s_barrier')
    S.marks.add('Bx')


def prereq(g):
    return ([f'dma{g}'] if g >= 1 else []) + BAR_MARKS.get(g, [])


def rl_post(g):
    return [f'v_add_u32 {vRL}, {SLOTB[g]}, {vLANE16}']


ops = []
for q in range(9):
    u, sg = q // 2, q % 2
    g = u
    for k, (jj, n) in enumerate([(jj, n) for jj in range(4) for n in range(5)]):
        f = newfrag()
        off = sg * 20480 + 8 * jj * 320 + 64 * n
        x = XN + 16 * q + 4 * jj
        first = (k == 0 and sg == 0)
        post = []
        if g:
            d = SLOTB[g] - SLOTB[g - 1]
            post = [f'v_add_u32 {vTA}, {d}, {vTA}' if d > 0 else f'v_subrev_u32 {vTA}, {-d}, {vTA}']
        acc = f'a[{16 * n}:{16 * n + 15}]'
        ops.append(Op([f'ds_read_b64_tr_b16 v[{f}:{f + 1}], {vTA} offset:{off}',
                       f'ds_read_b64_tr_b16 v[{f + 2}:{f + 3}], {vTA} offset:{off + 4 * 320}'],
                      [f'v_mfma_f32_32x32x16_bf16 {acc}, v[{f}:{f + 3}], v[{x}:{x + 3}], {"0" if (q == 0 and jj == 0) else acc}'],
                      name=f'a{q}' if k == 0 else None,
                      pre=barrier(g, post) if first else (eu_barrier if (q == 0 and k == OPT['bx']) else None),
                      requires=[f't{q}_{jj}'] if q else [],
                      pre_requires=prereq(g) if first else [], budget=OPT['bA']))
for n in range(5):
    f = newfrag()
    acc = f'a[{16 * n}:{16 * n + 15}]'
    ops.append(Op([f'ds_read_b128 v[{f}:{f + 3}], {vRL} offset:{32768 + 1024 * n}'],
                  [f'v_mfma_f32_32x32x16_bf16 {acc}, v[{f}:{f + 3}], v[{BCOR}:{BCOR + 3}], {acc}'],
                  name=f'fin{n}', pre=barrier(5, rl_post(5)) if n == 0 else None, pre_requires=prereq(5) if n == 0 else [],
                  requires=['bcor'], budget=OPT['bQ']))
for q in range(9):
    u, sg = q // 2, q % 2
    g = 5 + u
    for k, (jj, t4) in enumerate([(jj, t4) for jj in range(4) for t4 in range(4)]):
        f = newfrag()
        x = XN + 16 * q + 4 * jj
        acc = f'a[{QA + 16 * t4}:{QA + 16 * t4 + 15}]'
        first = (k == 0 and sg == 0 and u > 0)
        ops.append(Op([f'ds_read_b128 v[{f}:{f + 3}], {vRL} offset:{(sg * 16 + jj * 4 + t4) * 1024}'],
                      [f'v_mfma_f32_32x32x16_bf16 {acc}, v[{f}:{f + 3}], v[{x}:{x + 3}], {"0" if (q == 0 and jj == 0) else acc}'],
                      pre=barrier(g, rl_post(g)) if first else None,
                      pre_requires=prereq(g) if first else [], budget=OPT['bQ']))
for t4 in (1, 2, 3, 0):
    f = newfrag()
    acc = f'a[{QA + 16 * t4}:{QA + 16 * t4 + 15}]'
    ops.append(Op([f'ds_read_b128 v[{f}:{f + 3}], {vRL} offset:{16384 + 1024 * t4}'],
                  [f'v_mfma_f32_32x32x16_bf16 {acc}, v[{f}:{f + 3}], v[{BCOR}:{BCOR + 3}], {acc}'], name=f'qfin{t4}', budget=OPT['bQ']))
for t in range(4):
    f = newfrag()
    lam = 5 + t
    ops.append(Op([f'ds_read_b128 v[{f}:{f + 3}], {vRL} offset:{32768 + 1024 * t}'],
                  [f'v_mfma_f32_32x32x16_bf16 a[{16 * lam}:{16 * lam + 15}], v[{f}:{f + 3}], v[{BCOR}:{BCOR + 3}], 0'],
                  pre=barrier(10, rl_post(10)) if t == 0 else None, pre_requires=prereq(10) if t == 0 else [],
                  name=f'bcor{t}', budget=OPT['bQ']))
for q in range(9):
    u, sg = q // 2, q % 2
    g = 10 + u
    order = [(jj, n) for jj in range(4) for n in range(4)] if q < 8 else [(jj, n) for n in range(4) for jj in range(4)]
    for k, (jj, t) in enumerate(order):
        f = newfrag()
        lam = 5 + t
        off = sg * 16384 + 8 * jj * 256
        x = XN + 16 * q + 4 * jj
        first = (k == 0 and sg == 0 and u > 0)
        post = []
        if u > 0:
            d = SLOTB[g] - SLOTB[g - 1]
            post = [(f'v_add_u32 v{VTB + i}, {d}, v{VTB + i}' if d > 0 else f'v_subrev_u32 v{VTB + i}, {-d}, v{VTB + i}') for i in range(4)]
        ops.append(Op([f'ds_read_b64_tr_b16 v[{f}:{f + 1}], v{VTB + t} offset:{off}',
                       f'ds_read_b64_tr_b16 v[{f + 2}:{f + 3}], v{VTB + t} offset:{off + 4 * 256}'],
                      [f'v_mfma_f32_32x32x16_bf16 a[{16 * lam}:{16 * lam + 15}], v[{f}:{f + 3}], v[{x}:{x + 3}], a[{16 * lam}:{16 * lam + 15}]'],
                      name=f'fin{lam}' if (q == 8 and jj == 3) else (f'bs{q}' if k == 15 else None), pre=barrier(g, post) if first else None,
                      pre_requires=prereq(g) if first else [], budget=OPT['bB']))


def HP(lam):
    return 8 * lam if lam < 5 else 80 + 8 * (lam - 5)


ACT = {}
for ks in range(18):
    ACT[(0, ks)] = ('a', HP(ks // 2) + 4 * (ks & 1))
pool = [('a', 144 + 4 * i) for i in range(12)] + [('a', 40), ('a', 44)] + [('v', 16 + 4 * i) for i in range(36)] + \
       [('a', 128 + 4 * i) for i in range(4)] + [('a', 192 + 4 * i) for i in range(8)] + [('v', BIASR)]
order = [(k, ks) for k in (1, 2, 3) for ks in range(10)] + [(k, ks) for k in (1, 2, 3) for ks in range(10, 18)] + \
        [(k, ks) for k in range(4) for ks in (18, 19)] + ['rem']
assert len(pool) == len(order)
for key, r in zip(order, pool):
    ACT[key] = r
ACT['remS'] = ('v', BIASR + 4)


def act_regs(key):
    k, r = ACT[key]
    return f'{k}[{r}:{r + 3}]'


def kname(key):
    return key if isinstance(key, str) else f'{key[0]}_{key[1]}'


ACC2 = [48, 64, 224, 240, 112]


def acc2(n):
    return f'a[{ACC2[n]}:{ACC2[n] + 15}]'


def act_req(key):
    if key != 'rem' and key != 'remS' and key[0] == 0 and key[1] < 18:
        return [f'h{key[1] // 2}']
    return [f'act{kname(key)}']


def p2op(g, pos, n, key, zero=False, first=False, name=None, req=()):
    f = newfrag()
    ops.append(Op([f'ds_read_b128 v[{f}:{f + 3}], {vRL} offset:{pos * 1024}'],
                  [f'v_mfma_f32_32x32x16_bf16 {acc2(n)}, v[{f}:{f + 3}], {act_regs(key)}, {"0" if zero else acc2(n)}'],
                  name=name, pre=barrier(g, rl_post(g)) if first else None, pre_requires=prereq(g) if first else [],
                  requires=act_req(key) + list(req), budget=OPT['bP']))


for p, (kind, k) in enumerate(RUNS):
    g = 15 + p
    nk = 10 if kind == 'A' else 8
    for kk in range(nk):
        key = (k, kk + (10 if kind == 'B' else 0))
        z = (p == 0 and kk == 0)
        for n in range(3):
            p2op(g, kk * 3 + n, n, key, zero=z, first=(kk == 0 and n == 0), req=['h4'] if z else [])
        if k % 2 == 0:
            p2op(g, 3 * nk + kk, 3, key, zero=z)
for i, (k, ks) in enumerate(((0, 18), (0, 19), (2, 18), (2, 19))):
    p2op(23, 24 + 2 * k + (ks - 18), 3, (k, ks), first=(i == 0))
p2op(23, 35, 3, 'remS', name='pend3')
for n in range(3):
    for k in range(4):
        for ks in (18, 19):
            p2op(23, 6 * k + 3 * (ks - 18) + n, n, (k, ks))
    p2op(23, 32 + n, n, 'rem', name=f'pend{n}')
p2op(23, 36, 4, 'rem', zero=True, name='c0')
for u, pair in enumerate(((2, 3), (1, 0))):
    for k in pair:
        for ks in (list(range(10, 20)) + list(range(10))):
            nm = 'rxfree' if (k == 1 and ks == OPT['rxks']) else None
            p2op(24 + u, (k & 1) * 20 + ks, 4, (k, ks), first=(k == pair[0] and ks == 10), name=nm)

npoll = [0]


def poll_check(load_txt, cmp_lines, tag):
    k = npoll[0]
    npoll[0] += 1
    E.wait_tags([tag])
    E(f'L_PC{k}:')
    E(cmp_lines)
    E(f's_cmp_lg_u64 {SPOLL}, 0')
    E(f's_cbranch_scc1 L_PS{k}')
    E(f'L_PR{k}:')
    slow_paths.append((k, load_txt))


def flags_cmp(v):
    return f'v_cmp_ne_u64 {SPOLL}, s[{NONCE}:{NONCE + 1}], v[{v}:{v + 1}]'


def poll_item(setup, va, vd, tag, gap):
    fl_ = ' nt' if (OPT.get('gplain') and tag in ('pfa', 'pfb', 'pfo')) else ' sc1'
    ld = f'buffer_load_dwordx2 v[{vd}:{vd + 1}], {va}, {srd(SRD_WS)}, 0 offen{fl_}'
    return ([setup] if setup else []) + [Inst(ld, tag=tag), ('gap', gap), ('call', lambda: poll_check(ld, flags_cmp(vd), tag))]


def get_nonce():
    poll_check(NONL, f'v_cmp_eq_u32 {SPOLL}, 0, v{vNON}', 'nonce')
    E(f'v_readfirstlane_b32 s{NONCE}, v{vNON}\nv_readfirstlane_b32 s{NONCE + 1}, v{vNON + 1}')


def wave_flag(soff, need, off=0):
    fl_ = GS if (need and need[0] in ('gsta', 'gstb', 'ost')) else ' sc1'
    return Inst(f'buffer_store_dwordx2 v[{vNON}:{vNON + 1}], {vF0}, {srd(SRD_WS)}, {soff} offen offset:{off}{fl_}', need=need)


st_tr = Stream('tr', own_vcc=True)
for q in range(1, 9):
    st_tr.add([('after', f'a{q - 1}')] + ([('after', f'xl{q}')] if q > (3 if OPT['x23'] else 1) else []) + transpose_seg(q))
st_tr.add([('mark', 'trdone')])

RPT = TMP + 16
st_rp = Stream('rp')
st_rp.add([Inst(NONL, tag='nonce'), ('after', 'Bx')])
CSA_ = 'a[144:159]'
for f in range(11):
    if f < 9:
        t = RPT + 4 * (f % 4)
        st_rp.add([f'ds_read_b64_tr_b16 v[{t}:{t + 1}], {vA1} offset:{f * 4096}', f'ds_read_b64_tr_b16 v[{t + 2}:{t + 3}], {vA1} offset:{f * 4096 + 1024}'])
    else:
        st_rp.add([('gap', 2)])
    if f >= 2:
        f2 = f - 2
        t2 = RPT + 4 * (f2 % 4)
        st_rp.add([Inst(f'buffer_store_dwordx4 v[{t2}:{t2 + 3}], {vLANE16}, {srd(SRD_WS)}, {sUD} offen sc1', tag='eust'),
                   f'v_mfma_f32_32x32x16_bf16 {CSA_}, a[{ONESR}:{ONESR + 3}], v[{t2}:{t2 + 3}], {"0" if f2 == 0 else CSA_}',
                   f's_add_u32 {sUD}, {sUD}, 16384'])
t0, t1, t2 = f'v{RPT}', f'v{RPT + 1}', f'v{RPT + 2}'
st_rp.add([('call', get_nonce), ('mark', 'nonce_ok'), ('gap', 1), f'''v_accvgpr_read_b32 {t0}, a144
v_cvt_pk_bf16_f32 {t1}, {t0}, {t0}
v_lshlrev_b32 {t1}, 16, {t1}
v_sub_f32 {t2}, {t0}, {t1}
v_cvt_pk_bf16_f32 {t0}, {t1}, {t2}
v_cmp_gt_u32 {SPOLL}, 32, v1
v_cndmask_b32 {t0}, {vZ}, {t0}, {SPOLL}''',
           Inst(f'buffer_store_dword {t0}, {vLANE16}, {srd(SRD_WS)}, {sUC} offen sc1', tag='eust'), ('mark', 'eudone')])
st_rp.items[-3].glue = True
st_rp.add([('after', 'B2'), f's_lshl_b32 {tR0}, s2, 3\ns_add_u32 {tR0}, {tR0}, {L.WS_FLAG_E}\ns_cmp_eq_u32 {sW}, 0\ns_cselect_b32 {tR0}, {tR0}, {OOB}',
           wave_flag(tR0, []),
           f's_lshl_b32 {tR0}, {sU1}, 3\ns_add_u32 {tR0}, {tR0}, {L.WS_FLAG_U}\ns_cmp_eq_u32 {sW}, 1\ns_cselect_b32 {tR0}, {tR0}, {OOB}',
           wave_flag(tR0, []), ('mark', 'eupub')])
sU2 = 's71'
st_rp.add([U2C.format(d=sU2, t=tR0) if OPT['umap'] else f's_sub_u32 {sU2}, s2, 92'])
vA2 = 'v2'
st_rp.add([('call', lambda: E(f"""s_mul_i32 {tR1}, {sU2}, 1821
s_lshr_b32 {tR1}, {tR1}, 16
s_mul_i32 {tR0}, {sU2}, 7282
s_lshr_b32 {tR0}, {tR0}, 16
s_mul_i32 {tR2}, {tR0}, 9
s_sub_u32 {tR2}, {sU2}, {tR2}
s_add_u32 {tR3}, {tR2}, 5
s_cmp_ge_u32 {tR3}, 9
s_cselect_b32 {tM0}, 9, 0
s_sub_u32 {tR3}, {tR3}, {tM0}
s_and_b32 {tM0}, {tR0}, 1
s_cmp_eq_u32 {tM0}, 0
s_cselect_b32 {tR2}, {tR3}, {tR2}
s_and_b32 {tR0}, {tR0}, 3
s_mul_i32 {sUS}, {tR0}, 20
s_lshl_b32 {tM0}, {tR2}, 1
s_add_u32 {sUS}, {sUS}, {tM0}
s_mul_i32 {tR0}, {tR0}, 9
s_add_u32 {tR2}, {tR2}, {tR0}
s_lshl_b32 {tR3}, {sU2}, 5
s_lshl_b32 {tR0}, {sW}, 3
s_add_u32 {tR3}, {tR3}, {tR0}
s_mov_b32 {tM0}, 4
s_mov_b32 {tR4}, 8
s_cmp_lt_u32 {sU2}, 144
s_cbranch_scc1 L_RP_W2C
s_sub_u32 {tR0}, {sU2}, 144
s_lshr_b32 {tR1}, {tR0}, 2
s_and_b32 {tR2}, {tR0}, 3
s_mul_i32 {sUS}, {tR2}, 20
s_add_u32 {sUS}, {sUS}, 18
s_add_u32 {tR2}, {tR2}, 36
s_mul_i32 {tR3}, {tR0}, 36
s_lshl_b32 {tR0}, {sW}, 3
s_add_u32 {tR3}, {tR3}, {tR0}
s_lshr_b32 {tR0}, {sW}, 1
s_lshl_b32 {tR0}, {tR0}, 2
s_add_u32 {tR3}, {tR3}, {tR0}
s_mov_b32 {tM0}, 8
s_mov_b32 {tR4}, 4
s_cmp_lt_u32 {sU2}, 160
s_cbranch_scc1 L_RP_W2C
s_sub_u32 {tR1}, {sU2}, 160
s_mov_b32 {tR2}, 40
s_mov_b32 {sUS}, 80
s_lshl_b32 {tR3}, {tR1}, 2
s_add_u32 {tR3}, {tR3}, {sW}
s_mul_i32 {tR3}, {tR3}, 36
s_add_u32 {tR3}, {tR3}, 16
s_mov_b32 {tM0}, 16
s_mov_b32 {tR4}, 8
L_RP_W2C:""")),
           f"""s_mul_i32 {tR3}, {tR3}, 1152
s_cmp_lt_u32 {sU2}, 164
s_cselect_b32 {tR3}, {tR3}, {OOB}
s_mul_i32 {sRPF}, {tR1}, 41
s_add_u32 {sRPF}, {sRPF}, {tR2}""", ('mark', 'rp2setup'),
           f"""v_lshrrev_b32 {t1}, 5, v1
v_mul_lo_u32 {t1}, {t1}, {tM0}
v_bfe_u32 {t2}, v1, 2, 2
v_add_u32 {t0}, {t1}, {t2}
v_mul_u32_u24 {t0}, 1152, {t0}
v_bfe_u32 {t1}, v1, 4, 1
v_lshl_add_u32 {t0}, {t1}, 5, {t0}
v_and_b32 {t1}, 3, v1
v_lshl_add_u32 {t0}, {t1}, 3, {t0}
s_lshr_b32 {tR0}, {sW}, 1
s_mul_i32 {tR0}, {tR0}, 576
s_add_u32 {tR0}, {tR0}, {AUX}
v_add_u32 {vA1}, {tR0}, {t0}
s_mul_i32 {tR4}, {tR4}, 1152
v_add_u32 {vA2}, {tR4}, {vA1}""", ('after', 'rp2dma'),
           f"""s_lshl_b32 {tR2}, {tR1}, 2
s_add_u32 {tR0}, {tR2}, {sW}
s_mul_i32 {tR0}, {tR0}, {L.SLABW_SZ}
s_add_u32 {tR0}, {tR0}, {L.WS_SLABW}
s_cmp_lt_u32 {sU2}, 164
s_cselect_b32 {tR0}, {tR0}, {OOB}
s_mul_i32 {sUD}, {sUS}, 3072
s_add_u32 {sUD}, {sUD}, {tR0}
s_lshl_b32 {tR3}, {sUS}, 10
s_add_u32 {tR3}, {tR3}, {tR0}
s_add_u32 {tR3}, {tR3}, {L.SLABW_O}
s_add_u32 {sUC}, {sUD}, 3072
s_add_u32 {tR4}, {tR3}, 1024
s_cmp_lt_u32 {sUS}, 80
s_cselect_b32 {sUC}, {sUC}, {OOB}
s_cselect_b32 {tR4}, {tR4}, {OOB}
s_mul_i32 {tM0}, {sUS}, 3277
s_lshr_b32 {tM0}, {tM0}, 16
s_mul_i32 {sUST}, {tM0}, 20
s_sub_u32 {sUST}, {sUS}, {sUST}
s_lshr_b32 {tR0}, {tM0}, 1
s_mul_i32 {tR0}, {tR0}, 20
s_add_u32 {sUST}, {sUST}, {tR0}
s_and_b32 {tR0}, {sW}, 1
s_and_b32 {tM0}, {tM0}, 1
s_cmp_lt_u32 {sUS}, 80
s_cselect_b32 {tM0}, {tM0}, {tR0}
s_cselect_b32 {sUS}, {tR0}, 0
s_add_u32 {sUST}, {sUST}, {sUS}
s_lshl_b32 {sUST}, {sUST}, 10
s_andn2_b32 {tR0}, {sW}, 1
s_add_u32 {tR0}, {tR0}, {tM0}
s_add_u32 {tR0}, {tR0}, {tR2}
s_mul_i32 {tR0}, {tR0}, {L.SLABW_SZ}
s_add_u32 {sUST}, {sUST}, {tR0}
s_add_u32 {sUST}, {sUST}, {L.WS_SLABW + L.SLABW_S}
s_cmp_lt_u32 {sU2}, 164
s_cselect_b32 {sUST}, {sUST}, {OOB}
s_mul_i32 {sUS}, {sUS}, {16 * 1152}
s_add_u32 {sUS}, {sUS}, 256
s_and_b32 {tR2}, {sW}, 1
s_mul_i32 {tR2}, {tR2}, 320""", ('after', f'B{RA + 1}')])
vB1_, vB2_ = f'v{TMP + 32}', f'v{TMP + 33}'
frs = []
for lam in range(4):
    pre = [f's_add_u32 {tR0}, {tR1}, {lam + 1}', f's_and_b32 {tR0}, {tR0}, 3', f's_lshl_b32 {tR0}, {tR0}, 6', f's_add_u32 {tR0}, {tR0}, {tR2}',
           f'v_add_u32 {vB1_}, {tR0}, {vA1}', f'v_add_u32 {vB2_}, {tR0}, {vA2}']
    for k2 in range(2):
        dst = ((sUD, sUC)[k2], lam * 1024) if lam < 3 else ((tR3, tR4)[k2], 0)
        frs.append((pre if k2 == 0 else [], k2 * 16 * 1152, dst))
frs.append(([f'v_add_u32 {vB1_}, {sUS}, {vA1}', f'v_add_u32 {vB2_}, {sUS}, {vA2}'], 0, (sUST, 0)))
for f in range(11):
    if f < 9:
        t = RPT + 4 * (f % 4)
        pre, off, _ = frs[f]
        st_rp.add(pre + [f'ds_read_b64_tr_b16 v[{t}:{t + 1}], {vB1_} offset:{off}', f'ds_read_b64_tr_b16 v[{t + 2}:{t + 3}], {vB2_} offset:{off}'])
    else:
        st_rp.add([('gap', 2)])
    if f >= 2:
        f2 = f - 2
        t2_ = RPT + 4 * (f2 % 4)
        sb, im = frs[f2][2]
        st_rp.add([Inst(f'buffer_store_dwordx4 v[{t2_}:{t2_ + 3}], {vLANE16}, {srd(SRD_WS)}, {sb} offen offset:{im} sc1', tag='rp2st')] + ([('gap', OPT['rgap'])] if OPT['rgap'] else []))
st_rp.add([('mark', 'rp2done'), ('after', f'B{RA + 4}'),
           f's_lshl_b32 {tR0}, {sRPF}, 3\ns_add_u32 {tR0}, {tR0}, {L.WS_FLAG_RP}\ns_cmp_lt_u32 {sU2}, 164\ns_cselect_b32 {tR0}, {tR0}, {OOB}\n'
           f's_cmp_eq_u32 {sW}, 0\ns_cselect_b32 {tR0}, {tR0}, {OOB}', wave_flag(tR0, []), ('mark', 'rp2pub')])

STAGE_FN = {}
for u in range(5):
    STAGE_FN[u] = (dma_a, u)
    STAGE_FN[5 + u] = (dma_q, u)
    STAGE_FN[10 + u] = (dma_b, u)
for p in range(8):
    STAGE_FN[15 + p] = (dma_p, p)
STAGE_FN[23] = (dma_o, 0)
for u in range(2):
    STAGE_FN[24 + u] = (dma_c, u)
TOUCH_AT = {2: [4] if OPT['tfirst'] else [3, 4], 3: [10], 4: [11], 5: [6, 7], 6: [8], 7: [12], 8: [13], 9: [14], 12: [15, 16], 13: [17], 14: [18],
            15: [19], 16: [20], 17: [21], 18: [22], 19: [24], 20: [25]}


STAG_AT = {4: [10], 5: [6, 7, 11], 6: [8, 9], 7: [12], 8: [13], 9: [14], 14: [15, 16, 17, 18], 15: [19], 16: [20], 17: [21], 18: [22],
           19: [24], 20: [25]}


def stag_touch(t):
    fn, arg = STAGE_FN[t]
    o = touch(fn, arg)[:-1]
    o += [f's_cmp_eq_u32 {sP8}, {t % 8}', f's_cselect_b32 {tD0}, {tD0}, {OOB}']
    if fn is dma_b:
        o.append(nodep(f'buffer_load_dword v{vTD}, {vTW}, {srd(SRD_W1)}, {tD0} offen'))
    else:
        npc = {dma_q: 8 if arg < 4 else 4, dma_c: 10}.get(fn) or ((10, 8) if RUNS[arg][0] == 'A' else (8, 6))[RUNS[arg][1] % 2]
        if npc < 8:
            o.append(f'v_min_u32 v11, {(8 * npc - 1) * 128}, {vTCH}')
        o.append(nodep(f'buffer_load_dword v{vTD}, {vTCH if npc >= 8 else "v11"}, {srd(SRD_WS)}, {tD0} offen sc1'))
        if npc > 8:
            o += [f's_add_u32 {tD0}, {tD0}, 8192', nodep(f'buffer_load_dword v{vTD}, {vTL}, {srd(SRD_WS)}, {tD0} offen sc1')]
    return o


def paced(items):
    if not OPT['dmagap']:
        return items
    o = []
    for x in items:
        o.append(x)
        if isinstance(x, Inst):
            o.append(('gap', OPT['dmagap']))
    return o


st_dma = Stream('dma')
st_dma.add(([] if OPT['x23'] else xload(2)) + paced(dma_a(1)) + [('mark', 'dma1')] + ([] if OPT['x23'] else xload(3)) + paced(xload(4)))
for g in range(2, NSTG):
    fn, arg = STAGE_FN[g]
    if g == 5:
        st_dma.add([('after', 'e_ok')])
        if OPT['btouch'] == 1:
            def bt1():
                E(f's_and_b32 {tD0}, {sR}, 7\ns_lshl_b32 {tD0}, {tD0}, 2\ns_add_u32 {tD0}, {tD0}, {sW}\ns_mul_i32 {tD1}, {tD0}, {36 * 128}\n'
                  f's_add_u32 {tD1}, {tD1}, {sQ0}\ns_sub_u32 {tD1}, {tD1}, {sL8}\nv_min_u32 v11, {35 * 128}, {vTCH}')
                E.emit(nodep(f'buffer_load_dword v{vTD}, v11, {srd(SRD_WS)}, {tD1} offen sc1'))
                E(f's_mul_i32 {tD1}, {tD0}, {18 * 9216}\ns_add_u32 {tD1}, {tD1}, {sB0}\ns_mul_i32 {tD0}, {sW}, {32 * 9216}\ns_sub_u32 {tD1}, {tD1}, {tD0}\n'
                  f'v_min_u32 v11, 35, v1\nv_lshrrev_b32 {vTW}, 1, v11\nv_mul_u32_u24 {vTW}, 9216, {vTW}\nv_and_b32 v11, 1, v11\nv_lshl_add_u32 v11, v11, 7, {vTW}')
                E.emit(nodep(f'buffer_load_dword v{vTD}, v11, {srd(SRD_W1)}, {tD1} offen'))
            st_dma.add([('call', bt1)])
    if g == AUXAT:
        st_dma.add([('after', 'Bodone')])
    st_dma.add([('after', f'B{max(DMA_AFTER[g], 0) if g > 2 else 0}')] + paced(fn(arg)) + [('mark', f'dma{g}')])
    if g == 2:
        st_dma.add(paced(xload(5) + xload(6)))
    if g == 3:
        st_dma.add(paced(xload(7) + xload(8)))
    if g == 3 and OPT['btouch'] == 2:
        st_dma.add([f's_and_b32 {sP8}, {sR}, 7\nv_lshrrev_b32 {vTW}, 1, v1\nv_mul_u32_u24 {vTW}, 9216, {vTW}\nv_and_b32 v11, 1, v1\n'
                    f'v_lshl_add_u32 {vTW}, v11, 7, {vTW}\nv_min_u32 {vTL}, {15 * 128}, {vTCH}'])
    if g == OPT['rp2at']:
        o = [('after', 'rp2setup')]
        for i in range(9):
            if i % 4 == 0:
                o += [f's_add_u32 m0, {sL9}, {AUX + i * 1024}'] + ([f's_add_u32 {tR3}, {tR3}, 4096'] if i else [])
            o.append(Inst(f'buffer_load_dwordx4 {vLANE16}, {srd(SRD_RP)}, {tR3} offen offset:{(i % 4) * 1024} lds', tag='rp2'))
        st_dma.add(paced(o) + [('mark', 'rp2dma')])
    if g == 14:
        st_dma.add([('after', 'w_ok')])
    if OPT['btouch'] == 2:
        for t in STAG_AT.get(g, []):
            st_dma.add(stag_touch(t))
    if OPT['stouch'] and not (OPT['btouch'] and g > 2):
        for t in TOUCH_AT.get(g, []):
            st_dma.add(touch(*STAGE_FN[t]))


st_pol = Stream('pol')
st_pol.add([('after', 'nonce_ok'), ('after', 'eupub'), ('after', OPT_E)])
st_pol.add(poll_item(None, vPA, vPF, 'pfe', OPT['pchk']) + [('mark', 'e_ok')])
st_pol.add([f'v_and_b32 {vPA}, 31, v1\nv_lshlrev_b32 {vPA}, 2, {vPA}',
            f'buffer_load_dword v{vPF}, {vPA}, {srd(SRD_WS)}, {sSTB} offen sc1', ('gap', 22),
            f"""v_xor_b32 v{vPF + 1}, 0x8000, v{vPF}
v_and_b32 v{vPF + 1}, 0xffff, v{vPF + 1}
v_lshl_or_b32 v{vPF + 1}, v{vPF + 1}, 16, v{vPF + 1}
v_lshrrev_b32 {vPA}, 16, v{vPF}
v_and_b32 v{vPF}, {vMASKHI}, v{vPF}
v_rcp_f32 {vRSTD}, v{vPF}
s_mov_b32 {tC0}, -1
s_mov_b32 {tC1}, 0
v_cndmask_b32 v{BCOR}, {vPA}, v{vPF + 1}, s[92:93]
v_cndmask_b32 v{BCOR + 1}, 0, v{vPF + 1}, s[92:93]
v_cndmask_b32 v{BCOR + 2}, 0, v{vPF + 1}, s[92:93]
v_cndmask_b32 v{BCOR + 3}, 0, v{vPF + 1}, s[92:93]""", ('mark', 'bcor')])
st_pol.add([('after', 'rp2pub'), ('after', 'pubA'), ('after', 'trdone'), ('after', f'B{OPT["pfwat"]}')])
st_pol.add(poll_item(f'v_lshrrev_b32 {vPA}, 1, {vLANE16}\nv_min_u32 {vPA}, {40 * 8}, {vPA}\ns_mul_i32 {tC0}, {sS}, {41 * 8}\n'
                     f's_add_u32 {tC0}, {tC0}, {L.WS_FLAG_RP}\nv_add_u32 {vPA}, {tC0}, {vPA}\n'
                     f'v_and_b32 v{vPF}, 3, v1\nv_lshlrev_b32 v{vPF}, 3, v{vPF}\nv_add_u32 v{vPF}, {sGF}, v{vPF}\n'
                     f'v_cmp_gt_u32 vcc, 48, v1\nv_cndmask_b32 {vPA}, v{vPF}, {vPA}, vcc', vPA, vPF, 'pfw', OPT['pchk']) + [('mark', 'w_ok'), ('mark', 'pf_free')])


def ffn_epi(n, tag):
    o = [('after', f'fin{n}' if n < 5 else 'fin8'), ('gap', 1)]
    t = TMP if n < 5 else 136
    X = t + 8
    for half in range(2):
        for e in range(8):
            o.append(f'v_accvgpr_read_b32 v{t + e}, a{16 * n + 8 * half + e}')
        for e in range(8):
            o.append(f'v_mul_f32 v{t + e}, v{t + e}, |v{t + e}|')
        for p in range(4):
            o.append(f'v_cvt_pk_bf16_f32 v{X + 4 * half + p}, v{t + 2 * p}, v{t + 2 * p + 1}')
        for p in range(4):
            o.append(f'v_pk_max_i16 v{X + 4 * half + p}, v{X + 4 * half + p}, 0')
    if not OPT['hbatch']:
        o.append(f's_add_u32 {tE0}, {sGB}, {2048 * n}')
        o.append(Inst(f'buffer_store_dwordx4 v[{X}:{X + 3}], {vLANE16}, {srd(SRD_WS)}, {tE0} offen{GS}', tag=tag))
        o.append(Inst(f'buffer_store_dwordx4 v[{X + 4}:{X + 7}], {vLANE16}, {srd(SRD_WS)}, {tE0} offen offset:1024{GS}', tag=tag))
    for d in range(8):
        o.append(f'v_accvgpr_write_b32 a{HP(n) + d}, v{X + d}')
    o.append(('mark', f'h{n}'))
    if OPT['hbatch'] and (n == 8 or (n == 4 and not OPT['sgap'])):
        if OPT['quiet']:
            o += [('idle', st_dma), ('quiet', OPT['quiet'])]
        for i, ks in enumerate(range(0, 10) if n == 4 else range(10, 18)):
            if i % 4 == 0:
                o.append(f's_add_u32 {tE0}, {sGB}, {1024 * ks}')
            r = HP(ks // 2) + 4 * (ks & 1)
            o.append(Inst(f'buffer_store_dwordx4 a[{r}:{r + 3}], {vLANE16}, {srd(SRD_WS)}, {tE0} offen offset:{(i % 4) * 1024}{GS}', tag=tag))
    return o


def g_publish(ev, tag, first_kb, nlines, tmps):
    o = [('gap', OPT['pubgap'])] + ([('idle', st_dma), ('quiet', OPT['quiet'])] if (OPT['quiet'] and OPT['gtouch']) else []) + [f's_lshl_b32 {tmps}, {sC}, 3\ns_add_u32 {tmps}, {tmps}, {sGF}', wave_flag(tmps, [tag], 32 * ev)]
    if OPT['gtouch']:
        for k in range(0, nlines, 64):
            n = min(64, nlines - k)
            o.append(f's_add_u32 {tmps}, {sGB}, {first_kb * 2048 + k * 128}')
            if n < 64:
                o.append(f'v_min_u32 {vXO}, {(n - 1) * 128}, {vTCH}')
            o.append(nodep(f'buffer_load_dword v{vTD}, {vTCH if n == 64 else vXO}, {srd(SRD_WS)}, {tmps} offen sc1'))
    return o


st_epi = Stream('epi')
st_epi.add([('after', 'trdone')])
for n in range(5):
    st_epi.add(ffn_epi(n, 'gsta'))
st_hs = Stream('hs')
if OPT['sgap']:
    st_epi.add([('mark', 'epiA')])
    tH = 's70'
    for ks in range(10):
        r = HP(ks // 2) + 4 * (ks & 1)
        st_hs.add([('after', f'h{ks // 2}')] + ([f's_add_u32 {tH}, {sGB}, {1024 * ks}'] if ks % 4 == 0 else []) +
                  [Inst(f'buffer_store_dwordx4 a[{r}:{r + 3}], {vLANE16}, {srd(SRD_WS)}, {tH} offen offset:{(ks % 4) * 1024}{GS}', tag='gsta'),
                   ('gap', OPT['sgap'])])
    st_hs.add(g_publish(0, 'gsta', 0, 80, tH) + [('mark', 'pubA')])
else:
    st_epi.add([('mark', 'epiA')] + g_publish(0, 'gsta', 0, 80, tE0) + [('mark', 'pubA')])
for n in range(5, 9):
    st_epi.add(ffn_epi(n, 'gstb'))
st_epi.add([('mark', 'epiB')] + g_publish(1, 'gstb', 5, 64, tE0) + [('mark', 'pubB')])

vKW, vHX = 'v2', 'v3'
st_att = Stream('att')
T2 = TMP + 16
st_att.add([('after', 'rp2done'), ('after', 'trdone'), ('after', f'B{max(8, RA + 3)}'),
            f"""v_and_b32 v{T2}, 31, v1
s_lshl_b32 {tA0}, {sW}, 5
v_add_u32 v{T2 + 1}, {tA0}, v{T2}
v_mul_u32_u24 v{T2 + 1}, {PITCH}, v{T2 + 1}
v_lshrrev_b32 v{T2 + 2}, 5, v1
v_lshl_add_u32 v{T2 + 1}, v{T2 + 2}, 4, v{T2 + 1}
v_add_u32 {vKW}, {QB1}, v{T2 + 1}
v_subrev_u32 {vHX}, {112 * PITCH}, v{T2 + 1}
s_lshl_b32 {tA0}, {sR}, 4
s_add_u32 {tA0}, {tA0}, {sJ}
s_add_u32 {tA0}, {tA0}, 16
s_lshl_b32 {tA1}, {tA0}, 12
s_add_u32 {tA1}, {tA1}, {L.WS_HALO}
s_cmp_eq_u32 {sR}, 15
s_cselect_b32 {tA1}, {OOB}, {tA1}
v_mov_b32 v{T2 + 2}, {OOB}
v_cmp_gt_u32 vcc, {112 * PITCH}, v{T2 + 1}
v_cndmask_b32 {vHX}, {vHX}, v{T2 + 2}, vcc"""])
hcount = 0
for t4 in (1, 2, 3, 0):
    o = [('after', f'qfin{t4}'), ('gap', 2)]
    for hh in range(2 if t4 < 3 else 1):
        X = T2 + 8 + 4 * (hcount % 2)
        hcount += 1
        for e in range(8):
            o.append(f'v_accvgpr_read_b32 v{T2 + e}, a{QA + 16 * t4 + 8 * hh + e}')
        for e in range(8):
            o.append(f'v_mul_f32 v{T2 + e}, v{T2 + e}, {vRSTD}')
        for pp in range(4):
            o.append(f'v_cvt_pk_bf16_f32 v{X + pp}, v{T2 + 2 * pp}, v{T2 + 2 * pp + 1}')
        if t4:
            o.append(Inst(f'buffer_store_dwordx4 v[{X}:{X + 3}], {vHX}, {srd(SRD_WS)}, {tA1} offen offset:{64 * t4 + 32 * hh} sc1', tag='hxst'))
        o.append(Inst(f'ds_write_b128 {vKW}, v[{X}:{X + 3}] offset:{64 * t4 + 32 * hh}', tag='kvw'))
    if t4 == 3:
        o.append(('mark', 'hx'))
    st_att.add(o)


def kv_barrier():
    E.wait_tags(['kvw'])
    E('s_barrier')
    S.marks.add('Bkv')


st_att.add([('mark', 'kvw'), ('gap', 3), ('call', kv_barrier)])
st_hal = Stream('hal')
st_hal.add([('after', 'hx'), ('gap', OPT['hxgap']), f's_lshl_b32 {tA1}, {tA0}, 7\ns_add_u32 {tA1}, {tA1}, {L.WS_FLAG_HALO}\ns_cmp_eq_u32 {sW}, 3\ns_cselect_b32 {tA1}, {tA1}, {OOB}',
            wave_flag(tA1, ['hxst'])])
SC = 0.2357022603955158 * 1.4426950408889634
A0, A0R, AP, APR, VT, VTP = (f'v{TMP + i}' for i in range(6))
vSD = [f'v{TMP + 34}', f'v{TMP + 35}']
st_at2 = Stream('at2')
st_at2.add([('after', 'kvw'), ('after', 'epiA'), f"""v_and_b32 v{TMP + 8}, 15, v1
v_lshlrev_b32 v{TMP + 9}, 2, v{TMP + 8}""",
            f'buffer_load_dword {vSD[0]}, v{TMP + 9}, {srd(SRD_WS)}, {sSTB} offen sc1',
            f'buffer_load_dword {vSD[1]}, v{TMP + 9}, {srd(SRD_WS)}, {sSTB} offen offset:64 sc1',
            f"""v_lshrrev_b32 v{TMP + 9}, 4, v1
s_mul_i32 {tA2}, {sW}, {32 * PITCH}
s_add_u32 {tA2}, {tA2}, {QB1}
s_sub_u32 {tA3}, {tA2}, {16 * PITCH}
s_cmp_eq_u32 {sW}, 0
s_cselect_b32 {tA3}, {QB}, {tA3}
v_mul_u32_u24 v{TMP + 10}, {PITCH}, v{TMP + 8}
v_add_u32 {A0R}, {tA2}, v{TMP + 10}
v_add_u32 {APR}, {tA3}, v{TMP + 10}
v_lshl_add_u32 {A0}, v{TMP + 9}, 3, {A0R}
v_lshl_add_u32 {AP}, v{TMP + 9}, 3, {APR}
v_lshrrev_b32 v{TMP + 10}, 2, v1
v_mul_u32_u24 v{TMP + 10}, {PITCH}, v{TMP + 10}
v_and_b32 v{TMP + 11}, 3, v1
v_lshl_add_u32 v{TMP + 10}, v{TMP + 11}, 3, v{TMP + 10}
v_add_u32 {VT}, {tA2}, v{TMP + 10}
v_add_u32 {VTP}, {tA3}, v{TMP + 10}
s_add_u32 {tA2}, {sGB}, {9 * 2048}
s_sub_u32 {tA3}, {sGF}, {L.WS_FLAG_G}
s_lshl_b32 {tA3}, {tA3}, 3
s_lshr_b32 {tM0}, {sC}, 1
s_lshl_b32 {tM0}, {tM0}, 9
s_add_u32 {tA3}, {tA3}, {tM0}
s_and_b32 {tM0}, {sC}, 1
s_lshl_b32 {tM0}, {tM0}, 3
s_add_u32 {tA3}, {tA3}, {tM0}
s_add_u32 {tA3}, {tA3}, {L.WS_GREM}
v_lshrrev_b32 v{TMP + 10}, 5, v1
v_lshlrev_b32 v{TMP + 10}, 9, v{TMP + 10}
v_lshl_add_u32 v{TMP + 10}, v{TMP + 8}, 4, v{TMP + 10}
v_and_b32 v{TMP + 9}, 1, v{TMP + 9}
v_lshl_add_u32 v2, v{TMP + 9}, 3, v{TMP + 10}""", ('after', 'Bkv'), ('after', 'bcor3')])
QV = TMP + 6
SV = TMP + 14
PB = [196, BCOR]
m0_, m1_, t1_, t2_ = f'v{TMP + 30}', f'v{TMP + 31}', 'v200', 'v205'


def att_block(b):
    o = []
    for hd in range(2):
        mo = 0 if hd == 0 else 40
        for wh in range(2):
            kb = b + wh
            kr = AK[hd] + 4 * wh
            a, ar, off = (AP, APR, 0) if kb == 0 else (A0, A0R, (kb - 1) * 16 * PITCH)
            o.append(f'ds_read_b64 a[{kr}:{kr + 1}], {a} offset:{off + 72 + mo}')
            o.append(f'ds_read_b64 a[{kr + 2}:{kr + 3}], {ar} offset:{off + 72 + 32}')
        Q = QV + 4 * hd
        o.append(f'ds_read_b64 v[{Q}:{Q + 1}], {A0} offset:{b * 16 * PITCH + mo}')
        o.append(f'ds_read_b32 v{Q + 2 + hd}, {A0R} offset:{b * 16 * PITCH + 32 + 4 * hd}')
        o.append(f'v_mov_b32 v{Q + 3 - hd}, 0')
    for tl, ch in enumerate((18, 23, 22)):
        vr = AK[2 + tl // 2] + 4 * (tl % 2)
        for wh in range(2):
            kb = b + wh
            a, off = (VTP, 0) if kb == 0 else (VT, (kb - 1) * 16 * PITCH)
            o.append(f'ds_read_b64_tr_b16 a[{vr + 2 * wh}:{vr + 2 * wh + 1}], {a} offset:{off + 8 * ch}')
    for hd in range(2):
        Q = QV + 4 * hd
        o.append(f'v_cndmask_b32 v{Q + 2 + hd}, 0, v{Q + 2 + hd}, {M16}')
    o.append(f'v_and_b32 {vSD[b]}, {vMASKHI}, {vSD[b]}')
    o.append(f'v_mul_f32 {vSD[b]}, {vSD[b]}, {vSD[b]}')
    for hd in range(2):
        Q = QV + 4 * hd
        for wh in range(2):
            kr = AK[hd] + 4 * wh
            sr = SV + 8 * hd + 4 * wh
            bias = BIASR + 4 * wh
            o.append(f'v_mfma_f32_16x16x32_bf16 v[{sr}:{sr + 3}], a[{kr}:{kr + 3}], v[{Q}:{Q + 3}], v[{bias}:{bias + 3}]')
    o.append(('gap', 1))
    for hd, m in enumerate((m0_, m1_)):
        s = [f'v{SV + 8 * hd + i}' for i in range(8)]
        t = (t1_, t2_)[hd]
        o += [f'v_max3_f32 {m}, {s[0]}, {s[1]}, {s[2]}', f'v_max3_f32 {t}, {s[3]}, {s[4]}, {s[5]}',
              f'v_max3_f32 {m}, {m}, {s[6]}, {s[7]}', f'v_max_f32 {m}, {m}, {t}']
    o += [f'v_mov_b32 {t2_}, {fl(SC)}', ('gap', 1),
          f'v_permlane16_swap_b32 {m0_}, {m1_}', f'v_max_f32 {m0_}, {m0_}, {m1_}', f'v_mov_b32 {m1_}, {m0_}', ('gap', 1),
          f'v_permlane32_swap_b32 {m0_}, {m1_}', f'v_max_f32 {m0_}, {m0_}, {m1_}', f'v_mul_f32 {m0_}, {fl(-SC)}, {m0_}',
          f'v_mov_b32 {m1_}, {m0_}', ('gap', 1), f'v_permlane16_swap_b32 {m0_}, {m1_}']
    for hd, m in enumerate((m0_, m1_)):
        s = [f'v{SV + 8 * hd + i}' for i in range(8)]
        for i in range(8):
            o.append(f'v_fma_f32 {s[i]}, {s[i]}, {t2_}, {m}')
        for i in range(8):
            o.append(f'v_exp_f32 {s[i]}, {s[i]}')
    for hd in range(2):
        s = [f'v{SV + 8 * hd + i}' for i in range(8)]
        for i in range(4):
            o.append(f'v_cvt_pk_bf16_f32 v{PB[hd] + i}, {s[2 * i]}, {s[2 * i + 1]}')
    for hd in range(2):
        P = f'v[{PB[hd]}:{PB[hd] + 3}]'
        vm = AK[2] + 4 * hd
        o.append(f'v_mfma_f32_16x16x32_bf16 v[{QV + 4 * hd}:{QV + 4 * hd + 3}], a[{ONESR}:{ONESR + 3}], {P}, 0')
        o.append(f'v_mfma_f32_16x16x32_bf16 v[{SV + 8 * hd}:{SV + 8 * hd + 3}], a[{vm}:{vm + 3}], {P}, 0')
        o.append(f'v_mfma_f32_16x16x32_bf16 v[{SV + 8 * hd + 4}:{SV + 8 * hd + 7}], a[{AK[3]}:{AK[3] + 3}], {P}, 0')
    o.append(('gap', 1))
    for hd, m in enumerate((m0_, m1_)):
        o.append(f'v_rcp_f32 {m}, v{QV + 4 * hd}')
    for hd, m in enumerate((m0_, m1_)):
        o.append(f'v_mul_f32 {m}, {m}, {vSD[b]}')
    for hd, m in enumerate((m0_, m1_)):
        r = SV + 8 * hd
        for i in (0, 1, 2, 3, 4 + 2 * hd, 5 + 2 * hd):
            o.append(f'v_mul_f32 v{r + i}, v{r + i}, {m}')
    for hd in range(2):
        r = SV + 8 * hd
        o.append(f'v_cvt_pk_bf16_f32 v{QV + 2 * hd}, v{r}, v{r + 1}')
        o.append(f'v_cvt_pk_bf16_f32 v{QV + 2 * hd + 1}, v{r + 2}, v{r + 3}')
        o.append(f'v_cvt_pk_bf16_f32 v{QV + 4 + hd}, v{r + 4 + 2 * hd}, v{r + 5 + 2 * hd}')
    for hd in range(2):
        o.append(Inst(f'buffer_store_dwordx2 v[{QV + 2 * hd}:{QV + 2 * hd + 1}], v2, {srd(SRD_WS)}, {tA2} offen offset:{1024 * hd + 256 * b}{GS}', tag='ost'))
    o.append(Inst(f'buffer_store_dwordx2 v[{QV + 4}:{QV + 5}], {vREM}, {srd(SRD_WS)}, {tA3} offen offset:{256 * b}{GS}', tag='ost'))
    return o


st_at2.add(att_block(1))
vH = TMP + 32
st_hal.add([('gap', OPT['higap']),
            f's_sub_u32 {tA0}, {tA0}, 16\ns_lshl_b32 {tA1}, {tA0}, 7\ns_add_u32 {tA1}, {tA1}, {L.WS_FLAG_HALO}\ns_lshl_b32 {tM1}, {sJ}, 5\n'
            f's_add_u32 {tM1}, {tM1}, {L.WS_FLAG_U}\ns_cmp_eq_u32 {sR}, 0\ns_cselect_b32 {tA1}, {tM1}, {tA1}\nv_mov_b32 v3, {tA1}'])
HL = f'buffer_load_dwordx2 v[{vH}:{vH + 1}], v3, {srd(SRD_WS)}, 0 offen sc1'
st_hal.add([Inst(HL, tag='pfh'), ('gap', 22)])


def halo_import():
    poll_check(HL, flags_cmp(vH), 'pfh')
    E(f's_cmp_lg_u32 {sW}, 0\ns_cbranch_scc1 L_HI')
    E(f's_lshl_b32 {tA1}, {tA0}, 12\ns_add_u32 {tA1}, {tA1}, {L.WS_HALO}\ns_cmp_eq_u32 {sR}, 0\ns_cselect_b32 {tA1}, {OOB}, {tA1}')
    E(f's_mov_b32 {tM1}, m0\ns_mov_b32 m0, {QB}\ns_nop 0')
    for i in range(4):
        E.raw(f'    buffer_load_dwordx4 {vLANE16}, {srd(SRD_WS)}, {tA1} offen offset:{i * 1024} sc1 lds')
    E(f's_mov_b32 m0, {tM1}')
    E('L_HI:')
    E(f'buffer_load_dword v{vH}, v14, {srd(SRD_DBG)}, 0 offen', tag='himp')


st_hal.add([('call', halo_import), ('gap', 22), ('call', lambda: E.wait_tags(['himp'])), ('mark', 'halo_in')])
st_at2.add([f's_or_b32 {tM0}, {sR}, {sW}\ns_cmp_eq_u32 {tM0}, 0\ns_cselect_b32 {tM0}, 0xf149f2ca, 0'] +
           [f'v_min_f32 v{BIASR + i}, {tM0}, v{BIASR + i}' for i in range(4)] + [('after', 'halo_in')])
st_at2.add(att_block(0))
st_at2.add([('mark', 'odone'), ('gap', OPT['pubgap']), f's_lshl_b32 {tA2}, {sC}, 3\ns_add_u32 {tA2}, {tA2}, {sGF}', wave_flag(tA2, ['ost'], 64), ('mark', 'opub')])

st_act = Stream('act')
GPA = f'v_and_b32 {vPA}, 3, v1\nv_lshlrev_b32 {vPA}, 3, {vPA}\nv_add_u32 {vPA}, {sGF}, {vPA}'


def act_load(key, soff, off):
    o = []
    kind, r = ACT[key]
    if kind == 'v':
        o.append(('after', 'odone' if r >= BIASR else (f'bs{(r - 16) // 16}' if r + 4 <= 136 else 'epiB')))
    elif r >= AK[0]:
        o.append(('after', 'odone'))
    elif r >= QA:
        o.append(('after', 'kvw'))
    elif r >= 128:
        o.append(('after', 'epiB'))
    else:
        o.append(('after', 'epiA'))
    o.append(f'buffer_load_dwordx4 {act_regs(key)}, {vLANE16}, {srd(SRD_WS)}, {soff} offen offset:{off}{GS}')
    o.append(('mark', f'act{kname(key)}'))
    return o


st_act.add([('after', 'pf_free'), ('after', 'kvw'), GPA])
for k in range(1, 4):
    for ks in range(10):
        if ks % 4 == 0:
            st_act.add([f's_add_u32 {tC0}, {sGP[k]}, {ks * 1024}'])
        st_act.add(act_load((k, ks), tC0, (ks % 4) * 1024))
st_act.add([('after', 'pubB'), ('gap', OPT['pollgap'])])
st_act.add(poll_item(f'v_add_u32 {vPA}, 32, {vPA}', vPA, vPF, 'pfb', OPT['pchk']))
for k in range(1, 4):
    for ks in range(10, 18):
        if (ks - 10) % 4 == 0:
            st_act.add([f's_add_u32 {tC0}, {sGP[k]}, {ks * 1024}'])
        st_act.add(act_load((k, ks), tC0, ((ks - 10) % 4) * 1024))
st_ao = Stream('ao')
tO0, tO1 = 's90', 's91'
st_ao.add([('after', 'opub'), ('gap', OPT['ogap'])])
st_ao.add(poll_item(f'v_and_b32 v{BCOR + 2}, 3, v1\nv_lshlrev_b32 v{BCOR + 2}, 3, v{BCOR + 2}\ns_add_u32 {tO0}, {sGF}, 64\nv_add_u32 v{BCOR + 2}, {tO0}, v{BCOR + 2}',
                    f'v{BCOR + 2}', BCOR, 'pfo', OPT['pchk']))
st_ao.add([f's_sub_u32 {tO0}, {sGF}, {L.WS_FLAG_G}\ns_lshl_b32 {tO0}, {tO0}, 3\ns_add_u32 {tO0}, {tO0}, {L.WS_GREM}'] + act_load('rem', tO0, 0))
for k in (0, 2, 1, 3):
    st_ao.add([f's_add_u32 {tO0}, {sGP[k] if k else sGB}, {18 * 1024}'] + act_load((k, 18), tO0, 0) + act_load((k, 19), tO0, 1024))
st_ao.add([('gap', 15), f's_and_b32 {tO0}, {sC}, 1\ns_sub_u32 {tO0}, {tO0}, 1\ns_not_b32 {tO1}, {tO0}'] +
          [f'v_cndmask_b32 v{BIASR + 4 + d}, 0, v{BIASR + d}, s[90:91]' for d in range(4)] + [('mark', 'actremS')])

XB = TMP
XR = TMP + 20
vOA, vOS, vRS2 = 'v4', 'v5', 'v6'
SOM, SOS = 's20', 's21'
st_fin = Stream('fin')
st_fin.add([('after', 'opub'), ('after', 'fin8'), ('after', 'B18'),
            f"""v_lshrrev_b32 v2, 2, v1
v_mul_u32_u24 v2, 1152, v2
v_and_b32 v3, 3, v1
v_lshlrev_b32 v3, 4, v3
v_add_u32 {vOA}, v2, v3
s_lshr_b32 {tA0}, {sC}, 1
s_mul_i32 {tA0}, {tA0}, 576
s_and_b32 {tA1}, {sC}, 1
s_mul_i32 {tA2}, {tA1}, 320
s_add_u32 {tA2}, {tA2}, {tA0}
s_lshl_b32 {tA3}, {sS}, 6
s_add_u32 {tA2}, {tA2}, {tA3}
s_add_u32 {SOM}, {sXB}, {tA2}""",
            f'buffer_load_dwordx4 v[{XR}:{XR + 3}], {vOA}, {srd(SRD_X)}, {SOM} offen',
            f's_add_u32 {tA3}, {SOM}, {16 * 1152}',
            f'buffer_load_dwordx4 v[{XR + 4}:{XR + 7}], {vOA}, {srd(SRD_X)}, {tA3} offen',
            f'buffer_load_dwordx4 v[{XR + 8}:{XR + 11}], v3, {srd(SRD_B)}, {tA2} offen',
            f"""v_and_b32 v2, 15, v1
v_bfe_u32 v3, v1, 4, 1
v_lshlrev_b32 v3, 3, v3
v_mul_u32_u24 v7, 1152, v2
v_add_u32 v7, v7, v3
v_mov_b32 {vOS}, {OOB}
v_cmp_gt_u32 vcc, 32, v1
v_cndmask_b32 {vOS}, {vOS}, v7, vcc
s_lshl_b32 {tA2}, {sR}, 2
s_add_u32 {tA2}, {tA2}, {sS}
s_lshl_b32 {tA2}, {tA2}, 1
s_add_u32 {tA2}, {tA2}, {tA1}
s_lshl_b32 {tA3}, {tA2}, 6
s_add_u32 {tA3}, {tA3}, {L.WS_STAT}
v_lshlrev_b32 v2, 2, v2""",
            f'buffer_load_dword {vRS2}, v2, {srd(SRD_WS)}, {tA3} offen sc1',
            f"""s_mul_i32 {tA2}, {tA2}, {16 * 1152}
s_lshl_b32 {tA3}, {sW}, 4
s_add_u32 {tA3}, {tA3}, {tA0}
s_add_u32 {tA3}, {tA3}, 256
s_add_u32 {SOS}, {tA2}, {tA3}""",
            f'buffer_load_dwordx2 v[{XR + 12}:{XR + 13}], {vOS}, {srd(SRD_X)}, {SOS} offen',
            f'buffer_load_dwordx2 v[{XR + 14}:{XR + 15}], v3, {srd(SRD_B)}, {tA3} offen', ('gap', 40)])
for d in range(4):
    for hi in range(2):
        un = (lambda r, dst: f'v_and_b32 {dst}, {vMASKHI}, v{r}') if hi else (lambda r, dst: f'v_lshlrev_b32 {dst}, 16, v{r}')
        st_fin.add([un(XR + 8 + d, 'v2')])
        for rd in range(2):
            st_fin.add([un(XR + 4 * rd + d, 'v3'), f'v_add_f32 v{XB + 8 * rd + 2 * d + hi}, v2, v3'])
for d in range(2):
    for hi in range(2):
        un = (lambda r, dst: f'v_and_b32 {dst}, {vMASKHI}, v{r}') if hi else (lambda r, dst: f'v_lshlrev_b32 {dst}, 16, v{r}')
        st_fin.add([un(XR + 12 + d, 'v2'), un(XR + 14 + d, 'v3'), f'v_add_f32 v{XB + 16 + 2 * d + hi}, v2, v3'])
SND = ['s16', 's17', 's18', 's19']
RCV = ['s12', 's13', 's15', 's38', 's39']
st_fin.add([f"""v_and_b32 {vRS2}, {vMASKHI}, {vRS2}
v_mul_f32 {vRS2}, {vRS2}, {vRS2}
v_rcp_f32 {vRS2}, {vRS2}
v_mul_f32 {vRSTD}, {vRSTD}, {vRSTD}
s_lshl_b32 {tA0}, {sR}, 2
s_add_u32 {tA0}, {tA0}, {sC}
s_lshl_b32 {tA0}, {tA0}, 18
s_add_u32 {tA0}, {tA0}, {L.WS_PART}
s_lshl_b32 {tA2}, {sW}, 12
s_add_u32 {tA0}, {tA0}, {tA2}
s_lshl_b32 {tA2}, {sS}, 14
s_add_u32 {tA2}, {tA2}, {tA0}"""])
for k in range(1, 4):
    st_fin.add([f's_add_u32 {tA3}, {sS}, {k}\ns_and_b32 {tA3}, {tA3}, 3\ns_lshl_b32 {tA3}, {tA3}, 16\ns_add_u32 {SND[k]}, {tA3}, {tA2}'])
st_fin.add([f"""s_lshl_b32 {tA2}, {sR}, 1
s_lshr_b32 {tA3}, {sC}, 1
s_add_u32 {tA2}, {tA2}, {tA3}
s_lshl_b32 {tM0}, {tA2}, 17
s_add_u32 {tM0}, {tM0}, {L.WS_PARTS}
s_lshl_b32 {tM1}, {sS}, 1
s_add_u32 {tM1}, {tM1}, {tA1}
s_lshl_b32 {tA3}, {tM1}, 11
s_add_u32 {SND[0]}, {tM0}, {tA3}
s_lshl_b32 {tA3}, {sW}, 15
s_add_u32 {SND[0]}, {SND[0]}, {tA3}
s_lshl_b32 {tA3}, {tM1}, 14
s_add_u32 {RCV[0]}, {tM0}, {tA3}
s_lshl_b32 {tA3}, {sW}, 9
s_add_u32 {RCV[0]}, {RCV[0]}, {tA3}
v_bfe_u32 v2, v1, 4, 1
v_lshlrev_b32 v2, 14, v2
v_lshrrev_b32 v3, 5, v1
v_lshl_add_u32 v2, v3, 8, v2
v_and_b32 v11, 15, v1
v_lshl_add_u32 v7, v11, 4, v2
v_lshlrev_b32 v3, 11, v3
v_and_b32 v11, 31, v1
v_lshl_add_u32 v3, v11, 4, v3
v_add_u32 v2, 8192, v3
s_lshl_b32 {tA2}, {sS}, 16
s_add_u32 {tA2}, {tA2}, {tA0}"""])
for k in range(1, 4):
    st_fin.add([f's_add_u32 {tA3}, {sS}, {k}\ns_and_b32 {tA3}, {tA3}, 3\ns_lshl_b32 {tA3}, {tA3}, 14\ns_add_u32 {RCV[k]}, {tA3}, {tA2}'])
PT = XR
PKR = 196
CH = [196, 200, XR + 8, XR + 12]
st_fin.add([f'v_mov_b32 v{c + 3}, v{vNON}' for c in CH] + [('after', f'dma{NSTG - 1}')])
for n in (3, 0, 1, 2):
    st_fin.add([('after', f'pend{n}'), ('gap', 2)])
    for half in range(2):
        st_fin.add([f'v_accvgpr_read_b32 v{PT + e}, a{ACC2[n] + 8 * half + e}' for e in range(8)])
        for d in range(4):
            dd = 4 * half + d
            dst = (CH[dd // 3] + dd % 3) if n < 3 else (CH[dd // 2] + dd % 2)
            st_fin.add([f'v_cvt_pk_bf16_f32 v{dst}, v{PT + 2 * d}, v{PT + 2 * d + 1}'])
    for q in range(3 if n < 3 else 4):
        if n < 3:
            st_fin.add([f'buffer_store_dwordx4 v[{CH[q]}:{CH[q] + 3}], {vLANE16}, {srd(SRD_WS)}, {SND[n + 1]} offen offset:{q * 1024} sc1'])
        else:
            st_fin.add([f'buffer_store_dwordx4 v[{CH[q]}:{CH[q] + 3}], v7, {srd(SRD_WS)}, {SND[0]} offen offset:{q * 512} sc1'])
RB = 80
RXL = []
for k in range(1, 4):
    for q in range(3):
        r = RB + 12 * (k - 1) + 4 * q
        RXL.append(f'buffer_load_dwordx4 v[{r}:{r + 3}], {vLANE16}, {srd(SRD_WS)}, {RCV[k]} offen offset:{q * 1024} sc1')
RS = RB + 36
for i in range(4):
    RXL.append(f'buffer_load_dwordx4 v[{RS + 4 * i}:{RS + 4 * i + 3}], {("v3", "v2")[i // 2]}, {srd(SRD_WS)}, {(RCV[0], RCV[4])[i % 2]} offen sc1')
st_fin.add([f's_add_u32 {RCV[4]}, {RCV[0]}, 4096', ('after', 'rxfree')] + [Inst(x, tag='rx') for x in RXL])

S = Sched(E, [st_dma, st_pol, st_hs, st_hal, st_rp, st_tr, st_att, st_epi, st_at2, st_act, st_ao, st_fin])
S.vrate = OPT['vrate']
S.memorder = [st_pol, st_hs, st_hal, st_att, st_at2, st_epi, st_rp, st_dma, st_act, st_ao, st_fin, st_tr]
S.vcap = OPT['vcap']
S.lat = OPT['lat']
st_dma.edf = True
st_act.edf = True
st_ao.edf = True
if OPT.get('zlo') is not None:
    def hook(i):
        if OPT['zlo'] <= i < OPT['zlo'] + 50 * OPT['zst'] and (i - OPT['zlo']) % OPT['zst'] == 0:
            E.raw(f'; ZSTAMP {nstamp[0]} op {i}')
            stamp()
    S.hook = hook
S.extra_deadline = {f'xl{q}': 20 * (q - 1) for q in range(2, 9)}
S.run(ops, D=OPT['D'], WB=OPT['WB'], budget=3.0, maxmem=OPT['maxmem'])
stamp()
S.drain()
stamp()

OA = 16
TP = 144
E(f"""v_and_b32 v8, 31, v1
v_mul_u32_u24 v8, {TP}, v8
v_lshrrev_b32 v9, 5, v1
v_lshl_add_u32 v8, v9, 4, v8
s_mul_i32 s90, {sW}, {32 * TP}
s_add_u32 s90, s90, {SLOTB[23]}
v_add_u32 v8, s90, v8
v_lshrrev_b32 v11, 2, v1
v_mul_u32_u24 v11, {TP}, v11
v_and_b32 v15, 3, v1
v_lshl_add_u32 v11, v15, 5, v11
v_add_u32 v11, s90, v11""")
for e in range(16):
    E(f'v_accvgpr_read_b32 v{OA + e}, a{ACC2[4] + e}')
E.wait_tags(['rx'])
E('L_RXC:')
tags = [RB + 4 * i + 3 for i in range(13)]
E(f'v_xor_b32 v9, s{NONCE}, v{tags[0]}')
for i in range(1, 13, 2):
    E(f'v_xor_b32 v15, s{NONCE}, v{tags[i]}\nv_xor_b32 v32, s{NONCE}, v{tags[i + 1]}\nv_or3_b32 v9, v9, v15, v32')
E(f'v_cmp_ne_u32 {SPOLL}, 0, v9\ns_cmp_lg_u64 {SPOLL}, 0\ns_cbranch_scc1 L_RXS')
E('L_RXR:')
stamp()
for k in range(3):
    for dd in range(8):
        r = RB + 12 * k + 4 * (dd // 3) + dd % 3
        E(f'v_lshlrev_b32 v32, 16, v{r}\nv_and_b32 v33, {vMASKHI}, v{r}\nv_add_f32 v{OA + 2 * dd}, v{OA + 2 * dd}, v32\nv_add_f32 v{OA + 2 * dd + 1}, v{OA + 2 * dd + 1}, v33')
for q4 in range(4):
    for e in range(4):
        E(f'v_mul_f32 v{OA + 4 * q4 + e}, v{OA + 4 * q4 + e}, {vRSTD}')
    E(f'ds_write_b128 v8, v[{OA + 4 * q4}:{OA + 4 * q4 + 3}] offset:{32 * q4}', tag='tw')
SH = 40
for i in range(4):
    for d in range(2):
        r = RS + 4 * i + d
        if i == 0:
            E(f'v_lshlrev_b32 v{SH + 2 * d}, 16, v{r}\nv_and_b32 v{SH + 2 * d + 1}, {vMASKHI}, v{r}')
        else:
            E(f'v_lshlrev_b32 v32, 16, v{r}\nv_and_b32 v33, {vMASKHI}, v{r}\nv_add_f32 v{SH + 2 * d}, v{SH + 2 * d}, v32\nv_add_f32 v{SH + 2 * d + 1}, v{SH + 2 * d + 1}, v33')
    if i == 1:
        E.wait_tags(['tw'])
        for rd in range(2):
            E(f'ds_read_b128 v[{48 + 8 * rd}:{51 + 8 * rd}], v11 offset:{rd * 16 * TP}')
            E(f'ds_read_b128 v[{52 + 8 * rd}:{55 + 8 * rd}], v11 offset:{rd * 16 * TP + 16}')
for rd in range(2):
    for e in range(8):
        E(f'v_add_f32 v{48 + 8 * rd + e}, v{48 + 8 * rd + e}, v{XB + 8 * rd + e}')
    for d in range(4):
        E(f'v_cvt_pk_bf16_f32 v{64 + 4 * rd + d}, v{48 + 8 * rd + 2 * d}, v{48 + 8 * rd + 2 * d + 1}')
    E(f'buffer_store_dwordx4 v[{64 + 4 * rd}:{67 + 4 * rd}], {vOA}, {srd(SRD_OUT)}, {SOM} offen')
    if rd == 0:
        E(f's_add_u32 {SOM}, {SOM}, {16 * 1152}')
for e in range(4):
    E(f'v_mov_b32 v{SH + 4 + e}, v{SH + e}')
for e in range(4):
    E(f'v_permlane32_swap_b32 v{SH + e}, v{SH + 4 + e}')
for e in range(4):
    E(f'v_add_f32 v{SH + e}, v{SH + e}, v{SH + 4 + e}\nv_fma_f32 v{SH + e}, v{SH + e}, {vRS2}, v{XB + 16 + e}')
E(f'v_cvt_pk_bf16_f32 v72, v{SH}, v{SH + 1}\nv_cvt_pk_bf16_f32 v73, v{SH + 2}, v{SH + 3}')
E(f'buffer_store_dwordx2 v[72:73], {vOS}, {srd(SRD_OUT)}, {SOS} offen')

if OPT['stamps']:
    stamp()
    E('s_waitcnt lgkmcnt(0)')
    E(f'v_writelane_b32 {vSTAMP}, s100, {nstamp[0] - 1}')
    E(f's_mov_b32 s84, {nstamp[0]}')
    E(f'v_writelane_b32 {vSTAMP}, s84, 63')
    E(f'v_writelane_b32 {vSTAMP}, s99, 62')
    E(f's_lshl_b32 s84, s2, 2\ns_add_u32 s84, s84, {sW}\ns_lshl_b32 s84, s84, 8\ns_add_u32 s84, s84, {L.WS_STAMP}')
    E('v_lshlrev_b32 v1, 2, v1')
    E(f'buffer_store_dword {vSTAMP}, v1, {srd(SRD_WS)}, s84 offen')
E('L_END:')
E('s_endpgm')
for k, load_txt in slow_paths:
    E.raw(f'''L_PS{k}:
    s_add_u32 s99, s99, 1
    s_cmp_gt_u32 s99, 400000
    s_cbranch_scc1 L_PR{k}
    s_sleep 1
    {load_txt}
    s_waitcnt vmcnt(0)
    s_branch L_PC{k}''')
E.raw('''L_RXS:
    s_add_u32 s99, s99, 1
    s_cmp_gt_u32 s99, 400000
    s_cbranch_scc1 L_RXR
    s_sleep 1
''' + '\n'.join('    ' + x for x in RXL) + '''
    s_waitcnt vmcnt(0)
    s_branch L_RXC''')
E.raw('L_CODE_END:')
E.raw(KD_FMT.format(name=KN, vgpr=512, sgpr=102, accum=256, kernarg=88))
txt = E.text()
if OPT.get('hot'):
    import re
    lines = []
    for l in txt.split('\n'):
        if (OPT['hot'] & 1) and 'buffer_store' in l and 's[48:51]' in l and 'v255' not in l:
            l = l.replace('s[48:51]', 's[64:67]')
        if 's_cbranch_scc1 L_PS' in l or 's_cbranch_scc1 L_RXS' in l:
            l = '    s_nop 0'
        lines.append(l)
    txt = '\n'.join(lines)
    if OPT['hot'] & 2:
        txt = txt.replace('    s_and_b32 s84, s2, 7\n    s_lshr_b32 s85, s2, 3\n', '    s_mov_b32 s84, 0\n    s_mov_b32 s85, 0\n', 1)
open(OUT, 'w').write(txt)
if OPT.get('log'):
    for x in S.log:
        if x[1] == 'BARRIER' or (x[1] == 'flushed' and x[3] > 6) or (x[1] == 'mark' and not x[2].startswith(('t', 'act', 'dma', 'xl'))):
            print(x)
print('insts', E.ninst, 'nops', E.n_nop, 'waits', E.n_wait)
```

```python
import sys
import struct
sys.path.insert(0, 'gen')
from kgen import *
from sched import *
import layout as L

KN = 'parallel_sum__sliding_local_dilated__dense_activation_squared_relu__prompt_kernel'
OPT = dict(stamps=0, D=6, WB=3, bA=3.5, bQ=4.5, bB=4.0, bP=4.5, pubgap=35, pollgap=20, stouch=1, gtouch=1,
           hxgap=30, higap=60, egap=5, pgap=60, dmagap=0, bx=16, maxmem=2, vrate=55, vcap=3, rp2at=4, lat=30, pfwat=11, auxat=21, rxks=17, ogap=40, btouch=2, hbatch=0, drain=1, eat=6, quiet=0, tfirst=0, pchk=24, umap=0, cpf=1, sgap=0, rgap=0, rxat=50, etouch=0, x23=0)
for a in sys.argv[2:]:
    k, v = a.split('=')
    OPT[k] = float(v) if '.' in v else int(v)
OUT = sys.argv[1]
OPT_E = f"a{OPT['eat']}"
GS = '' if OPT.get('gplain') else ' sc1'

if OPT.get('gpad'):
    L.WS_G = 0x4000000
    L.G_WAVE = 20480 + OPT['gpad']
    L.G_WG = 4 * L.G_WAVE
E = Emitter()
slow_paths = []
fl = lambda x: '0x%08x' % struct.unpack('<I', struct.pack('<f', x))[0]
OOB = '0x40000000'

sW, sR, sS, sC, sJ = 's4', 's5', 's6', 's7', 's8'
P_X, P_WQKV, P_WO, P_W1, P_B1, P_W2, P_B2 = 16, 18, 20, 24, 26, 28, 30
P_OUT, P_DBG, P_WS = 32, 34, 36
SRD_X, SRD_W1, SRD_WS, SRD_RP, SRD_B, SRD_OUT, SRD_DBG, SRD_EU = 40, 44, 48, 52, 56, 60, 64, 68
NONCE = 82
sSLW, sGF, sRPF, sCSA, sCSB, sGB = 's9', 's10', 's11', 's12', 's13', 's14'
sUST, sUS, sUD, sUC = 's15', 's38', 's39', 's3'
sA0, sA4, sB0, sB4, sQ0, sQ4 = 's16', 's17', 's18', 's19', 's20', 's21'
sPF = ['s22', 's23', 's24', 's25']
sGP = [None, 's26', 's27', 's28']
sXB, sXB2, sSTB = 's29', 's30', 's31'
M16 = 's[32:33]'
MX1, MX2 = 's[34:35]', 's[36:37]'
sL10, sL8, sL9, sBO, sC0, sC1 = 's72', 's73', 's74', 's75', 's80', 's81'
sBO2, sL6, sP8 = 's76', 's0', 's1'
SPOLL = 's[78:79]'
tD0, tD1 = 's84', 's85'
tA0, tA1, tA2, tA3 = 's86', 's87', 's88', 's89'
tR0, tR1, tR2, tR3, tR4 = 's90', 's91', 's95', 's96', 's77'
tC0, tC1 = 's92', 's93'
tE0 = 's94'
tM0, tM1 = 's97', 's98'


def srd(n):
    return f's[{n}:{n + 3}]'


XN = 16
FR = 160
NF = 7
BIASR = 188
VDA = 196
VDB = 201
vTA = 'v205'
VTB = 4
vRL = 'v206'
vF0 = 'v207'
vTCH = 'v208'
vLANE16 = 'v209'
vTL = 'v210'
vRSTD = 'v211'
vXO = 'v212'
vREM = 'v213'
BCOR = 214
TMP = 218
vMASKHI = 'v254'
vSTAMP = 'v255'
vNON = 12
vPF = 8
vTD = 10
vPA = 'v15'
vTW = 'v0'
QA = 144
AK = [192, 200, 208, 216]
ONESR = 220

RING = [0, 40960, 81920]
AUX = 122880
LDS_TOTAL = 163840
QB = AUX
QB1 = QB + 4096
PITCH = 240
SLOTB = {g: RING[g % 3] for g in range(18)}
DMA_AFTER = {g: g - 1 for g in range(18)}
NSTG = 26
AUXAT = OPT['auxat']
for g in range(18, AUXAT):
    SLOTB[g] = RING[g % 3]
    DMA_AFTER[g] = g - 1
for g in range(AUXAT, NSTG):
    SLOTB[g] = [AUX, RING[AUXAT % 3], RING[(AUXAT + 1) % 3], RING[(AUXAT + 2) % 3]][(g - AUXAT) % 4]
    DMA_AFTER[g] = g - 2

if OPT['drain']:
    DMA_AFTER = {g: v - 1 for g, v in DMA_AFTER.items()}
nstamp = [0]


def stamp():
    if not OPT['stamps']:
        return
    k = nstamp[0]
    if k > 0:
        E(f'v_writelane_b32 {vSTAMP}, s100, {k - 1}')
    E('s_memrealtime s[100:101]' if OPT.get('rt') else 's_memtime s[100:101]')
    nstamp[0] += 1


def mk_srd(n, p, size):
    E(f's_mov_b32 s{n}, s{p}\ns_mov_b32 s{n + 1}, s{p + 1}\ns_mov_b32 s{n + 2}, {size}\ns_mov_b32 s{n + 3}, 0x20000')


def emit_all(lst):
    for x in lst:
        if isinstance(x, str):
            E(x)
        elif isinstance(x, Inst):
            E.emit(x)


def nodep(txt):
    ld = Inst(txt)
    ld.writes = set()
    return ld


hdr = open('parallel_sum__sliding_local_dilated__dense_activation_squared_relu__prompt.s.ref').read()
hdr = [l for l in hdr.split('\n') if l.startswith(';') and '@launch' not in l and 'Override' not in l and 'grid=ceil' not in l]
E.raw('\n'.join(hdr))
E.raw(f'; @launch grid=(256,1,1) block=(256,1,1) lds={LDS_TOTAL}')
E.raw(f'.amdgcn_target "amdgcn-amd-amdhsa--gfx950"\n.text\n.globl {KN}\n.p2align 8\n.type {KN},@function\n{KN}:')

E('s_cmp_ge_u32 s2, 256\ns_cbranch_scc1 L_END')
stamp()
E('s_load_dwordx16 s[16:31], s[0:1], 0')
E('s_load_dwordx4 s[32:35], s[0:1], 64')
E('s_load_dwordx2 s[36:37], s[0:1], 80')
E(f's_memrealtime s[{NONCE}:{NONCE + 1}]')
E('s_mov_b32 s99, 0')
E(f's_getpc_b64 s[{SRD_EU}:{SRD_EU + 1}]')
E('L_PCREF:')
E(f's_mov_b32 s{SRD_EU + 2}, L_CODE_END-L_PCREF\ns_mov_b32 s{SRD_EU + 3}, 0x20000')
E('v_lshlrev_b32 v2, 7, v0')
if OPT['cpf'] == 0:
    E('s_lshr_b32 s3, s2, 3\ns_and_b32 s3, s3, 1\ns_lshl_b32 s3, s3, 15')
else:
    sh = 11 + OPT['cpf']
    E(f's_lshr_b32 s3, s2, 3\ns_and_b32 s3, s3, {(1 << (16 - sh)) - 1}\ns_lshl_b32 s3, s3, {sh}\nv_lshrrev_b32 v3, {sh}, v2\nv_lshl_or_b32 v2, v3, 30, v2')
E.emit(nodep(f'buffer_load_dword v{vTD}, v2, {srd(SRD_EU)}, s3 offen'))
E('v_lshrrev_b32 v1, 6, v0')
E(f'v_readfirstlane_b32 {sW}, v1')
E('v_and_b32 v1, 63, v0')
E(f'''s_and_b32 s84, s2, 7
s_lshr_b32 s85, s2, 3
s_lshr_b32 {sS}, s84, 1
s_and_b32 {sC}, s85, 3
s_and_b32 s84, s84, 1
s_lshl_b32 s84, s84, 3
s_lshr_b32 s85, s85, 2
s_add_u32 {sR}, s84, s85
s_lshl_b32 {sJ}, {sS}, 2
s_add_u32 {sJ}, {sJ}, {sC}
v_bfe_u32 v2, v1, 2, 3
v_mul_u32_u24 v2, 4608, v2
v_lshrrev_b32 v3, 5, v1
v_lshl_add_u32 v2, v3, 6, v2
v_and_b32 v4, 3, v1
v_lshl_add_u32 {vXO}, v4, 4, v2
v_mul_u32_u24 v5, 1152, v3
v_and_b32 v6, 31, v1
v_lshl_add_u32 v5, v6, 4, v5
v_mov_b32 v7, {OOB}
v_cmp_gt_u32 vcc, 8, v6
v_cndmask_b32 v6, v7, v5, vcc
v_lshlrev_b32 {vLANE16}, 4, v1
s_lshl_b32 s86, {sR}, 2
s_add_u32 s86, s86, {sW}
s_mul_i32 s86, s86, 36864
s_lshl_b32 s87, {sR}, 4
s_add_u32 s87, s87, {sJ}
s_lshl_b32 s87, s87, 2
s_add_u32 s87, s87, {sW}
s_mul_i32 s88, s87, 2304''')
if OPT.get('stag'):
    E(f's_and_b32 s94, {sR}, {OPT["stagm"]}')
    E('L_STG:')
    E('s_cmp_eq_u32 s94, 0\ns_cbranch_scc1 L_STGD')
    E(f's_sleep {OPT["stag"]}\ns_sub_u32 s94, s94, 1\ns_branch L_STG')
    E('L_STGD:')
for i in range(5):
    E(f'''v_add_u32 v8, {64 * i}, v1
v_mul_u32_u24 v9, 3277, v8
v_lshrrev_b32 v9, 16, v9
v_mul_u32_u24 v11, 20, v9
v_sub_u32 v11, v8, v11
v_mul_u32_u24 v9, 9216, v9
v_lshl_add_u32 v{VDA + i}, v11, 4, v9''')
    if i % 4:
        E(f'v_subrev_u32 v{VDA + i}, {(i % 4) * 1024}, v{VDA + i}')
E(f'''s_mul_i32 s89, {sJ}, 576
s_and_b32 s84, {sJ}, 1
s_cmp_eq_u32 s84, 0
s_cselect_b32 s90, 256, 0
s_cselect_b32 s91, 0, 320
s_mul_i32 s92, {sW}, {32 * 9216}
s_add_u32 s92, s92, s89
s_add_u32 s93, s92, s90
s_mul_i32 {sL10}, {sW}, 10240''')
E('s_waitcnt lgkmcnt(0)')
mk_srd(SRD_X, P_X, 2359296)
mk_srd(SRD_W1, P_W1, 5308416)
E1R = TMP + 16
for k in range(3):
    E(f'buffer_load_dwordx4 v[{E1R + 4 * k}:{E1R + 4 * k + 3}], {"v5" if k < 2 else "v6"}, {srd(SRD_X)}, s88 offen offset:{512 * k}')


def xload(q, sb=None):
    o = []
    for i in range(4):
        r = XN + 16 * q + 4 * i
        b, off = (sb or sXB, 128 * q) if q < 5 else (sXB2, 128 * (q - 5))
        o.append(Inst(f'buffer_load_dwordx4 v[{r}:{r + 3}], {vXO}, {srd(SRD_X)}, {b} offen offset:{1152 * i + off}', tag=f'x{q}'))
    o.append(('mark', f'xl{q}'))
    return o


TOUCH_ONLY = [False]


def touch(fn, *a):
    TOUCH_ONLY[0] = True
    o = fn(*a)
    TOUCH_ONLY[0] = False
    return o


def dma_a(u, sb=None):
    g = u
    base = SLOTB[g]
    out = [f's_add_u32 {tD0}, {sb or sA0}, {u * 128 * 9216}' if u < 4 else f's_mov_b32 {tD0}, {sA4}']
    if TOUCH_ONLY[0]:
        return out + [nodep(f'buffer_load_dword v{vTD}, {vTW}, {srd(SRD_W1)}, {tD0} offen')]
    lw = sL10
    if u == 4:
        out.append(f's_lshr_b32 {tD1}, {sL10}, 1')
        lw = tD1
    for gr in range(2 if u < 4 else 1):
        if gr:
            out.append(f's_add_u32 {tD0}, {tD0}, {16 * 9216}')
        for i in range(5):
            if i % 4 == 0:
                out.append(f's_add_u32 m0, {lw}, {base + gr * 5120 + i * 1024}')
            out.append(Inst(f'buffer_load_dwordx4 v{VDA + i}, {srd(SRD_W1)}, {tD0} offen offset:{(i % 4) * 1024} lds', tag=f'st{g}'))
    return out


def lin_pieces(g, lw, lbase, npc):
    out = []
    for i in range(npc):
        if i % 4 == 0:
            out.append(f's_add_u32 m0, {lw}, {lbase + i * 1024}' if lw else f's_mov_b32 m0, {lbase + i * 1024}')
            if i:
                out.append(f's_add_u32 {tD0}, {tD0}, 4096')
        out.append(Inst(f'buffer_load_dwordx4 {vLANE16}, {srd(SRD_WS)}, {tD0} offen offset:{(i % 4) * 1024} sc1 lds', tag=f'st{g}'))
    return out


def cs_pieces(g, src, lofs, n):
    o = [f's_lshl_b32 {tD1}, {sW}, 10', f's_add_u32 {tD0}, {src}, {tD1}'] + lin_pieces(g, tD1, SLOTB[g] + lofs, 1)
    if n == 5:
        o += [f's_add_u32 {tD0}, {src}, 4096'] + lin_pieces(g, None, SLOTB[g] + lofs + 4096, 1)
    return o


def dma_b(u):
    g = 10 + u
    base = SLOTB[g]
    out = [f's_add_u32 {tD0}, {sB0}, {u * 128 * 9216}' if u < 4 else f's_mov_b32 {tD0}, {sB4}']
    if TOUCH_ONLY[0]:
        return out + [nodep(f'buffer_load_dword v{vTD}, {vTW}, {srd(SRD_W1)}, {tD0} offen')]
    lw = sL8
    if u == 4:
        out.append(f's_lshr_b32 {tD1}, {sL8}, 1')
        lw = tD1
    for gr in range(2 if u < 4 else 1):
        if gr:
            out.append(f's_add_u32 {tD0}, {tD0}, {16 * 9216}')
        out.append(f's_add_u32 m0, {lw}, {base + gr * 4096}')
        for i in range(4):
            out.append(Inst(f'buffer_load_dwordx4 v{VDB + i}, {srd(SRD_W1)}, {tD0} offen offset:{i * 1024} lds', tag=f'st{g}'))
    if u == 0:
        out += cs_pieces(g, sCSB, 32768, 4)
    return out


def dma_lin(g, setup, lw, npc):
    if TOUCH_ONLY[0]:
        return [setup[-1]] + [nodep(f'buffer_load_dword v{vTD}, {vTL}, {srd(SRD_WS)}, {tD0} offen sc1')]
    return list(setup) + lin_pieces(g, lw, SLOTB[g], npc)


def dma_q(u):
    g = 5 + u
    if u < 4:
        o = dma_lin(g, [f's_add_u32 {tD0}, {sQ0}, {u * 32768}'], sL8, 8)
        if u == 0 and not TOUCH_ONLY[0]:
            o = cs_pieces(g, sCSA, 32768, 5) + o
        return o
    o = dma_lin(g, [f's_lshr_b32 {tD1}, {sL8}, 1', f's_mov_b32 {tD0}, {sQ4}'], tD1, 4)
    if not TOUCH_ONLY[0]:
        o += [f's_lshl_b32 {tM1}, {sJ}, 12', f's_add_u32 {tM1}, {tM1}, {L.WS_CSQ}'] + cs_pieces(g, tM1, 16384, 4)
    return o


RUNS = [('A', k) for k in range(4)] + [('B', k) for k in range(4)]


def dma_p(p):
    kind, k = RUNS[p]
    g = 15 + p
    if kind == 'A':
        return dma_lin(g, [f's_mov_b32 {tD0}, {sPF[k]}'], (sL10, sL8)[k % 2], (10, 8)[k % 2])
    return dma_lin(g, [f's_add_u32 {tD0}, {sPF[k]}, {(sBO, sBO2)[k % 2]}'], (sL8, sL6)[k % 2], (8, 6)[k % 2])


def dma_o(_):
    g = 23
    if TOUCH_ONLY[0]:
        return []
    o = [f's_add_u32 {tD0}, {sC}, {sW}', f's_and_b32 {tD1}, {tD0}, 3', f's_mul_i32 {tD0}, {tD1}, 61440', f's_add_u32 {tD0}, {tD0}, {sSLW}',
         f's_add_u32 {tD0}, {tD0}, {54 * 1024}'] + lin_pieces(g, sL6, SLOTB[g], 6)
    o += [f's_lshr_b32 {tD0}, {tD1}, 1', f's_mul_i32 {tD0}, {tD0}, 20480', f's_add_u32 {tD0}, {tD0}, {sSLW}',
          f's_add_u32 {tD0}, {tD0}, {L.SLABW_S + 18 * 1024}', f's_lshl_b32 {tD1}, {sW}, 11'] + lin_pieces(g, tD1, SLOTB[g] + 24576, 2)
    o += [f's_lshl_b32 {tD1}, {sW}, 10', f's_add_u32 {tD0}, {tD1}, {240 * 1024}', f's_cmp_eq_u32 {sW}, 3',
          f's_cselect_b32 {tD0}, {L.SLABW_S + 40 * 1024}, {tD0}', f's_add_u32 {tD0}, {tD0}, {sSLW}'] + lin_pieces(g, tD1, SLOTB[g] + 32768, 1)
    o += [f's_add_u32 {tD0}, {sSLW}, {L.SLABW_O + 80 * 1024}'] + lin_pieces(g, None, SLOTB[g] + 36864, 1)
    return o


def dma_c(u):
    return dma_lin(24 + u, [f's_mov_b32 {tD0}, {(sC0, sC1)[u]}'], sL10, 10)


A0L = dma_a(0, 's93')
cut = [i for i, x in enumerate(A0L) if isinstance(x, Inst)][4] + 1
def early_touch(first_seg, first_stage):
    E(f'''v_and_b32 v8, 7, v1
s_lshl_b32 s84, {sC}, 3
v_add_u32 v8, s84, v8
v_mul_u32_u24 v8, 1152, v8
v_lshrrev_b32 v9, 3, v1
v_lshl_add_u32 v11, v9, 7, v8''')
    E.emit(nodep(f'buffer_load_dword v{vTD}, v11, {srd(SRD_X)}, s86 offen offset:{128 * first_seg}'))
    E(f'''v_mul_u32_u24 v11, 86, v1
v_lshrrev_b32 v11, 8, v11
v_mul_u32_u24 v9, 3, v11
v_sub_u32 v9, v1, v9
v_lshrrev_b32 v15, 2, v11
v_and_b32 v11, 3, v11
v_lshl_add_u32 v11, v15, 7, v11
s_and_b32 s84, {sR}, 7
s_lshl_b32 s84, s84, 2
s_add_u32 s84, s84, {128 * first_stage}
v_add_u32 v11, s84, v11
v_mul_u32_u24 v11, 9216, v11
v_lshl_add_u32 v11, v9, 7, v11
v_cmp_gt_u32 vcc, {12 * (4 - first_stage)}, v1
v_cndmask_b32 v11, v7, v11, vcc''')
    E.emit(nodep(f'buffer_load_dword v{vTD}, v11, {srd(SRD_W1)}, s93 offen'))
    if first_seg == 0:
        E.emit(nodep(f'buffer_load_dword v{vTD}, v8, {srd(SRD_X)}, s86 offen offset:1024'))


if OPT['tfirst']:
    early_touch(0, 0)
else:
    emit_all(xload(0, 's86') + A0L[:cut])
    E(f's_mov_b32 s97, {tD0}')
stamp()
mk_srd(SRD_DBG, P_DBG, 256)
E(f'''s_or_b32 s{NONCE}, s{NONCE}, 1
v_mov_b32 v8, s{NONCE}
v_mov_b32 v9, s{NONCE + 1}
v_mov_b32 v14, 0
v_cmp_eq_u32 vcc, 0, v1
v_cndmask_b32 {vF0}, v7, v14, vcc
s_or_b32 s85, s2, {sW}
s_cmp_eq_u32 s85, 0
s_cselect_b32 s85, 0, {OOB}''')
E(f'buffer_store_dwordx2 v[8:9], {vF0}, {srd(SRD_DBG)}, s85 offen sc1')
mk_srd(SRD_WS, P_WS, 0x10000000)
mk_srd(SRD_B, P_B1, 9216)
mk_srd(SRD_OUT, P_OUT, 2359296)
U2C = '''s_add_u32 {d}, s2, 48
s_cmp_ge_u32 s2, 144
s_cselect_b32 {d}, 255, {d}
s_sub_u32 {t}, s2, 208
s_cmp_ge_u32 s2, 208
s_cselect_b32 {d}, {t}, {d}'''
E(U2C.format(d='s84', t='s85') if OPT['umap'] else 's_sub_u32 s84, s2, 92')
E(f'''s_cmp_lt_u32 s84, 144
s_cselect_b32 s{SRD_RP}, s{P_W2}, s{P_WO}
s_cselect_b32 s{SRD_RP + 1}, s{P_W2 + 1}, s{P_WO + 1}
s_mov_b32 s{SRD_RP + 2}, 5308416
s_cselect_b32 s{SRD_RP + 2}, s{SRD_RP + 2}, 663552
s_mov_b32 s{SRD_RP + 3}, 0x20000''')
vU, vA1, vZ = 'v2', 'v3', f'v{TMP + 32}'
sU1 = 's98'
E(f'''s_lshr_b32 s85, s2, 3
s_and_b32 s84, s2, 1
s_lshl_b32 s84, s84, 1
s_cmp_ge_u32 s85, 9
s_cselect_b32 s94, 9, 0
s_cselect_b32 s95, 1, 0
s_sub_u32 s94, s85, s94
s_mul_i32 s96, {sS}, 9
s_add_u32 s94, s94, s96
s_lshl_b32 s94, s94, 2
s_add_u32 s94, s94, s84
s_add_u32 s94, s94, s95
s_add_u32 {sU1}, s94, 64
s_sub_u32 s94, s85, 18
s_and_b32 s95, s94, 3
s_lshl_b32 s96, {sS}, 2
s_add_u32 s95, s95, s96
s_lshl_b32 s95, s95, 2
s_add_u32 s95, s95, s84
s_lshr_b32 s94, s94, 2
s_add_u32 s95, s95, s94
s_cmp_ge_u32 s85, 18
s_cselect_b32 {sU1}, s95, {sU1}
s_cmp_ge_u32 s85, 26
s_cselect_b32 {sU1}, 255, {sU1}''')
if not OPT['umap']:
    E(f's_mov_b32 {sU1}, s2')
E(f'''s_and_b32 s84, {sU1}, 3
s_lshr_b32 s85, {sW}, 1
s_lshl_b32 s85, s85, 5
s_and_b32 s94, {sW}, 1
s_lshl_b32 s94, s94, 2
s_add_u32 s85, s85, s94
s_lshl_b32 s94, s84, 3
s_add_u32 s85, s85, s94
v_lshrrev_b32 v8, 4, v1
v_and_b32 v9, 15, v1
v_bfe_u32 v11, v1, 4, 1
v_lshrrev_b32 v3, 5, v1
v_lshlrev_b32 v3, 3, v3
v_bfe_u32 v15, v1, 2, 2
v_add_u32 v3, v3, v15
v_lshlrev_b32 v3, 8, v3
v_add_u32 v3, {AUX}, v3
s_cmp_ge_u32 {sU1}, 64
s_cbranch_scc1 L_EU_W1
s_lshr_b32 s94, {sU1}, 2
s_mov_b32 s{SRD_EU}, s{P_WQKV}
s_mov_b32 s{SRD_EU + 1}, s{P_WQKV + 1}
s_mov_b32 s{SRD_EU + 2}, 1990656
s_mov_b32 {sUST}, {64 * 3456}
s_mul_i32 {sUS}, s85, 3456
s_mul_i32 s95, s94, 72
s_add_u32 {sUS}, {sUS}, s95
s_mul_i32 {sUD}, s94, {L.SLABQ_SZ}
s_lshl_b32 s95, s84, 2
s_add_u32 s95, s95, {sW}
s_lshl_b32 s95, s95, 10
s_add_u32 {sUD}, {sUD}, s95
s_add_u32 {sUD}, {sUD}, {L.WS_SLABQ}
s_lshl_b32 {sUC}, s94, 12
s_add_u32 {sUC}, {sUC}, {L.WS_CSQ}
s_mov_b32 s96, {OOB}
v_mul_u32_u24 v8, 3456, v8
v_mul_u32_u24 v15, 13, v9
v_lshrrev_b32 v15, 6, v15
v_mul_u32_u24 v2, 5, v15
v_sub_u32 v9, v9, v2
v_mul_u32_u24 v15, 1152, v15
v_add_u32 v8, v8, v15
v_lshl_add_u32 {vU}, v9, 4, v8
v_lshlrev_b32 v11, 2, v11
v_and_b32 v8, 1, v1
v_lshl_add_u32 v11, v8, 1, v11
v_bfe_u32 v8, v1, 1, 1
v_add_u32 v11, v11, v8
s_lshl_b32 s95, {sW}, 3
v_add_u32 v11, s95, v11
v_min_u32 v11, 26, v11
v_mul_u32_u24 v8, 57, v11
v_lshrrev_b32 v8, 9, v8
v_lshl_add_u32 v11, v11, 3, v3
v_lshl_add_u32 {vA1}, v8, 3, v11
s_branch L_EU_DONE
L_EU_W1:
s_sub_u32 s94, {sU1}, 64
s_lshr_b32 s94, s94, 2
s_mov_b32 s{SRD_EU}, s{P_W1}
s_mov_b32 s{SRD_EU + 1}, s{P_W1 + 1}
s_mov_b32 s{SRD_EU + 2}, 5308416
s_mov_b32 {sUST}, {64 * 9216}
s_mul_i32 {sUS}, s85, 9216
s_lshl_b32 s95, s94, 8
s_add_u32 {sUS}, {sUS}, s95
s_mov_b32 {sUD}, {OOB}
s_lshl_b32 {sUC}, s94, 12
s_add_u32 {sUC}, {sUC}, {L.WS_CSF}
s_lshl_b32 s96, {sW}, 6
s_add_u32 s96, s96, s95
s_cmp_eq_u32 s84, 0
s_cselect_b32 s96, s96, {OOB}
s_cmp_lt_u32 {sU1}, 208
s_cselect_b32 {sUS}, {sUS}, {OOB}
s_cselect_b32 {sUC}, {sUC}, {OOB}
v_mul_u32_u24 v8, 9216, v8
v_lshl_add_u32 {vU}, v9, 4, v8
v_lshl_add_u32 v3, v11, 5, v3
v_lshl_add_u32 v3, v4, 3, v3
s_lshl_b32 s95, {sW}, 6
v_add_u32 {vA1}, s95, v3
L_EU_DONE:
s_lshl_b32 s95, {sW}, 10
s_add_u32 {sUC}, {sUC}, s95
s_lshl_b32 s94, s84, 2
s_add_u32 {sUC}, {sUC}, s94
v_and_b32 v8, 31, v1
v_lshlrev_b32 v8, 1, v8
s_nop 2''')
if not OPT['tfirst']:
    E(f's_mov_b32 {tD0}, s97')
    emit_all(A0L[cut:] + xload(1, 's86'))
E(f'buffer_load_ushort {vZ}, v8, {srd(SRD_B)}, s96 offen')
mk_srd(SRD_B, P_B2, 1152)
def eu_dma():
    for i in range(9):
        E(f's_add_u32 m0, s95, {AUX + i * 4096}')
        E(f'buffer_load_dwordx4 {vU}, {srd(SRD_EU)}, {sUS} offen lds', tag='eu')
        if i < 8:
            E(f's_add_u32 {sUS}, {sUS}, {sUST}')


if OPT['tfirst']:
    eu_dma()
E(f'''s_mov_b32 {sXB}, s86
s_add_u32 {sXB2}, s86, 640
s_mov_b32 {sA0}, s93
s_add_u32 {sB0}, s92, s91
s_mul_i32 s84, {sW}, {16 * 9216}
s_add_u32 s84, s84, {512 * 9216}
s_add_u32 s84, s84, s89
s_add_u32 {sA4}, s84, s90
s_add_u32 {sB4}, s84, s91
s_lshl_b32 {sL8}, {sW}, 13
s_mul_i32 {sL9}, {sW}, 9216
s_lshl_b32 {sBO2}, {sW}, 11
s_sub_u32 {sBO2}, 30720, {sBO2}
s_cmp_eq_u32 {sW}, 3
s_cselect_b32 {sBO}, 10240, {sBO2}
s_mul_i32 {sL6}, {sW}, 6144
s_mul_i32 s84, {sJ}, {L.SLABQ_SZ}
s_add_u32 s84, s84, {L.WS_SLABQ}
s_add_u32 {sQ0}, s84, {sL8}
s_lshl_b32 s85, {sW}, 12
s_add_u32 {sQ4}, s84, s85
s_add_u32 {sQ4}, {sQ4}, {8 * 16384}
s_mul_i32 s84, {sJ}, 9216
s_add_u32 s84, s84, {L.WS_CSF}
s_lshl_b32 s90, s90, 4
s_lshl_b32 s91, s91, 4
s_add_u32 {sCSA}, s84, s90
s_add_u32 {sCSB}, s84, s91
s_mul_i32 {sGB}, s87, {L.G_WAVE}
s_add_u32 {sGB}, {sGB}, {L.WS_G}
s_mul_i32 {sSLW}, {sJ}, {L.SLABW_SZ}
s_add_u32 {sSLW}, {sSLW}, {L.WS_SLABW}''')
for k in range(4):
    E(f's_add_u32 s84, {sC}, {k}\ns_and_b32 s84, s84, 3\ns_mul_i32 s85, s84, 61440\ns_add_u32 s85, s85, {sL10 if k % 2 == 0 else sL8}')
    if k % 2 == 0:
        E(f's_lshr_b32 s90, s84, 1\ns_mul_i32 s90, s90, 20480\ns_add_u32 s90, s90, {L.SLABW_S}')
        E(f's_cmp_eq_u32 {sW}, 3\ns_cselect_b32 s85, s90, s85')
    E(f's_add_u32 {sPF[k]}, s85, {sSLW}')
    if k:
        E(f's_sub_u32 s84, s84, {sC}\ns_mul_i32 s84, s84, {L.G_WG}\ns_add_u32 {sGP[k]}, s84, {sGB}')
for u, d in enumerate((sC0, sC1)):
    E(f's_lshr_b32 s84, {sW}, 1\ns_add_u32 s84, s84, {sC}\ns_add_u32 s84, s84, {2 - 2 * u}\ns_and_b32 s84, s84, 3\ns_mul_i32 s84, s84, 20480\n'
      f's_and_b32 s85, {sW}, 1\ns_mul_i32 s85, s85, 10240\ns_add_u32 s84, s84, s85\ns_add_u32 s84, s84, {sSLW}\ns_add_u32 {d}, s84, {L.SLABW_O}')
E(f'''s_lshl_b32 {sGF}, {sR}, 2
s_add_u32 {sGF}, {sGF}, {sS}
s_lshl_b32 {sGF}, {sGF}, 2
s_add_u32 {sGF}, {sGF}, {sW}
s_lshl_b32 {sGF}, {sGF}, 7
s_add_u32 {sGF}, {sGF}, {L.WS_FLAG_G}
s_lshl_b32 {sSTB}, {sR}, 2
s_add_u32 {sSTB}, {sSTB}, {sW}
s_lshl_b32 {sSTB}, {sSTB}, 7
s_add_u32 {sSTB}, {sSTB}, {L.WS_STAT}
s_mov_b64 {M16}, 0xffff
s_mov_b32 s34, 0x55555555
s_mov_b32 s35, 0x55555555
s_mov_b32 s36, 0x33333333
s_mov_b32 s37, 0x33333333''')
if not OPT['tfirst']:
    eu_dma()
E(f'''s_and_b32 s84, {sR}, 7
v_mul_u32_u24 v8, 86, v1
v_lshrrev_b32 v8, 8, v8
v_mul_u32_u24 v9, 3, v8
v_sub_u32 v9, v1, v9
s_lshl_b32 s85, s84, 2
v_add_u32 v8, s85, v8
v_mul_u32_u24 v8, 9216, v8
v_lshl_add_u32 v8, v9, 7, v8
v_cmp_gt_u32 vcc, 12, v1
v_cndmask_b32 {vTW}, v7, v8, vcc
v_lshlrev_b32 {vTCH}, 7, v1
s_mul_i32 s85, s84, {10 * 128}
v_add_u32 v8, s85, {vTCH}
v_cmp_gt_u32 vcc, 10, v1
v_cndmask_b32 {vTL}, v7, v8, vcc
v_lshrrev_b32 v8, 5, v1
v_lshlrev_b32 v8, 5, v8
v_bfe_u32 v9, v1, 2, 2
v_add_u32 v8, v8, v9
v_bfe_u32 v11, v1, 4, 1
v_lshlrev_b32 v11, 5, v11
v_lshl_add_u32 v11, v4, 3, v11
v_mul_u32_u24 v15, 320, v8
v_add_u32 {vTA}, v15, v11
v_lshl_add_u32 v15, v8, 8, v11
v_add_u32 v15, {SLOTB[10]}, v15
v_lshrrev_b32 v8, 4, v1
v_xor_b32 v11, v9, v8
v_mul_u32_u24 v8, 9216, v8
v_lshl_add_u32 v8, v11, 6, v8
v_lshl_add_u32 v{VDB}, v4, 4, v8''')
for i in range(1, 4):
    E(f'v_add_u32 v{VDB + i}, {i * (4 * 9216 - 1024)}, v{VDB}')
E(f'''v_mov_b32 {vMASKHI}, 0xffff0000
v_cndmask_b32 {vREM}, v7, {vLANE16}, {M16}
v_mov_b32 v{TMP + 33}, v7''')
for t in range(4):
    E(f'v_xor_b32 v8, {t}, v9\nv_lshl_add_u32 v{TMP + t}, v8, 6, v15')
E(f'''v_and_b32 v8, 15, v1
v_lshrrev_b32 v9, 4, v1
v_lshlrev_b32 v9, 2, v9
v_sub_u32 v8, v8, v9
v_mov_b32 v15, 0xf149f2ca
v_mov_b32 v9, 0x3f803f80''')
for i in range(4):
    E(f'''v_accvgpr_write_b32 a{ONESR + i}, v9
v_subrev_u32 v11, {i}, v8
v_and_b32 v11, 0x80000001, v11
v_cmp_eq_u32 vcc, 0, v11
v_cndmask_b32 v{BIASR + 4 + i}, v15, v14, vcc
v_xor_b32 v11, 0x80000000, v11
v_cmp_eq_u32 vcc, 0, v11
v_cndmask_b32 v{BIASR + i}, v15, v14, vcc''')
E(f'''v_and_b32 v8, 31, v1
s_lshl_b32 s85, {sJ}, 2
v_add_u32 v11, s85, v8
s_mul_i32 s85, {sJ}, 9
s_andn2_b32 s85, s85, 3
s_add_u32 s85, s85, 60
v_add_u32 v15, s85, v8
v_min_u32 v15, 207, v15
v_cmp_gt_u32 vcc, 4, v8
v_cndmask_b32 v11, v15, v11, vcc
v_bfe_u32 v15, v1, 2, 2
v_lshlrev_b32 v15, 1, v15
v_lshl_add_u32 v15, v4, 3, v15
s_lshl_b32 s85, s84, 5
s_lshr_b32 s84, {sR}, 3
s_add_u32 s85, s85, s84
v_add_u32 v15, s85, v15
v_add_u32 v11, {(L.WS_FLAG_U - L.WS_FLAG_E) // 8}, v11
v_cmp_gt_u32 vcc, 16, v8
v_cndmask_b32 v11, v15, v11, vcc
v_lshlrev_b32 v11, 3, v11
v_add_u32 {vPA}, {L.WS_FLAG_E}, v11''')
for t in range(4):
    E(f'v_mov_b32 v{VTB + t}, v{TMP + t}')
stamp()
if OPT['tfirst']:
    emit_all(xload(0) + dma_a(0) + xload(1))
if OPT['x23']:
    emit_all(xload(2) + xload(3))
stamp()
a0, a1, q0, q1 = (f'v{TMP + i}' for i in range(4))
E(f'v_mov_b32 {a0}, 0\nv_mov_b32 {a1}, 0\nv_mov_b32 {q0}, 0\nv_mov_b32 {q1}, 0')
for e in range(12):
    r = f'v{E1R + e}'
    E(f'v_dot2_f32_bf16 {(a0, a1)[e & 1]}, {r}, v9, {(a0, a1)[e & 1]}')
    E(f'v_dot2_f32_bf16 {(q0, q1)[e & 1]}, {r}, {r}, {(q0, q1)[e & 1]}')
E(f'v_add_f32 {a0}, {a0}, {a1}\nv_add_f32 {q0}, {q0}, {q1}')
for sh in (1, 2, 4, 8):
    E(f'v_add_f32_dpp {a0}, {a0}, {a0} row_shr:{sh} row_mask:0xf bank_mask:0xf bound_ctrl:0')
    E(f'v_add_f32_dpp {q0}, {q0}, {q0} row_shr:{sh} row_mask:0xf bank_mask:0xf bound_ctrl:0')
E(f'v_add_f32_dpp {a0}, {a0}, {a0} row_bcast:15 row_mask:0xa bank_mask:0xf')
E(f'v_add_f32_dpp {q0}, {q0}, {q0} row_bcast:15 row_mask:0xa bank_mask:0xf')
E(f'''v_mul_f32 {a0}, 0x3ae38e39, {a0}
v_mul_f32 {q0}, 0x3ae38e39, {q0}
v_fma_f32 {q0}, -{a0}, {a0}, {q0}
v_max_f32 {q0}, 0, {q0}
v_cvt_pk_bf16_f32 {q0}, {q0}, {q0}
v_lshlrev_b32 {q0}, 16, {q0}
v_add_f32 {q0}, 0x3727c5ac, {q0}
v_cvt_pk_bf16_f32 {q0}, {q0}, {q0}
v_lshlrev_b32 {q0}, 16, {q0}
v_sqrt_f32 {q0}, {q0}
v_and_b32 {a1}, 31, v1
v_cvt_pk_bf16_f32 {a0}, {a0}, {q0}
v_lshrrev_b32 {q1}, 5, v1
v_lshlrev_b32 {q1}, 2, {q1}
v_cmp_eq_u32 vcc, 31, {a1}
v_cndmask_b32 {q1}, v{TMP + 33}, {q1}, vcc
s_lshl_b32 s84, s87, 3
s_add_u32 s84, s84, {L.WS_STAT}''')
E(f'buffer_store_dword {a0}, {q1}, {srd(SRD_WS)}, s84 offen sc1', tag='eust')
NONL = f'buffer_load_dwordx2 v[{vNON}:{vNON + 1}], v14, {srd(SRD_DBG)}, 0 offen sc1'
stamp()

X1 = 'quad_perm:[1,0,3,2] row_mask:0xf bank_mask:0xf'
X2 = 'quad_perm:[2,3,0,1] row_mask:0xf bank_mask:0xf'


def transpose_seg(q):
    R = lambda i, d: f'v{XN + 16 * q + 4 * i + d}'
    Tm = lambda i, d: f'v{TMP + 4 * i + d}'
    o = [f's_mov_b64 vcc, {MX1}']
    for i0 in (0, 2):
        for d in range(4):
            o.append(f'v_cndmask_b32_dpp {Tm(i0, d)}, {R(i0 + 1, d)}, {R(i0, d)}, vcc {X1}')
    o.append('s_not_b64 vcc, vcc')
    for i0 in (0, 2):
        for d in range(4):
            o.append(f'v_cndmask_b32_dpp {Tm(i0 + 1, d)}, {R(i0, d)}, {R(i0 + 1, d)}, vcc {X1}')
    o.append(f's_mov_b64 vcc, {MX2}')
    for i0 in (0, 1):
        for d in range(4):
            o.append(f'v_cndmask_b32_dpp {R(i0, d)}, {Tm(i0 + 2, d)}, {Tm(i0, d)}, vcc {X2}')
        o.append(('mark', f't{q}_{i0}'))
    o.append('s_not_b64 vcc, vcc')
    for i0 in (0, 1):
        for d in range(4):
            o.append(f'v_cndmask_b32_dpp {R(i0 + 2, d)}, {Tm(i0, d)}, {Tm(i0 + 2, d)}, vcc {X2}')
        o.append(('mark', f't{q}_{i0 + 2}'))
    return o


k = 0
for x in transpose_seg(0):
    if isinstance(x, str):
        E(x)
        k += 1
        if k % 3 == 0:
            E('v_nop')
stamp()

fragi = [0]


def newfrag():
    f = FR + 4 * (fragi[0] % NF)
    fragi[0] += 1
    return f


RA = OPT['rp2at']
BAR_TAGS = {2: ['eust'], RA + 1: ['rp2'], RA + 4: ['rp2st']}
BAR_MARKS = {2: ['eudone'], RA + 1: ['rp2dma'], RA + 3: ['rp2done'], OPT['auxat'] - 1: ['odone']}


def barrier(g, post=()):
    def f():
        if OPT['stamps'] > 2:
            stamp()
        E.wait_tags([f'st{g}'] + BAR_TAGS.get(g, []))
        if OPT['drain']:
            E.wait_all(vm=False)
        E('s_barrier')
        if OPT['stamps'] > 1:
            stamp()
        S.marks.add(f'B{g}')
        if 'odone' in S.marks:
            S.marks.add('Bodone')
        S.log.append((S.cur, 'BARRIER', g, 0))
        emit_all(post)
    return f


def eu_barrier():
    E.wait_tags(['eu'])
    E('s_barrier')
    S.marks.add('Bx')


def prereq(g):
    return ([f'dma{g}'] if g >= 1 else []) + BAR_MARKS.get(g, [])


def rl_post(g):
    return [f'v_add_u32 {vRL}, {SLOTB[g]}, {vLANE16}']


ops = []
for q in range(9):
    u, sg = q // 2, q % 2
    g = u
    for k, (jj, n) in enumerate([(jj, n) for jj in range(4) for n in range(5)]):
        f = newfrag()
        off = sg * 20480 + 8 * jj * 320 + 64 * n
        x = XN + 16 * q + 4 * jj
        first = (k == 0 and sg == 0)
        post = []
        if g:
            d = SLOTB[g] - SLOTB[g - 1]
            post = [f'v_add_u32 {vTA}, {d}, {vTA}' if d > 0 else f'v_subrev_u32 {vTA}, {-d}, {vTA}']
        acc = f'a[{16 * n}:{16 * n + 15}]'
        ops.append(Op([f'ds_read_b64_tr_b16 v[{f}:{f + 1}], {vTA} offset:{off}',
                       f'ds_read_b64_tr_b16 v[{f + 2}:{f + 3}], {vTA} offset:{off + 4 * 320}'],
                      [f'v_mfma_f32_32x32x16_bf16 {acc}, v[{f}:{f + 3}], v[{x}:{x + 3}], {"0" if (q == 0 and jj == 0) else acc}'],
                      name=f'a{q}' if k == 0 else None,
                      pre=barrier(g, post) if first else (eu_barrier if (q == 0 and k == OPT['bx']) else None),
                      requires=[f't{q}_{jj}'] if q else [],
                      pre_requires=prereq(g) if first else [], budget=OPT['bA']))
for n in range(5):
    f = newfrag()
    acc = f'a[{16 * n}:{16 * n + 15}]'
    ops.append(Op([f'ds_read_b128 v[{f}:{f + 3}], {vRL} offset:{32768 + 1024 * n}'],
                  [f'v_mfma_f32_32x32x16_bf16 {acc}, v[{f}:{f + 3}], v[{BCOR}:{BCOR + 3}], {acc}'],
                  name=f'fin{n}', pre=barrier(5, rl_post(5)) if n == 0 else None, pre_requires=prereq(5) if n == 0 else [],
                  requires=['bcor'], budget=OPT['bQ']))
for q in range(9):
    u, sg = q // 2, q % 2
    g = 5 + u
    for k, (jj, t4) in enumerate([(jj, t4) for jj in range(4) for t4 in range(4)]):
        f = newfrag()
        x = XN + 16 * q + 4 * jj
        acc = f'a[{QA + 16 * t4}:{QA + 16 * t4 + 15}]'
        first = (k == 0 and sg == 0 and u > 0)
        ops.append(Op([f'ds_read_b128 v[{f}:{f + 3}], {vRL} offset:{(sg * 16 + jj * 4 + t4) * 1024}'],
                      [f'v_mfma_f32_32x32x16_bf16 {acc}, v[{f}:{f + 3}], v[{x}:{x + 3}], {"0" if (q == 0 and jj == 0) else acc}'],
                      pre=barrier(g, rl_post(g)) if first else None,
                      pre_requires=prereq(g) if first else [], budget=OPT['bQ']))
for t4 in (1, 2, 3, 0):
    f = newfrag()
    acc = f'a[{QA + 16 * t4}:{QA + 16 * t4 + 15}]'
    ops.append(Op([f'ds_read_b128 v[{f}:{f + 3}], {vRL} offset:{16384 + 1024 * t4}'],
                  [f'v_mfma_f32_32x32x16_bf16 {acc}, v[{f}:{f + 3}], v[{BCOR}:{BCOR + 3}], {acc}'], name=f'qfin{t4}', budget=OPT['bQ']))
for t in range(4):
    f = newfrag()
    lam = 5 + t
    ops.append(Op([f'ds_read_b128 v[{f}:{f + 3}], {vRL} offset:{32768 + 1024 * t}'],
                  [f'v_mfma_f32_32x32x16_bf16 a[{16 * lam}:{16 * lam + 15}], v[{f}:{f + 3}], v[{BCOR}:{BCOR + 3}], 0'],
                  pre=barrier(10, rl_post(10)) if t == 0 else None, pre_requires=prereq(10) if t == 0 else [],
                  name=f'bcor{t}', budget=OPT['bQ']))
for q in range(9):
    u, sg = q // 2, q % 2
    g = 10 + u
    order = [(jj, n) for jj in range(4) for n in range(4)] if q < 8 else [(jj, n) for n in range(4) for jj in range(4)]
    for k, (jj, t) in enumerate(order):
        f = newfrag()
        lam = 5 + t
        off = sg * 16384 + 8 * jj * 256
        x = XN + 16 * q + 4 * jj
        first = (k == 0 and sg == 0 and u > 0)
        post = []
        if u > 0:
            d = SLOTB[g] - SLOTB[g - 1]
            post = [(f'v_add_u32 v{VTB + i}, {d}, v{VTB + i}' if d > 0 else f'v_subrev_u32 v{VTB + i}, {-d}, v{VTB + i}') for i in range(4)]
        ops.append(Op([f'ds_read_b64_tr_b16 v[{f}:{f + 1}], v{VTB + t} offset:{off}',
                       f'ds_read_b64_tr_b16 v[{f + 2}:{f + 3}], v{VTB + t} offset:{off + 4 * 256}'],
                      [f'v_mfma_f32_32x32x16_bf16 a[{16 * lam}:{16 * lam + 15}], v[{f}:{f + 3}], v[{x}:{x + 3}], a[{16 * lam}:{16 * lam + 15}]'],
                      name=f'fin{lam}' if (q == 8 and jj == 3) else (f'bs{q}' if k == 15 else None), pre=barrier(g, post) if first else None,
                      pre_requires=prereq(g) if first else [], budget=OPT['bB']))


def HP(lam):
    return 8 * lam if lam < 5 else 80 + 8 * (lam - 5)


ACT = {}
for ks in range(18):
    ACT[(0, ks)] = ('a', HP(ks // 2) + 4 * (ks & 1))
pool = [('a', 144 + 4 * i) for i in range(12)] + [('a', 40), ('a', 44)] + [('v', 16 + 4 * i) for i in range(36)] + \
       [('a', 128 + 4 * i) for i in range(4)] + [('a', 192 + 4 * i) for i in range(8)] + [('v', BIASR)]
order = [(k, ks) for k in (1, 2, 3) for ks in range(10)] + [(k, ks) for k in (1, 2, 3) for ks in range(10, 18)] + \
        [(k, ks) for k in range(4) for ks in (18, 19)] + ['rem']
assert len(pool) == len(order)
for key, r in zip(order, pool):
    ACT[key] = r
ACT['remS'] = ('v', BIASR + 4)


def act_regs(key):
    k, r = ACT[key]
    return f'{k}[{r}:{r + 3}]'


def kname(key):
    return key if isinstance(key, str) else f'{key[0]}_{key[1]}'


ACC2 = [48, 64, 224, 240, 112]


def acc2(n):
    return f'a[{ACC2[n]}:{ACC2[n] + 15}]'


def act_req(key):
    if key != 'rem' and key != 'remS' and key[0] == 0 and key[1] < 18:
        return [f'h{key[1] // 2}']
    return [f'act{kname(key)}']


def p2op(g, pos, n, key, zero=False, first=False, name=None, req=()):
    f = newfrag()
    ops.append(Op([f'ds_read_b128 v[{f}:{f + 3}], {vRL} offset:{pos * 1024}'],
                  [f'v_mfma_f32_32x32x16_bf16 {acc2(n)}, v[{f}:{f + 3}], {act_regs(key)}, {"0" if zero else acc2(n)}'],
                  name=name, pre=barrier(g, rl_post(g)) if first else None, pre_requires=prereq(g) if first else [],
                  requires=act_req(key) + list(req), budget=OPT['bP']))


for p, (kind, k) in enumerate(RUNS):
    g = 15 + p
    nk = 10 if kind == 'A' else 8
    for kk in range(nk):
        key = (k, kk + (10 if kind == 'B' else 0))
        z = (p == 0 and kk == 0)
        for n in range(3):
            p2op(g, kk * 3 + n, n, key, zero=z, first=(kk == 0 and n == 0), req=['h4'] if z else [])
        if k % 2 == 0:
            p2op(g, 3 * nk + kk, 3, key, zero=z)
for i, (k, ks) in enumerate(((0, 18), (0, 19), (2, 18), (2, 19))):
    p2op(23, 24 + 2 * k + (ks - 18), 3, (k, ks), first=(i == 0))
p2op(23, 35, 3, 'remS', name='pend3')
for n in range(3):
    for k in range(4):
        for ks in (18, 19):
            p2op(23, 6 * k + 3 * (ks - 18) + n, n, (k, ks))
    p2op(23, 32 + n, n, 'rem', name=f'pend{n}')
p2op(23, 36, 4, 'rem', zero=True, name='c0')
for u, pair in enumerate(((2, 3), (1, 0))):
    for k in pair:
        for ks in (list(range(10, 20)) + list(range(10))):
            nm = 'rxfree' if (k == 1 and ks == OPT['rxks']) else None
            p2op(24 + u, (k & 1) * 20 + ks, 4, (k, ks), first=(k == pair[0] and ks == 10), name=nm)

npoll = [0]


def poll_check(load_txt, cmp_lines, tag):
    k = npoll[0]
    npoll[0] += 1
    E.wait_tags([tag])
    E(f'L_PC{k}:')
    E(cmp_lines)
    E(f's_cmp_lg_u64 {SPOLL}, 0')
    E(f's_cbranch_scc1 L_PS{k}')
    E(f'L_PR{k}:')
    slow_paths.append((k, load_txt))


def flags_cmp(v):
    return f'v_cmp_ne_u64 {SPOLL}, s[{NONCE}:{NONCE + 1}], v[{v}:{v + 1}]'


def poll_item(setup, va, vd, tag, gap):
    fl_ = ' nt' if (OPT.get('gplain') and tag in ('pfa', 'pfb', 'pfo')) else ' sc1'
    ld = f'buffer_load_dwordx2 v[{vd}:{vd + 1}], {va}, {srd(SRD_WS)}, 0 offen{fl_}'
    return ([setup] if setup else []) + [Inst(ld, tag=tag), ('gap', gap), ('call', lambda: poll_check(ld, flags_cmp(vd), tag))]


def get_nonce():
    poll_check(NONL, f'v_cmp_eq_u32 {SPOLL}, 0, v{vNON}', 'nonce')
    E(f'v_readfirstlane_b32 s{NONCE}, v{vNON}\nv_readfirstlane_b32 s{NONCE + 1}, v{vNON + 1}')


def wave_flag(soff, need, off=0):
    fl_ = GS if (need and need[0] in ('gsta', 'gstb', 'ost')) else ' sc1'
    return Inst(f'buffer_store_dwordx2 v[{vNON}:{vNON + 1}], {vF0}, {srd(SRD_WS)}, {soff} offen offset:{off}{fl_}', need=need)


st_tr = Stream('tr', own_vcc=True)
for q in range(1, 9):
    st_tr.add([('after', f'a{q - 1}')] + ([('after', f'xl{q}')] if q > (3 if OPT['x23'] else 1) else []) + transpose_seg(q))
st_tr.add([('mark', 'trdone')])

RPT = TMP + 16
st_rp = Stream('rp')
st_rp.add([Inst(NONL, tag='nonce'), ('after', 'Bx')])
CSA_ = 'a[144:159]'
for f in range(11):
    if f < 9:
        t = RPT + 4 * (f % 4)
        st_rp.add([f'ds_read_b64_tr_b16 v[{t}:{t + 1}], {vA1} offset:{f * 4096}', f'ds_read_b64_tr_b16 v[{t + 2}:{t + 3}], {vA1} offset:{f * 4096 + 1024}'])
    else:
        st_rp.add([('gap', 2)])
    if f >= 2:
        f2 = f - 2
        t2 = RPT + 4 * (f2 % 4)
        st_rp.add([Inst(f'buffer_store_dwordx4 v[{t2}:{t2 + 3}], {vLANE16}, {srd(SRD_WS)}, {sUD} offen sc1', tag='eust'),
                   f'v_mfma_f32_32x32x16_bf16 {CSA_}, a[{ONESR}:{ONESR + 3}], v[{t2}:{t2 + 3}], {"0" if f2 == 0 else CSA_}',
                   f's_add_u32 {sUD}, {sUD}, 16384'])
t0, t1, t2 = f'v{RPT}', f'v{RPT + 1}', f'v{RPT + 2}'
st_rp.add([('call', get_nonce), ('mark', 'nonce_ok'), ('gap', 1), f'''v_accvgpr_read_b32 {t0}, a144
v_cvt_pk_bf16_f32 {t1}, {t0}, {t0}
v_lshlrev_b32 {t1}, 16, {t1}
v_sub_f32 {t2}, {t0}, {t1}
v_cvt_pk_bf16_f32 {t0}, {t1}, {t2}
v_cmp_gt_u32 {SPOLL}, 32, v1
v_cndmask_b32 {t0}, {vZ}, {t0}, {SPOLL}''',
           Inst(f'buffer_store_dword {t0}, {vLANE16}, {srd(SRD_WS)}, {sUC} offen sc1', tag='eust'), ('mark', 'eudone')])
st_rp.items[-3].glue = True
st_rp.add([('after', 'B2'), f's_lshl_b32 {tR0}, s2, 3\ns_add_u32 {tR0}, {tR0}, {L.WS_FLAG_E}\ns_cmp_eq_u32 {sW}, 0\ns_cselect_b32 {tR0}, {tR0}, {OOB}',
           wave_flag(tR0, []),
           f's_lshl_b32 {tR0}, {sU1}, 3\ns_add_u32 {tR0}, {tR0}, {L.WS_FLAG_U}\ns_cmp_eq_u32 {sW}, 1\ns_cselect_b32 {tR0}, {tR0}, {OOB}',
           wave_flag(tR0, []), ('mark', 'eupub')])
sU2 = 's71'
st_rp.add([U2C.format(d=sU2, t=tR0) if OPT['umap'] else f's_sub_u32 {sU2}, s2, 92'])
vA2 = 'v2'
st_rp.add([('call', lambda: E(f"""s_mul_i32 {tR1}, {sU2}, 1821
s_lshr_b32 {tR1}, {tR1}, 16
s_mul_i32 {tR0}, {sU2}, 7282
s_lshr_b32 {tR0}, {tR0}, 16
s_mul_i32 {tR2}, {tR0}, 9
s_sub_u32 {tR2}, {sU2}, {tR2}
s_add_u32 {tR3}, {tR2}, 5
s_cmp_ge_u32 {tR3}, 9
s_cselect_b32 {tM0}, 9, 0
s_sub_u32 {tR3}, {tR3}, {tM0}
s_and_b32 {tM0}, {tR0}, 1
s_cmp_eq_u32 {tM0}, 0
s_cselect_b32 {tR2}, {tR3}, {tR2}
s_and_b32 {tR0}, {tR0}, 3
s_mul_i32 {sUS}, {tR0}, 20
s_lshl_b32 {tM0}, {tR2}, 1
s_add_u32 {sUS}, {sUS}, {tM0}
s_mul_i32 {tR0}, {tR0}, 9
s_add_u32 {tR2}, {tR2}, {tR0}
s_lshl_b32 {tR3}, {sU2}, 5
s_lshl_b32 {tR0}, {sW}, 3
s_add_u32 {tR3}, {tR3}, {tR0}
s_mov_b32 {tM0}, 4
s_mov_b32 {tR4}, 8
s_cmp_lt_u32 {sU2}, 144
s_cbranch_scc1 L_RP_W2C
s_sub_u32 {tR0}, {sU2}, 144
s_lshr_b32 {tR1}, {tR0}, 2
s_and_b32 {tR2}, {tR0}, 3
s_mul_i32 {sUS}, {tR2}, 20
s_add_u32 {sUS}, {sUS}, 18
s_add_u32 {tR2}, {tR2}, 36
s_mul_i32 {tR3}, {tR0}, 36
s_lshl_b32 {tR0}, {sW}, 3
s_add_u32 {tR3}, {tR3}, {tR0}
s_lshr_b32 {tR0}, {sW}, 1
s_lshl_b32 {tR0}, {tR0}, 2
s_add_u32 {tR3}, {tR3}, {tR0}
s_mov_b32 {tM0}, 8
s_mov_b32 {tR4}, 4
s_cmp_lt_u32 {sU2}, 160
s_cbranch_scc1 L_RP_W2C
s_sub_u32 {tR1}, {sU2}, 160
s_mov_b32 {tR2}, 40
s_mov_b32 {sUS}, 80
s_lshl_b32 {tR3}, {tR1}, 2
s_add_u32 {tR3}, {tR3}, {sW}
s_mul_i32 {tR3}, {tR3}, 36
s_add_u32 {tR3}, {tR3}, 16
s_mov_b32 {tM0}, 16
s_mov_b32 {tR4}, 8
L_RP_W2C:""")),
           f"""s_mul_i32 {tR3}, {tR3}, 1152
s_cmp_lt_u32 {sU2}, 164
s_cselect_b32 {tR3}, {tR3}, {OOB}
s_mul_i32 {sRPF}, {tR1}, 41
s_add_u32 {sRPF}, {sRPF}, {tR2}""", ('mark', 'rp2setup'),
           f"""v_lshrrev_b32 {t1}, 5, v1
v_mul_lo_u32 {t1}, {t1}, {tM0}
v_bfe_u32 {t2}, v1, 2, 2
v_add_u32 {t0}, {t1}, {t2}
v_mul_u32_u24 {t0}, 1152, {t0}
v_bfe_u32 {t1}, v1, 4, 1
v_lshl_add_u32 {t0}, {t1}, 5, {t0}
v_and_b32 {t1}, 3, v1
v_lshl_add_u32 {t0}, {t1}, 3, {t0}
s_lshr_b32 {tR0}, {sW}, 1
s_mul_i32 {tR0}, {tR0}, 576
s_add_u32 {tR0}, {tR0}, {AUX}
v_add_u32 {vA1}, {tR0}, {t0}
s_mul_i32 {tR4}, {tR4}, 1152
v_add_u32 {vA2}, {tR4}, {vA1}""", ('after', 'rp2dma'),
           f"""s_lshl_b32 {tR2}, {tR1}, 2
s_add_u32 {tR0}, {tR2}, {sW}
s_mul_i32 {tR0}, {tR0}, {L.SLABW_SZ}
s_add_u32 {tR0}, {tR0}, {L.WS_SLABW}
s_cmp_lt_u32 {sU2}, 164
s_cselect_b32 {tR0}, {tR0}, {OOB}
s_mul_i32 {sUD}, {sUS}, 3072
s_add_u32 {sUD}, {sUD}, {tR0}
s_lshl_b32 {tR3}, {sUS}, 10
s_add_u32 {tR3}, {tR3}, {tR0}
s_add_u32 {tR3}, {tR3}, {L.SLABW_O}
s_add_u32 {sUC}, {sUD}, 3072
s_add_u32 {tR4}, {tR3}, 1024
s_cmp_lt_u32 {sUS}, 80
s_cselect_b32 {sUC}, {sUC}, {OOB}
s_cselect_b32 {tR4}, {tR4}, {OOB}
s_mul_i32 {tM0}, {sUS}, 3277
s_lshr_b32 {tM0}, {tM0}, 16
s_mul_i32 {sUST}, {tM0}, 20
s_sub_u32 {sUST}, {sUS}, {sUST}
s_lshr_b32 {tR0}, {tM0}, 1
s_mul_i32 {tR0}, {tR0}, 20
s_add_u32 {sUST}, {sUST}, {tR0}
s_and_b32 {tR0}, {sW}, 1
s_and_b32 {tM0}, {tM0}, 1
s_cmp_lt_u32 {sUS}, 80
s_cselect_b32 {tM0}, {tM0}, {tR0}
s_cselect_b32 {sUS}, {tR0}, 0
s_add_u32 {sUST}, {sUST}, {sUS}
s_lshl_b32 {sUST}, {sUST}, 10
s_andn2_b32 {tR0}, {sW}, 1
s_add_u32 {tR0}, {tR0}, {tM0}
s_add_u32 {tR0}, {tR0}, {tR2}
s_mul_i32 {tR0}, {tR0}, {L.SLABW_SZ}
s_add_u32 {sUST}, {sUST}, {tR0}
s_add_u32 {sUST}, {sUST}, {L.WS_SLABW + L.SLABW_S}
s_cmp_lt_u32 {sU2}, 164
s_cselect_b32 {sUST}, {sUST}, {OOB}
s_mul_i32 {sUS}, {sUS}, {16 * 1152}
s_add_u32 {sUS}, {sUS}, 256
s_and_b32 {tR2}, {sW}, 1
s_mul_i32 {tR2}, {tR2}, 320""", ('after', f'B{RA + 1}')])
vB1_, vB2_ = f'v{TMP + 32}', f'v{TMP + 33}'
frs = []
for lam in range(4):
    pre = [f's_add_u32 {tR0}, {tR1}, {lam + 1}', f's_and_b32 {tR0}, {tR0}, 3', f's_lshl_b32 {tR0}, {tR0}, 6', f's_add_u32 {tR0}, {tR0}, {tR2}',
           f'v_add_u32 {vB1_}, {tR0}, {vA1}', f'v_add_u32 {vB2_}, {tR0}, {vA2}']
    for k2 in range(2):
        dst = ((sUD, sUC)[k2], lam * 1024) if lam < 3 else ((tR3, tR4)[k2], 0)
        frs.append((pre if k2 == 0 else [], k2 * 16 * 1152, dst))
frs.append(([f'v_add_u32 {vB1_}, {sUS}, {vA1}', f'v_add_u32 {vB2_}, {sUS}, {vA2}'], 0, (sUST, 0)))
for f in range(11):
    if f < 9:
        t = RPT + 4 * (f % 4)
        pre, off, _ = frs[f]
        st_rp.add(pre + [f'ds_read_b64_tr_b16 v[{t}:{t + 1}], {vB1_} offset:{off}', f'ds_read_b64_tr_b16 v[{t + 2}:{t + 3}], {vB2_} offset:{off}'])
    else:
        st_rp.add([('gap', 2)])
    if f >= 2:
        f2 = f - 2
        t2_ = RPT + 4 * (f2 % 4)
        sb, im = frs[f2][2]
        st_rp.add([Inst(f'buffer_store_dwordx4 v[{t2_}:{t2_ + 3}], {vLANE16}, {srd(SRD_WS)}, {sb} offen offset:{im} sc1', tag='rp2st')] + ([('gap', OPT['rgap'])] if OPT['rgap'] else []))
st_rp.add([('mark', 'rp2done'), ('after', f'B{RA + 4}'),
           f's_lshl_b32 {tR0}, {sRPF}, 3\ns_add_u32 {tR0}, {tR0}, {L.WS_FLAG_RP}\ns_cmp_lt_u32 {sU2}, 164\ns_cselect_b32 {tR0}, {tR0}, {OOB}\n'
           f's_cmp_eq_u32 {sW}, 0\ns_cselect_b32 {tR0}, {tR0}, {OOB}', wave_flag(tR0, []), ('mark', 'rp2pub')])

STAGE_FN = {}
for u in range(5):
    STAGE_FN[u] = (dma_a, u)
    STAGE_FN[5 + u] = (dma_q, u)
    STAGE_FN[10 + u] = (dma_b, u)
for p in range(8):
    STAGE_FN[15 + p] = (dma_p, p)
STAGE_FN[23] = (dma_o, 0)
for u in range(2):
    STAGE_FN[24 + u] = (dma_c, u)
TOUCH_AT = {2: [4] if OPT['tfirst'] else [3, 4], 3: [10], 4: [11], 5: [6, 7], 6: [8], 7: [12], 8: [13], 9: [14], 12: [15, 16], 13: [17], 14: [18],
            15: [19], 16: [20], 17: [21], 18: [22], 19: [24], 20: [25]}


STAG_AT = {4: [10], 5: [6, 7, 11], 6: [8, 9], 7: [12], 8: [13], 9: [14], 14: [15, 16, 17, 18], 15: [19], 16: [20], 17: [21], 18: [22],
           19: [24], 20: [25]}


def stag_touch(t):
    fn, arg = STAGE_FN[t]
    o = touch(fn, arg)[:-1]
    o += [f's_cmp_eq_u32 {sP8}, {t % 8}', f's_cselect_b32 {tD0}, {tD0}, {OOB}']
    if fn is dma_b:
        o.append(nodep(f'buffer_load_dword v{vTD}, {vTW}, {srd(SRD_W1)}, {tD0} offen'))
    else:
        npc = {dma_q: 8 if arg < 4 else 4, dma_c: 10}.get(fn) or ((10, 8) if RUNS[arg][0] == 'A' else (8, 6))[RUNS[arg][1] % 2]
        if npc < 8:
            o.append(f'v_min_u32 v11, {(8 * npc - 1) * 128}, {vTCH}')
        o.append(nodep(f'buffer_load_dword v{vTD}, {vTCH if npc >= 8 else "v11"}, {srd(SRD_WS)}, {tD0} offen sc1'))
        if npc > 8:
            o += [f's_add_u32 {tD0}, {tD0}, 8192', nodep(f'buffer_load_dword v{vTD}, {vTL}, {srd(SRD_WS)}, {tD0} offen sc1')]
    return o


def paced(items):
    if not OPT['dmagap']:
        return items
    o = []
    for x in items:
        o.append(x)
        if isinstance(x, Inst):
            o.append(('gap', OPT['dmagap']))
    return o


st_dma = Stream('dma')
st_dma.add(([] if OPT['x23'] else xload(2)) + paced(dma_a(1)) + [('mark', 'dma1')] + ([] if OPT['x23'] else xload(3)) + paced(xload(4)))
for g in range(2, NSTG):
    fn, arg = STAGE_FN[g]
    if g == 5:
        st_dma.add([('after', 'e_ok')])
        if OPT['btouch'] == 1:
            def bt1():
                E(f's_and_b32 {tD0}, {sR}, 7\ns_lshl_b32 {tD0}, {tD0}, 2\ns_add_u32 {tD0}, {tD0}, {sW}\ns_mul_i32 {tD1}, {tD0}, {36 * 128}\n'
                  f's_add_u32 {tD1}, {tD1}, {sQ0}\ns_sub_u32 {tD1}, {tD1}, {sL8}\nv_min_u32 v11, {35 * 128}, {vTCH}')
                E.emit(nodep(f'buffer_load_dword v{vTD}, v11, {srd(SRD_WS)}, {tD1} offen sc1'))
                E(f's_mul_i32 {tD1}, {tD0}, {18 * 9216}\ns_add_u32 {tD1}, {tD1}, {sB0}\ns_mul_i32 {tD0}, {sW}, {32 * 9216}\ns_sub_u32 {tD1}, {tD1}, {tD0}\n'
                  f'v_min_u32 v11, 35, v1\nv_lshrrev_b32 {vTW}, 1, v11\nv_mul_u32_u24 {vTW}, 9216, {vTW}\nv_and_b32 v11, 1, v11\nv_lshl_add_u32 v11, v11, 7, {vTW}')
                E.emit(nodep(f'buffer_load_dword v{vTD}, v11, {srd(SRD_W1)}, {tD1} offen'))
            st_dma.add([('call', bt1)])
    if g == AUXAT:
        st_dma.add([('after', 'Bodone')])
    st_dma.add([('after', f'B{max(DMA_AFTER[g], 0) if g > 2 else 0}')] + paced(fn(arg)) + [('mark', f'dma{g}')])
    if g == 2:
        st_dma.add(paced(xload(5) + xload(6)))
    if g == 3:
        st_dma.add(paced(xload(7) + xload(8)))
    if g == 3 and OPT['btouch'] == 2:
        st_dma.add([f's_and_b32 {sP8}, {sR}, 7\nv_lshrrev_b32 {vTW}, 1, v1\nv_mul_u32_u24 {vTW}, 9216, {vTW}\nv_and_b32 v11, 1, v1\n'
                    f'v_lshl_add_u32 {vTW}, v11, 7, {vTW}\nv_min_u32 {vTL}, {15 * 128}, {vTCH}'])
    if g == OPT['rp2at']:
        o = [('after', 'rp2setup')]
        for i in range(9):
            if i % 4 == 0:
                o += [f's_add_u32 m0, {sL9}, {AUX + i * 1024}'] + ([f's_add_u32 {tR3}, {tR3}, 4096'] if i else [])
            o.append(Inst(f'buffer_load_dwordx4 {vLANE16}, {srd(SRD_RP)}, {tR3} offen offset:{(i % 4) * 1024} lds', tag='rp2'))
        st_dma.add(paced(o) + [('mark', 'rp2dma')])
    if g == 14:
        st_dma.add([('after', 'w_ok')])
    if OPT['btouch'] == 2:
        for t in STAG_AT.get(g, []):
            st_dma.add(stag_touch(t))
    if OPT['stouch'] and not (OPT['btouch'] and g > 2):
        for t in TOUCH_AT.get(g, []):
            st_dma.add(touch(*STAGE_FN[t]))


st_pol = Stream('pol')
st_pol.add([('after', 'nonce_ok'), ('after', 'eupub'), ('after', OPT_E)])
st_pol.add(poll_item(None, vPA, vPF, 'pfe', OPT['pchk']) + [('mark', 'e_ok')])
st_pol.add([f'v_and_b32 {vPA}, 31, v1\nv_lshlrev_b32 {vPA}, 2, {vPA}',
            f'buffer_load_dword v{vPF}, {vPA}, {srd(SRD_WS)}, {sSTB} offen sc1', ('gap', 22),
            f"""v_xor_b32 v{vPF + 1}, 0x8000, v{vPF}
v_and_b32 v{vPF + 1}, 0xffff, v{vPF + 1}
v_lshl_or_b32 v{vPF + 1}, v{vPF + 1}, 16, v{vPF + 1}
v_lshrrev_b32 {vPA}, 16, v{vPF}
v_and_b32 v{vPF}, {vMASKHI}, v{vPF}
v_rcp_f32 {vRSTD}, v{vPF}
s_mov_b32 {tC0}, -1
s_mov_b32 {tC1}, 0
v_cndmask_b32 v{BCOR}, {vPA}, v{vPF + 1}, s[92:93]
v_cndmask_b32 v{BCOR + 1}, 0, v{vPF + 1}, s[92:93]
v_cndmask_b32 v{BCOR + 2}, 0, v{vPF + 1}, s[92:93]
v_cndmask_b32 v{BCOR + 3}, 0, v{vPF + 1}, s[92:93]""", ('mark', 'bcor')])
st_pol.add([('after', 'rp2pub'), ('after', 'pubA'), ('after', 'trdone'), ('after', f'B{OPT["pfwat"]}')])
st_pol.add(poll_item(f'v_lshrrev_b32 {vPA}, 1, {vLANE16}\nv_min_u32 {vPA}, {40 * 8}, {vPA}\ns_mul_i32 {tC0}, {sS}, {41 * 8}\n'
                     f's_add_u32 {tC0}, {tC0}, {L.WS_FLAG_RP}\nv_add_u32 {vPA}, {tC0}, {vPA}\n'
                     f'v_and_b32 v{vPF}, 3, v1\nv_lshlrev_b32 v{vPF}, 3, v{vPF}\nv_add_u32 v{vPF}, {sGF}, v{vPF}\n'
                     f'v_cmp_gt_u32 vcc, 48, v1\nv_cndmask_b32 {vPA}, v{vPF}, {vPA}, vcc', vPA, vPF, 'pfw', OPT['pchk']) + [('mark', 'w_ok'), ('mark', 'pf_free')])


def ffn_epi(n, tag):
    o = [('after', f'fin{n}' if n < 5 else 'fin8'), ('gap', 1)]
    t = TMP if n < 5 else 136
    X = t + 8
    for half in range(2):
        for e in range(8):
            o.append(f'v_accvgpr_read_b32 v{t + e}, a{16 * n + 8 * half + e}')
        for e in range(8):
            o.append(f'v_mul_f32 v{t + e}, v{t + e}, |v{t + e}|')
        for p in range(4):
            o.append(f'v_cvt_pk_bf16_f32 v{X + 4 * half + p}, v{t + 2 * p}, v{t + 2 * p + 1}')
        for p in range(4):
            o.append(f'v_pk_max_i16 v{X + 4 * half + p}, v{X + 4 * half + p}, 0')
    if not OPT['hbatch']:
        o.append(f's_add_u32 {tE0}, {sGB}, {2048 * n}')
        o.append(Inst(f'buffer_store_dwordx4 v[{X}:{X + 3}], {vLANE16}, {srd(SRD_WS)}, {tE0} offen{GS}', tag=tag))
        o.append(Inst(f'buffer_store_dwordx4 v[{X + 4}:{X + 7}], {vLANE16}, {srd(SRD_WS)}, {tE0} offen offset:1024{GS}', tag=tag))
    for d in range(8):
        o.append(f'v_accvgpr_write_b32 a{HP(n) + d}, v{X + d}')
    o.append(('mark', f'h{n}'))
    if OPT['hbatch'] and (n == 8 or (n == 4 and not OPT['sgap'])):
        if OPT['quiet']:
            o += [('idle', st_dma), ('quiet', OPT['quiet'])]
        for i, ks in enumerate(range(0, 10) if n == 4 else range(10, 18)):
            if i % 4 == 0:
                o.append(f's_add_u32 {tE0}, {sGB}, {1024 * ks}')
            r = HP(ks // 2) + 4 * (ks & 1)
            o.append(Inst(f'buffer_store_dwordx4 a[{r}:{r + 3}], {vLANE16}, {srd(SRD_WS)}, {tE0} offen offset:{(i % 4) * 1024}{GS}', tag=tag))
    return o


def g_publish(ev, tag, first_kb, nlines, tmps):
    o = [('gap', OPT['pubgap'])] + ([('idle', st_dma), ('quiet', OPT['quiet'])] if (OPT['quiet'] and OPT['gtouch']) else []) + [f's_lshl_b32 {tmps}, {sC}, 3\ns_add_u32 {tmps}, {tmps}, {sGF}', wave_flag(tmps, [tag], 32 * ev)]
    if OPT['gtouch']:
        for k in range(0, nlines, 64):
            n = min(64, nlines - k)
            o.append(f's_add_u32 {tmps}, {sGB}, {first_kb * 2048 + k * 128}')
            if n < 64:
                o.append(f'v_min_u32 {vXO}, {(n - 1) * 128}, {vTCH}')
            o.append(nodep(f'buffer_load_dword v{vTD}, {vTCH if n == 64 else vXO}, {srd(SRD_WS)}, {tmps} offen sc1'))
    return o


st_epi = Stream('epi')
st_epi.add([('after', 'trdone')])
for n in range(5):
    st_epi.add(ffn_epi(n, 'gsta'))
st_hs = Stream('hs')
if OPT['sgap']:
    st_epi.add([('mark', 'epiA')])
    tH = 's70'
    for ks in range(10):
        r = HP(ks // 2) + 4 * (ks & 1)
        st_hs.add([('after', f'h{ks // 2}')] + ([f's_add_u32 {tH}, {sGB}, {1024 * ks}'] if ks % 4 == 0 else []) +
                  [Inst(f'buffer_store_dwordx4 a[{r}:{r + 3}], {vLANE16}, {srd(SRD_WS)}, {tH} offen offset:{(ks % 4) * 1024}{GS}', tag='gsta'),
                   ('gap', OPT['sgap'])])
    st_hs.add(g_publish(0, 'gsta', 0, 80, tH) + [('mark', 'pubA')])
else:
    st_epi.add([('mark', 'epiA')] + g_publish(0, 'gsta', 0, 80, tE0) + [('mark', 'pubA')])
for n in range(5, 9):
    st_epi.add(ffn_epi(n, 'gstb'))
st_epi.add([('mark', 'epiB')] + g_publish(1, 'gstb', 5, 64, tE0) + [('mark', 'pubB')])

vKW, vHX = 'v2', 'v3'
st_att = Stream('att')
T2 = TMP + 16
st_att.add([('after', 'rp2done'), ('after', 'trdone'), ('after', f'B{max(8, RA + 3)}'),
            f"""v_and_b32 v{T2}, 31, v1
s_lshl_b32 {tA0}, {sW}, 5
v_add_u32 v{T2 + 1}, {tA0}, v{T2}
v_mul_u32_u24 v{T2 + 1}, {PITCH}, v{T2 + 1}
v_lshrrev_b32 v{T2 + 2}, 5, v1
v_lshl_add_u32 v{T2 + 1}, v{T2 + 2}, 4, v{T2 + 1}
v_add_u32 {vKW}, {QB1}, v{T2 + 1}
v_subrev_u32 {vHX}, {112 * PITCH}, v{T2 + 1}
s_lshl_b32 {tA0}, {sR}, 4
s_add_u32 {tA0}, {tA0}, {sJ}
s_add_u32 {tA0}, {tA0}, 16
s_lshl_b32 {tA1}, {tA0}, 12
s_add_u32 {tA1}, {tA1}, {L.WS_HALO}
s_cmp_eq_u32 {sR}, 15
s_cselect_b32 {tA1}, {OOB}, {tA1}
v_mov_b32 v{T2 + 2}, {OOB}
v_cmp_gt_u32 vcc, {112 * PITCH}, v{T2 + 1}
v_cndmask_b32 {vHX}, {vHX}, v{T2 + 2}, vcc"""])
hcount = 0
for t4 in (1, 2, 3, 0):
    o = [('after', f'qfin{t4}'), ('gap', 2)]
    for hh in range(2 if t4 < 3 else 1):
        X = T2 + 8 + 4 * (hcount % 2)
        hcount += 1
        for e in range(8):
            o.append(f'v_accvgpr_read_b32 v{T2 + e}, a{QA + 16 * t4 + 8 * hh + e}')
        for e in range(8):
            o.append(f'v_mul_f32 v{T2 + e}, v{T2 + e}, {vRSTD}')
        for pp in range(4):
            o.append(f'v_cvt_pk_bf16_f32 v{X + pp}, v{T2 + 2 * pp}, v{T2 + 2 * pp + 1}')
        if t4:
            o.append(Inst(f'buffer_store_dwordx4 v[{X}:{X + 3}], {vHX}, {srd(SRD_WS)}, {tA1} offen offset:{64 * t4 + 32 * hh} sc1', tag='hxst'))
        o.append(Inst(f'ds_write_b128 {vKW}, v[{X}:{X + 3}] offset:{64 * t4 + 32 * hh}', tag='kvw'))
    if t4 == 3:
        o.append(('mark', 'hx'))
    st_att.add(o)


def kv_barrier():
    E.wait_tags(['kvw'])
    E('s_barrier')
    S.marks.add('Bkv')


st_att.add([('mark', 'kvw'), ('gap', 3), ('call', kv_barrier)])
st_hal = Stream('hal')
st_hal.add([('after', 'hx'), ('gap', OPT['hxgap']), f's_lshl_b32 {tA1}, {tA0}, 7\ns_add_u32 {tA1}, {tA1}, {L.WS_FLAG_HALO}\ns_cmp_eq_u32 {sW}, 3\ns_cselect_b32 {tA1}, {tA1}, {OOB}',
            wave_flag(tA1, ['hxst'])])
SC = 0.2357022603955158 * 1.4426950408889634
A0, A0R, AP, APR, VT, VTP = (f'v{TMP + i}' for i in range(6))
vSD = [f'v{TMP + 34}', f'v{TMP + 35}']
st_at2 = Stream('at2')
st_at2.add([('after', 'kvw'), ('after', 'epiA'), f"""v_and_b32 v{TMP + 8}, 15, v1
v_lshlrev_b32 v{TMP + 9}, 2, v{TMP + 8}""",
            f'buffer_load_dword {vSD[0]}, v{TMP + 9}, {srd(SRD_WS)}, {sSTB} offen sc1',
            f'buffer_load_dword {vSD[1]}, v{TMP + 9}, {srd(SRD_WS)}, {sSTB} offen offset:64 sc1',
            f"""v_lshrrev_b32 v{TMP + 9}, 4, v1
s_mul_i32 {tA2}, {sW}, {32 * PITCH}
s_add_u32 {tA2}, {tA2}, {QB1}
s_sub_u32 {tA3}, {tA2}, {16 * PITCH}
s_cmp_eq_u32 {sW}, 0
s_cselect_b32 {tA3}, {QB}, {tA3}
v_mul_u32_u24 v{TMP + 10}, {PITCH}, v{TMP + 8}
v_add_u32 {A0R}, {tA2}, v{TMP + 10}
v_add_u32 {APR}, {tA3}, v{TMP + 10}
v_lshl_add_u32 {A0}, v{TMP + 9}, 3, {A0R}
v_lshl_add_u32 {AP}, v{TMP + 9}, 3, {APR}
v_lshrrev_b32 v{TMP + 10}, 2, v1
v_mul_u32_u24 v{TMP + 10}, {PITCH}, v{TMP + 10}
v_and_b32 v{TMP + 11}, 3, v1
v_lshl_add_u32 v{TMP + 10}, v{TMP + 11}, 3, v{TMP + 10}
v_add_u32 {VT}, {tA2}, v{TMP + 10}
v_add_u32 {VTP}, {tA3}, v{TMP + 10}
s_add_u32 {tA2}, {sGB}, {9 * 2048}
s_sub_u32 {tA3}, {sGF}, {L.WS_FLAG_G}
s_lshl_b32 {tA3}, {tA3}, 3
s_lshr_b32 {tM0}, {sC}, 1
s_lshl_b32 {tM0}, {tM0}, 9
s_add_u32 {tA3}, {tA3}, {tM0}
s_and_b32 {tM0}, {sC}, 1
s_lshl_b32 {tM0}, {tM0}, 3
s_add_u32 {tA3}, {tA3}, {tM0}
s_add_u32 {tA3}, {tA3}, {L.WS_GREM}
v_lshrrev_b32 v{TMP + 10}, 5, v1
v_lshlrev_b32 v{TMP + 10}, 9, v{TMP + 10}
v_lshl_add_u32 v{TMP + 10}, v{TMP + 8}, 4, v{TMP + 10}
v_and_b32 v{TMP + 9}, 1, v{TMP + 9}
v_lshl_add_u32 v2, v{TMP + 9}, 3, v{TMP + 10}""", ('after', 'Bkv'), ('after', 'bcor3')])
QV = TMP + 6
SV = TMP + 14
PB = [196, BCOR]
m0_, m1_, t1_, t2_ = f'v{TMP + 30}', f'v{TMP + 31}', 'v200', 'v205'


def att_block(b):
    o = []
    for hd in range(2):
        mo = 0 if hd == 0 else 40
        for wh in range(2):
            kb = b + wh
            kr = AK[hd] + 4 * wh
            a, ar, off = (AP, APR, 0) if kb == 0 else (A0, A0R, (kb - 1) * 16 * PITCH)
            o.append(f'ds_read_b64 a[{kr}:{kr + 1}], {a} offset:{off + 72 + mo}')
            o.append(f'ds_read_b64 a[{kr + 2}:{kr + 3}], {ar} offset:{off + 72 + 32}')
        Q = QV + 4 * hd
        o.append(f'ds_read_b64 v[{Q}:{Q + 1}], {A0} offset:{b * 16 * PITCH + mo}')
        o.append(f'ds_read_b32 v{Q + 2 + hd}, {A0R} offset:{b * 16 * PITCH + 32 + 4 * hd}')
        o.append(f'v_mov_b32 v{Q + 3 - hd}, 0')
    for tl, ch in enumerate((18, 23, 22)):
        vr = AK[2 + tl // 2] + 4 * (tl % 2)
        for wh in range(2):
            kb = b + wh
            a, off = (VTP, 0) if kb == 0 else (VT, (kb - 1) * 16 * PITCH)
            o.append(f'ds_read_b64_tr_b16 a[{vr + 2 * wh}:{vr + 2 * wh + 1}], {a} offset:{off + 8 * ch}')
    for hd in range(2):
        Q = QV + 4 * hd
        o.append(f'v_cndmask_b32 v{Q + 2 + hd}, 0, v{Q + 2 + hd}, {M16}')
    o.append(f'v_and_b32 {vSD[b]}, {vMASKHI}, {vSD[b]}')
    o.append(f'v_mul_f32 {vSD[b]}, {vSD[b]}, {vSD[b]}')
    for hd in range(2):
        Q = QV + 4 * hd
        for wh in range(2):
            kr = AK[hd] + 4 * wh
            sr = SV + 8 * hd + 4 * wh
            bias = BIASR + 4 * wh
            o.append(f'v_mfma_f32_16x16x32_bf16 v[{sr}:{sr + 3}], a[{kr}:{kr + 3}], v[{Q}:{Q + 3}], v[{bias}:{bias + 3}]')
    o.append(('gap', 1))
    for hd, m in enumerate((m0_, m1_)):
        s = [f'v{SV + 8 * hd + i}' for i in range(8)]
        t = (t1_, t2_)[hd]
        o += [f'v_max3_f32 {m}, {s[0]}, {s[1]}, {s[2]}', f'v_max3_f32 {t}, {s[3]}, {s[4]}, {s[5]}',
              f'v_max3_f32 {m}, {m}, {s[6]}, {s[7]}', f'v_max_f32 {m}, {m}, {t}']
    o += [f'v_mov_b32 {t2_}, {fl(SC)}', ('gap', 1),
          f'v_permlane16_swap_b32 {m0_}, {m1_}', f'v_max_f32 {m0_}, {m0_}, {m1_}', f'v_mov_b32 {m1_}, {m0_}', ('gap', 1),
          f'v_permlane32_swap_b32 {m0_}, {m1_}', f'v_max_f32 {m0_}, {m0_}, {m1_}', f'v_mul_f32 {m0_}, {fl(-SC)}, {m0_}',
          f'v_mov_b32 {m1_}, {m0_}', ('gap', 1), f'v_permlane16_swap_b32 {m0_}, {m1_}']
    for hd, m in enumerate((m0_, m1_)):
        s = [f'v{SV + 8 * hd + i}' for i in range(8)]
        for i in range(8):
            o.append(f'v_fma_f32 {s[i]}, {s[i]}, {t2_}, {m}')
        for i in range(8):
            o.append(f'v_exp_f32 {s[i]}, {s[i]}')
    for hd in range(2):
        s = [f'v{SV + 8 * hd + i}' for i in range(8)]
        for i in range(4):
            o.append(f'v_cvt_pk_bf16_f32 v{PB[hd] + i}, {s[2 * i]}, {s[2 * i + 1]}')
    for hd in range(2):
        P = f'v[{PB[hd]}:{PB[hd] + 3}]'
        vm = AK[2] + 4 * hd
        o.append(f'v_mfma_f32_16x16x32_bf16 v[{QV + 4 * hd}:{QV + 4 * hd + 3}], a[{ONESR}:{ONESR + 3}], {P}, 0')
        o.append(f'v_mfma_f32_16x16x32_bf16 v[{SV + 8 * hd}:{SV + 8 * hd + 3}], a[{vm}:{vm + 3}], {P}, 0')
        o.append(f'v_mfma_f32_16x16x32_bf16 v[{SV + 8 * hd + 4}:{SV + 8 * hd + 7}], a[{AK[3]}:{AK[3] + 3}], {P}, 0')
    o.append(('gap', 1))
    for hd, m in enumerate((m0_, m1_)):
        o.append(f'v_rcp_f32 {m}, v{QV + 4 * hd}')
    for hd, m in enumerate((m0_, m1_)):
        o.append(f'v_mul_f32 {m}, {m}, {vSD[b]}')
    for hd, m in enumerate((m0_, m1_)):
        r = SV + 8 * hd
        for i in (0, 1, 2, 3, 4 + 2 * hd, 5 + 2 * hd):
            o.append(f'v_mul_f32 v{r + i}, v{r + i}, {m}')
    for hd in range(2):
        r = SV + 8 * hd
        o.append(f'v_cvt_pk_bf16_f32 v{QV + 2 * hd}, v{r}, v{r + 1}')
        o.append(f'v_cvt_pk_bf16_f32 v{QV + 2 * hd + 1}, v{r + 2}, v{r + 3}')
        o.append(f'v_cvt_pk_bf16_f32 v{QV + 4 + hd}, v{r + 4 + 2 * hd}, v{r + 5 + 2 * hd}')
    for hd in range(2):
        o.append(Inst(f'buffer_store_dwordx2 v[{QV + 2 * hd}:{QV + 2 * hd + 1}], v2, {srd(SRD_WS)}, {tA2} offen offset:{1024 * hd + 256 * b}{GS}', tag='ost'))
    o.append(Inst(f'buffer_store_dwordx2 v[{QV + 4}:{QV + 5}], {vREM}, {srd(SRD_WS)}, {tA3} offen offset:{256 * b}{GS}', tag='ost'))
    return o


st_at2.add(att_block(1))
vH = TMP + 32
st_hal.add([('gap', OPT['higap']),
            f's_sub_u32 {tA0}, {tA0}, 16\ns_lshl_b32 {tA1}, {tA0}, 7\ns_add_u32 {tA1}, {tA1}, {L.WS_FLAG_HALO}\ns_lshl_b32 {tM1}, {sJ}, 5\n'
            f's_add_u32 {tM1}, {tM1}, {L.WS_FLAG_U}\ns_cmp_eq_u32 {sR}, 0\ns_cselect_b32 {tA1}, {tM1}, {tA1}\nv_mov_b32 v3, {tA1}'])
HL = f'buffer_load_dwordx2 v[{vH}:{vH + 1}], v3, {srd(SRD_WS)}, 0 offen sc1'
st_hal.add([Inst(HL, tag='pfh'), ('gap', 22)])


def halo_import():
    poll_check(HL, flags_cmp(vH), 'pfh')
    E(f's_cmp_lg_u32 {sW}, 0\ns_cbranch_scc1 L_HI')
    E(f's_lshl_b32 {tA1}, {tA0}, 12\ns_add_u32 {tA1}, {tA1}, {L.WS_HALO}\ns_cmp_eq_u32 {sR}, 0\ns_cselect_b32 {tA1}, {OOB}, {tA1}')
    E(f's_mov_b32 {tM1}, m0\ns_mov_b32 m0, {QB}\ns_nop 0')
    for i in range(4):
        E.raw(f'    buffer_load_dwordx4 {vLANE16}, {srd(SRD_WS)}, {tA1} offen offset:{i * 1024} sc1 lds')
    E(f's_mov_b32 m0, {tM1}')
    E('L_HI:')
    E(f'buffer_load_dword v{vH}, v14, {srd(SRD_DBG)}, 0 offen', tag='himp')


st_hal.add([('call', halo_import), ('gap', 22), ('call', lambda: E.wait_tags(['himp'])), ('mark', 'halo_in')])
st_at2.add([f's_or_b32 {tM0}, {sR}, {sW}\ns_cmp_eq_u32 {tM0}, 0\ns_cselect_b32 {tM0}, 0xf149f2ca, 0'] +
           [f'v_min_f32 v{BIASR + i}, {tM0}, v{BIASR + i}' for i in range(4)] + [('after', 'halo_in')])
st_at2.add(att_block(0))
st_at2.add([('mark', 'odone'), ('gap', OPT['pubgap']), f's_lshl_b32 {tA2}, {sC}, 3\ns_add_u32 {tA2}, {tA2}, {sGF}', wave_flag(tA2, ['ost'], 64), ('mark', 'opub')])

st_act = Stream('act')
GPA = f'v_and_b32 {vPA}, 3, v1\nv_lshlrev_b32 {vPA}, 3, {vPA}\nv_add_u32 {vPA}, {sGF}, {vPA}'


def act_load(key, soff, off):
    o = []
    kind, r = ACT[key]
    if kind == 'v':
        o.append(('after', 'odone' if r >= BIASR else (f'bs{(r - 16) // 16}' if r + 4 <= 136 else 'epiB')))
    elif r >= AK[0]:
        o.append(('after', 'odone'))
    elif r >= QA:
        o.append(('after', 'kvw'))
    elif r >= 128:
        o.append(('after', 'epiB'))
    else:
        o.append(('after', 'epiA'))
    o.append(f'buffer_load_dwordx4 {act_regs(key)}, {vLANE16}, {srd(SRD_WS)}, {soff} offen offset:{off}{GS}')
    o.append(('mark', f'act{kname(key)}'))
    return o


st_act.add([('after', 'pf_free'), ('after', 'kvw'), GPA])
for k in range(1, 4):
    for ks in range(10):
        if ks % 4 == 0:
            st_act.add([f's_add_u32 {tC0}, {sGP[k]}, {ks * 1024}'])
        st_act.add(act_load((k, ks), tC0, (ks % 4) * 1024))
st_act.add([('after', 'pubB'), ('gap', OPT['pollgap'])])
st_act.add(poll_item(f'v_add_u32 {vPA}, 32, {vPA}', vPA, vPF, 'pfb', OPT['pchk']))
for k in range(1, 4):
    for ks in range(10, 18):
        if (ks - 10) % 4 == 0:
            st_act.add([f's_add_u32 {tC0}, {sGP[k]}, {ks * 1024}'])
        st_act.add(act_load((k, ks), tC0, ((ks - 10) % 4) * 1024))
st_ao = Stream('ao')
tO0, tO1 = 's90', 's91'
st_ao.add([('after', 'opub'), ('gap', OPT['ogap'])])
st_ao.add(poll_item(f'v_and_b32 v{BCOR + 2}, 3, v1\nv_lshlrev_b32 v{BCOR + 2}, 3, v{BCOR + 2}\ns_add_u32 {tO0}, {sGF}, 64\nv_add_u32 v{BCOR + 2}, {tO0}, v{BCOR + 2}',
                    f'v{BCOR + 2}', BCOR, 'pfo', OPT['pchk']))
st_ao.add([f's_sub_u32 {tO0}, {sGF}, {L.WS_FLAG_G}\ns_lshl_b32 {tO0}, {tO0}, 3\ns_add_u32 {tO0}, {tO0}, {L.WS_GREM}'] + act_load('rem', tO0, 0))
for k in (0, 2, 1, 3):
    st_ao.add([f's_add_u32 {tO0}, {sGP[k] if k else sGB}, {18 * 1024}'] + act_load((k, 18), tO0, 0) + act_load((k, 19), tO0, 1024))
st_ao.add([('gap', 15), f's_and_b32 {tO0}, {sC}, 1\ns_sub_u32 {tO0}, {tO0}, 1\ns_not_b32 {tO1}, {tO0}'] +
          [f'v_cndmask_b32 v{BIASR + 4 + d}, 0, v{BIASR + d}, s[90:91]' for d in range(4)] + [('mark', 'actremS')])

XB = TMP
XR = TMP + 20
vOA, vOS, vRS2 = 'v4', 'v5', 'v6'
SOM, SOS = 's20', 's21'
st_fin = Stream('fin')
st_fin.add([('after', 'opub'), ('after', 'fin8'), ('after', 'B18'),
            f"""v_lshrrev_b32 v2, 2, v1
v_mul_u32_u24 v2, 1152, v2
v_and_b32 v3, 3, v1
v_lshlrev_b32 v3, 4, v3
v_add_u32 {vOA}, v2, v3
s_lshr_b32 {tA0}, {sC}, 1
s_mul_i32 {tA0}, {tA0}, 576
s_and_b32 {tA1}, {sC}, 1
s_mul_i32 {tA2}, {tA1}, 320
s_add_u32 {tA2}, {tA2}, {tA0}
s_lshl_b32 {tA3}, {sS}, 6
s_add_u32 {tA2}, {tA2}, {tA3}
s_add_u32 {SOM}, {sXB}, {tA2}""",
            f'buffer_load_dwordx4 v[{XR}:{XR + 3}], {vOA}, {srd(SRD_X)}, {SOM} offen',
            f's_add_u32 {tA3}, {SOM}, {16 * 1152}',
            f'buffer_load_dwordx4 v[{XR + 4}:{XR + 7}], {vOA}, {srd(SRD_X)}, {tA3} offen',
            f'buffer_load_dwordx4 v[{XR + 8}:{XR + 11}], v3, {srd(SRD_B)}, {tA2} offen',
            f"""v_and_b32 v2, 15, v1
v_bfe_u32 v3, v1, 4, 1
v_lshlrev_b32 v3, 3, v3
v_mul_u32_u24 v7, 1152, v2
v_add_u32 v7, v7, v3
v_mov_b32 {vOS}, {OOB}
v_cmp_gt_u32 vcc, 32, v1
v_cndmask_b32 {vOS}, {vOS}, v7, vcc
s_lshl_b32 {tA2}, {sR}, 2
s_add_u32 {tA2}, {tA2}, {sS}
s_lshl_b32 {tA2}, {tA2}, 1
s_add_u32 {tA2}, {tA2}, {tA1}
s_lshl_b32 {tA3}, {tA2}, 6
s_add_u32 {tA3}, {tA3}, {L.WS_STAT}
v_lshlrev_b32 v2, 2, v2""",
            f'buffer_load_dword {vRS2}, v2, {srd(SRD_WS)}, {tA3} offen sc1',
            f"""s_mul_i32 {tA2}, {tA2}, {16 * 1152}
s_lshl_b32 {tA3}, {sW}, 4
s_add_u32 {tA3}, {tA3}, {tA0}
s_add_u32 {tA3}, {tA3}, 256
s_add_u32 {SOS}, {tA2}, {tA3}""",
            f'buffer_load_dwordx2 v[{XR + 12}:{XR + 13}], {vOS}, {srd(SRD_X)}, {SOS} offen',
            f'buffer_load_dwordx2 v[{XR + 14}:{XR + 15}], v3, {srd(SRD_B)}, {tA3} offen', ('gap', 40)])
for d in range(4):
    for hi in range(2):
        un = (lambda r, dst: f'v_and_b32 {dst}, {vMASKHI}, v{r}') if hi else (lambda r, dst: f'v_lshlrev_b32 {dst}, 16, v{r}')
        st_fin.add([un(XR + 8 + d, 'v2')])
        for rd in range(2):
            st_fin.add([un(XR + 4 * rd + d, 'v3'), f'v_add_f32 v{XB + 8 * rd + 2 * d + hi}, v2, v3'])
for d in range(2):
    for hi in range(2):
        un = (lambda r, dst: f'v_and_b32 {dst}, {vMASKHI}, v{r}') if hi else (lambda r, dst: f'v_lshlrev_b32 {dst}, 16, v{r}')
        st_fin.add([un(XR + 12 + d, 'v2'), un(XR + 14 + d, 'v3'), f'v_add_f32 v{XB + 16 + 2 * d + hi}, v2, v3'])
SND = ['s16', 's17', 's18', 's19']
RCV = ['s12', 's13', 's15', 's38', 's39']
st_fin.add([f"""v_and_b32 {vRS2}, {vMASKHI}, {vRS2}
v_mul_f32 {vRS2}, {vRS2}, {vRS2}
v_rcp_f32 {vRS2}, {vRS2}
v_mul_f32 {vRSTD}, {vRSTD}, {vRSTD}
s_lshl_b32 {tA0}, {sR}, 2
s_add_u32 {tA0}, {tA0}, {sC}
s_lshl_b32 {tA0}, {tA0}, 18
s_add_u32 {tA0}, {tA0}, {L.WS_PART}
s_lshl_b32 {tA2}, {sW}, 12
s_add_u32 {tA0}, {tA0}, {tA2}
s_lshl_b32 {tA2}, {sS}, 14
s_add_u32 {tA2}, {tA2}, {tA0}"""])
for k in range(1, 4):
    st_fin.add([f's_add_u32 {tA3}, {sS}, {k}\ns_and_b32 {tA3}, {tA3}, 3\ns_lshl_b32 {tA3}, {tA3}, 16\ns_add_u32 {SND[k]}, {tA3}, {tA2}'])
st_fin.add([f"""s_lshl_b32 {tA2}, {sR}, 1
s_lshr_b32 {tA3}, {sC}, 1
s_add_u32 {tA2}, {tA2}, {tA3}
s_lshl_b32 {tM0}, {tA2}, 17
s_add_u32 {tM0}, {tM0}, {L.WS_PARTS}
s_lshl_b32 {tM1}, {sS}, 1
s_add_u32 {tM1}, {tM1}, {tA1}
s_lshl_b32 {tA3}, {tM1}, 11
s_add_u32 {SND[0]}, {tM0}, {tA3}
s_lshl_b32 {tA3}, {sW}, 15
s_add_u32 {SND[0]}, {SND[0]}, {tA3}
s_lshl_b32 {tA3}, {tM1}, 14
s_add_u32 {RCV[0]}, {tM0}, {tA3}
s_lshl_b32 {tA3}, {sW}, 9
s_add_u32 {RCV[0]}, {RCV[0]}, {tA3}
v_bfe_u32 v2, v1, 4, 1
v_lshlrev_b32 v2, 14, v2
v_lshrrev_b32 v3, 5, v1
v_lshl_add_u32 v2, v3, 8, v2
v_and_b32 v11, 15, v1
v_lshl_add_u32 v7, v11, 4, v2
v_lshlrev_b32 v3, 11, v3
v_and_b32 v11, 31, v1
v_lshl_add_u32 v3, v11, 4, v3
v_add_u32 v2, 8192, v3
s_lshl_b32 {tA2}, {sS}, 16
s_add_u32 {tA2}, {tA2}, {tA0}"""])
for k in range(1, 4):
    st_fin.add([f's_add_u32 {tA3}, {sS}, {k}\ns_and_b32 {tA3}, {tA3}, 3\ns_lshl_b32 {tA3}, {tA3}, 14\ns_add_u32 {RCV[k]}, {tA3}, {tA2}'])
PT = XR
PKR = 196
CH = [196, 200, XR + 8, XR + 12]
st_fin.add([f'v_mov_b32 v{c + 3}, v{vNON}' for c in CH] + [('after', f'dma{NSTG - 1}')])
for n in (3, 0, 1, 2):
    st_fin.add([('after', f'pend{n}'), ('gap', 2)])
    for half in range(2):
        st_fin.add([f'v_accvgpr_read_b32 v{PT + e}, a{ACC2[n] + 8 * half + e}' for e in range(8)])
        for d in range(4):
            dd = 4 * half + d
            dst = (CH[dd // 3] + dd % 3) if n < 3 else (CH[dd // 2] + dd % 2)
            st_fin.add([f'v_cvt_pk_bf16_f32 v{dst}, v{PT + 2 * d}, v{PT + 2 * d + 1}'])
    for q in range(3 if n < 3 else 4):
        if n < 3:
            st_fin.add([f'buffer_store_dwordx4 v[{CH[q]}:{CH[q] + 3}], {vLANE16}, {srd(SRD_WS)}, {SND[n + 1]} offen offset:{q * 1024} sc1'])
        else:
            st_fin.add([f'buffer_store_dwordx4 v[{CH[q]}:{CH[q] + 3}], v7, {srd(SRD_WS)}, {SND[0]} offen offset:{q * 512} sc1'])
RB = 80
RXL = []
for k in range(1, 4):
    for q in range(3):
        r = RB + 12 * (k - 1) + 4 * q
        RXL.append(f'buffer_load_dwordx4 v[{r}:{r + 3}], {vLANE16}, {srd(SRD_WS)}, {RCV[k]} offen offset:{q * 1024} sc1')
RS = RB + 36
for i in range(4):
    RXL.append(f'buffer_load_dwordx4 v[{RS + 4 * i}:{RS + 4 * i + 3}], {("v3", "v2")[i // 2]}, {srd(SRD_WS)}, {(RCV[0], RCV[4])[i % 2]} offen sc1')
st_fin.add([f's_add_u32 {RCV[4]}, {RCV[0]}, 4096', ('after', 'rxfree')] + [Inst(x, tag='rx') for x in RXL])

S = Sched(E, [st_dma, st_pol, st_hs, st_hal, st_rp, st_tr, st_att, st_epi, st_at2, st_act, st_ao, st_fin])
S.vrate = OPT['vrate']
S.memorder = [st_pol, st_hs, st_hal, st_att, st_at2, st_epi, st_rp, st_dma, st_act, st_ao, st_fin, st_tr]
S.vcap = OPT['vcap']
S.lat = OPT['lat']
st_dma.edf = True
st_act.edf = True
st_ao.edf = True
if OPT.get('zlo') is not None:
    def hook(i):
        if OPT['zlo'] <= i < OPT['zlo'] + 50 * OPT['zst'] and (i - OPT['zlo']) % OPT['zst'] == 0:
            E.raw(f'; ZSTAMP {nstamp[0]} op {i}')
            stamp()
    S.hook = hook
S.extra_deadline = {f'xl{q}': 20 * (q - 1) for q in range(2, 9)}
S.run(ops, D=OPT['D'], WB=OPT['WB'], budget=3.0, maxmem=OPT['maxmem'])
stamp()
S.drain()
stamp()

OA = 16
TP = 144
E(f"""v_and_b32 v8, 31, v1
v_mul_u32_u24 v8, {TP}, v8
v_lshrrev_b32 v9, 5, v1
v_lshl_add_u32 v8, v9, 4, v8
s_mul_i32 s90, {sW}, {32 * TP}
s_add_u32 s90, s90, {SLOTB[23]}
v_add_u32 v8, s90, v8
v_lshrrev_b32 v11, 2, v1
v_mul_u32_u24 v11, {TP}, v11
v_and_b32 v15, 3, v1
v_lshl_add_u32 v11, v15, 5, v11
v_add_u32 v11, s90, v11""")
for e in range(16):
    E(f'v_accvgpr_read_b32 v{OA + e}, a{ACC2[4] + e}')
E.wait_tags(['rx'])
E('L_RXC:')
tags = [RB + 4 * i + 3 for i in range(13)]
E(f'v_xor_b32 v9, s{NONCE}, v{tags[0]}')
for i in range(1, 13, 2):
    E(f'v_xor_b32 v15, s{NONCE}, v{tags[i]}\nv_xor_b32 v32, s{NONCE}, v{tags[i + 1]}\nv_or3_b32 v9, v9, v15, v32')
E(f'v_cmp_ne_u32 {SPOLL}, 0, v9\ns_cmp_lg_u64 {SPOLL}, 0\ns_cbranch_scc1 L_RXS')
E('L_RXR:')
stamp()
for k in range(3):
    for dd in range(8):
        r = RB + 12 * k + 4 * (dd // 3) + dd % 3
        E(f'v_lshlrev_b32 v32, 16, v{r}\nv_and_b32 v33, {vMASKHI}, v{r}\nv_add_f32 v{OA + 2 * dd}, v{OA + 2 * dd}, v32\nv_add_f32 v{OA + 2 * dd + 1}, v{OA + 2 * dd + 1}, v33')
for q4 in range(4):
    for e in range(4):
        E(f'v_mul_f32 v{OA + 4 * q4 + e}, v{OA + 4 * q4 + e}, {vRSTD}')
    E(f'ds_write_b128 v8, v[{OA + 4 * q4}:{OA + 4 * q4 + 3}] offset:{32 * q4}', tag='tw')
SH = 40
for i in range(4):
    for d in range(2):
        r = RS + 4 * i + d
        if i == 0:
            E(f'v_lshlrev_b32 v{SH + 2 * d}, 16, v{r}\nv_and_b32 v{SH + 2 * d + 1}, {vMASKHI}, v{r}')
        else:
            E(f'v_lshlrev_b32 v32, 16, v{r}\nv_and_b32 v33, {vMASKHI}, v{r}\nv_add_f32 v{SH + 2 * d}, v{SH + 2 * d}, v32\nv_add_f32 v{SH + 2 * d + 1}, v{SH + 2 * d + 1}, v33')
    if i == 1:
        E.wait_tags(['tw'])
        for rd in range(2):
            E(f'ds_read_b128 v[{48 + 8 * rd}:{51 + 8 * rd}], v11 offset:{rd * 16 * TP}')
            E(f'ds_read_b128 v[{52 + 8 * rd}:{55 + 8 * rd}], v11 offset:{rd * 16 * TP + 16}')
for rd in range(2):
    for e in range(8):
        E(f'v_add_f32 v{48 + 8 * rd + e}, v{48 + 8 * rd + e}, v{XB + 8 * rd + e}')
    for d in range(4):
        E(f'v_cvt_pk_bf16_f32 v{64 + 4 * rd + d}, v{48 + 8 * rd + 2 * d}, v{48 + 8 * rd + 2 * d + 1}')
    E(f'buffer_store_dwordx4 v[{64 + 4 * rd}:{67 + 4 * rd}], {vOA}, {srd(SRD_OUT)}, {SOM} offen')
    if rd == 0:
        E(f's_add_u32 {SOM}, {SOM}, {16 * 1152}')
for e in range(4):
    E(f'v_mov_b32 v{SH + 4 + e}, v{SH + e}')
for e in range(4):
    E(f'v_permlane32_swap_b32 v{SH + e}, v{SH + 4 + e}')
for e in range(4):
    E(f'v_add_f32 v{SH + e}, v{SH + e}, v{SH + 4 + e}\nv_fma_f32 v{SH + e}, v{SH + e}, {vRS2}, v{XB + 16 + e}')
E(f'v_cvt_pk_bf16_f32 v72, v{SH}, v{SH + 1}\nv_cvt_pk_bf16_f32 v73, v{SH + 2}, v{SH + 3}')
E(f'buffer_store_dwordx2 v[72:73], {vOS}, {srd(SRD_OUT)}, {SOS} offen')

if OPT['stamps']:
    stamp()
    E('s_waitcnt lgkmcnt(0)')
    E(f'v_writelane_b32 {vSTAMP}, s100, {nstamp[0] - 1}')
    E(f's_mov_b32 s84, {nstamp[0]}')
    E(f'v_writelane_b32 {vSTAMP}, s84, 63')
    E(f'v_writelane_b32 {vSTAMP}, s99, 62')
    E(f's_lshl_b32 s84, s2, 2\ns_add_u32 s84, s84, {sW}\ns_lshl_b32 s84, s84, 8\ns_add_u32 s84, s84, {L.WS_STAMP}')
    E('v_lshlrev_b32 v1, 2, v1')
    E(f'buffer_store_dword {vSTAMP}, v1, {srd(SRD_WS)}, s84 offen')
E('L_END:')
E('s_endpgm')
for k, load_txt in slow_paths:
    E.raw(f'''L_PS{k}:
    s_add_u32 s99, s99, 1
    s_cmp_gt_u32 s99, 400000
    s_cbranch_scc1 L_PR{k}
    s_sleep 1
    {load_txt}
    s_waitcnt vmcnt(0)
    s_branch L_PC{k}''')
E.raw('''L_RXS:
    s_add_u32 s99, s99, 1
    s_cmp_gt_u32 s99, 400000
    s_cbranch_scc1 L_RXR
    s_sleep 1
''' + '\n'.join('    ' + x for x in RXL) + '''
    s_waitcnt vmcnt(0)
    s_branch L_RXC''')
E.raw('L_CODE_END:')
E.raw(KD_FMT.format(name=KN, vgpr=512, sgpr=102, accum=256, kernarg=88))
txt = E.text()
if OPT.get('hot'):
    import re
    lines = []
    for l in txt.split('\n'):
        if (OPT['hot'] & 1) and 'buffer_store' in l and 's[48:51]' in l and 'v255' not in l:
            l = l.replace('s[48:51]', 's[64:67]')
        if 's_cbranch_scc1 L_PS' in l or 's_cbranch_scc1 L_RXS' in l:
            l = '    s_nop 0'
        lines.append(l)
    txt = '\n'.join(lines)
    if OPT['hot'] & 2:
        txt = txt.replace('    s_and_b32 s84, s2, 7\n    s_lshr_b32 s85, s2, 3\n', '    s_mov_b32 s84, 0\n    s_mov_b32 s85, 0\n', 1)
open(OUT, 'w').write(txt)
if OPT.get('log'):
    for x in S.log:
        if x[1] == 'BARRIER' or (x[1] == 'flushed' and x[3] > 6) or (x[1] == 'mark' and not x[2].startswith(('t', 'act', 'dma', 'xl'))):
            print(x)
print('insts', E.ninst, 'nops', E.n_nop, 'waits', E.n_wait)
```

```python
import sys
import struct
sys.path.insert(0, 'gen')
from kgen import *
from sched import *
import layout as L

KN = 'parallel_sum__sliding_local_dilated__dense_activation_squared_relu__prompt_kernel'
OPT = dict(stamps=0, D=6, WB=3, bA=3.5, bQ=4.5, bB=4.0, bP=4.5, pubgap=35, pollgap=20, stouch=0, gtouch=0,
           hxgap=30, higap=60, egap=5, pgap=60, dmagap=0, bx=16, maxmem=2, vrate=55, vcap=3, rp2at=4, lat=30, pfwat=11, auxat=21, rxks=17, ogap=40, btouch=0, hbatch=0, drain=1, eat=6, quiet=0, tfirst=0, pchk=24, umap=0, cpf=1, rot=0, sgap=0, rgap=0, rxat=50, etouch=0, x23=0)
for a in sys.argv[2:]:
    k, v = a.split('=')
    OPT[k] = float(v) if '.' in v else int(v)
OUT = sys.argv[1]
OPT_E = f"a{OPT['eat']}"
GS = '' if OPT.get('gplain') else ' sc1'

if OPT.get('gpad'):
    L.WS_G = 0x4000000
    L.G_WAVE = 20480 + OPT['gpad']
    L.G_WG = 4 * L.G_WAVE
E = Emitter()
slow_paths = []
fl = lambda x: '0x%08x' % struct.unpack('<I', struct.pack('<f', x))[0]
OOB = '0x40000000'

sW, sR, sS, sC, sJ = 's4', 's5', 's6', 's7', 's8'
P_X, P_WQKV, P_WO, P_W1, P_B1, P_W2, P_B2 = 16, 18, 20, 24, 26, 28, 30
P_OUT, P_DBG, P_WS = 32, 34, 36
SRD_X, SRD_W1, SRD_WS, SRD_RP, SRD_B, SRD_OUT, SRD_DBG, SRD_EU = 40, 44, 48, 52, 56, 60, 64, 68
NONCE = 82
sSLW, sGF, sRPF, sCSA, sCSB, sGB = 's9', 's10', 's11', 's12', 's13', 's14'
sUST, sUS, sUD, sUC = 's15', 's38', 's39', 's3'
sA0, sA4, sB0, sB4, sQ0, sQ4 = 's16', 's17', 's18', 's19', 's20', 's21'
sPF = ['s22', 's23', 's24', 's25']
sGP = [None, 's26', 's27', 's28']
sXB, sXB2, sSTB = 's29', 's30', 's31'
M16 = 's[32:33]'
MX1, MX2 = 's[34:35]', 's[36:37]'
sL10, sL8, sL9, sBO, sC0, sC1 = 's72', 's73', 's74', 's75', 's80', 's81'
sBO2, sL6, sP8 = 's76', 's0', 's1'
SPOLL = 's[78:79]'
tD0, tD1 = 's84', 's85'
tA0, tA1, tA2, tA3 = 's86', 's87', 's88', 's89'
tR0, tR1, tR2, tR3, tR4 = 's90', 's91', 's95', 's96', 's77'
tC0, tC1 = 's92', 's93'
tE0 = 's94'
tM0, tM1 = 's97', 's98'


def srd(n):
    return f's[{n}:{n + 3}]'


XN = 16
FR = 160
NF = 7
BIASR = 188
VDA = 196
VDB = 201
vTA = 'v205'
VTB = 4
vRL = 'v206'
vF0 = 'v207'
vTCH = 'v208'
vLANE16 = 'v209'
vTL = 'v210'
vRSTD = 'v211'
vXO = 'v212'
vREM = 'v213'
BCOR = 214
TMP = 218
vMASKHI = 'v254'
vSTAMP = 'v255'
vNON = 12
vPF = 8
vTD = 10
vPA = 'v15'
vTW = 'v0'
QA = 144
AK = [192, 200, 208, 216]
ONESR = 220

RING = [0, 40960, 81920]
AUX = 122880
LDS_TOTAL = 163840
QB = AUX
QB1 = QB + 4096
PITCH = 240
SLOTB = {g: RING[g % 3] for g in range(18)}
DMA_AFTER = {g: g - 1 for g in range(18)}
NSTG = 26
AUXAT = OPT['auxat']
for g in range(18, AUXAT):
    SLOTB[g] = RING[g % 3]
    DMA_AFTER[g] = g - 1
for g in range(AUXAT, NSTG):
    SLOTB[g] = [AUX, RING[AUXAT % 3], RING[(AUXAT + 1) % 3], RING[(AUXAT + 2) % 3]][(g - AUXAT) % 4]
    DMA_AFTER[g] = g - 2

if OPT['drain']:
    DMA_AFTER = {g: v - 1 for g, v in DMA_AFTER.items()}
nstamp = [0]


def stamp():
    if not OPT['stamps']:
        return
    k = nstamp[0]
    if k > 0:
        E(f'v_writelane_b32 {vSTAMP}, s100, {k - 1}')
    E('s_memrealtime s[100:101]' if OPT.get('rt') else 's_memtime s[100:101]')
    nstamp[0] += 1


def mk_srd(n, p, size):
    E(f's_mov_b32 s{n}, s{p}\ns_mov_b32 s{n + 1}, s{p + 1}\ns_mov_b32 s{n + 2}, {size}\ns_mov_b32 s{n + 3}, 0x20000')


def emit_all(lst):
    for x in lst:
        if isinstance(x, str):
            E(x)
        elif isinstance(x, Inst):
            E.emit(x)


def nodep(txt):
    ld = Inst(txt)
    ld.writes = set()
    return ld


hdr = open('parallel_sum__sliding_local_dilated__dense_activation_squared_relu__prompt.s.ref').read()
hdr = [l for l in hdr.split('\n') if l.startswith(';') and '@launch' not in l and 'Override' not in l and 'grid=ceil' not in l]
E.raw('\n'.join(hdr))
E.raw(f'; @launch grid=(256,1,1) block=(256,1,1) lds={LDS_TOTAL}')
E.raw(f'.amdgcn_target "amdgcn-amd-amdhsa--gfx950"\n.text\n.globl {KN}\n.p2align 8\n.type {KN},@function\n{KN}:')

E('s_cmp_ge_u32 s2, 256\ns_cbranch_scc1 L_END')
stamp()
E('s_load_dwordx16 s[16:31], s[0:1], 0')
E('s_load_dwordx4 s[32:35], s[0:1], 64')
E('s_load_dwordx2 s[36:37], s[0:1], 80')
E(f's_memrealtime s[{NONCE}:{NONCE + 1}]')
E('s_mov_b32 s99, 0')
E(f's_getpc_b64 s[{SRD_EU}:{SRD_EU + 1}]')
E('L_PCREF:')
E(f's_mov_b32 s{SRD_EU + 2}, L_CODE_END-L_PCREF\ns_mov_b32 s{SRD_EU + 3}, 0x20000')
E('v_lshlrev_b32 v2, 7, v0')
if OPT['cpf'] == 0:
    E('s_lshr_b32 s3, s2, 3\ns_and_b32 s3, s3, 1\ns_lshl_b32 s3, s3, 15')
else:
    sh = 11 + OPT['cpf']
    E(f's_lshr_b32 s3, s2, 3\ns_and_b32 s3, s3, {(1 << (16 - sh)) - 1}\ns_lshl_b32 s3, s3, {sh}\nv_lshrrev_b32 v3, {sh}, v2\nv_lshl_or_b32 v2, v3, 30, v2')
E.emit(nodep(f'buffer_load_dword v{vTD}, v2, {srd(SRD_EU)}, s3 offen'))
E('v_lshrrev_b32 v1, 6, v0')
E(f'v_readfirstlane_b32 {sW}, v1')
E('v_and_b32 v1, 63, v0')
E(f'''s_and_b32 s84, s2, 7
s_lshr_b32 s85, s2, 3
s_lshr_b32 {sS}, s84, 1
s_and_b32 {sC}, s85, 3
s_and_b32 s84, s84, 1
s_lshl_b32 s84, s84, 3
s_lshr_b32 s85, s85, 2
s_add_u32 {sR}, s84, s85
s_lshl_b32 {sJ}, {sS}, 2
s_add_u32 {sJ}, {sJ}, {sC}
v_bfe_u32 v2, v1, 2, 3
v_mul_u32_u24 v2, 4608, v2
v_lshrrev_b32 v3, 5, v1
v_lshl_add_u32 v2, v3, 6, v2
v_and_b32 v4, 3, v1
v_lshl_add_u32 {vXO}, v4, 4, v2
v_mul_u32_u24 v5, 1152, v3
v_and_b32 v6, 31, v1
v_lshl_add_u32 v5, v6, 4, v5
v_mov_b32 v7, {OOB}
v_cmp_gt_u32 vcc, 8, v6
v_cndmask_b32 v6, v7, v5, vcc
v_lshlrev_b32 {vLANE16}, 4, v1
s_lshl_b32 s86, {sR}, 2
s_add_u32 s86, s86, {sW}
s_mul_i32 s86, s86, 36864
s_lshl_b32 s87, {sR}, 4
s_add_u32 s87, s87, {sJ}
s_lshl_b32 s87, s87, 2
s_add_u32 s87, s87, {sW}
s_mul_i32 s88, s87, 2304''')
if OPT.get('stag'):
    E(f's_and_b32 s94, {sR}, {OPT["stagm"]}')
    E('L_STG:')
    E('s_cmp_eq_u32 s94, 0\ns_cbranch_scc1 L_STGD')
    E(f's_sleep {OPT["stag"]}\ns_sub_u32 s94, s94, 1\ns_branch L_STG')
    E('L_STGD:')
for i in range(5):
    E(f'''v_add_u32 v8, {64 * i}, v1
v_mul_u32_u24 v9, 3277, v8
v_lshrrev_b32 v9, 16, v9
v_mul_u32_u24 v11, 20, v9
v_sub_u32 v11, v8, v11
v_mul_u32_u24 v9, 9216, v9
v_lshl_add_u32 v{VDA + i}, v11, 4, v9''')
    if i % 4:
        E(f'v_subrev_u32 v{VDA + i}, {(i % 4) * 1024}, v{VDA + i}')
E(f'''s_mul_i32 s89, {sJ}, 576
s_and_b32 s84, {sJ}, 1
s_cmp_eq_u32 s84, 0
s_cselect_b32 s90, 256, 0
s_cselect_b32 s91, 0, 320
s_and_b32 s92, {sW}, {1 if OPT['rot'] else 3}
s_mul_i32 s92, s92, {32 * 9216}
s_add_u32 s92, s92, s89
s_add_u32 s93, s92, s90
s_mul_i32 {sL10}, {sW}, 10240''')
E('s_waitcnt lgkmcnt(0)')
mk_srd(SRD_X, P_X, 2359296)
mk_srd(SRD_W1, P_W1, 5308416)
if OPT['rot']:
    E(f's_mov_b32 s78, s30\ns_mov_b32 s79, s31\ns_and_b32 s1, {sR}, 7\ns_lshl_b32 s84, {sC}, 1\ns_add_u32 s1, s1, s84\ns_sub_u32 s84, s1, 9\ns_min_u32 s1, s1, s84\n'
      f's_lshr_b32 s84, {sW}, 1\ns_add_u32 s30, s1, s84')
E1R = TMP + 16
for k in range(3):
    E(f'buffer_load_dwordx4 v[{E1R + 4 * k}:{E1R + 4 * k + 3}], {"v5" if k < 2 else "v6"}, {srd(SRD_X)}, s88 offen offset:{512 * k}')


sROT, sROTW = 's1', 's30'


def sig(dst, base, add, tmp):
    return [f's_add_u32 {dst}, {base}, {add}', f's_sub_u32 {tmp}, {dst}, 9', f's_min_u32 {dst}, {dst}, {tmp}']


def xload(q, sb=None):
    o = []
    if OPT['rot']:
        o += sig(tD0, sROT, q, tD1) + [f's_lshl_b32 {tD0}, {tD0}, 7', f's_add_u32 {tD0}, {tD0}, {sb or sXB}']
        for i in range(4):
            r = XN + 16 * q + 4 * i
            o.append(Inst(f'buffer_load_dwordx4 v[{r}:{r + 3}], {vXO}, {srd(SRD_X)}, {tD0} offen offset:{1152 * i}', tag=f'x{q}'))
        o.append(('mark', f'xl{q}'))
        return o
    for i in range(4):
        r = XN + 16 * q + 4 * i
        b, off = (sb or sXB, 128 * q) if q < 5 else (sXB2, 128 * (q - 5))
        o.append(Inst(f'buffer_load_dwordx4 v[{r}:{r + 3}], {vXO}, {srd(SRD_X)}, {b} offen offset:{1152 * i + off}', tag=f'x{q}'))
    o.append(('mark', f'xl{q}'))
    return o


TOUCH_ONLY = [False]


def touch(fn, *a):
    TOUCH_ONLY[0] = True
    o = fn(*a)
    TOUCH_ONLY[0] = False
    return o


def dma_a(u, sb=None):
    g = u
    base = SLOTB[g]
    out = [f's_add_u32 {tD0}, {sb or sA0}, {u * 128 * 9216}' if u < 4 else f's_mov_b32 {tD0}, {sA4}']
    if OPT['rot']:
        out = sig(tD0, sROTW if u < 4 else sROT, 2 * u, tD1) + [f's_mul_i32 {tD0}, {tD0}, {64 * 9216}', f's_add_u32 {tD0}, {tD0}, {(sb or sA0) if u < 4 else sA4}']
    if TOUCH_ONLY[0]:
        return out + [nodep(f'buffer_load_dword v{vTD}, {vTW}, {srd(SRD_W1)}, {tD0} offen')]
    lw = sL10
    if u == 4:
        out.append(f's_lshr_b32 {tD1}, {sL10}, 1')
        lw = tD1
    for gr in range(2 if u < 4 else 1):
        if gr:
            out.append(f's_add_u32 {tD0}, {tD0}, {16 * 9216}')
        for i in range(5):
            if i % 4 == 0:
                out.append(f's_add_u32 m0, {lw}, {base + gr * 5120 + i * 1024}')
            out.append(Inst(f'buffer_load_dwordx4 v{VDA + i}, {srd(SRD_W1)}, {tD0} offen offset:{(i % 4) * 1024} lds', tag=f'st{g}'))
    return out


def lin_pieces(g, lw, lbase, npc):
    out = []
    for i in range(npc):
        if i % 4 == 0:
            out.append(f's_add_u32 m0, {lw}, {lbase + i * 1024}' if lw else f's_mov_b32 m0, {lbase + i * 1024}')
            if i:
                out.append(f's_add_u32 {tD0}, {tD0}, 4096')
        out.append(Inst(f'buffer_load_dwordx4 {vLANE16}, {srd(SRD_WS)}, {tD0} offen offset:{(i % 4) * 1024} sc1 lds', tag=f'st{g}'))
    return out


def cs_pieces(g, src, lofs, n):
    o = [f's_lshl_b32 {tD1}, {sW}, 10', f's_add_u32 {tD0}, {src}, {tD1}'] + lin_pieces(g, tD1, SLOTB[g] + lofs, 1)
    if n == 5:
        o += [f's_add_u32 {tD0}, {src}, 4096'] + lin_pieces(g, None, SLOTB[g] + lofs + 4096, 1)
    return o


def dma_b(u):
    g = 10 + u
    base = SLOTB[g]
    out = [f's_add_u32 {tD0}, {sB0}, {u * 128 * 9216}' if u < 4 else f's_mov_b32 {tD0}, {sB4}']
    if OPT['rot']:
        out = sig(tD0, sROTW if u < 4 else sROT, 2 * u, tD1) + [f's_mul_i32 {tD0}, {tD0}, {64 * 9216}', f's_add_u32 {tD0}, {tD0}, {sB0 if u < 4 else sB4}']
    if TOUCH_ONLY[0]:
        return out + [nodep(f'buffer_load_dword v{vTD}, {vTW}, {srd(SRD_W1)}, {tD0} offen')]
    lw = sL8
    if u == 4:
        out.append(f's_lshr_b32 {tD1}, {sL8}, 1')
        lw = tD1
    for gr in range(2 if u < 4 else 1):
        if gr:
            out.append(f's_add_u32 {tD0}, {tD0}, {16 * 9216}')
        out.append(f's_add_u32 m0, {lw}, {base + gr * 4096}')
        for i in range(4):
            out.append(Inst(f'buffer_load_dwordx4 v{VDB + i}, {srd(SRD_W1)}, {tD0} offen offset:{i * 1024} lds', tag=f'st{g}'))
    if u == 0:
        out += cs_pieces(g, sCSB, 32768, 4)
    return out


def dma_lin(g, setup, lw, npc):
    if TOUCH_ONLY[0]:
        return [setup[-1]] + [nodep(f'buffer_load_dword v{vTD}, {vTL}, {srd(SRD_WS)}, {tD0} offen sc1')]
    return list(setup) + lin_pieces(g, lw, SLOTB[g], npc)


def dma_q(u):
    g = 5 + u
    if u < 4:
        o = dma_lin(g, [f's_add_u32 {tD0}, {sQ0}, {u * 32768}'] if not OPT['rot'] else
                    sig(tD0, sROTW, 2 * u, tD1) + [f's_lshl_b32 {tD0}, {tD0}, 14', f's_add_u32 {tD0}, {tD0}, {sQ0}'], sL8, 8)
        if u == 0 and not TOUCH_ONLY[0]:
            o = cs_pieces(g, sCSA, 32768, 5) + o
        return o
    o = dma_lin(g, [f's_lshr_b32 {tD1}, {sL8}, 1', f's_mov_b32 {tD0}, {sQ4}'] if not OPT['rot'] else
                sig(tD0, sROT, 8, tD1) + [f's_lshl_b32 {tD0}, {tD0}, 14', f's_add_u32 {tD0}, {tD0}, {sQ4}', f's_lshr_b32 {tD1}, {sL8}, 1'], tD1, 4)
    if not TOUCH_ONLY[0]:
        o += [f's_lshl_b32 {tM1}, {sJ}, 12', f's_add_u32 {tM1}, {tM1}, {L.WS_CSQ}'] + cs_pieces(g, tM1, 16384, 4)
    return o


RUNS = [('A', k) for k in range(4)] + [('B', k) for k in range(4)]


def dma_p(p):
    kind, k = RUNS[p]
    g = 15 + p
    if kind == 'A':
        return dma_lin(g, [f's_mov_b32 {tD0}, {sPF[k]}'], (sL10, sL8)[k % 2], (10, 8)[k % 2])
    return dma_lin(g, [f's_add_u32 {tD0}, {sPF[k]}, {(sBO, sBO2)[k % 2]}'], (sL8, sL6)[k % 2], (8, 6)[k % 2])


def dma_o(_):
    g = 23
    if TOUCH_ONLY[0]:
        return []
    o = [f's_add_u32 {tD0}, {sC}, {sW}', f's_and_b32 {tD1}, {tD0}, 3', f's_mul_i32 {tD0}, {tD1}, 61440', f's_add_u32 {tD0}, {tD0}, {sSLW}',
         f's_add_u32 {tD0}, {tD0}, {54 * 1024}'] + lin_pieces(g, sL6, SLOTB[g], 6)
    o += [f's_lshr_b32 {tD0}, {tD1}, 1', f's_mul_i32 {tD0}, {tD0}, 20480', f's_add_u32 {tD0}, {tD0}, {sSLW}',
          f's_add_u32 {tD0}, {tD0}, {L.SLABW_S + 18 * 1024}', f's_lshl_b32 {tD1}, {sW}, 11'] + lin_pieces(g, tD1, SLOTB[g] + 24576, 2)
    o += [f's_lshl_b32 {tD1}, {sW}, 10', f's_add_u32 {tD0}, {tD1}, {240 * 1024}', f's_cmp_eq_u32 {sW}, 3',
          f's_cselect_b32 {tD0}, {L.SLABW_S + 40 * 1024}, {tD0}', f's_add_u32 {tD0}, {tD0}, {sSLW}'] + lin_pieces(g, tD1, SLOTB[g] + 32768, 1)
    o += [f's_add_u32 {tD0}, {sSLW}, {L.SLABW_O + 80 * 1024}'] + lin_pieces(g, None, SLOTB[g] + 36864, 1)
    return o


def dma_c(u):
    return dma_lin(24 + u, [f's_mov_b32 {tD0}, {(sC0, sC1)[u]}'], sL10, 10)


A0L = dma_a(0, 's93')
cut = [i for i, x in enumerate(A0L) if isinstance(x, Inst)][4] + 1
def early_touch(first_seg, first_stage):
    E(f'''v_and_b32 v8, 7, v1
s_lshl_b32 s84, {sC}, 3
v_add_u32 v8, s84, v8
v_mul_u32_u24 v8, 1152, v8
v_lshrrev_b32 v9, 3, v1
v_lshl_add_u32 v11, v9, 7, v8''')
    E.emit(nodep(f'buffer_load_dword v{vTD}, v11, {srd(SRD_X)}, s86 offen offset:{128 * first_seg}'))
    E(f'''v_mul_u32_u24 v11, 86, v1
v_lshrrev_b32 v11, 8, v11
v_mul_u32_u24 v9, 3, v11
v_sub_u32 v9, v1, v9
v_lshrrev_b32 v15, 2, v11
v_and_b32 v11, 3, v11
v_lshl_add_u32 v11, v15, 7, v11
s_and_b32 s84, {sR}, 7
s_lshl_b32 s84, s84, 2
s_add_u32 s84, s84, {128 * first_stage}
v_add_u32 v11, s84, v11
v_mul_u32_u24 v11, 9216, v11
v_lshl_add_u32 v11, v9, 7, v11
v_cmp_gt_u32 vcc, {12 * (4 - first_stage)}, v1
v_cndmask_b32 v11, v7, v11, vcc''')
    E.emit(nodep(f'buffer_load_dword v{vTD}, v11, {srd(SRD_W1)}, s93 offen'))
    if first_seg == 0:
        E.emit(nodep(f'buffer_load_dword v{vTD}, v8, {srd(SRD_X)}, s86 offen offset:1024'))


if OPT['tfirst']:
    early_touch(0, 0)
else:
    emit_all(xload(0, 's86') + A0L[:cut])
    E(f's_mov_b32 s97, {tD0}')
stamp()
mk_srd(SRD_DBG, P_DBG, 256)
E(f'''s_or_b32 s{NONCE}, s{NONCE}, 1
v_mov_b32 v8, s{NONCE}
v_mov_b32 v9, s{NONCE + 1}
v_mov_b32 v14, 0
v_cmp_eq_u32 vcc, 0, v1
v_cndmask_b32 {vF0}, v7, v14, vcc
s_or_b32 s85, s2, {sW}
s_cmp_eq_u32 s85, 0
s_cselect_b32 s85, 0, {OOB}''')
E(f'buffer_store_dwordx2 v[8:9], {vF0}, {srd(SRD_DBG)}, s85 offen sc1')
mk_srd(SRD_WS, P_WS, 0x10000000)
mk_srd(SRD_B, P_B1, 9216)
mk_srd(SRD_OUT, P_OUT, 2359296)
U2C = '''s_add_u32 {d}, s2, 48
s_cmp_ge_u32 s2, 144
s_cselect_b32 {d}, 255, {d}
s_sub_u32 {t}, s2, 208
s_cmp_ge_u32 s2, 208
s_cselect_b32 {d}, {t}, {d}'''
E(U2C.format(d='s84', t='s85') if OPT['umap'] else 's_sub_u32 s84, s2, 92')
E(f'''s_cmp_lt_u32 s84, 144
s_cselect_b32 s{SRD_RP}, s{P_W2}, s{P_WO}
s_cselect_b32 s{SRD_RP + 1}, s{P_W2 + 1}, s{P_WO + 1}
s_mov_b32 s{SRD_RP + 2}, 5308416
s_cselect_b32 s{SRD_RP + 2}, s{SRD_RP + 2}, 663552
s_mov_b32 s{SRD_RP + 3}, 0x20000''')
vU, vA1, vZ = 'v2', 'v3', f'v{TMP + 32}'
sU1 = 's98'
E(f'''s_lshr_b32 s85, s2, 3
s_and_b32 s84, s2, 1
s_lshl_b32 s84, s84, 1
s_cmp_ge_u32 s85, 9
s_cselect_b32 s94, 9, 0
s_cselect_b32 s95, 1, 0
s_sub_u32 s94, s85, s94
s_mul_i32 s96, {sS}, 9
s_add_u32 s94, s94, s96
s_lshl_b32 s94, s94, 2
s_add_u32 s94, s94, s84
s_add_u32 s94, s94, s95
s_add_u32 {sU1}, s94, 64
s_sub_u32 s94, s85, 18
s_and_b32 s95, s94, 3
s_lshl_b32 s96, {sS}, 2
s_add_u32 s95, s95, s96
s_lshl_b32 s95, s95, 2
s_add_u32 s95, s95, s84
s_lshr_b32 s94, s94, 2
s_add_u32 s95, s95, s94
s_cmp_ge_u32 s85, 18
s_cselect_b32 {sU1}, s95, {sU1}
s_cmp_ge_u32 s85, 26
s_cselect_b32 {sU1}, 255, {sU1}''')
if not OPT['umap']:
    E(f's_mov_b32 {sU1}, s2')
E(f'''s_and_b32 s84, {sU1}, 3
s_lshr_b32 s85, {sW}, 1
s_lshl_b32 s85, s85, 5
s_and_b32 s94, {sW}, 1
s_lshl_b32 s94, s94, 2
s_add_u32 s85, s85, s94
s_lshl_b32 s94, s84, 3
s_add_u32 s85, s85, s94
v_lshrrev_b32 v8, 4, v1
v_and_b32 v9, 15, v1
v_bfe_u32 v11, v1, 4, 1
v_lshrrev_b32 v3, 5, v1
v_lshlrev_b32 v3, 3, v3
v_bfe_u32 v15, v1, 2, 2
v_add_u32 v3, v3, v15
v_lshlrev_b32 v3, 8, v3
v_add_u32 v3, {AUX}, v3
s_cmp_ge_u32 {sU1}, 64
s_cbranch_scc1 L_EU_W1
s_lshr_b32 s94, {sU1}, 2
s_mov_b32 s{SRD_EU}, s{P_WQKV}
s_mov_b32 s{SRD_EU + 1}, s{P_WQKV + 1}
s_mov_b32 s{SRD_EU + 2}, 1990656
s_mov_b32 {sUST}, {64 * 3456}
s_mul_i32 {sUS}, s85, 3456
s_mul_i32 s95, s94, 72
s_add_u32 {sUS}, {sUS}, s95
s_mul_i32 {sUD}, s94, {L.SLABQ_SZ}
s_lshl_b32 s95, s84, 2
s_add_u32 s95, s95, {sW}
s_lshl_b32 s95, s95, 10
s_add_u32 {sUD}, {sUD}, s95
s_add_u32 {sUD}, {sUD}, {L.WS_SLABQ}
s_lshl_b32 {sUC}, s94, 12
s_add_u32 {sUC}, {sUC}, {L.WS_CSQ}
s_mov_b32 s96, {OOB}
v_mul_u32_u24 v8, 3456, v8
v_mul_u32_u24 v15, 13, v9
v_lshrrev_b32 v15, 6, v15
v_mul_u32_u24 v2, 5, v15
v_sub_u32 v9, v9, v2
v_mul_u32_u24 v15, 1152, v15
v_add_u32 v8, v8, v15
v_lshl_add_u32 {vU}, v9, 4, v8
v_lshlrev_b32 v11, 2, v11
v_and_b32 v8, 1, v1
v_lshl_add_u32 v11, v8, 1, v11
v_bfe_u32 v8, v1, 1, 1
v_add_u32 v11, v11, v8
s_lshl_b32 s95, {sW}, 3
v_add_u32 v11, s95, v11
v_min_u32 v11, 26, v11
v_mul_u32_u24 v8, 57, v11
v_lshrrev_b32 v8, 9, v8
v_lshl_add_u32 v11, v11, 3, v3
v_lshl_add_u32 {vA1}, v8, 3, v11
s_branch L_EU_DONE
L_EU_W1:
s_sub_u32 s94, {sU1}, 64
s_lshr_b32 s94, s94, 2
s_mov_b32 s{SRD_EU}, s{P_W1}
s_mov_b32 s{SRD_EU + 1}, s{P_W1 + 1}
s_mov_b32 s{SRD_EU + 2}, 5308416
s_mov_b32 {sUST}, {64 * 9216}
s_mul_i32 {sUS}, s85, 9216
s_lshl_b32 s95, s94, 8
s_add_u32 {sUS}, {sUS}, s95
s_mov_b32 {sUD}, {OOB}
s_lshl_b32 {sUC}, s94, 12
s_add_u32 {sUC}, {sUC}, {L.WS_CSF}
s_lshl_b32 s96, {sW}, 6
s_add_u32 s96, s96, s95
s_cmp_eq_u32 s84, 0
s_cselect_b32 s96, s96, {OOB}
s_cmp_lt_u32 {sU1}, 208
s_cselect_b32 {sUS}, {sUS}, {OOB}
s_cselect_b32 {sUC}, {sUC}, {OOB}
v_mul_u32_u24 v8, 9216, v8
v_lshl_add_u32 {vU}, v9, 4, v8
v_lshl_add_u32 v3, v11, 5, v3
v_lshl_add_u32 v3, v4, 3, v3
s_lshl_b32 s95, {sW}, 6
v_add_u32 {vA1}, s95, v3
L_EU_DONE:
s_lshl_b32 s95, {sW}, 10
s_add_u32 {sUC}, {sUC}, s95
s_lshl_b32 s94, s84, 2
s_add_u32 {sUC}, {sUC}, s94
v_and_b32 v8, 31, v1
v_lshlrev_b32 v8, 1, v8
s_nop 2''')
if not OPT['tfirst']:
    E(f's_mov_b32 {tD0}, s97')
    emit_all(A0L[cut:] + xload(1, 's86'))
E(f'buffer_load_ushort {vZ}, v8, {srd(SRD_B)}, s96 offen')
mk_srd(SRD_B, 78 if OPT['rot'] else P_B2, 1152)
def eu_dma():
    for i in range(9):
        E(f's_add_u32 m0, s95, {AUX + i * 4096}')
        E(f'buffer_load_dwordx4 {vU}, {srd(SRD_EU)}, {sUS} offen lds', tag='eu')
        if i < 8:
            E(f's_add_u32 {sUS}, {sUS}, {sUST}')


if OPT['tfirst']:
    eu_dma()
E(f'''s_mov_b32 {sXB}, s86
{'s_nop 0' if OPT['rot'] else f's_add_u32 {sXB2}, s86, 640'}
s_mov_b32 {sA0}, s93
s_add_u32 {sB0}, s92, s91
s_mul_i32 s84, {sW}, {16 * 9216}
s_add_u32 s84, s84, {0 if OPT['rot'] else 512 * 9216}
s_add_u32 s84, s84, s89
s_add_u32 {sA4}, s84, s90
s_add_u32 {sB4}, s84, s91
s_lshl_b32 {sL8}, {sW}, 13
s_mul_i32 {sL9}, {sW}, 9216
s_lshl_b32 {sBO2}, {sW}, 11
s_sub_u32 {sBO2}, 30720, {sBO2}
s_cmp_eq_u32 {sW}, 3
s_cselect_b32 {sBO}, 10240, {sBO2}
s_mul_i32 {sL6}, {sW}, 6144
s_mul_i32 s84, {sJ}, {L.SLABQ_SZ}
s_add_u32 s84, s84, {L.WS_SLABQ}
s_and_b32 s85, {sL8}, {0x3fff if OPT['rot'] else 0xffff}
s_add_u32 {sQ0}, s84, s85
s_lshl_b32 s85, {sW}, 12
s_add_u32 {sQ4}, s84, s85
s_add_u32 {sQ4}, {sQ4}, {0 if OPT['rot'] else 8 * 16384}
s_mul_i32 s84, {sJ}, 9216
s_add_u32 s84, s84, {L.WS_CSF}
s_lshl_b32 s90, s90, 4
s_lshl_b32 s91, s91, 4
s_add_u32 {sCSA}, s84, s90
s_add_u32 {sCSB}, s84, s91
s_mul_i32 {sGB}, s87, {L.G_WAVE}
s_add_u32 {sGB}, {sGB}, {L.WS_G}
s_mul_i32 {sSLW}, {sJ}, {L.SLABW_SZ}
s_add_u32 {sSLW}, {sSLW}, {L.WS_SLABW}''')
for k in range(4):
    E(f's_add_u32 s84, {sC}, {k}\ns_and_b32 s84, s84, 3\ns_mul_i32 s85, s84, 61440\ns_add_u32 s85, s85, {sL10 if k % 2 == 0 else sL8}')
    if k % 2 == 0:
        E(f's_lshr_b32 s90, s84, 1\ns_mul_i32 s90, s90, 20480\ns_add_u32 s90, s90, {L.SLABW_S}')
        E(f's_cmp_eq_u32 {sW}, 3\ns_cselect_b32 s85, s90, s85')
    E(f's_add_u32 {sPF[k]}, s85, {sSLW}')
    if k:
        E(f's_sub_u32 s84, s84, {sC}\ns_mul_i32 s84, s84, {L.G_WG}\ns_add_u32 {sGP[k]}, s84, {sGB}')
for u, d in enumerate((sC0, sC1)):
    E(f's_lshr_b32 s84, {sW}, 1\ns_add_u32 s84, s84, {sC}\ns_add_u32 s84, s84, {2 - 2 * u}\ns_and_b32 s84, s84, 3\ns_mul_i32 s84, s84, 20480\n'
      f's_and_b32 s85, {sW}, 1\ns_mul_i32 s85, s85, 10240\ns_add_u32 s84, s84, s85\ns_add_u32 s84, s84, {sSLW}\ns_add_u32 {d}, s84, {L.SLABW_O}')
E(f'''s_lshl_b32 {sGF}, {sR}, 2
s_add_u32 {sGF}, {sGF}, {sS}
s_lshl_b32 {sGF}, {sGF}, 2
s_add_u32 {sGF}, {sGF}, {sW}
s_lshl_b32 {sGF}, {sGF}, 7
s_add_u32 {sGF}, {sGF}, {L.WS_FLAG_G}
s_lshl_b32 {sSTB}, {sR}, 2
s_add_u32 {sSTB}, {sSTB}, {sW}
s_lshl_b32 {sSTB}, {sSTB}, 7
s_add_u32 {sSTB}, {sSTB}, {L.WS_STAT}
s_mov_b64 {M16}, 0xffff
s_mov_b32 s34, 0x55555555
s_mov_b32 s35, 0x55555555
s_mov_b32 s36, 0x33333333
s_mov_b32 s37, 0x33333333''')
if not OPT['tfirst']:
    eu_dma()
E(f'''s_and_b32 s84, {sR}, 7
v_mul_u32_u24 v8, 86, v1
v_lshrrev_b32 v8, 8, v8
v_mul_u32_u24 v9, 3, v8
v_sub_u32 v9, v1, v9
s_lshl_b32 s85, s84, 2
v_add_u32 v8, s85, v8
v_mul_u32_u24 v8, 9216, v8
v_lshl_add_u32 v8, v9, 7, v8
v_cmp_gt_u32 vcc, 12, v1
v_cndmask_b32 {vTW}, v7, v8, vcc
v_lshlrev_b32 {vTCH}, 7, v1
s_mul_i32 s85, s84, {10 * 128}
v_add_u32 v8, s85, {vTCH}
v_cmp_gt_u32 vcc, 10, v1
v_cndmask_b32 {vTL}, v7, v8, vcc
v_lshrrev_b32 v8, 5, v1
v_lshlrev_b32 v8, 5, v8
v_bfe_u32 v9, v1, 2, 2
v_add_u32 v8, v8, v9
v_bfe_u32 v11, v1, 4, 1
v_lshlrev_b32 v11, 5, v11
v_lshl_add_u32 v11, v4, 3, v11
v_mul_u32_u24 v15, 320, v8
v_add_u32 {vTA}, v15, v11
v_lshl_add_u32 v15, v8, 8, v11
v_add_u32 v15, {SLOTB[10]}, v15
v_lshrrev_b32 v8, 4, v1
v_xor_b32 v11, v9, v8
v_mul_u32_u24 v8, 9216, v8
v_lshl_add_u32 v8, v11, 6, v8
v_lshl_add_u32 v{VDB}, v4, 4, v8''')
for i in range(1, 4):
    E(f'v_add_u32 v{VDB + i}, {i * (4 * 9216 - 1024)}, v{VDB}')
E(f'''v_mov_b32 {vMASKHI}, 0xffff0000
v_cndmask_b32 {vREM}, v7, {vLANE16}, {M16}
v_mov_b32 v{TMP + 33}, v7''')
for t in range(4):
    E(f'v_xor_b32 v8, {t}, v9\nv_lshl_add_u32 v{TMP + t}, v8, 6, v15')
E(f'''v_and_b32 v8, 15, v1
v_lshrrev_b32 v9, 4, v1
v_lshlrev_b32 v9, 2, v9
v_sub_u32 v8, v8, v9
v_mov_b32 v15, 0xf149f2ca
v_mov_b32 v9, 0x3f803f80''')
for i in range(4):
    E(f'''v_accvgpr_write_b32 a{ONESR + i}, v9
v_subrev_u32 v11, {i}, v8
v_and_b32 v11, 0x80000001, v11
v_cmp_eq_u32 vcc, 0, v11
v_cndmask_b32 v{BIASR + 4 + i}, v15, v14, vcc
v_xor_b32 v11, 0x80000000, v11
v_cmp_eq_u32 vcc, 0, v11
v_cndmask_b32 v{BIASR + i}, v15, v14, vcc''')
E(f'''v_and_b32 v8, 31, v1
s_lshl_b32 s85, {sJ}, 2
v_add_u32 v11, s85, v8
s_mul_i32 s85, {sJ}, 9
s_andn2_b32 s85, s85, 3
s_add_u32 s85, s85, 60
v_add_u32 v15, s85, v8
v_min_u32 v15, 207, v15
v_cmp_gt_u32 vcc, 4, v8
v_cndmask_b32 v11, v15, v11, vcc
v_bfe_u32 v15, v1, 2, 2
v_lshlrev_b32 v15, 1, v15
v_lshl_add_u32 v15, v4, 3, v15
s_lshl_b32 s85, s84, 5
s_lshr_b32 s84, {sR}, 3
s_add_u32 s85, s85, s84
v_add_u32 v15, s85, v15
v_add_u32 v11, {(L.WS_FLAG_U - L.WS_FLAG_E) // 8}, v11
v_cmp_gt_u32 vcc, 16, v8
v_cndmask_b32 v11, v15, v11, vcc
v_lshlrev_b32 v11, 3, v11
v_add_u32 {vPA}, {L.WS_FLAG_E}, v11''')
for t in range(4):
    E(f'v_mov_b32 v{VTB + t}, v{TMP + t}')
stamp()
if OPT['tfirst']:
    emit_all(xload(0) + dma_a(0) + xload(1))
if OPT['x23']:
    emit_all(xload(2) + xload(3))
stamp()
a0, a1, q0, q1 = (f'v{TMP + i}' for i in range(4))
E(f'v_mov_b32 {a0}, 0\nv_mov_b32 {a1}, 0\nv_mov_b32 {q0}, 0\nv_mov_b32 {q1}, 0')
for e in range(12):
    r = f'v{E1R + e}'
    E(f'v_dot2_f32_bf16 {(a0, a1)[e & 1]}, {r}, v9, {(a0, a1)[e & 1]}')
    E(f'v_dot2_f32_bf16 {(q0, q1)[e & 1]}, {r}, {r}, {(q0, q1)[e & 1]}')
E(f'v_add_f32 {a0}, {a0}, {a1}\nv_add_f32 {q0}, {q0}, {q1}')
for sh in (1, 2, 4, 8):
    E(f'v_add_f32_dpp {a0}, {a0}, {a0} row_shr:{sh} row_mask:0xf bank_mask:0xf bound_ctrl:0')
    E(f'v_add_f32_dpp {q0}, {q0}, {q0} row_shr:{sh} row_mask:0xf bank_mask:0xf bound_ctrl:0')
E(f'v_add_f32_dpp {a0}, {a0}, {a0} row_bcast:15 row_mask:0xa bank_mask:0xf')
E(f'v_add_f32_dpp {q0}, {q0}, {q0} row_bcast:15 row_mask:0xa bank_mask:0xf')
E(f'''v_mul_f32 {a0}, 0x3ae38e39, {a0}
v_mul_f32 {q0}, 0x3ae38e39, {q0}
v_fma_f32 {q0}, -{a0}, {a0}, {q0}
v_max_f32 {q0}, 0, {q0}
v_cvt_pk_bf16_f32 {q0}, {q0}, {q0}
v_lshlrev_b32 {q0}, 16, {q0}
v_add_f32 {q0}, 0x3727c5ac, {q0}
v_cvt_pk_bf16_f32 {q0}, {q0}, {q0}
v_lshlrev_b32 {q0}, 16, {q0}
v_sqrt_f32 {q0}, {q0}
v_and_b32 {a1}, 31, v1
v_cvt_pk_bf16_f32 {a0}, {a0}, {q0}
v_lshrrev_b32 {q1}, 5, v1
v_lshlrev_b32 {q1}, 2, {q1}
v_cmp_eq_u32 vcc, 31, {a1}
v_cndmask_b32 {q1}, v{TMP + 33}, {q1}, vcc
s_lshl_b32 s84, s87, 3
s_add_u32 s84, s84, {L.WS_STAT}''')
E(f'buffer_store_dword {a0}, {q1}, {srd(SRD_WS)}, s84 offen sc1', tag='eust')
NONL = f'buffer_load_dwordx2 v[{vNON}:{vNON + 1}], v14, {srd(SRD_DBG)}, 0 offen sc1'
stamp()

X1 = 'quad_perm:[1,0,3,2] row_mask:0xf bank_mask:0xf'
X2 = 'quad_perm:[2,3,0,1] row_mask:0xf bank_mask:0xf'


def transpose_seg(q):
    R = lambda i, d: f'v{XN + 16 * q + 4 * i + d}'
    Tm = lambda i, d: f'v{TMP + 4 * i + d}'
    o = [f's_mov_b64 vcc, {MX1}']
    for i0 in (0, 2):
        for d in range(4):
            o.append(f'v_cndmask_b32_dpp {Tm(i0, d)}, {R(i0 + 1, d)}, {R(i0, d)}, vcc {X1}')
    o.append('s_not_b64 vcc, vcc')
    for i0 in (0, 2):
        for d in range(4):
            o.append(f'v_cndmask_b32_dpp {Tm(i0 + 1, d)}, {R(i0, d)}, {R(i0 + 1, d)}, vcc {X1}')
    o.append(f's_mov_b64 vcc, {MX2}')
    for i0 in (0, 1):
        for d in range(4):
            o.append(f'v_cndmask_b32_dpp {R(i0, d)}, {Tm(i0 + 2, d)}, {Tm(i0, d)}, vcc {X2}')
        o.append(('mark', f't{q}_{i0}'))
    o.append('s_not_b64 vcc, vcc')
    for i0 in (0, 1):
        for d in range(4):
            o.append(f'v_cndmask_b32_dpp {R(i0 + 2, d)}, {Tm(i0, d)}, {Tm(i0 + 2, d)}, vcc {X2}')
        o.append(('mark', f't{q}_{i0 + 2}'))
    return o


k = 0
for x in transpose_seg(0):
    if isinstance(x, str):
        E(x)
        k += 1
        if k % 3 == 0:
            E('v_nop')
stamp()

fragi = [0]


def newfrag():
    f = FR + 4 * (fragi[0] % NF)
    fragi[0] += 1
    return f


RA = OPT['rp2at']
BAR_TAGS = {2: ['eust'], RA + 1: ['rp2'], RA + 4: ['rp2st']}
BAR_MARKS = {2: ['eudone'], RA + 1: ['rp2dma'], RA + 3: ['rp2done'], OPT['auxat'] - 1: ['odone']}


def barrier(g, post=()):
    def f():
        if OPT['stamps'] > 2:
            stamp()
        E.wait_tags([f'st{g}'] + BAR_TAGS.get(g, []))
        if OPT['drain']:
            E.wait_all(vm=False)
        E('s_barrier')
        if OPT['stamps'] > 1:
            stamp()
        S.marks.add(f'B{g}')
        if 'odone' in S.marks:
            S.marks.add('Bodone')
        S.log.append((S.cur, 'BARRIER', g, 0))
        emit_all(post)
    return f


def eu_barrier():
    E.wait_tags(['eu'])
    E('s_barrier')
    S.marks.add('Bx')


def prereq(g):
    return ([f'dma{g}'] if g >= 1 else []) + BAR_MARKS.get(g, [])


def rl_post(g):
    return [f'v_add_u32 {vRL}, {SLOTB[g]}, {vLANE16}']


ops = []
for q in range(9):
    u, sg = q // 2, q % 2
    g = u
    for k, (jj, n) in enumerate([(jj, n) for jj in range(4) for n in range(5)]):
        f = newfrag()
        off = sg * 20480 + 8 * jj * 320 + 64 * n
        x = XN + 16 * q + 4 * jj
        first = (k == 0 and sg == 0)
        post = []
        if g:
            d = SLOTB[g] - SLOTB[g - 1]
            post = [f'v_add_u32 {vTA}, {d}, {vTA}' if d > 0 else f'v_subrev_u32 {vTA}, {-d}, {vTA}']
        acc = f'a[{16 * n}:{16 * n + 15}]'
        ops.append(Op([f'ds_read_b64_tr_b16 v[{f}:{f + 1}], {vTA} offset:{off}',
                       f'ds_read_b64_tr_b16 v[{f + 2}:{f + 3}], {vTA} offset:{off + 4 * 320}'],
                      [f'v_mfma_f32_32x32x16_bf16 {acc}, v[{f}:{f + 3}], v[{x}:{x + 3}], {"0" if (q == 0 and jj == 0) else acc}'],
                      name=f'a{q}' if k == 0 else None,
                      pre=barrier(g, post) if first else (eu_barrier if (q == 0 and k == OPT['bx']) else None),
                      requires=[f't{q}_{jj}'] if q else [],
                      pre_requires=prereq(g) if first else [], budget=OPT['bA']))
for n in range(5):
    f = newfrag()
    acc = f'a[{16 * n}:{16 * n + 15}]'
    ops.append(Op([f'ds_read_b128 v[{f}:{f + 3}], {vRL} offset:{32768 + 1024 * n}'],
                  [f'v_mfma_f32_32x32x16_bf16 {acc}, v[{f}:{f + 3}], v[{BCOR}:{BCOR + 3}], {acc}'],
                  name=f'fin{n}', pre=barrier(5, rl_post(5)) if n == 0 else None, pre_requires=prereq(5) if n == 0 else [],
                  requires=['bcor'], budget=OPT['bQ']))
for q in range(9):
    u, sg = q // 2, q % 2
    g = 5 + u
    for k, (jj, t4) in enumerate([(jj, t4) for jj in range(4) for t4 in range(4)]):
        f = newfrag()
        x = XN + 16 * q + 4 * jj
        acc = f'a[{QA + 16 * t4}:{QA + 16 * t4 + 15}]'
        first = (k == 0 and sg == 0 and u > 0)
        ops.append(Op([f'ds_read_b128 v[{f}:{f + 3}], {vRL} offset:{(sg * 16 + jj * 4 + t4) * 1024}'],
                      [f'v_mfma_f32_32x32x16_bf16 {acc}, v[{f}:{f + 3}], v[{x}:{x + 3}], {"0" if (q == 0 and jj == 0) else acc}'],
                      pre=barrier(g, rl_post(g)) if first else None,
                      pre_requires=prereq(g) if first else [], budget=OPT['bQ']))
for t4 in (1, 2, 3, 0):
    f = newfrag()
    acc = f'a[{QA + 16 * t4}:{QA + 16 * t4 + 15}]'
    ops.append(Op([f'ds_read_b128 v[{f}:{f + 3}], {vRL} offset:{16384 + 1024 * t4}'],
                  [f'v_mfma_f32_32x32x16_bf16 {acc}, v[{f}:{f + 3}], v[{BCOR}:{BCOR + 3}], {acc}'], name=f'qfin{t4}', budget=OPT['bQ']))
for t in range(4):
    f = newfrag()
    lam = 5 + t
    ops.append(Op([f'ds_read_b128 v[{f}:{f + 3}], {vRL} offset:{32768 + 1024 * t}'],
                  [f'v_mfma_f32_32x32x16_bf16 a[{16 * lam}:{16 * lam + 15}], v[{f}:{f + 3}], v[{BCOR}:{BCOR + 3}], 0'],
                  pre=barrier(10, rl_post(10)) if t == 0 else None, pre_requires=prereq(10) if t == 0 else [],
                  name=f'bcor{t}', budget=OPT['bQ']))
for q in range(9):
    u, sg = q // 2, q % 2
    g = 10 + u
    order = [(jj, n) for jj in range(4) for n in range(4)] if q < 8 else [(jj, n) for n in range(4) for jj in range(4)]
    for k, (jj, t) in enumerate(order):
        f = newfrag()
        lam = 5 + t
        off = sg * 16384 + 8 * jj * 256
        x = XN + 16 * q + 4 * jj
        first = (k == 0 and sg == 0 and u > 0)
        post = []
        if u > 0:
            d = SLOTB[g] - SLOTB[g - 1]
            post = [(f'v_add_u32 v{VTB + i}, {d}, v{VTB + i}' if d > 0 else f'v_subrev_u32 v{VTB + i}, {-d}, v{VTB + i}') for i in range(4)]
        ops.append(Op([f'ds_read_b64_tr_b16 v[{f}:{f + 1}], v{VTB + t} offset:{off}',
                       f'ds_read_b64_tr_b16 v[{f + 2}:{f + 3}], v{VTB + t} offset:{off + 4 * 256}'],
                      [f'v_mfma_f32_32x32x16_bf16 a[{16 * lam}:{16 * lam + 15}], v[{f}:{f + 3}], v[{x}:{x + 3}], a[{16 * lam}:{16 * lam + 15}]'],
                      name=f'fin{lam}' if (q == 8 and jj == 3) else (f'bs{q}' if k == 15 else None), pre=barrier(g, post) if first else None,
                      pre_requires=prereq(g) if first else [], budget=OPT['bB']))


def HP(lam):
    return 8 * lam if lam < 5 else 80 + 8 * (lam - 5)


ACT = {}
for ks in range(18):
    ACT[(0, ks)] = ('a', HP(ks // 2) + 4 * (ks & 1))
pool = [('a', 144 + 4 * i) for i in range(12)] + [('a', 40), ('a', 44)] + [('v', 16 + 4 * i) for i in range(36)] + \
       [('a', 128 + 4 * i) for i in range(4)] + [('a', 192 + 4 * i) for i in range(8)] + [('v', BIASR)]
order = [(k, ks) for k in (1, 2, 3) for ks in range(10)] + [(k, ks) for k in (1, 2, 3) for ks in range(10, 18)] + \
        [(k, ks) for k in range(4) for ks in (18, 19)] + ['rem']
assert len(pool) == len(order)
for key, r in zip(order, pool):
    ACT[key] = r
ACT['remS'] = ('v', BIASR + 4)


def act_regs(key):
    k, r = ACT[key]
    return f'{k}[{r}:{r + 3}]'


def kname(key):
    return key if isinstance(key, str) else f'{key[0]}_{key[1]}'


ACC2 = [48, 64, 224, 240, 112]


def acc2(n):
    return f'a[{ACC2[n]}:{ACC2[n] + 15}]'


def act_req(key):
    if key != 'rem' and key != 'remS' and key[0] == 0 and key[1] < 18:
        return [f'h{key[1] // 2}']
    return [f'act{kname(key)}']


def p2op(g, pos, n, key, zero=False, first=False, name=None, req=()):
    f = newfrag()
    ops.append(Op([f'ds_read_b128 v[{f}:{f + 3}], {vRL} offset:{pos * 1024}'],
                  [f'v_mfma_f32_32x32x16_bf16 {acc2(n)}, v[{f}:{f + 3}], {act_regs(key)}, {"0" if zero else acc2(n)}'],
                  name=name, pre=barrier(g, rl_post(g)) if first else None, pre_requires=prereq(g) if first else [],
                  requires=act_req(key) + list(req), budget=OPT['bP']))


for p, (kind, k) in enumerate(RUNS):
    g = 15 + p
    nk = 10 if kind == 'A' else 8
    for kk in range(nk):
        key = (k, kk + (10 if kind == 'B' else 0))
        z = (p == 0 and kk == 0)
        for n in range(3):
            p2op(g, kk * 3 + n, n, key, zero=z, first=(kk == 0 and n == 0), req=['h4'] if z else [])
        if k % 2 == 0:
            p2op(g, 3 * nk + kk, 3, key, zero=z)
for i, (k, ks) in enumerate(((0, 18), (0, 19), (2, 18), (2, 19))):
    p2op(23, 24 + 2 * k + (ks - 18), 3, (k, ks), first=(i == 0))
p2op(23, 35, 3, 'remS', name='pend3')
for n in range(3):
    for k in range(4):
        for ks in (18, 19):
            p2op(23, 6 * k + 3 * (ks - 18) + n, n, (k, ks))
    p2op(23, 32 + n, n, 'rem', name=f'pend{n}')
p2op(23, 36, 4, 'rem', zero=True, name='c0')
for u, pair in enumerate(((2, 3), (1, 0))):
    for k in pair:
        for ks in (list(range(10, 20)) + list(range(10))):
            nm = 'rxfree' if (k == 1 and ks == OPT['rxks']) else None
            p2op(24 + u, (k & 1) * 20 + ks, 4, (k, ks), first=(k == pair[0] and ks == 10), name=nm)

npoll = [0]


def poll_check(load_txt, cmp_lines, tag):
    k = npoll[0]
    npoll[0] += 1
    E.wait_tags([tag])
    E(f'L_PC{k}:')
    E(cmp_lines)
    E(f's_cmp_lg_u64 {SPOLL}, 0')
    E(f's_cbranch_scc1 L_PS{k}')
    E(f'L_PR{k}:')
    slow_paths.append((k, load_txt))


def flags_cmp(v):
    return f'v_cmp_ne_u64 {SPOLL}, s[{NONCE}:{NONCE + 1}], v[{v}:{v + 1}]'


def poll_item(setup, va, vd, tag, gap):
    fl_ = ' nt' if (OPT.get('gplain') and tag in ('pfa', 'pfb', 'pfo')) else ' sc1'
    ld = f'buffer_load_dwordx2 v[{vd}:{vd + 1}], {va}, {srd(SRD_WS)}, 0 offen{fl_}'
    return ([setup] if setup else []) + [Inst(ld, tag=tag), ('gap', gap), ('call', lambda: poll_check(ld, flags_cmp(vd), tag))]


def get_nonce():
    poll_check(NONL, f'v_cmp_eq_u32 {SPOLL}, 0, v{vNON}', 'nonce')
    E(f'v_readfirstlane_b32 s{NONCE}, v{vNON}\nv_readfirstlane_b32 s{NONCE + 1}, v{vNON + 1}')


def wave_flag(soff, need, off=0):
    fl_ = GS if (need and need[0] in ('gsta', 'gstb', 'ost')) else ' sc1'
    return Inst(f'buffer_store_dwordx2 v[{vNON}:{vNON + 1}], {vF0}, {srd(SRD_WS)}, {soff} offen offset:{off}{fl_}', need=need)


st_tr = Stream('tr', own_vcc=True)
for q in range(1, 9):
    st_tr.add([('after', f'a{q - 1}')] + ([('after', f'xl{q}')] if q > (3 if OPT['x23'] else 1) else []) + transpose_seg(q))
st_tr.add([('mark', 'trdone')])

RPT = TMP + 16
st_rp = Stream('rp')
st_rp.add([Inst(NONL, tag='nonce'), ('after', 'Bx')])
CSA_ = 'a[144:159]'
for f in range(11):
    if f < 9:
        t = RPT + 4 * (f % 4)
        st_rp.add([f'ds_read_b64_tr_b16 v[{t}:{t + 1}], {vA1} offset:{f * 4096}', f'ds_read_b64_tr_b16 v[{t + 2}:{t + 3}], {vA1} offset:{f * 4096 + 1024}'])
    else:
        st_rp.add([('gap', 2)])
    if f >= 2:
        f2 = f - 2
        t2 = RPT + 4 * (f2 % 4)
        st_rp.add([Inst(f'buffer_store_dwordx4 v[{t2}:{t2 + 3}], {vLANE16}, {srd(SRD_WS)}, {sUD} offen sc1', tag='eust'),
                   f'v_mfma_f32_32x32x16_bf16 {CSA_}, a[{ONESR}:{ONESR + 3}], v[{t2}:{t2 + 3}], {"0" if f2 == 0 else CSA_}',
                   f's_add_u32 {sUD}, {sUD}, 16384'])
t0, t1, t2 = f'v{RPT}', f'v{RPT + 1}', f'v{RPT + 2}'
st_rp.add([('call', get_nonce), ('mark', 'nonce_ok'), ('gap', 1), f'''v_accvgpr_read_b32 {t0}, a144
v_cvt_pk_bf16_f32 {t1}, {t0}, {t0}
v_lshlrev_b32 {t1}, 16, {t1}
v_sub_f32 {t2}, {t0}, {t1}
v_cvt_pk_bf16_f32 {t0}, {t1}, {t2}
v_cmp_gt_u32 {SPOLL}, 32, v1
v_cndmask_b32 {t0}, {vZ}, {t0}, {SPOLL}''',
           Inst(f'buffer_store_dword {t0}, {vLANE16}, {srd(SRD_WS)}, {sUC} offen sc1', tag='eust'), ('mark', 'eudone')])
st_rp.items[-3].glue = True
st_rp.add([('after', 'B2'), f's_lshl_b32 {tR0}, s2, 3\ns_add_u32 {tR0}, {tR0}, {L.WS_FLAG_E}\ns_cmp_eq_u32 {sW}, 0\ns_cselect_b32 {tR0}, {tR0}, {OOB}',
           wave_flag(tR0, []),
           f's_lshl_b32 {tR0}, {sU1}, 3\ns_add_u32 {tR0}, {tR0}, {L.WS_FLAG_U}\ns_cmp_eq_u32 {sW}, 1\ns_cselect_b32 {tR0}, {tR0}, {OOB}',
           wave_flag(tR0, []), ('mark', 'eupub')])
sU2 = 's71'
st_rp.add([U2C.format(d=sU2, t=tR0) if OPT['umap'] else f's_sub_u32 {sU2}, s2, 92'])
vA2 = 'v2'
st_rp.add([('call', lambda: E(f"""s_mul_i32 {tR1}, {sU2}, 1821
s_lshr_b32 {tR1}, {tR1}, 16
s_mul_i32 {tR0}, {sU2}, 7282
s_lshr_b32 {tR0}, {tR0}, 16
s_mul_i32 {tR2}, {tR0}, 9
s_sub_u32 {tR2}, {sU2}, {tR2}
s_add_u32 {tR3}, {tR2}, 5
s_cmp_ge_u32 {tR3}, 9
s_cselect_b32 {tM0}, 9, 0
s_sub_u32 {tR3}, {tR3}, {tM0}
s_and_b32 {tM0}, {tR0}, 1
s_cmp_eq_u32 {tM0}, 0
s_cselect_b32 {tR2}, {tR3}, {tR2}
s_and_b32 {tR0}, {tR0}, 3
s_mul_i32 {sUS}, {tR0}, 20
s_lshl_b32 {tM0}, {tR2}, 1
s_add_u32 {sUS}, {sUS}, {tM0}
s_mul_i32 {tR0}, {tR0}, 9
s_add_u32 {tR2}, {tR2}, {tR0}
s_lshl_b32 {tR3}, {sU2}, 5
s_lshl_b32 {tR0}, {sW}, 3
s_add_u32 {tR3}, {tR3}, {tR0}
s_mov_b32 {tM0}, 4
s_mov_b32 {tR4}, 8
s_cmp_lt_u32 {sU2}, 144
s_cbranch_scc1 L_RP_W2C
s_sub_u32 {tR0}, {sU2}, 144
s_lshr_b32 {tR1}, {tR0}, 2
s_and_b32 {tR2}, {tR0}, 3
s_mul_i32 {sUS}, {tR2}, 20
s_add_u32 {sUS}, {sUS}, 18
s_add_u32 {tR2}, {tR2}, 36
s_mul_i32 {tR3}, {tR0}, 36
s_lshl_b32 {tR0}, {sW}, 3
s_add_u32 {tR3}, {tR3}, {tR0}
s_lshr_b32 {tR0}, {sW}, 1
s_lshl_b32 {tR0}, {tR0}, 2
s_add_u32 {tR3}, {tR3}, {tR0}
s_mov_b32 {tM0}, 8
s_mov_b32 {tR4}, 4
s_cmp_lt_u32 {sU2}, 160
s_cbranch_scc1 L_RP_W2C
s_sub_u32 {tR1}, {sU2}, 160
s_mov_b32 {tR2}, 40
s_mov_b32 {sUS}, 80
s_lshl_b32 {tR3}, {tR1}, 2
s_add_u32 {tR3}, {tR3}, {sW}
s_mul_i32 {tR3}, {tR3}, 36
s_add_u32 {tR3}, {tR3}, 16
s_mov_b32 {tM0}, 16
s_mov_b32 {tR4}, 8
L_RP_W2C:""")),
           f"""s_mul_i32 {tR3}, {tR3}, 1152
s_cmp_lt_u32 {sU2}, 164
s_cselect_b32 {tR3}, {tR3}, {OOB}
s_mul_i32 {sRPF}, {tR1}, 41
s_add_u32 {sRPF}, {sRPF}, {tR2}""", ('mark', 'rp2setup'),
           f"""v_lshrrev_b32 {t1}, 5, v1
v_mul_lo_u32 {t1}, {t1}, {tM0}
v_bfe_u32 {t2}, v1, 2, 2
v_add_u32 {t0}, {t1}, {t2}
v_mul_u32_u24 {t0}, 1152, {t0}
v_bfe_u32 {t1}, v1, 4, 1
v_lshl_add_u32 {t0}, {t1}, 5, {t0}
v_and_b32 {t1}, 3, v1
v_lshl_add_u32 {t0}, {t1}, 3, {t0}
s_lshr_b32 {tR0}, {sW}, 1
s_mul_i32 {tR0}, {tR0}, 576
s_add_u32 {tR0}, {tR0}, {AUX}
v_add_u32 {vA1}, {tR0}, {t0}
s_mul_i32 {tR4}, {tR4}, 1152
v_add_u32 {vA2}, {tR4}, {vA1}""", ('after', 'rp2dma'),
           f"""s_lshl_b32 {tR2}, {tR1}, 2
s_add_u32 {tR0}, {tR2}, {sW}
s_mul_i32 {tR0}, {tR0}, {L.SLABW_SZ}
s_add_u32 {tR0}, {tR0}, {L.WS_SLABW}
s_cmp_lt_u32 {sU2}, 164
s_cselect_b32 {tR0}, {tR0}, {OOB}
s_mul_i32 {sUD}, {sUS}, 3072
s_add_u32 {sUD}, {sUD}, {tR0}
s_lshl_b32 {tR3}, {sUS}, 10
s_add_u32 {tR3}, {tR3}, {tR0}
s_add_u32 {tR3}, {tR3}, {L.SLABW_O}
s_add_u32 {sUC}, {sUD}, 3072
s_add_u32 {tR4}, {tR3}, 1024
s_cmp_lt_u32 {sUS}, 80
s_cselect_b32 {sUC}, {sUC}, {OOB}
s_cselect_b32 {tR4}, {tR4}, {OOB}
s_mul_i32 {tM0}, {sUS}, 3277
s_lshr_b32 {tM0}, {tM0}, 16
s_mul_i32 {sUST}, {tM0}, 20
s_sub_u32 {sUST}, {sUS}, {sUST}
s_lshr_b32 {tR0}, {tM0}, 1
s_mul_i32 {tR0}, {tR0}, 20
s_add_u32 {sUST}, {sUST}, {tR0}
s_and_b32 {tR0}, {sW}, 1
s_and_b32 {tM0}, {tM0}, 1
s_cmp_lt_u32 {sUS}, 80
s_cselect_b32 {tM0}, {tM0}, {tR0}
s_cselect_b32 {sUS}, {tR0}, 0
s_add_u32 {sUST}, {sUST}, {sUS}
s_lshl_b32 {sUST}, {sUST}, 10
s_andn2_b32 {tR0}, {sW}, 1
s_add_u32 {tR0}, {tR0}, {tM0}
s_add_u32 {tR0}, {tR0}, {tR2}
s_mul_i32 {tR0}, {tR0}, {L.SLABW_SZ}
s_add_u32 {sUST}, {sUST}, {tR0}
s_add_u32 {sUST}, {sUST}, {L.WS_SLABW + L.SLABW_S}
s_cmp_lt_u32 {sU2}, 164
s_cselect_b32 {sUST}, {sUST}, {OOB}
s_mul_i32 {sUS}, {sUS}, {16 * 1152}
s_add_u32 {sUS}, {sUS}, 256
s_and_b32 {tR2}, {sW}, 1
s_mul_i32 {tR2}, {tR2}, 320""", ('after', f'B{RA + 1}')])
vB1_, vB2_ = f'v{TMP + 32}', f'v{TMP + 33}'
frs = []
for lam in range(4):
    pre = [f's_add_u32 {tR0}, {tR1}, {lam + 1}', f's_and_b32 {tR0}, {tR0}, 3', f's_lshl_b32 {tR0}, {tR0}, 6', f's_add_u32 {tR0}, {tR0}, {tR2}',
           f'v_add_u32 {vB1_}, {tR0}, {vA1}', f'v_add_u32 {vB2_}, {tR0}, {vA2}']
    for k2 in range(2):
        dst = ((sUD, sUC)[k2], lam * 1024) if lam < 3 else ((tR3, tR4)[k2], 0)
        frs.append((pre if k2 == 0 else [], k2 * 16 * 1152, dst))
frs.append(([f'v_add_u32 {vB1_}, {sUS}, {vA1}', f'v_add_u32 {vB2_}, {sUS}, {vA2}'], 0, (sUST, 0)))
for f in range(11):
    if f < 9:
        t = RPT + 4 * (f % 4)
        pre, off, _ = frs[f]
        st_rp.add(pre + [f'ds_read_b64_tr_b16 v[{t}:{t + 1}], {vB1_} offset:{off}', f'ds_read_b64_tr_b16 v[{t + 2}:{t + 3}], {vB2_} offset:{off}'])
    else:
        st_rp.add([('gap', 2)])
    if f >= 2:
        f2 = f - 2
        t2_ = RPT + 4 * (f2 % 4)
        sb, im = frs[f2][2]
        st_rp.add([Inst(f'buffer_store_dwordx4 v[{t2_}:{t2_ + 3}], {vLANE16}, {srd(SRD_WS)}, {sb} offen offset:{im} sc1', tag='rp2st')] + ([('gap', OPT['rgap'])] if OPT['rgap'] else []))
st_rp.add([('mark', 'rp2done'), ('after', f'B{RA + 4}'),
           f's_lshl_b32 {tR0}, {sRPF}, 3\ns_add_u32 {tR0}, {tR0}, {L.WS_FLAG_RP}\ns_cmp_lt_u32 {sU2}, 164\ns_cselect_b32 {tR0}, {tR0}, {OOB}\n'
           f's_cmp_eq_u32 {sW}, 0\ns_cselect_b32 {tR0}, {tR0}, {OOB}', wave_flag(tR0, []), ('mark', 'rp2pub')])

STAGE_FN = {}
for u in range(5):
    STAGE_FN[u] = (dma_a, u)
    STAGE_FN[5 + u] = (dma_q, u)
    STAGE_FN[10 + u] = (dma_b, u)
for p in range(8):
    STAGE_FN[15 + p] = (dma_p, p)
STAGE_FN[23] = (dma_o, 0)
for u in range(2):
    STAGE_FN[24 + u] = (dma_c, u)
TOUCH_AT = {2: [4] if OPT['tfirst'] else [3, 4], 3: [10], 4: [11], 5: [6, 7], 6: [8], 7: [12], 8: [13], 9: [14], 12: [15, 16], 13: [17], 14: [18],
            15: [19], 16: [20], 17: [21], 18: [22], 19: [24], 20: [25]}


STAG_AT = {4: [10], 5: [6, 7, 11], 6: [8, 9], 7: [12], 8: [13], 9: [14], 14: [15, 16, 17, 18], 15: [19], 16: [20], 17: [21], 18: [22],
           19: [24], 20: [25]}


def stag_touch(t):
    fn, arg = STAGE_FN[t]
    o = touch(fn, arg)[:-1]
    o += [f's_cmp_eq_u32 {sP8}, {t % 8}', f's_cselect_b32 {tD0}, {tD0}, {OOB}']
    if fn is dma_b:
        o.append(nodep(f'buffer_load_dword v{vTD}, {vTW}, {srd(SRD_W1)}, {tD0} offen'))
    else:
        npc = {dma_q: 8 if arg < 4 else 4, dma_c: 10}.get(fn) or ((10, 8) if RUNS[arg][0] == 'A' else (8, 6))[RUNS[arg][1] % 2]
        if npc < 8:
            o.append(f'v_min_u32 v11, {(8 * npc - 1) * 128}, {vTCH}')
        o.append(nodep(f'buffer_load_dword v{vTD}, {vTCH if npc >= 8 else "v11"}, {srd(SRD_WS)}, {tD0} offen sc1'))
        if npc > 8:
            o += [f's_add_u32 {tD0}, {tD0}, 8192', nodep(f'buffer_load_dword v{vTD}, {vTL}, {srd(SRD_WS)}, {tD0} offen sc1')]
    return o


def paced(items):
    if not OPT['dmagap']:
        return items
    o = []
    for x in items:
        o.append(x)
        if isinstance(x, Inst):
            o.append(('gap', OPT['dmagap']))
    return o


st_dma = Stream('dma')
st_dma.add(([] if OPT['x23'] else xload(2)) + paced(dma_a(1)) + [('mark', 'dma1')] + ([] if OPT['x23'] else xload(3)) + paced(xload(4)))
for g in range(2, NSTG):
    fn, arg = STAGE_FN[g]
    if g == 5:
        st_dma.add([('after', 'e_ok')])
        if OPT['btouch'] == 1:
            def bt1():
                E(f's_and_b32 {tD0}, {sR}, 7\ns_lshl_b32 {tD0}, {tD0}, 2\ns_add_u32 {tD0}, {tD0}, {sW}\ns_mul_i32 {tD1}, {tD0}, {36 * 128}\n'
                  f's_add_u32 {tD1}, {tD1}, {sQ0}\ns_sub_u32 {tD1}, {tD1}, {sL8}\nv_min_u32 v11, {35 * 128}, {vTCH}')
                E.emit(nodep(f'buffer_load_dword v{vTD}, v11, {srd(SRD_WS)}, {tD1} offen sc1'))
                E(f's_mul_i32 {tD1}, {tD0}, {18 * 9216}\ns_add_u32 {tD1}, {tD1}, {sB0}\ns_mul_i32 {tD0}, {sW}, {32 * 9216}\ns_sub_u32 {tD1}, {tD1}, {tD0}\n'
                  f'v_min_u32 v11, 35, v1\nv_lshrrev_b32 {vTW}, 1, v11\nv_mul_u32_u24 {vTW}, 9216, {vTW}\nv_and_b32 v11, 1, v11\nv_lshl_add_u32 v11, v11, 7, {vTW}')
                E.emit(nodep(f'buffer_load_dword v{vTD}, v11, {srd(SRD_W1)}, {tD1} offen'))
            st_dma.add([('call', bt1)])
    if g == AUXAT:
        st_dma.add([('after', 'Bodone')])
    st_dma.add([('after', f'B{max(DMA_AFTER[g], 0) if g > 2 else 0}')] + paced(fn(arg)) + [('mark', f'dma{g}')])
    if g == 2:
        st_dma.add(paced(xload(5) + xload(6)))
    if g == 3:
        st_dma.add(paced(xload(7) + xload(8)))
    if g == 3 and OPT['btouch'] == 2:
        st_dma.add([f's_and_b32 {sP8}, {sR}, 7\nv_lshrrev_b32 {vTW}, 1, v1\nv_mul_u32_u24 {vTW}, 9216, {vTW}\nv_and_b32 v11, 1, v1\n'
                    f'v_lshl_add_u32 {vTW}, v11, 7, {vTW}\nv_min_u32 {vTL}, {15 * 128}, {vTCH}'])
    if g == OPT['rp2at']:
        o = [('after', 'rp2setup')]
        for i in range(9):
            if i % 4 == 0:
                o += [f's_add_u32 m0, {sL9}, {AUX + i * 1024}'] + ([f's_add_u32 {tR3}, {tR3}, 4096'] if i else [])
            o.append(Inst(f'buffer_load_dwordx4 {vLANE16}, {srd(SRD_RP)}, {tR3} offen offset:{(i % 4) * 1024} lds', tag='rp2'))
        st_dma.add(paced(o) + [('mark', 'rp2dma')])
    if g == 14:
        st_dma.add([('after', 'w_ok')])
    if OPT['btouch'] == 2:
        for t in STAG_AT.get(g, []):
            st_dma.add(stag_touch(t))
    if OPT['stouch'] and not (OPT['btouch'] and g > 2):
        for t in TOUCH_AT.get(g, []):
            st_dma.add(touch(*STAGE_FN[t]))


st_pol = Stream('pol')
st_pol.add([('after', 'nonce_ok'), ('after', 'eupub'), ('after', OPT_E)])
st_pol.add(poll_item(None, vPA, vPF, 'pfe', OPT['pchk']) + [('mark', 'e_ok')])
st_pol.add([f'v_and_b32 {vPA}, 31, v1\nv_lshlrev_b32 {vPA}, 2, {vPA}',
            f'buffer_load_dword v{vPF}, {vPA}, {srd(SRD_WS)}, {sSTB} offen sc1', ('gap', 22),
            f"""v_xor_b32 v{vPF + 1}, 0x8000, v{vPF}
v_and_b32 v{vPF + 1}, 0xffff, v{vPF + 1}
v_lshl_or_b32 v{vPF + 1}, v{vPF + 1}, 16, v{vPF + 1}
v_lshrrev_b32 {vPA}, 16, v{vPF}
v_and_b32 v{vPF}, {vMASKHI}, v{vPF}
v_rcp_f32 {vRSTD}, v{vPF}
s_mov_b32 {tC0}, -1
s_mov_b32 {tC1}, 0
v_cndmask_b32 v{BCOR}, {vPA}, v{vPF + 1}, s[92:93]
v_cndmask_b32 v{BCOR + 1}, 0, v{vPF + 1}, s[92:93]
v_cndmask_b32 v{BCOR + 2}, 0, v{vPF + 1}, s[92:93]
v_cndmask_b32 v{BCOR + 3}, 0, v{vPF + 1}, s[92:93]""", ('mark', 'bcor')])
st_pol.add([('after', 'rp2pub'), ('after', 'pubA'), ('after', 'trdone'), ('after', f'B{OPT["pfwat"]}')])
st_pol.add(poll_item(f'v_lshrrev_b32 {vPA}, 1, {vLANE16}\nv_min_u32 {vPA}, {40 * 8}, {vPA}\ns_mul_i32 {tC0}, {sS}, {41 * 8}\n'
                     f's_add_u32 {tC0}, {tC0}, {L.WS_FLAG_RP}\nv_add_u32 {vPA}, {tC0}, {vPA}\n'
                     f'v_and_b32 v{vPF}, 3, v1\nv_lshlrev_b32 v{vPF}, 3, v{vPF}\nv_add_u32 v{vPF}, {sGF}, v{vPF}\n'
                     f'v_cmp_gt_u32 vcc, 48, v1\nv_cndmask_b32 {vPA}, v{vPF}, {vPA}, vcc', vPA, vPF, 'pfw', OPT['pchk']) + [('mark', 'w_ok'), ('mark', 'pf_free')])


def ffn_epi(n, tag):
    o = [('after', f'fin{n}' if n < 5 else 'fin8'), ('gap', 1)]
    t = TMP if n < 5 else 136
    X = t + 8
    for half in range(2):
        for e in range(8):
            o.append(f'v_accvgpr_read_b32 v{t + e}, a{16 * n + 8 * half + e}')
        for e in range(8):
            o.append(f'v_mul_f32 v{t + e}, v{t + e}, |v{t + e}|')
        for p in range(4):
            o.append(f'v_cvt_pk_bf16_f32 v{X + 4 * half + p}, v{t + 2 * p}, v{t + 2 * p + 1}')
        for p in range(4):
            o.append(f'v_pk_max_i16 v{X + 4 * half + p}, v{X + 4 * half + p}, 0')
    if not OPT['hbatch']:
        o.append(f's_add_u32 {tE0}, {sGB}, {2048 * n}')
        o.append(Inst(f'buffer_store_dwordx4 v[{X}:{X + 3}], {vLANE16}, {srd(SRD_WS)}, {tE0} offen{GS}', tag=tag))
        o.append(Inst(f'buffer_store_dwordx4 v[{X + 4}:{X + 7}], {vLANE16}, {srd(SRD_WS)}, {tE0} offen offset:1024{GS}', tag=tag))
    for d in range(8):
        o.append(f'v_accvgpr_write_b32 a{HP(n) + d}, v{X + d}')
    o.append(('mark', f'h{n}'))
    if OPT['hbatch'] and (n == 8 or (n == 4 and not OPT['sgap'])):
        if OPT['quiet']:
            o += [('idle', st_dma), ('quiet', OPT['quiet'])]
        for i, ks in enumerate(range(0, 10) if n == 4 else range(10, 18)):
            if i % 4 == 0:
                o.append(f's_add_u32 {tE0}, {sGB}, {1024 * ks}')
            r = HP(ks // 2) + 4 * (ks & 1)
            o.append(Inst(f'buffer_store_dwordx4 a[{r}:{r + 3}], {vLANE16}, {srd(SRD_WS)}, {tE0} offen offset:{(i % 4) * 1024}{GS}', tag=tag))
    return o


def g_publish(ev, tag, first_kb, nlines, tmps):
    o = [('gap', OPT['pubgap'])] + ([('idle', st_dma), ('quiet', OPT['quiet'])] if (OPT['quiet'] and OPT['gtouch']) else []) + [f's_lshl_b32 {tmps}, {sC}, 3\ns_add_u32 {tmps}, {tmps}, {sGF}', wave_flag(tmps, [tag], 32 * ev)]
    if OPT['gtouch']:
        for k in range(0, nlines, 64):
            n = min(64, nlines - k)
            o.append(f's_add_u32 {tmps}, {sGB}, {first_kb * 2048 + k * 128}')
            if n < 64:
                o.append(f'v_min_u32 {vXO}, {(n - 1) * 128}, {vTCH}')
            o.append(nodep(f'buffer_load_dword v{vTD}, {vTCH if n == 64 else vXO}, {srd(SRD_WS)}, {tmps} offen sc1'))
    return o


st_epi = Stream('epi')
st_epi.add([('after', 'trdone')])
for n in range(5):
    st_epi.add(ffn_epi(n, 'gsta'))
st_hs = Stream('hs')
if OPT['sgap']:
    st_epi.add([('mark', 'epiA')])
    tH = 's70'
    for ks in range(10):
        r = HP(ks // 2) + 4 * (ks & 1)
        st_hs.add([('after', f'h{ks // 2}')] + ([f's_add_u32 {tH}, {sGB}, {1024 * ks}'] if ks % 4 == 0 else []) +
                  [Inst(f'buffer_store_dwordx4 a[{r}:{r + 3}], {vLANE16}, {srd(SRD_WS)}, {tH} offen offset:{(ks % 4) * 1024}{GS}', tag='gsta'),
                   ('gap', OPT['sgap'])])
    st_hs.add(g_publish(0, 'gsta', 0, 80, tH) + [('mark', 'pubA')])
else:
    st_epi.add([('mark', 'epiA')] + g_publish(0, 'gsta', 0, 80, tE0) + [('mark', 'pubA')])
for n in range(5, 9):
    st_epi.add(ffn_epi(n, 'gstb'))
st_epi.add([('mark', 'epiB')] + g_publish(1, 'gstb', 5, 64, tE0) + [('mark', 'pubB')])

vKW, vHX = 'v2', 'v3'
st_att = Stream('att')
T2 = TMP + 16
st_att.add([('after', 'rp2done'), ('after', 'trdone'), ('after', f'B{max(8, RA + 3)}'),
            f"""v_and_b32 v{T2}, 31, v1
s_lshl_b32 {tA0}, {sW}, 5
v_add_u32 v{T2 + 1}, {tA0}, v{T2}
v_mul_u32_u24 v{T2 + 1}, {PITCH}, v{T2 + 1}
v_lshrrev_b32 v{T2 + 2}, 5, v1
v_lshl_add_u32 v{T2 + 1}, v{T2 + 2}, 4, v{T2 + 1}
v_add_u32 {vKW}, {QB1}, v{T2 + 1}
v_subrev_u32 {vHX}, {112 * PITCH}, v{T2 + 1}
s_lshl_b32 {tA0}, {sR}, 4
s_add_u32 {tA0}, {tA0}, {sJ}
s_add_u32 {tA0}, {tA0}, 16
s_lshl_b32 {tA1}, {tA0}, 12
s_add_u32 {tA1}, {tA1}, {L.WS_HALO}
s_cmp_eq_u32 {sR}, 15
s_cselect_b32 {tA1}, {OOB}, {tA1}
v_mov_b32 v{T2 + 2}, {OOB}
v_cmp_gt_u32 vcc, {112 * PITCH}, v{T2 + 1}
v_cndmask_b32 {vHX}, {vHX}, v{T2 + 2}, vcc"""])
hcount = 0
for t4 in (1, 2, 3, 0):
    o = [('after', f'qfin{t4}'), ('gap', 2)]
    for hh in range(2 if t4 < 3 else 1):
        X = T2 + 8 + 4 * (hcount % 2)
        hcount += 1
        for e in range(8):
            o.append(f'v_accvgpr_read_b32 v{T2 + e}, a{QA + 16 * t4 + 8 * hh + e}')
        for e in range(8):
            o.append(f'v_mul_f32 v{T2 + e}, v{T2 + e}, {vRSTD}')
        for pp in range(4):
            o.append(f'v_cvt_pk_bf16_f32 v{X + pp}, v{T2 + 2 * pp}, v{T2 + 2 * pp + 1}')
        if t4:
            o.append(Inst(f'buffer_store_dwordx4 v[{X}:{X + 3}], {vHX}, {srd(SRD_WS)}, {tA1} offen offset:{64 * t4 + 32 * hh} sc1', tag='hxst'))
        o.append(Inst(f'ds_write_b128 {vKW}, v[{X}:{X + 3}] offset:{64 * t4 + 32 * hh}', tag='kvw'))
    if t4 == 3:
        o.append(('mark', 'hx'))
    st_att.add(o)


def kv_barrier():
    E.wait_tags(['kvw'])
    E('s_barrier')
    S.marks.add('Bkv')


st_att.add([('mark', 'kvw'), ('gap', 3), ('call', kv_barrier)])
st_hal = Stream('hal')
st_hal.add([('after', 'hx'), ('gap', OPT['hxgap']), f's_lshl_b32 {tA1}, {tA0}, 7\ns_add_u32 {tA1}, {tA1}, {L.WS_FLAG_HALO}\ns_cmp_eq_u32 {sW}, 3\ns_cselect_b32 {tA1}, {tA1}, {OOB}',
            wave_flag(tA1, ['hxst'])])
SC = 0.2357022603955158 * 1.4426950408889634
A0, A0R, AP, APR, VT, VTP = (f'v{TMP + i}' for i in range(6))
vSD = [f'v{TMP + 34}', f'v{TMP + 35}']
st_at2 = Stream('at2')
st_at2.add([('after', 'kvw'), ('after', 'epiA'), f"""v_and_b32 v{TMP + 8}, 15, v1
v_lshlrev_b32 v{TMP + 9}, 2, v{TMP + 8}""",
            f'buffer_load_dword {vSD[0]}, v{TMP + 9}, {srd(SRD_WS)}, {sSTB} offen sc1',
            f'buffer_load_dword {vSD[1]}, v{TMP + 9}, {srd(SRD_WS)}, {sSTB} offen offset:64 sc1',
            f"""v_lshrrev_b32 v{TMP + 9}, 4, v1
s_mul_i32 {tA2}, {sW}, {32 * PITCH}
s_add_u32 {tA2}, {tA2}, {QB1}
s_sub_u32 {tA3}, {tA2}, {16 * PITCH}
s_cmp_eq_u32 {sW}, 0
s_cselect_b32 {tA3}, {QB}, {tA3}
v_mul_u32_u24 v{TMP + 10}, {PITCH}, v{TMP + 8}
v_add_u32 {A0R}, {tA2}, v{TMP + 10}
v_add_u32 {APR}, {tA3}, v{TMP + 10}
v_lshl_add_u32 {A0}, v{TMP + 9}, 3, {A0R}
v_lshl_add_u32 {AP}, v{TMP + 9}, 3, {APR}
v_lshrrev_b32 v{TMP + 10}, 2, v1
v_mul_u32_u24 v{TMP + 10}, {PITCH}, v{TMP + 10}
v_and_b32 v{TMP + 11}, 3, v1
v_lshl_add_u32 v{TMP + 10}, v{TMP + 11}, 3, v{TMP + 10}
v_add_u32 {VT}, {tA2}, v{TMP + 10}
v_add_u32 {VTP}, {tA3}, v{TMP + 10}
s_add_u32 {tA2}, {sGB}, {9 * 2048}
s_sub_u32 {tA3}, {sGF}, {L.WS_FLAG_G}
s_lshl_b32 {tA3}, {tA3}, 3
s_lshr_b32 {tM0}, {sC}, 1
s_lshl_b32 {tM0}, {tM0}, 9
s_add_u32 {tA3}, {tA3}, {tM0}
s_and_b32 {tM0}, {sC}, 1
s_lshl_b32 {tM0}, {tM0}, 3
s_add_u32 {tA3}, {tA3}, {tM0}
s_add_u32 {tA3}, {tA3}, {L.WS_GREM}
v_lshrrev_b32 v{TMP + 10}, 5, v1
v_lshlrev_b32 v{TMP + 10}, 9, v{TMP + 10}
v_lshl_add_u32 v{TMP + 10}, v{TMP + 8}, 4, v{TMP + 10}
v_and_b32 v{TMP + 9}, 1, v{TMP + 9}
v_lshl_add_u32 v2, v{TMP + 9}, 3, v{TMP + 10}""", ('after', 'Bkv'), ('after', 'bcor3')])
QV = TMP + 6
SV = TMP + 14
PB = [196, BCOR]
m0_, m1_, t1_, t2_ = f'v{TMP + 30}', f'v{TMP + 31}', 'v200', 'v205'


def att_block(b):
    o = []
    for hd in range(2):
        mo = 0 if hd == 0 else 40
        for wh in range(2):
            kb = b + wh
            kr = AK[hd] + 4 * wh
            a, ar, off = (AP, APR, 0) if kb == 0 else (A0, A0R, (kb - 1) * 16 * PITCH)
            o.append(f'ds_read_b64 a[{kr}:{kr + 1}], {a} offset:{off + 72 + mo}')
            o.append(f'ds_read_b64 a[{kr + 2}:{kr + 3}], {ar} offset:{off + 72 + 32}')
        Q = QV + 4 * hd
        o.append(f'ds_read_b64 v[{Q}:{Q + 1}], {A0} offset:{b * 16 * PITCH + mo}')
        o.append(f'ds_read_b32 v{Q + 2 + hd}, {A0R} offset:{b * 16 * PITCH + 32 + 4 * hd}')
        o.append(f'v_mov_b32 v{Q + 3 - hd}, 0')
    for tl, ch in enumerate((18, 23, 22)):
        vr = AK[2 + tl // 2] + 4 * (tl % 2)
        for wh in range(2):
            kb = b + wh
            a, off = (VTP, 0) if kb == 0 else (VT, (kb - 1) * 16 * PITCH)
            o.append(f'ds_read_b64_tr_b16 a[{vr + 2 * wh}:{vr + 2 * wh + 1}], {a} offset:{off + 8 * ch}')
    for hd in range(2):
        Q = QV + 4 * hd
        o.append(f'v_cndmask_b32 v{Q + 2 + hd}, 0, v{Q + 2 + hd}, {M16}')
    o.append(f'v_and_b32 {vSD[b]}, {vMASKHI}, {vSD[b]}')
    o.append(f'v_mul_f32 {vSD[b]}, {vSD[b]}, {vSD[b]}')
    for hd in range(2):
        Q = QV + 4 * hd
        for wh in range(2):
            kr = AK[hd] + 4 * wh
            sr = SV + 8 * hd + 4 * wh
            bias = BIASR + 4 * wh
            o.append(f'v_mfma_f32_16x16x32_bf16 v[{sr}:{sr + 3}], a[{kr}:{kr + 3}], v[{Q}:{Q + 3}], v[{bias}:{bias + 3}]')
    o.append(('gap', 1))
    for hd, m in enumerate((m0_, m1_)):
        s = [f'v{SV + 8 * hd + i}' for i in range(8)]
        t = (t1_, t2_)[hd]
        o += [f'v_max3_f32 {m}, {s[0]}, {s[1]}, {s[2]}', f'v_max3_f32 {t}, {s[3]}, {s[4]}, {s[5]}',
              f'v_max3_f32 {m}, {m}, {s[6]}, {s[7]}', f'v_max_f32 {m}, {m}, {t}']
    o += [f'v_mov_b32 {t2_}, {fl(SC)}', ('gap', 1),
          f'v_permlane16_swap_b32 {m0_}, {m1_}', f'v_max_f32 {m0_}, {m0_}, {m1_}', f'v_mov_b32 {m1_}, {m0_}', ('gap', 1),
          f'v_permlane32_swap_b32 {m0_}, {m1_}', f'v_max_f32 {m0_}, {m0_}, {m1_}', f'v_mul_f32 {m0_}, {fl(-SC)}, {m0_}',
          f'v_mov_b32 {m1_}, {m0_}', ('gap', 1), f'v_permlane16_swap_b32 {m0_}, {m1_}']
    for hd, m in enumerate((m0_, m1_)):
        s = [f'v{SV + 8 * hd + i}' for i in range(8)]
        for i in range(8):
            o.append(f'v_fma_f32 {s[i]}, {s[i]}, {t2_}, {m}')
        for i in range(8):
            o.append(f'v_exp_f32 {s[i]}, {s[i]}')
    for hd in range(2):
        s = [f'v{SV + 8 * hd + i}' for i in range(8)]
        for i in range(4):
            o.append(f'v_cvt_pk_bf16_f32 v{PB[hd] + i}, {s[2 * i]}, {s[2 * i + 1]}')
    for hd in range(2):
        P = f'v[{PB[hd]}:{PB[hd] + 3}]'
        vm = AK[2] + 4 * hd
        o.append(f'v_mfma_f32_16x16x32_bf16 v[{QV + 4 * hd}:{QV + 4 * hd + 3}], a[{ONESR}:{ONESR + 3}], {P}, 0')
        o.append(f'v_mfma_f32_16x16x32_bf16 v[{SV + 8 * hd}:{SV + 8 * hd + 3}], a[{vm}:{vm + 3}], {P}, 0')
        o.append(f'v_mfma_f32_16x16x32_bf16 v[{SV + 8 * hd + 4}:{SV + 8 * hd + 7}], a[{AK[3]}:{AK[3] + 3}], {P}, 0')
    o.append(('gap', 1))
    for hd, m in enumerate((m0_, m1_)):
        o.append(f'v_rcp_f32 {m}, v{QV + 4 * hd}')
    for hd, m in enumerate((m0_, m1_)):
        o.append(f'v_mul_f32 {m}, {m}, {vSD[b]}')
    for hd, m in enumerate((m0_, m1_)):
        r = SV + 8 * hd
        for i in (0, 1, 2, 3, 4 + 2 * hd, 5 + 2 * hd):
            o.append(f'v_mul_f32 v{r + i}, v{r + i}, {m}')
    for hd in range(2):
        r = SV + 8 * hd
        o.append(f'v_cvt_pk_bf16_f32 v{QV + 2 * hd}, v{r}, v{r + 1}')
        o.append(f'v_cvt_pk_bf16_f32 v{QV + 2 * hd + 1}, v{r + 2}, v{r + 3}')
        o.append(f'v_cvt_pk_bf16_f32 v{QV + 4 + hd}, v{r + 4 + 2 * hd}, v{r + 5 + 2 * hd}')
    for hd in range(2):
        o.append(Inst(f'buffer_store_dwordx2 v[{QV + 2 * hd}:{QV + 2 * hd + 1}], v2, {srd(SRD_WS)}, {tA2} offen offset:{1024 * hd + 256 * b}{GS}', tag='ost'))
    o.append(Inst(f'buffer_store_dwordx2 v[{QV + 4}:{QV + 5}], {vREM}, {srd(SRD_WS)}, {tA3} offen offset:{256 * b}{GS}', tag='ost'))
    return o


st_at2.add(att_block(1))
vH = TMP + 32
st_hal.add([('gap', OPT['higap']),
            f's_sub_u32 {tA0}, {tA0}, 16\ns_lshl_b32 {tA1}, {tA0}, 7\ns_add_u32 {tA1}, {tA1}, {L.WS_FLAG_HALO}\ns_lshl_b32 {tM1}, {sJ}, 5\n'
            f's_add_u32 {tM1}, {tM1}, {L.WS_FLAG_U}\ns_cmp_eq_u32 {sR}, 0\ns_cselect_b32 {tA1}, {tM1}, {tA1}\nv_mov_b32 v3, {tA1}'])
HL = f'buffer_load_dwordx2 v[{vH}:{vH + 1}], v3, {srd(SRD_WS)}, 0 offen sc1'
st_hal.add([Inst(HL, tag='pfh'), ('gap', 22)])


def halo_import():
    poll_check(HL, flags_cmp(vH), 'pfh')
    E(f's_cmp_lg_u32 {sW}, 0\ns_cbranch_scc1 L_HI')
    E(f's_lshl_b32 {tA1}, {tA0}, 12\ns_add_u32 {tA1}, {tA1}, {L.WS_HALO}\ns_cmp_eq_u32 {sR}, 0\ns_cselect_b32 {tA1}, {OOB}, {tA1}')
    E(f's_mov_b32 {tM1}, m0\ns_mov_b32 m0, {QB}\ns_nop 0')
    for i in range(4):
        E.raw(f'    buffer_load_dwordx4 {vLANE16}, {srd(SRD_WS)}, {tA1} offen offset:{i * 1024} sc1 lds')
    E(f's_mov_b32 m0, {tM1}')
    E('L_HI:')
    E(f'buffer_load_dword v{vH}, v14, {srd(SRD_DBG)}, 0 offen', tag='himp')


st_hal.add([('call', halo_import), ('gap', 22), ('call', lambda: E.wait_tags(['himp'])), ('mark', 'halo_in')])
st_at2.add([f's_or_b32 {tM0}, {sR}, {sW}\ns_cmp_eq_u32 {tM0}, 0\ns_cselect_b32 {tM0}, 0xf149f2ca, 0'] +
           [f'v_min_f32 v{BIASR + i}, {tM0}, v{BIASR + i}' for i in range(4)] + [('after', 'halo_in')])
st_at2.add(att_block(0))
st_at2.add([('mark', 'odone'), ('gap', OPT['pubgap']), f's_lshl_b32 {tA2}, {sC}, 3\ns_add_u32 {tA2}, {tA2}, {sGF}', wave_flag(tA2, ['ost'], 64), ('mark', 'opub')])

st_act = Stream('act')
GPA = f'v_and_b32 {vPA}, 3, v1\nv_lshlrev_b32 {vPA}, 3, {vPA}\nv_add_u32 {vPA}, {sGF}, {vPA}'


def act_load(key, soff, off):
    o = []
    kind, r = ACT[key]
    if kind == 'v':
        o.append(('after', 'odone' if r >= BIASR else (f'bs{(r - 16) // 16}' if r + 4 <= 136 else 'epiB')))
    elif r >= AK[0]:
        o.append(('after', 'odone'))
    elif r >= QA:
        o.append(('after', 'kvw'))
    elif r >= 128:
        o.append(('after', 'epiB'))
    else:
        o.append(('after', 'epiA'))
    o.append(f'buffer_load_dwordx4 {act_regs(key)}, {vLANE16}, {srd(SRD_WS)}, {soff} offen offset:{off}{GS}')
    o.append(('mark', f'act{kname(key)}'))
    return o


st_act.add([('after', 'pf_free'), ('after', 'kvw'), GPA])
for k in range(1, 4):
    for ks in range(10):
        if ks % 4 == 0:
            st_act.add([f's_add_u32 {tC0}, {sGP[k]}, {ks * 1024}'])
        st_act.add(act_load((k, ks), tC0, (ks % 4) * 1024))
st_act.add([('after', 'pubB'), ('gap', OPT['pollgap'])])
st_act.add(poll_item(f'v_add_u32 {vPA}, 32, {vPA}', vPA, vPF, 'pfb', OPT['pchk']))
for k in range(1, 4):
    for ks in range(10, 18):
        if (ks - 10) % 4 == 0:
            st_act.add([f's_add_u32 {tC0}, {sGP[k]}, {ks * 1024}'])
        st_act.add(act_load((k, ks), tC0, ((ks - 10) % 4) * 1024))
st_ao = Stream('ao')
tO0, tO1 = 's90', 's91'
st_ao.add([('after', 'opub'), ('gap', OPT['ogap'])])
st_ao.add(poll_item(f'v_and_b32 v{BCOR + 2}, 3, v1\nv_lshlrev_b32 v{BCOR + 2}, 3, v{BCOR + 2}\ns_add_u32 {tO0}, {sGF}, 64\nv_add_u32 v{BCOR + 2}, {tO0}, v{BCOR + 2}',
                    f'v{BCOR + 2}', BCOR, 'pfo', OPT['pchk']))
st_ao.add([f's_sub_u32 {tO0}, {sGF}, {L.WS_FLAG_G}\ns_lshl_b32 {tO0}, {tO0}, 3\ns_add_u32 {tO0}, {tO0}, {L.WS_GREM}'] + act_load('rem', tO0, 0))
for k in (0, 2, 1, 3):
    st_ao.add([f's_add_u32 {tO0}, {sGP[k] if k else sGB}, {18 * 1024}'] + act_load((k, 18), tO0, 0) + act_load((k, 19), tO0, 1024))
st_ao.add([('gap', 15), f's_and_b32 {tO0}, {sC}, 1\ns_sub_u32 {tO0}, {tO0}, 1\ns_not_b32 {tO1}, {tO0}'] +
          [f'v_cndmask_b32 v{BIASR + 4 + d}, 0, v{BIASR + d}, s[90:91]' for d in range(4)] + [('mark', 'actremS')])

XB = TMP
XR = TMP + 20
vOA, vOS, vRS2 = 'v4', 'v5', 'v6'
SOM, SOS = 's20', 's21'
st_fin = Stream('fin')
st_fin.add([('after', 'opub'), ('after', 'fin8'), ('after', 'B18'),
            f"""v_lshrrev_b32 v2, 2, v1
v_mul_u32_u24 v2, 1152, v2
v_and_b32 v3, 3, v1
v_lshlrev_b32 v3, 4, v3
v_add_u32 {vOA}, v2, v3
s_lshr_b32 {tA0}, {sC}, 1
s_mul_i32 {tA0}, {tA0}, 576
s_and_b32 {tA1}, {sC}, 1
s_mul_i32 {tA2}, {tA1}, 320
s_add_u32 {tA2}, {tA2}, {tA0}
s_lshl_b32 {tA3}, {sS}, 6
s_add_u32 {tA2}, {tA2}, {tA3}
s_add_u32 {SOM}, {sXB}, {tA2}""",
            f'buffer_load_dwordx4 v[{XR}:{XR + 3}], {vOA}, {srd(SRD_X)}, {SOM} offen',
            f's_add_u32 {tA3}, {SOM}, {16 * 1152}',
            f'buffer_load_dwordx4 v[{XR + 4}:{XR + 7}], {vOA}, {srd(SRD_X)}, {tA3} offen',
            f'buffer_load_dwordx4 v[{XR + 8}:{XR + 11}], v3, {srd(SRD_B)}, {tA2} offen',
            f"""v_and_b32 v2, 15, v1
v_bfe_u32 v3, v1, 4, 1
v_lshlrev_b32 v3, 3, v3
v_mul_u32_u24 v7, 1152, v2
v_add_u32 v7, v7, v3
v_mov_b32 {vOS}, {OOB}
v_cmp_gt_u32 vcc, 32, v1
v_cndmask_b32 {vOS}, {vOS}, v7, vcc
s_lshl_b32 {tA2}, {sR}, 2
s_add_u32 {tA2}, {tA2}, {sS}
s_lshl_b32 {tA2}, {tA2}, 1
s_add_u32 {tA2}, {tA2}, {tA1}
s_lshl_b32 {tA3}, {tA2}, 6
s_add_u32 {tA3}, {tA3}, {L.WS_STAT}
v_lshlrev_b32 v2, 2, v2""",
            f'buffer_load_dword {vRS2}, v2, {srd(SRD_WS)}, {tA3} offen sc1',
            f"""s_mul_i32 {tA2}, {tA2}, {16 * 1152}
s_lshl_b32 {tA3}, {sW}, 4
s_add_u32 {tA3}, {tA3}, {tA0}
s_add_u32 {tA3}, {tA3}, 256
s_add_u32 {SOS}, {tA2}, {tA3}""",
            f'buffer_load_dwordx2 v[{XR + 12}:{XR + 13}], {vOS}, {srd(SRD_X)}, {SOS} offen',
            f'buffer_load_dwordx2 v[{XR + 14}:{XR + 15}], v3, {srd(SRD_B)}, {tA3} offen', ('gap', 40)])
for d in range(4):
    for hi in range(2):
        un = (lambda r, dst: f'v_and_b32 {dst}, {vMASKHI}, v{r}') if hi else (lambda r, dst: f'v_lshlrev_b32 {dst}, 16, v{r}')
        st_fin.add([un(XR + 8 + d, 'v2')])
        for rd in range(2):
            st_fin.add([un(XR + 4 * rd + d, 'v3'), f'v_add_f32 v{XB + 8 * rd + 2 * d + hi}, v2, v3'])
for d in range(2):
    for hi in range(2):
        un = (lambda r, dst: f'v_and_b32 {dst}, {vMASKHI}, v{r}') if hi else (lambda r, dst: f'v_lshlrev_b32 {dst}, 16, v{r}')
        st_fin.add([un(XR + 12 + d, 'v2'), un(XR + 14 + d, 'v3'), f'v_add_f32 v{XB + 16 + 2 * d + hi}, v2, v3'])
SND = ['s16', 's17', 's18', 's19']
RCV = ['s12', 's13', 's15', 's38', 's39']
st_fin.add([f"""v_and_b32 {vRS2}, {vMASKHI}, {vRS2}
v_mul_f32 {vRS2}, {vRS2}, {vRS2}
v_rcp_f32 {vRS2}, {vRS2}
v_mul_f32 {vRSTD}, {vRSTD}, {vRSTD}
s_lshl_b32 {tA0}, {sR}, 2
s_add_u32 {tA0}, {tA0}, {sC}
s_lshl_b32 {tA0}, {tA0}, 18
s_add_u32 {tA0}, {tA0}, {L.WS_PART}
s_lshl_b32 {tA2}, {sW}, 12
s_add_u32 {tA0}, {tA0}, {tA2}
s_lshl_b32 {tA2}, {sS}, 14
s_add_u32 {tA2}, {tA2}, {tA0}"""])
for k in range(1, 4):
    st_fin.add([f's_add_u32 {tA3}, {sS}, {k}\ns_and_b32 {tA3}, {tA3}, 3\ns_lshl_b32 {tA3}, {tA3}, 16\ns_add_u32 {SND[k]}, {tA3}, {tA2}'])
st_fin.add([f"""s_lshl_b32 {tA2}, {sR}, 1
s_lshr_b32 {tA3}, {sC}, 1
s_add_u32 {tA2}, {tA2}, {tA3}
s_lshl_b32 {tM0}, {tA2}, 17
s_add_u32 {tM0}, {tM0}, {L.WS_PARTS}
s_lshl_b32 {tM1}, {sS}, 1
s_add_u32 {tM1}, {tM1}, {tA1}
s_lshl_b32 {tA3}, {tM1}, 11
s_add_u32 {SND[0]}, {tM0}, {tA3}
s_lshl_b32 {tA3}, {sW}, 15
s_add_u32 {SND[0]}, {SND[0]}, {tA3}
s_lshl_b32 {tA3}, {tM1}, 14
s_add_u32 {RCV[0]}, {tM0}, {tA3}
s_lshl_b32 {tA3}, {sW}, 9
s_add_u32 {RCV[0]}, {RCV[0]}, {tA3}
v_bfe_u32 v2, v1, 4, 1
v_lshlrev_b32 v2, 14, v2
v_lshrrev_b32 v3, 5, v1
v_lshl_add_u32 v2, v3, 8, v2
v_and_b32 v11, 15, v1
v_lshl_add_u32 v7, v11, 4, v2
v_lshlrev_b32 v3, 11, v3
v_and_b32 v11, 31, v1
v_lshl_add_u32 v3, v11, 4, v3
v_add_u32 v2, 8192, v3
s_lshl_b32 {tA2}, {sS}, 16
s_add_u32 {tA2}, {tA2}, {tA0}"""])
for k in range(1, 4):
    st_fin.add([f's_add_u32 {tA3}, {sS}, {k}\ns_and_b32 {tA3}, {tA3}, 3\ns_lshl_b32 {tA3}, {tA3}, 14\ns_add_u32 {RCV[k]}, {tA3}, {tA2}'])
PT = XR
PKR = 196
CH = [196, 200, XR + 8, XR + 12]
st_fin.add([f'v_mov_b32 v{c + 3}, v{vNON}' for c in CH] + [('after', f'dma{NSTG - 1}')])
for n in (3, 0, 1, 2):
    st_fin.add([('after', f'pend{n}'), ('gap', 2)])
    for half in range(2):
        st_fin.add([f'v_accvgpr_read_b32 v{PT + e}, a{ACC2[n] + 8 * half + e}' for e in range(8)])
        for d in range(4):
            dd = 4 * half + d
            dst = (CH[dd // 3] + dd % 3) if n < 3 else (CH[dd // 2] + dd % 2)
            st_fin.add([f'v_cvt_pk_bf16_f32 v{dst}, v{PT + 2 * d}, v{PT + 2 * d + 1}'])
    for q in range(3 if n < 3 else 4):
        if n < 3:
            st_fin.add([f'buffer_store_dwordx4 v[{CH[q]}:{CH[q] + 3}], {vLANE16}, {srd(SRD_WS)}, {SND[n + 1]} offen offset:{q * 1024} sc1'])
        else:
            st_fin.add([f'buffer_store_dwordx4 v[{CH[q]}:{CH[q] + 3}], v7, {srd(SRD_WS)}, {SND[0]} offen offset:{q * 512} sc1'])
RB = 80
RXL = []
for k in range(1, 4):
    for q in range(3):
        r = RB + 12 * (k - 1) + 4 * q
        RXL.append(f'buffer_load_dwordx4 v[{r}:{r + 3}], {vLANE16}, {srd(SRD_WS)}, {RCV[k]} offen offset:{q * 1024} sc1')
RS = RB + 36
for i in range(4):
    RXL.append(f'buffer_load_dwordx4 v[{RS + 4 * i}:{RS + 4 * i + 3}], {("v3", "v2")[i // 2]}, {srd(SRD_WS)}, {(RCV[0], RCV[4])[i % 2]} offen sc1')
st_fin.add([f's_add_u32 {RCV[4]}, {RCV[0]}, 4096', ('after', 'rxfree')] + [Inst(x, tag='rx') for x in RXL])

S = Sched(E, [st_dma, st_pol, st_hs, st_hal, st_rp, st_tr, st_att, st_epi, st_at2, st_act, st_ao, st_fin])
S.vrate = OPT['vrate']
S.memorder = [st_pol, st_hs, st_hal, st_att, st_at2, st_epi, st_rp, st_dma, st_act, st_ao, st_fin, st_tr]
S.vcap = OPT['vcap']
S.lat = OPT['lat']
st_dma.edf = True
st_act.edf = True
st_ao.edf = True
if OPT.get('zlo') is not None:
    def hook(i):
        if OPT['zlo'] <= i < OPT['zlo'] + 50 * OPT['zst'] and (i - OPT['zlo']) % OPT['zst'] == 0:
            E.raw(f'; ZSTAMP {nstamp[0]} op {i}')
            stamp()
    S.hook = hook
S.extra_deadline = {f'xl{q}': 20 * (q - 1) for q in range(2, 9)}
S.run(ops, D=OPT['D'], WB=OPT['WB'], budget=3.0, maxmem=OPT['maxmem'])
stamp()
S.drain()
stamp()

OA = 16
TP = 144
E(f"""v_and_b32 v8, 31, v1
v_mul_u32_u24 v8, {TP}, v8
v_lshrrev_b32 v9, 5, v1
v_lshl_add_u32 v8, v9, 4, v8
s_mul_i32 s90, {sW}, {32 * TP}
s_add_u32 s90, s90, {SLOTB[23]}
v_add_u32 v8, s90, v8
v_lshrrev_b32 v11, 2, v1
v_mul_u32_u24 v11, {TP}, v11
v_and_b32 v15, 3, v1
v_lshl_add_u32 v11, v15, 5, v11
v_add_u32 v11, s90, v11""")
for e in range(16):
    E(f'v_accvgpr_read_b32 v{OA + e}, a{ACC2[4] + e}')
E.wait_tags(['rx'])
E('L_RXC:')
tags = [RB + 4 * i + 3 for i in range(13)]
E(f'v_xor_b32 v9, s{NONCE}, v{tags[0]}')
for i in range(1, 13, 2):
    E(f'v_xor_b32 v15, s{NONCE}, v{tags[i]}\nv_xor_b32 v32, s{NONCE}, v{tags[i + 1]}\nv_or3_b32 v9, v9, v15, v32')
E(f'v_cmp_ne_u32 {SPOLL}, 0, v9\ns_cmp_lg_u64 {SPOLL}, 0\ns_cbranch_scc1 L_RXS')
E('L_RXR:')
stamp()
for k in range(3):
    for dd in range(8):
        r = RB + 12 * k + 4 * (dd // 3) + dd % 3
        E(f'v_lshlrev_b32 v32, 16, v{r}\nv_and_b32 v33, {vMASKHI}, v{r}\nv_add_f32 v{OA + 2 * dd}, v{OA + 2 * dd}, v32\nv_add_f32 v{OA + 2 * dd + 1}, v{OA + 2 * dd + 1}, v33')
for q4 in range(4):
    for e in range(4):
        E(f'v_mul_f32 v{OA + 4 * q4 + e}, v{OA + 4 * q4 + e}, {vRSTD}')
    E(f'ds_write_b128 v8, v[{OA + 4 * q4}:{OA + 4 * q4 + 3}] offset:{32 * q4}', tag='tw')
SH = 40
for i in range(4):
    for d in range(2):
        r = RS + 4 * i + d
        if i == 0:
            E(f'v_lshlrev_b32 v{SH + 2 * d}, 16, v{r}\nv_and_b32 v{SH + 2 * d + 1}, {vMASKHI}, v{r}')
        else:
            E(f'v_lshlrev_b32 v32, 16, v{r}\nv_and_b32 v33, {vMASKHI}, v{r}\nv_add_f32 v{SH + 2 * d}, v{SH + 2 * d}, v32\nv_add_f32 v{SH + 2 * d + 1}, v{SH + 2 * d + 1}, v33')
    if i == 1:
        E.wait_tags(['tw'])
        for rd in range(2):
            E(f'ds_read_b128 v[{48 + 8 * rd}:{51 + 8 * rd}], v11 offset:{rd * 16 * TP}')
            E(f'ds_read_b128 v[{52 + 8 * rd}:{55 + 8 * rd}], v11 offset:{rd * 16 * TP + 16}')
for rd in range(2):
    for e in range(8):
        E(f'v_add_f32 v{48 + 8 * rd + e}, v{48 + 8 * rd + e}, v{XB + 8 * rd + e}')
    for d in range(4):
        E(f'v_cvt_pk_bf16_f32 v{64 + 4 * rd + d}, v{48 + 8 * rd + 2 * d}, v{48 + 8 * rd + 2 * d + 1}')
    E(f'buffer_store_dwordx4 v[{64 + 4 * rd}:{67 + 4 * rd}], {vOA}, {srd(SRD_OUT)}, {SOM} offen')
    if rd == 0:
        E(f's_add_u32 {SOM}, {SOM}, {16 * 1152}')
for e in range(4):
    E(f'v_mov_b32 v{SH + 4 + e}, v{SH + e}')
for e in range(4):
    E(f'v_permlane32_swap_b32 v{SH + e}, v{SH + 4 + e}')
for e in range(4):
    E(f'v_add_f32 v{SH + e}, v{SH + e}, v{SH + 4 + e}\nv_fma_f32 v{SH + e}, v{SH + e}, {vRS2}, v{XB + 16 + e}')
E(f'v_cvt_pk_bf16_f32 v72, v{SH}, v{SH + 1}\nv_cvt_pk_bf16_f32 v73, v{SH + 2}, v{SH + 3}')
E(f'buffer_store_dwordx2 v[72:73], {vOS}, {srd(SRD_OUT)}, {SOS} offen')

if OPT['stamps']:
    stamp()
    E('s_waitcnt lgkmcnt(0)')
    E(f'v_writelane_b32 {vSTAMP}, s100, {nstamp[0] - 1}')
    E(f's_mov_b32 s84, {nstamp[0]}')
    E(f'v_writelane_b32 {vSTAMP}, s84, 63')
    E(f'v_writelane_b32 {vSTAMP}, s99, 62')
    E(f's_lshl_b32 s84, s2, 2\ns_add_u32 s84, s84, {sW}\ns_lshl_b32 s84, s84, 8\ns_add_u32 s84, s84, {L.WS_STAMP}')
    E('v_lshlrev_b32 v1, 2, v1')
    E(f'buffer_store_dword {vSTAMP}, v1, {srd(SRD_WS)}, s84 offen')
E('L_END:')
E('s_endpgm')
for k, load_txt in slow_paths:
    E.raw(f'''L_PS{k}:
    s_add_u32 s99, s99, 1
    s_cmp_gt_u32 s99, 400000
    s_cbranch_scc1 L_PR{k}
    s_sleep 1
    {load_txt}
    s_waitcnt vmcnt(0)
    s_branch L_PC{k}''')
E.raw('''L_RXS:
    s_add_u32 s99, s99, 1
    s_cmp_gt_u32 s99, 400000
    s_cbranch_scc1 L_RXR
    s_sleep 1
''' + '\n'.join('    ' + x for x in RXL) + '''
    s_waitcnt vmcnt(0)
    s_branch L_RXC''')
E.raw('L_CODE_END:')
E.raw(KD_FMT.format(name=KN, vgpr=512, sgpr=102, accum=256, kernarg=88))
txt = E.text()
if OPT.get('hot'):
    import re
    lines = []
    for l in txt.split('\n'):
        if (OPT['hot'] & 1) and 'buffer_store' in l and 's[48:51]' in l and 'v255' not in l:
            l = l.replace('s[48:51]', 's[64:67]')
        if 's_cbranch_scc1 L_PS' in l or 's_cbranch_scc1 L_RXS' in l:
            l = '    s_nop 0'
        lines.append(l)
    txt = '\n'.join(lines)
    if OPT['hot'] & 2:
        txt = txt.replace('    s_and_b32 s84, s2, 7\n    s_lshr_b32 s85, s2, 3\n', '    s_mov_b32 s84, 0\n    s_mov_b32 s85, 0\n', 1)
open(OUT, 'w').write(txt)
if OPT.get('log'):
    for x in S.log:
        if x[1] == 'BARRIER' or (x[1] == 'flushed' and x[3] > 6) or (x[1] == 'mark' and not x[2].startswith(('t', 'act', 'dma', 'xl'))):
            print(x)
print('insts', E.ninst, 'nops', E.n_nop, 'waits', E.n_wait)
```

```python
import sys
import struct
sys.path.insert(0, 'gen')
from kgen import *
from sched import *
import layout as L

KN = 'parallel_sum__sliding_local_dilated__dense_activation_squared_relu__prompt_kernel'
OPT = dict(stamps=0, D=6, WB=3, bA=3.5, bQ=4.5, bB=4.0, bP=4.5, pubgap=35, pollgap=20, stouch=0, gtouch=0,
           hxgap=30, higap=40, egap=5, pgap=60, dmagap=0, bx=16, maxmem=2, vrate=55, vcap=3, rp2at=3, lat=30, pfwat=10, auxat=20, rxks=17, ogap=40, btouch=0, hbatch=0, drain=1, eat=6, quiet=0, tfirst=0, pchk=24, umap=0, cpf=1, rot=0, wsoff=0, sgap=0, rgap=0, rxat=50, etouch=0, x23=0)
for a in sys.argv[2:]:
    k, v = a.split('=')
    OPT[k] = float(v) if '.' in v else int(v)
OUT = sys.argv[1]
OPT_E = f"a{OPT['eat']}"
GS = '' if OPT.get('gplain') else ' sc1'

if OPT.get('gpad'):
    L.WS_G = 0x4000000
    L.G_WAVE = 20480 + OPT['gpad']
    L.G_WG = 4 * L.G_WAVE
E = Emitter()
slow_paths = []
fl = lambda x: '0x%08x' % struct.unpack('<I', struct.pack('<f', x))[0]
OOB = '0x40000000'

sW, sR, sS, sC, sJ = 's4', 's5', 's6', 's7', 's8'
P_X, P_WQKV, P_WO, P_W1, P_B1, P_W2, P_B2 = 16, 18, 20, 24, 26, 28, 30
P_OUT, P_DBG, P_WS = 32, 34, 36
SRD_X, SRD_W1, SRD_WS, SRD_RP, SRD_B, SRD_OUT, SRD_DBG, SRD_EU = 40, 44, 48, 52, 56, 60, 64, 68
NONCE = 82
sSLW, sGF, sRPF, sCSA, sCSB, sGB = 's9', 's10', 's11', 's12', 's13', 's14'
sUST, sUS, sUD, sUC = 's15', 's38', 's39', 's3'
sA0, sA4, sB0, sB4, sQ0, sQ4 = 's16', 's17', 's18', 's19', 's20', 's21'
sPF = ['s22', 's23', 's24', 's25']
sGP = [None, 's26', 's27', 's28']
sXB, sXB2, sSTB = 's29', 's30', 's31'
M16 = 's[32:33]'
MX1, MX2 = 's[34:35]', 's[36:37]'
sL10, sL8, sL9, sBO, sC0, sC1 = 's72', 's73', 's74', 's75', 's80', 's81'
sBO2, sL6, sP8 = 's76', 's0', 's1'
SPOLL = 's[78:79]'
tD0, tD1 = 's84', 's85'
tA0, tA1, tA2, tA3 = 's86', 's87', 's88', 's89'
tR0, tR1, tR2, tR3, tR4 = 's90', 's91', 's95', 's96', 's77'
tC0, tC1 = 's92', 's93'
tE0 = 's94'
tM0, tM1 = 's97', 's98'


def srd(n):
    return f's[{n}:{n + 3}]'


XN = 16
FR = 160
NF = 7
BIASR = 188
VDA = 196
VDB = 201
vTA = 'v205'
VTB = 4
vRL = 'v206'
vF0 = 'v207'
vTCH = 'v208'
vLANE16 = 'v209'
vTL = 'v210'
vRSTD = 'v211'
vXO = 'v212'
vREM = 'v213'
BCOR = 214
TMP = 218
vMASKHI = 'v254'
vSTAMP = 'v255'
vNON = 12
vPF = 8
vTD = 10
vPA = 'v15'
vTW = 'v0'
QA = 144
AK = [192, 200, 208, 216]
ONESR = 220

RING = [0, 40960, 81920]
AUX = 122880
LDS_TOTAL = 163840
QB = AUX
QB1 = QB + 4096
PITCH = 240
SLOTB = {g: RING[g % 3] for g in range(18)}
DMA_AFTER = {g: g - 1 for g in range(18)}
NSTG = 26
AUXAT = OPT['auxat']
for g in range(18, AUXAT):
    SLOTB[g] = RING[g % 3]
    DMA_AFTER[g] = g - 1
for g in range(AUXAT, NSTG):
    SLOTB[g] = [AUX, RING[AUXAT % 3], RING[(AUXAT + 1) % 3], RING[(AUXAT + 2) % 3]][(g - AUXAT) % 4]
    DMA_AFTER[g] = g - 2

if OPT['drain']:
    DMA_AFTER = {g: v - 1 for g, v in DMA_AFTER.items()}
nstamp = [0]


def stamp():
    if not OPT['stamps']:
        return
    k = nstamp[0]
    if k > 0:
        E(f'v_writelane_b32 {vSTAMP}, s100, {k - 1}')
    E('s_memrealtime s[100:101]' if OPT.get('rt') else 's_memtime s[100:101]')
    nstamp[0] += 1


def mk_srd(n, p, size):
    E(f's_mov_b32 s{n}, s{p}\ns_mov_b32 s{n + 1}, s{p + 1}\ns_mov_b32 s{n + 2}, {size}\ns_mov_b32 s{n + 3}, 0x20000')


def emit_all(lst):
    for x in lst:
        if isinstance(x, str):
            E(x)
        elif isinstance(x, Inst):
            E.emit(x)


def nodep(txt):
    ld = Inst(txt)
    ld.writes = set()
    return ld


hdr = open('parallel_sum__sliding_local_dilated__dense_activation_squared_relu__prompt.s.ref').read()
hdr = [l for l in hdr.split('\n') if l.startswith(';') and '@launch' not in l and 'Override' not in l and 'grid=ceil' not in l]
E.raw('\n'.join(hdr))
E.raw(f'; @launch grid=(256,1,1) block=(256,1,1) lds={LDS_TOTAL}')
E.raw(f'.amdgcn_target "amdgcn-amd-amdhsa--gfx950"\n.text\n.globl {KN}\n.p2align 8\n.type {KN},@function\n{KN}:')

E('s_cmp_ge_u32 s2, 256\ns_cbranch_scc1 L_END')
stamp()
E('s_load_dwordx16 s[16:31], s[0:1], 0')
E('s_load_dwordx4 s[32:35], s[0:1], 64')
E('s_load_dwordx2 s[36:37], s[0:1], 80')
E(f's_memrealtime s[{NONCE}:{NONCE + 1}]')
E('s_mov_b32 s99, 0')
E(f's_getpc_b64 s[{SRD_EU}:{SRD_EU + 1}]')
E('L_PCREF:')
E(f's_mov_b32 s{SRD_EU + 2}, L_CODE_END-L_PCREF\ns_mov_b32 s{SRD_EU + 3}, 0x20000')
E('v_lshlrev_b32 v2, 7, v0')
if OPT['cpf'] == 0:
    E('s_lshr_b32 s3, s2, 3\ns_and_b32 s3, s3, 1\ns_lshl_b32 s3, s3, 15')
else:
    sh = 11 + OPT['cpf']
    E(f's_lshr_b32 s3, s2, 3\ns_and_b32 s3, s3, {(1 << (16 - sh)) - 1}\ns_lshl_b32 s3, s3, {sh}\nv_lshrrev_b32 v3, {sh}, v2\nv_lshl_or_b32 v2, v3, 30, v2')
E.emit(nodep(f'buffer_load_dword v{vTD}, v2, {srd(SRD_EU)}, s3 offen'))
E('v_lshrrev_b32 v1, 6, v0')
E(f'v_readfirstlane_b32 {sW}, v1')
E('v_and_b32 v1, 63, v0')
E(f'''s_and_b32 s84, s2, 7
s_lshr_b32 s85, s2, 3
s_lshr_b32 {sS}, s84, 1
s_and_b32 {sC}, s85, 3
s_and_b32 s84, s84, 1
s_lshl_b32 s84, s84, 3
s_lshr_b32 s85, s85, 2
s_add_u32 {sR}, s84, s85
s_lshl_b32 {sJ}, {sS}, 2
s_add_u32 {sJ}, {sJ}, {sC}
v_bfe_u32 v2, v1, 2, 3
v_mul_u32_u24 v2, 4608, v2
v_lshrrev_b32 v3, 5, v1
v_lshl_add_u32 v2, v3, 6, v2
v_and_b32 v4, 3, v1
v_lshl_add_u32 {vXO}, v4, 4, v2
v_mul_u32_u24 v5, 1152, v3
v_and_b32 v6, 31, v1
v_lshl_add_u32 v5, v6, 4, v5
v_mov_b32 v7, {OOB}
v_cmp_gt_u32 vcc, 8, v6
v_cndmask_b32 v6, v7, v5, vcc
v_lshlrev_b32 {vLANE16}, 4, v1
s_lshl_b32 s86, {sR}, 2
s_add_u32 s86, s86, {sW}
s_mul_i32 s86, s86, 36864
s_lshl_b32 s87, {sR}, 4
s_add_u32 s87, s87, {sJ}
s_lshl_b32 s87, s87, 2
s_add_u32 s87, s87, {sW}
s_mul_i32 s88, s87, 2304''')
if OPT.get('stag'):
    E(f's_and_b32 s94, {sR}, {OPT["stagm"]}')
    E('L_STG:')
    E('s_cmp_eq_u32 s94, 0\ns_cbranch_scc1 L_STGD')
    E(f's_sleep {OPT["stag"]}\ns_sub_u32 s94, s94, 1\ns_branch L_STG')
    E('L_STGD:')
for i in range(5):
    E(f'''v_add_u32 v8, {64 * i}, v1
v_mul_u32_u24 v9, 3277, v8
v_lshrrev_b32 v9, 16, v9
v_mul_u32_u24 v11, 20, v9
v_sub_u32 v11, v8, v11
v_mul_u32_u24 v9, 9216, v9
v_lshl_add_u32 v{VDA + i}, v11, 4, v9''')
    if i % 4:
        E(f'v_subrev_u32 v{VDA + i}, {(i % 4) * 1024}, v{VDA + i}')
E(f'''s_mul_i32 s89, {sJ}, 576
s_and_b32 s84, {sJ}, 1
s_cmp_eq_u32 s84, 0
s_cselect_b32 s90, 256, 0
s_cselect_b32 s91, 0, 320
s_and_b32 s92, {sW}, {1 if OPT['rot'] else 3}
s_mul_i32 s92, s92, {32 * 9216}
s_add_u32 s92, s92, s89
s_add_u32 s93, s92, s90
s_mul_i32 {sL10}, {sW}, 10240''')
E('s_waitcnt lgkmcnt(0)')
mk_srd(SRD_X, P_X, 2359296)
mk_srd(SRD_W1, P_W1, 5308416)
if OPT['rot']:
    E(f's_mov_b32 s78, s30\ns_mov_b32 s79, s31\ns_and_b32 s1, {sR}, 7\ns_lshl_b32 s84, {sC}, 1\ns_add_u32 s1, s1, s84\ns_sub_u32 s84, s1, 9\ns_min_u32 s1, s1, s84\n'
      f's_lshr_b32 s84, {sW}, 1\ns_add_u32 s30, s1, s84')
E1R = TMP + 16
for k in range(3):
    E(f'buffer_load_dwordx4 v[{E1R + 4 * k}:{E1R + 4 * k + 3}], {"v5" if k < 2 else "v6"}, {srd(SRD_X)}, s88 offen offset:{512 * k}')


sROT, sROTW = 's1', 's30'


def sig(dst, base, add, tmp):
    return [f's_add_u32 {dst}, {base}, {add}', f's_sub_u32 {tmp}, {dst}, 9', f's_min_u32 {dst}, {dst}, {tmp}']


def xload(q, sb=None):
    o = []
    if OPT['rot']:
        o += sig(tD0, sROT, q, tD1) + [f's_lshl_b32 {tD0}, {tD0}, 7', f's_add_u32 {tD0}, {tD0}, {sb or sXB}']
        for i in range(4):
            r = XN + 16 * q + 4 * i
            o.append(Inst(f'buffer_load_dwordx4 v[{r}:{r + 3}], {vXO}, {srd(SRD_X)}, {tD0} offen offset:{1152 * i}', tag=f'x{q}'))
        o.append(('mark', f'xl{q}'))
        return o
    for i in range(4):
        r = XN + 16 * q + 4 * i
        b, off = (sb or sXB, 128 * q) if q < 5 else (sXB2, 128 * (q - 5))
        o.append(Inst(f'buffer_load_dwordx4 v[{r}:{r + 3}], {vXO}, {srd(SRD_X)}, {b} offen offset:{1152 * i + off}', tag=f'x{q}'))
    o.append(('mark', f'xl{q}'))
    return o


TOUCH_ONLY = [False]


def touch(fn, *a):
    TOUCH_ONLY[0] = True
    o = fn(*a)
    TOUCH_ONLY[0] = False
    return o


def dma_a(u, sb=None):
    g = u
    base = SLOTB[g]
    out = [f's_add_u32 {tD0}, {sb or sA0}, {u * 128 * 9216}' if u < 4 else f's_mov_b32 {tD0}, {sA4}']
    if OPT['rot']:
        out = sig(tD0, sROTW if u < 4 else sROT, 2 * u, tD1) + [f's_mul_i32 {tD0}, {tD0}, {64 * 9216}', f's_add_u32 {tD0}, {tD0}, {(sb or sA0) if u < 4 else sA4}']
    if TOUCH_ONLY[0]:
        return out + [nodep(f'buffer_load_dword v{vTD}, {vTW}, {srd(SRD_W1)}, {tD0} offen')]
    lw = sL10
    if u == 4:
        out.append(f's_lshr_b32 {tD1}, {sL10}, 1')
        lw = tD1
    for gr in range(2 if u < 4 else 1):
        if gr:
            out.append(f's_add_u32 {tD0}, {tD0}, {16 * 9216}')
        for i in range(5):
            if i % 4 == 0:
                out.append(f's_add_u32 m0, {lw}, {base + gr * 5120 + i * 1024}')
            out.append(Inst(f'buffer_load_dwordx4 v{VDA + i}, {srd(SRD_W1)}, {tD0} offen offset:{(i % 4) * 1024} lds', tag=f'st{g}'))
    return out


def lin_pieces(g, lw, lbase, npc):
    out = []
    for i in range(npc):
        if i % 4 == 0:
            out.append(f's_add_u32 m0, {lw}, {lbase + i * 1024}' if lw else f's_mov_b32 m0, {lbase + i * 1024}')
            if i:
                out.append(f's_add_u32 {tD0}, {tD0}, 4096')
        out.append(Inst(f'buffer_load_dwordx4 {vLANE16}, {srd(SRD_WS)}, {tD0} offen offset:{(i % 4) * 1024} sc1 lds', tag=f'st{g}'))
    return out


def cs_pieces(g, src, lofs, n):
    o = [f's_lshl_b32 {tD1}, {sW}, 10', f's_add_u32 {tD0}, {src}, {tD1}'] + lin_pieces(g, tD1, SLOTB[g] + lofs, 1)
    if n == 5:
        o += [f's_add_u32 {tD0}, {src}, 4096'] + lin_pieces(g, None, SLOTB[g] + lofs + 4096, 1)
    return o


def dma_b(u):
    g = 10 + u
    base = SLOTB[g]
    out = [f's_add_u32 {tD0}, {sB0}, {u * 128 * 9216}' if u < 4 else f's_mov_b32 {tD0}, {sB4}']
    if OPT['rot']:
        out = sig(tD0, sROTW if u < 4 else sROT, 2 * u, tD1) + [f's_mul_i32 {tD0}, {tD0}, {64 * 9216}', f's_add_u32 {tD0}, {tD0}, {sB0 if u < 4 else sB4}']
    if TOUCH_ONLY[0]:
        return out + [nodep(f'buffer_load_dword v{vTD}, {vTW}, {srd(SRD_W1)}, {tD0} offen')]
    lw = sL8
    if u == 4:
        out.append(f's_lshr_b32 {tD1}, {sL8}, 1')
        lw = tD1
    for gr in range(2 if u < 4 else 1):
        if gr:
            out.append(f's_add_u32 {tD0}, {tD0}, {16 * 9216}')
        out.append(f's_add_u32 m0, {lw}, {base + gr * 4096}')
        for i in range(4):
            out.append(Inst(f'buffer_load_dwordx4 v{VDB + i}, {srd(SRD_W1)}, {tD0} offen offset:{i * 1024} lds', tag=f'st{g}'))
    if u == 0:
        out += cs_pieces(g, sCSB, 32768, 4)
    return out


def dma_lin(g, setup, lw, npc):
    if TOUCH_ONLY[0]:
        return [setup[-1]] + [nodep(f'buffer_load_dword v{vTD}, {vTL}, {srd(SRD_WS)}, {tD0} offen sc1')]
    return list(setup) + lin_pieces(g, lw, SLOTB[g], npc)


def dma_q(u):
    g = 5 + u
    if u < 4:
        o = dma_lin(g, [f's_add_u32 {tD0}, {sQ0}, {u * 32768}'] if not OPT['rot'] else
                    sig(tD0, sROTW, 2 * u, tD1) + [f's_lshl_b32 {tD0}, {tD0}, 14', f's_add_u32 {tD0}, {tD0}, {sQ0}'], sL8, 8)
        if u == 0 and not TOUCH_ONLY[0]:
            o = cs_pieces(g, sCSA, 32768, 5) + o
        return o
    o = dma_lin(g, [f's_lshr_b32 {tD1}, {sL8}, 1', f's_mov_b32 {tD0}, {sQ4}'] if not OPT['rot'] else
                sig(tD0, sROT, 8, tD1) + [f's_lshl_b32 {tD0}, {tD0}, 14', f's_add_u32 {tD0}, {tD0}, {sQ4}', f's_lshr_b32 {tD1}, {sL8}, 1'], tD1, 4)
    if not TOUCH_ONLY[0]:
        o += [f's_lshl_b32 {tM1}, {sJ}, 12', f's_add_u32 {tM1}, {tM1}, {L.WS_CSQ}'] + cs_pieces(g, tM1, 16384, 4)
    return o


RUNS = [('A', k) for k in range(4)] + [('B', k) for k in range(4)]


def dma_p(p):
    kind, k = RUNS[p]
    g = 15 + p
    if kind == 'A':
        return dma_lin(g, [f's_mov_b32 {tD0}, {sPF[k]}'], (sL10, sL8)[k % 2], (10, 8)[k % 2])
    return dma_lin(g, [f's_add_u32 {tD0}, {sPF[k]}, {(sBO, sBO2)[k % 2]}'], (sL8, sL6)[k % 2], (8, 6)[k % 2])


def dma_o(_):
    g = 23
    if TOUCH_ONLY[0]:
        return []
    o = [f's_add_u32 {tD0}, {sC}, {sW}', f's_and_b32 {tD1}, {tD0}, 3', f's_mul_i32 {tD0}, {tD1}, 61440', f's_add_u32 {tD0}, {tD0}, {sSLW}',
         f's_add_u32 {tD0}, {tD0}, {54 * 1024}'] + lin_pieces(g, sL6, SLOTB[g], 6)
    o += [f's_lshr_b32 {tD0}, {tD1}, 1', f's_mul_i32 {tD0}, {tD0}, 20480', f's_add_u32 {tD0}, {tD0}, {sSLW}',
          f's_add_u32 {tD0}, {tD0}, {L.SLABW_S + 18 * 1024}', f's_lshl_b32 {tD1}, {sW}, 11'] + lin_pieces(g, tD1, SLOTB[g] + 24576, 2)
    o += [f's_lshl_b32 {tD1}, {sW}, 10', f's_add_u32 {tD0}, {tD1}, {240 * 1024}', f's_cmp_eq_u32 {sW}, 3',
          f's_cselect_b32 {tD0}, {L.SLABW_S + 40 * 1024}, {tD0}', f's_add_u32 {tD0}, {tD0}, {sSLW}'] + lin_pieces(g, tD1, SLOTB[g] + 32768, 1)
    o += [f's_add_u32 {tD0}, {sSLW}, {L.SLABW_O + 80 * 1024}'] + lin_pieces(g, None, SLOTB[g] + 36864, 1)
    return o


def dma_c(u):
    return dma_lin(24 + u, [f's_mov_b32 {tD0}, {(sC0, sC1)[u]}'], sL10, 10)


A0L = dma_a(0, 's93')
cut = [i for i, x in enumerate(A0L) if isinstance(x, Inst)][4] + 1
def early_touch(first_seg, first_stage):
    E(f'''v_and_b32 v8, 7, v1
s_lshl_b32 s84, {sC}, 3
v_add_u32 v8, s84, v8
v_mul_u32_u24 v8, 1152, v8
v_lshrrev_b32 v9, 3, v1
v_lshl_add_u32 v11, v9, 7, v8''')
    E.emit(nodep(f'buffer_load_dword v{vTD}, v11, {srd(SRD_X)}, s86 offen offset:{128 * first_seg}'))
    E(f'''v_mul_u32_u24 v11, 86, v1
v_lshrrev_b32 v11, 8, v11
v_mul_u32_u24 v9, 3, v11
v_sub_u32 v9, v1, v9
v_lshrrev_b32 v15, 2, v11
v_and_b32 v11, 3, v11
v_lshl_add_u32 v11, v15, 7, v11
s_and_b32 s84, {sR}, 7
s_lshl_b32 s84, s84, 2
s_add_u32 s84, s84, {128 * first_stage}
v_add_u32 v11, s84, v11
v_mul_u32_u24 v11, 9216, v11
v_lshl_add_u32 v11, v9, 7, v11
v_cmp_gt_u32 vcc, {12 * (4 - first_stage)}, v1
v_cndmask_b32 v11, v7, v11, vcc''')
    E.emit(nodep(f'buffer_load_dword v{vTD}, v11, {srd(SRD_W1)}, s93 offen'))
    if first_seg == 0:
        E.emit(nodep(f'buffer_load_dword v{vTD}, v8, {srd(SRD_X)}, s86 offen offset:1024'))


if OPT['tfirst']:
    early_touch(0, 0)
else:
    emit_all(xload(0, 's86') + A0L[:cut])
    E(f's_mov_b32 s97, {tD0}')
stamp()
mk_srd(SRD_DBG, P_DBG, 256)
E(f'''s_or_b32 s{NONCE}, s{NONCE}, 1
v_mov_b32 v8, s{NONCE}
v_mov_b32 v9, s{NONCE + 1}
v_mov_b32 v14, 0
v_cmp_eq_u32 vcc, 0, v1
v_cndmask_b32 {vF0}, v7, v14, vcc
s_or_b32 s85, s2, {sW}
s_cmp_eq_u32 s85, 0
s_cselect_b32 s85, 0, {OOB}''')
E(f'buffer_store_dwordx2 v[8:9], {vF0}, {srd(SRD_DBG)}, s85 offen sc1')
if OPT['wsoff']:
    E(f's_add_u32 s{P_WS}, s{P_WS}, {OPT["wsoff"] << 20}\ns_addc_u32 s{P_WS + 1}, s{P_WS + 1}, 0')
mk_srd(SRD_WS, P_WS, 0x10000000 - (OPT['wsoff'] << 20))
mk_srd(SRD_B, P_B1, 9216)
mk_srd(SRD_OUT, P_OUT, 2359296)
U2C = '''s_add_u32 {d}, s2, 48
s_cmp_ge_u32 s2, 144
s_cselect_b32 {d}, 255, {d}
s_sub_u32 {t}, s2, 208
s_cmp_ge_u32 s2, 208
s_cselect_b32 {d}, {t}, {d}'''
E(U2C.format(d='s84', t='s85') if OPT['umap'] else 's_sub_u32 s84, s2, 92')
E(f'''s_cmp_lt_u32 s84, 144
s_cselect_b32 s{SRD_RP}, s{P_W2}, s{P_WO}
s_cselect_b32 s{SRD_RP + 1}, s{P_W2 + 1}, s{P_WO + 1}
s_mov_b32 s{SRD_RP + 2}, 5308416
s_cselect_b32 s{SRD_RP + 2}, s{SRD_RP + 2}, 663552
s_mov_b32 s{SRD_RP + 3}, 0x20000''')
vU, vA1, vZ = 'v2', 'v3', f'v{TMP + 32}'
sU1 = 's98'
E(f'''s_lshr_b32 s85, s2, 3
s_and_b32 s84, s2, 1
s_lshl_b32 s84, s84, 1
s_cmp_ge_u32 s85, 9
s_cselect_b32 s94, 9, 0
s_cselect_b32 s95, 1, 0
s_sub_u32 s94, s85, s94
s_mul_i32 s96, {sS}, 9
s_add_u32 s94, s94, s96
s_lshl_b32 s94, s94, 2
s_add_u32 s94, s94, s84
s_add_u32 s94, s94, s95
s_add_u32 {sU1}, s94, 64
s_sub_u32 s94, s85, 18
s_and_b32 s95, s94, 3
s_lshl_b32 s96, {sS}, 2
s_add_u32 s95, s95, s96
s_lshl_b32 s95, s95, 2
s_add_u32 s95, s95, s84
s_lshr_b32 s94, s94, 2
s_add_u32 s95, s95, s94
s_cmp_ge_u32 s85, 18
s_cselect_b32 {sU1}, s95, {sU1}
s_cmp_ge_u32 s85, 26
s_cselect_b32 {sU1}, 255, {sU1}''')
if not OPT['umap']:
    E(f's_mov_b32 {sU1}, s2')
E(f'''s_and_b32 s84, {sU1}, 3
s_lshr_b32 s85, {sW}, 1
s_lshl_b32 s85, s85, 5
s_and_b32 s94, {sW}, 1
s_lshl_b32 s94, s94, 2
s_add_u32 s85, s85, s94
s_lshl_b32 s94, s84, 3
s_add_u32 s85, s85, s94
v_lshrrev_b32 v8, 4, v1
v_and_b32 v9, 15, v1
v_bfe_u32 v11, v1, 4, 1
v_lshrrev_b32 v3, 5, v1
v_lshlrev_b32 v3, 3, v3
v_bfe_u32 v15, v1, 2, 2
v_add_u32 v3, v3, v15
v_lshlrev_b32 v3, 8, v3
v_add_u32 v3, {AUX}, v3
s_cmp_ge_u32 {sU1}, 64
s_cbranch_scc1 L_EU_W1
s_lshr_b32 s94, {sU1}, 2
s_mov_b32 s{SRD_EU}, s{P_WQKV}
s_mov_b32 s{SRD_EU + 1}, s{P_WQKV + 1}
s_mov_b32 s{SRD_EU + 2}, 1990656
s_mov_b32 {sUST}, {64 * 3456}
s_mul_i32 {sUS}, s85, 3456
s_mul_i32 s95, s94, 72
s_add_u32 {sUS}, {sUS}, s95
s_mul_i32 {sUD}, s94, {L.SLABQ_SZ}
s_lshl_b32 s95, s84, 2
s_add_u32 s95, s95, {sW}
s_lshl_b32 s95, s95, 10
s_add_u32 {sUD}, {sUD}, s95
s_add_u32 {sUD}, {sUD}, {L.WS_SLABQ}
s_lshl_b32 {sUC}, s94, 12
s_add_u32 {sUC}, {sUC}, {L.WS_CSQ}
s_mov_b32 s96, {OOB}
v_mul_u32_u24 v8, 3456, v8
v_mul_u32_u24 v15, 13, v9
v_lshrrev_b32 v15, 6, v15
v_mul_u32_u24 v2, 5, v15
v_sub_u32 v9, v9, v2
v_mul_u32_u24 v15, 1152, v15
v_add_u32 v8, v8, v15
v_lshl_add_u32 {vU}, v9, 4, v8
v_lshlrev_b32 v11, 2, v11
v_and_b32 v8, 1, v1
v_lshl_add_u32 v11, v8, 1, v11
v_bfe_u32 v8, v1, 1, 1
v_add_u32 v11, v11, v8
s_lshl_b32 s95, {sW}, 3
v_add_u32 v11, s95, v11
v_min_u32 v11, 26, v11
v_mul_u32_u24 v8, 57, v11
v_lshrrev_b32 v8, 9, v8
v_lshl_add_u32 v11, v11, 3, v3
v_lshl_add_u32 {vA1}, v8, 3, v11
s_branch L_EU_DONE
L_EU_W1:
s_sub_u32 s94, {sU1}, 64
s_lshr_b32 s94, s94, 2
s_mov_b32 s{SRD_EU}, s{P_W1}
s_mov_b32 s{SRD_EU + 1}, s{P_W1 + 1}
s_mov_b32 s{SRD_EU + 2}, 5308416
s_mov_b32 {sUST}, {64 * 9216}
s_mul_i32 {sUS}, s85, 9216
s_lshl_b32 s95, s94, 8
s_add_u32 {sUS}, {sUS}, s95
s_mov_b32 {sUD}, {OOB}
s_lshl_b32 {sUC}, s94, 12
s_add_u32 {sUC}, {sUC}, {L.WS_CSF}
s_lshl_b32 s96, {sW}, 6
s_add_u32 s96, s96, s95
s_cmp_eq_u32 s84, 0
s_cselect_b32 s96, s96, {OOB}
s_cmp_lt_u32 {sU1}, 208
s_cselect_b32 {sUS}, {sUS}, {OOB}
s_cselect_b32 {sUC}, {sUC}, {OOB}
v_mul_u32_u24 v8, 9216, v8
v_lshl_add_u32 {vU}, v9, 4, v8
v_lshl_add_u32 v3, v11, 5, v3
v_lshl_add_u32 v3, v4, 3, v3
s_lshl_b32 s95, {sW}, 6
v_add_u32 {vA1}, s95, v3
L_EU_DONE:
s_lshl_b32 s95, {sW}, 10
s_add_u32 {sUC}, {sUC}, s95
s_lshl_b32 s94, s84, 2
s_add_u32 {sUC}, {sUC}, s94
v_and_b32 v8, 31, v1
v_lshlrev_b32 v8, 1, v8
s_nop 2''')
if not OPT['tfirst']:
    E(f's_mov_b32 {tD0}, s97')
    emit_all(A0L[cut:] + xload(1, 's86'))
E(f'buffer_load_ushort {vZ}, v8, {srd(SRD_B)}, s96 offen')
mk_srd(SRD_B, 78 if OPT['rot'] else P_B2, 1152)
def eu_dma():
    for i in range(9):
        E(f's_add_u32 m0, s95, {AUX + i * 4096}')
        E(f'buffer_load_dwordx4 {vU}, {srd(SRD_EU)}, {sUS} offen lds', tag='eu')
        if i < 8:
            E(f's_add_u32 {sUS}, {sUS}, {sUST}')


if OPT['tfirst']:
    eu_dma()
E(f'''s_mov_b32 {sXB}, s86
{'s_nop 0' if OPT['rot'] else f's_add_u32 {sXB2}, s86, 640'}
s_mov_b32 {sA0}, s93
s_add_u32 {sB0}, s92, s91
s_mul_i32 s84, {sW}, {16 * 9216}
s_add_u32 s84, s84, {0 if OPT['rot'] else 512 * 9216}
s_add_u32 s84, s84, s89
s_add_u32 {sA4}, s84, s90
s_add_u32 {sB4}, s84, s91
s_lshl_b32 {sL8}, {sW}, 13
s_mul_i32 {sL9}, {sW}, 9216
s_lshl_b32 {sBO2}, {sW}, 11
s_sub_u32 {sBO2}, 30720, {sBO2}
s_cmp_eq_u32 {sW}, 3
s_cselect_b32 {sBO}, 10240, {sBO2}
s_mul_i32 {sL6}, {sW}, 6144
s_mul_i32 s84, {sJ}, {L.SLABQ_SZ}
s_add_u32 s84, s84, {L.WS_SLABQ}
s_and_b32 s85, {sL8}, {0x3fff if OPT['rot'] else 0xffff}
s_add_u32 {sQ0}, s84, s85
s_lshl_b32 s85, {sW}, 12
s_add_u32 {sQ4}, s84, s85
s_add_u32 {sQ4}, {sQ4}, {0 if OPT['rot'] else 8 * 16384}
s_mul_i32 s84, {sJ}, 9216
s_add_u32 s84, s84, {L.WS_CSF}
s_lshl_b32 s90, s90, 4
s_lshl_b32 s91, s91, 4
s_add_u32 {sCSA}, s84, s90
s_add_u32 {sCSB}, s84, s91
s_mul_i32 {sGB}, s87, {L.G_WAVE}
s_add_u32 {sGB}, {sGB}, {L.WS_G}
s_mul_i32 {sSLW}, {sJ}, {L.SLABW_SZ}
s_add_u32 {sSLW}, {sSLW}, {L.WS_SLABW}''')
for k in range(4):
    E(f's_add_u32 s84, {sC}, {k}\ns_and_b32 s84, s84, 3\ns_mul_i32 s85, s84, 61440\ns_add_u32 s85, s85, {sL10 if k % 2 == 0 else sL8}')
    if k % 2 == 0:
        E(f's_lshr_b32 s90, s84, 1\ns_mul_i32 s90, s90, 20480\ns_add_u32 s90, s90, {L.SLABW_S}')
        E(f's_cmp_eq_u32 {sW}, 3\ns_cselect_b32 s85, s90, s85')
    E(f's_add_u32 {sPF[k]}, s85, {sSLW}')
    if k:
        E(f's_sub_u32 s84, s84, {sC}\ns_mul_i32 s84, s84, {L.G_WG}\ns_add_u32 {sGP[k]}, s84, {sGB}')
for u, d in enumerate((sC0, sC1)):
    E(f's_lshr_b32 s84, {sW}, 1\ns_add_u32 s84, s84, {sC}\ns_add_u32 s84, s84, {2 - 2 * u}\ns_and_b32 s84, s84, 3\ns_mul_i32 s84, s84, 20480\n'
      f's_and_b32 s85, {sW}, 1\ns_mul_i32 s85, s85, 10240\ns_add_u32 s84, s84, s85\ns_add_u32 s84, s84, {sSLW}\ns_add_u32 {d}, s84, {L.SLABW_O}')
E(f'''s_lshl_b32 {sGF}, {sR}, 2
s_add_u32 {sGF}, {sGF}, {sS}
s_lshl_b32 {sGF}, {sGF}, 2
s_add_u32 {sGF}, {sGF}, {sW}
s_lshl_b32 {sGF}, {sGF}, 7
s_add_u32 {sGF}, {sGF}, {L.WS_FLAG_G}
s_lshl_b32 {sSTB}, {sR}, 2
s_add_u32 {sSTB}, {sSTB}, {sW}
s_lshl_b32 {sSTB}, {sSTB}, 7
s_add_u32 {sSTB}, {sSTB}, {L.WS_STAT}
s_mov_b64 {M16}, 0xffff
s_mov_b32 s34, 0x55555555
s_mov_b32 s35, 0x55555555
s_mov_b32 s36, 0x33333333
s_mov_b32 s37, 0x33333333''')
if not OPT['tfirst']:
    eu_dma()
E(f'''s_and_b32 s84, {sR}, 7
v_mul_u32_u24 v8, 86, v1
v_lshrrev_b32 v8, 8, v8
v_mul_u32_u24 v9, 3, v8
v_sub_u32 v9, v1, v9
s_lshl_b32 s85, s84, 2
v_add_u32 v8, s85, v8
v_mul_u32_u24 v8, 9216, v8
v_lshl_add_u32 v8, v9, 7, v8
v_cmp_gt_u32 vcc, 12, v1
v_cndmask_b32 {vTW}, v7, v8, vcc
v_lshlrev_b32 {vTCH}, 7, v1
s_mul_i32 s85, s84, {10 * 128}
v_add_u32 v8, s85, {vTCH}
v_cmp_gt_u32 vcc, 10, v1
v_cndmask_b32 {vTL}, v7, v8, vcc
v_lshrrev_b32 v8, 5, v1
v_lshlrev_b32 v8, 5, v8
v_bfe_u32 v9, v1, 2, 2
v_add_u32 v8, v8, v9
v_bfe_u32 v11, v1, 4, 1
v_lshlrev_b32 v11, 5, v11
v_lshl_add_u32 v11, v4, 3, v11
v_mul_u32_u24 v15, 320, v8
v_add_u32 {vTA}, v15, v11
v_lshl_add_u32 v15, v8, 8, v11
v_add_u32 v15, {SLOTB[10]}, v15
v_lshrrev_b32 v8, 4, v1
v_xor_b32 v11, v9, v8
v_mul_u32_u24 v8, 9216, v8
v_lshl_add_u32 v8, v11, 6, v8
v_lshl_add_u32 v{VDB}, v4, 4, v8''')
for i in range(1, 4):
    E(f'v_add_u32 v{VDB + i}, {i * (4 * 9216 - 1024)}, v{VDB}')
E(f'''v_mov_b32 {vMASKHI}, 0xffff0000
v_cndmask_b32 {vREM}, v7, {vLANE16}, {M16}
v_mov_b32 v{TMP + 33}, v7''')
for t in range(4):
    E(f'v_xor_b32 v8, {t}, v9\nv_lshl_add_u32 v{TMP + t}, v8, 6, v15')
E(f'''v_and_b32 v8, 15, v1
v_lshrrev_b32 v9, 4, v1
v_lshlrev_b32 v9, 2, v9
v_sub_u32 v8, v8, v9
v_mov_b32 v15, 0xf149f2ca
v_mov_b32 v9, 0x3f803f80''')
for i in range(4):
    E(f'''v_accvgpr_write_b32 a{ONESR + i}, v9
v_subrev_u32 v11, {i}, v8
v_and_b32 v11, 0x80000001, v11
v_cmp_eq_u32 vcc, 0, v11
v_cndmask_b32 v{BIASR + 4 + i}, v15, v14, vcc
v_xor_b32 v11, 0x80000000, v11
v_cmp_eq_u32 vcc, 0, v11
v_cndmask_b32 v{BIASR + i}, v15, v14, vcc''')
E(f'''v_and_b32 v8, 31, v1
s_lshl_b32 s85, {sJ}, 2
v_add_u32 v11, s85, v8
s_mul_i32 s85, {sJ}, 9
s_andn2_b32 s85, s85, 3
s_add_u32 s85, s85, 60
v_add_u32 v15, s85, v8
v_min_u32 v15, 207, v15
v_cmp_gt_u32 vcc, 4, v8
v_cndmask_b32 v11, v15, v11, vcc
v_bfe_u32 v15, v1, 2, 2
v_lshlrev_b32 v15, 1, v15
v_lshl_add_u32 v15, v4, 3, v15
s_lshl_b32 s85, s84, 5
s_lshr_b32 s84, {sR}, 3
s_add_u32 s85, s85, s84
v_add_u32 v15, s85, v15
v_add_u32 v11, {(L.WS_FLAG_U - L.WS_FLAG_E) // 8}, v11
v_cmp_gt_u32 vcc, 16, v8
v_cndmask_b32 v11, v15, v11, vcc
v_lshlrev_b32 v11, 3, v11
v_add_u32 {vPA}, {L.WS_FLAG_E}, v11''')
for t in range(4):
    E(f'v_mov_b32 v{VTB + t}, v{TMP + t}')
stamp()
if OPT['tfirst']:
    emit_all(xload(0) + dma_a(0) + xload(1))
if OPT['x23']:
    emit_all(xload(2) + xload(3))
stamp()
a0, a1, q0, q1 = (f'v{TMP + i}' for i in range(4))
E(f'v_mov_b32 {a0}, 0\nv_mov_b32 {a1}, 0\nv_mov_b32 {q0}, 0\nv_mov_b32 {q1}, 0')
for e in range(12):
    r = f'v{E1R + e}'
    E(f'v_dot2_f32_bf16 {(a0, a1)[e & 1]}, {r}, v9, {(a0, a1)[e & 1]}')
    E(f'v_dot2_f32_bf16 {(q0, q1)[e & 1]}, {r}, {r}, {(q0, q1)[e & 1]}')
E(f'v_add_f32 {a0}, {a0}, {a1}\nv_add_f32 {q0}, {q0}, {q1}')
for sh in (1, 2, 4, 8):
    E(f'v_add_f32_dpp {a0}, {a0}, {a0} row_shr:{sh} row_mask:0xf bank_mask:0xf bound_ctrl:0')
    E(f'v_add_f32_dpp {q0}, {q0}, {q0} row_shr:{sh} row_mask:0xf bank_mask:0xf bound_ctrl:0')
E(f'v_add_f32_dpp {a0}, {a0}, {a0} row_bcast:15 row_mask:0xa bank_mask:0xf')
E(f'v_add_f32_dpp {q0}, {q0}, {q0} row_bcast:15 row_mask:0xa bank_mask:0xf')
E(f'''v_mul_f32 {a0}, 0x3ae38e39, {a0}
v_mul_f32 {q0}, 0x3ae38e39, {q0}
v_fma_f32 {q0}, -{a0}, {a0}, {q0}
v_max_f32 {q0}, 0, {q0}
v_cvt_pk_bf16_f32 {q0}, {q0}, {q0}
v_lshlrev_b32 {q0}, 16, {q0}
v_add_f32 {q0}, 0x3727c5ac, {q0}
v_cvt_pk_bf16_f32 {q0}, {q0}, {q0}
v_lshlrev_b32 {q0}, 16, {q0}
v_sqrt_f32 {q0}, {q0}
v_and_b32 {a1}, 31, v1
v_cvt_pk_bf16_f32 {a0}, {a0}, {q0}
v_lshrrev_b32 {q1}, 5, v1
v_lshlrev_b32 {q1}, 2, {q1}
v_cmp_eq_u32 vcc, 31, {a1}
v_cndmask_b32 {q1}, v{TMP + 33}, {q1}, vcc
s_lshl_b32 s84, s87, 3
s_add_u32 s84, s84, {L.WS_STAT}''')
E(f'buffer_store_dword {a0}, {q1}, {srd(SRD_WS)}, s84 offen sc1', tag='eust')
NONL = f'buffer_load_dwordx2 v[{vNON}:{vNON + 1}], v14, {srd(SRD_DBG)}, 0 offen sc1'
stamp()

X1 = 'quad_perm:[1,0,3,2] row_mask:0xf bank_mask:0xf'
X2 = 'quad_perm:[2,3,0,1] row_mask:0xf bank_mask:0xf'


def transpose_seg(q):
    R = lambda i, d: f'v{XN + 16 * q + 4 * i + d}'
    Tm = lambda i, d: f'v{TMP + 4 * i + d}'
    o = [f's_mov_b64 vcc, {MX1}']
    for i0 in (0, 2):
        for d in range(4):
            o.append(f'v_cndmask_b32_dpp {Tm(i0, d)}, {R(i0 + 1, d)}, {R(i0, d)}, vcc {X1}')
    o.append('s_not_b64 vcc, vcc')
    for i0 in (0, 2):
        for d in range(4):
            o.append(f'v_cndmask_b32_dpp {Tm(i0 + 1, d)}, {R(i0, d)}, {R(i0 + 1, d)}, vcc {X1}')
    o.append(f's_mov_b64 vcc, {MX2}')
    for i0 in (0, 1):
        for d in range(4):
            o.append(f'v_cndmask_b32_dpp {R(i0, d)}, {Tm(i0 + 2, d)}, {Tm(i0, d)}, vcc {X2}')
        o.append(('mark', f't{q}_{i0}'))
    o.append('s_not_b64 vcc, vcc')
    for i0 in (0, 1):
        for d in range(4):
            o.append(f'v_cndmask_b32_dpp {R(i0 + 2, d)}, {Tm(i0, d)}, {Tm(i0 + 2, d)}, vcc {X2}')
        o.append(('mark', f't{q}_{i0 + 2}'))
    return o


k = 0
for x in transpose_seg(0):
    if isinstance(x, str):
        E(x)
        k += 1
        if k % 3 == 0:
            E('v_nop')
stamp()

fragi = [0]


def newfrag():
    f = FR + 4 * (fragi[0] % NF)
    fragi[0] += 1
    return f


RA = OPT['rp2at']
BAR_TAGS = {2: ['eust'], RA + 1: ['rp2'], RA + 4: ['rp2st']}
BAR_MARKS = {2: ['eudone'], RA + 1: ['rp2dma'], RA + 3: ['rp2done'], OPT['auxat'] - 1: ['odone']}


def barrier(g, post=()):
    def f():
        if OPT['stamps'] > 2:
            stamp()
        E.wait_tags([f'st{g}'] + BAR_TAGS.get(g, []))
        if OPT['drain']:
            E.wait_all(vm=False)
        E('s_barrier')
        if OPT['stamps'] > 1:
            stamp()
        S.marks.add(f'B{g}')
        if 'odone' in S.marks:
            S.marks.add('Bodone')
        S.log.append((S.cur, 'BARRIER', g, 0))
        emit_all(post)
    return f


def eu_barrier():
    E.wait_tags(['eu'])
    E('s_barrier')
    S.marks.add('Bx')


def prereq(g):
    return ([f'dma{g}'] if g >= 1 else []) + BAR_MARKS.get(g, [])


def rl_post(g):
    return [f'v_add_u32 {vRL}, {SLOTB[g]}, {vLANE16}']


ops = []
for q in range(9):
    u, sg = q // 2, q % 2
    g = u
    for k, (jj, n) in enumerate([(jj, n) for jj in range(4) for n in range(5)]):
        f = newfrag()
        off = sg * 20480 + 8 * jj * 320 + 64 * n
        x = XN + 16 * q + 4 * jj
        first = (k == 0 and sg == 0)
        post = []
        if g:
            d = SLOTB[g] - SLOTB[g - 1]
            post = [f'v_add_u32 {vTA}, {d}, {vTA}' if d > 0 else f'v_subrev_u32 {vTA}, {-d}, {vTA}']
        acc = f'a[{16 * n}:{16 * n + 15}]'
        ops.append(Op([f'ds_read_b64_tr_b16 v[{f}:{f + 1}], {vTA} offset:{off}',
                       f'ds_read_b64_tr_b16 v[{f + 2}:{f + 3}], {vTA} offset:{off + 4 * 320}'],
                      [f'v_mfma_f32_32x32x16_bf16 {acc}, v[{f}:{f + 3}], v[{x}:{x + 3}], {"0" if (q == 0 and jj == 0) else acc}'],
                      name=f'a{q}' if k == 0 else None,
                      pre=barrier(g, post) if first else (eu_barrier if (q == 0 and k == OPT['bx']) else None),
                      requires=[f't{q}_{jj}'] if q else [],
                      pre_requires=prereq(g) if first else [], budget=OPT['bA']))
for n in range(5):
    f = newfrag()
    acc = f'a[{16 * n}:{16 * n + 15}]'
    ops.append(Op([f'ds_read_b128 v[{f}:{f + 3}], {vRL} offset:{32768 + 1024 * n}'],
                  [f'v_mfma_f32_32x32x16_bf16 {acc}, v[{f}:{f + 3}], v[{BCOR}:{BCOR + 3}], {acc}'],
                  name=f'fin{n}', pre=barrier(5, rl_post(5)) if n == 0 else None, pre_requires=prereq(5) if n == 0 else [],
                  requires=['bcor'], budget=OPT['bQ']))
for q in range(9):
    u, sg = q // 2, q % 2
    g = 5 + u
    for k, (jj, t4) in enumerate([(jj, t4) for jj in range(4) for t4 in range(4)]):
        f = newfrag()
        x = XN + 16 * q + 4 * jj
        acc = f'a[{QA + 16 * t4}:{QA + 16 * t4 + 15}]'
        first = (k == 0 and sg == 0 and u > 0)
        ops.append(Op([f'ds_read_b128 v[{f}:{f + 3}], {vRL} offset:{(sg * 16 + jj * 4 + t4) * 1024}'],
                      [f'v_mfma_f32_32x32x16_bf16 {acc}, v[{f}:{f + 3}], v[{x}:{x + 3}], {"0" if (q == 0 and jj == 0) else acc}'],
                      pre=barrier(g, rl_post(g)) if first else None,
                      pre_requires=prereq(g) if first else [], budget=OPT['bQ']))
for t4 in (1, 2, 3, 0):
    f = newfrag()
    acc = f'a[{QA + 16 * t4}:{QA + 16 * t4 + 15}]'
    ops.append(Op([f'ds_read_b128 v[{f}:{f + 3}], {vRL} offset:{16384 + 1024 * t4}'],
                  [f'v_mfma_f32_32x32x16_bf16 {acc}, v[{f}:{f + 3}], v[{BCOR}:{BCOR + 3}], {acc}'], name=f'qfin{t4}', budget=OPT['bQ']))
for t in range(4):
    f = newfrag()
    lam = 5 + t
    ops.append(Op([f'ds_read_b128 v[{f}:{f + 3}], {vRL} offset:{32768 + 1024 * t}'],
                  [f'v_mfma_f32_32x32x16_bf16 a[{16 * lam}:{16 * lam + 15}], v[{f}:{f + 3}], v[{BCOR}:{BCOR + 3}], 0'],
                  pre=barrier(10, rl_post(10)) if t == 0 else None, pre_requires=prereq(10) if t == 0 else [],
                  name=f'bcor{t}', budget=OPT['bQ']))
for q in range(9):
    u, sg = q // 2, q % 2
    g = 10 + u
    order = [(jj, n) for jj in range(4) for n in range(4)] if q < 8 else [(jj, n) for n in range(4) for jj in range(4)]
    for k, (jj, t) in enumerate(order):
        f = newfrag()
        lam = 5 + t
        off = sg * 16384 + 8 * jj * 256
        x = XN + 16 * q + 4 * jj
        first = (k == 0 and sg == 0 and u > 0)
        post = []
        if u > 0:
            d = SLOTB[g] - SLOTB[g - 1]
            post = [(f'v_add_u32 v{VTB + i}, {d}, v{VTB + i}' if d > 0 else f'v_subrev_u32 v{VTB + i}, {-d}, v{VTB + i}') for i in range(4)]
        ops.append(Op([f'ds_read_b64_tr_b16 v[{f}:{f + 1}], v{VTB + t} offset:{off}',
                       f'ds_read_b64_tr_b16 v[{f + 2}:{f + 3}], v{VTB + t} offset:{off + 4 * 256}'],
                      [f'v_mfma_f32_32x32x16_bf16 a[{16 * lam}:{16 * lam + 15}], v[{f}:{f + 3}], v[{x}:{x + 3}], a[{16 * lam}:{16 * lam + 15}]'],
                      name=f'fin{lam}' if (q == 8 and jj == 3) else (f'bs{q}' if k == 15 else None), pre=barrier(g, post) if first else None,
                      pre_requires=prereq(g) if first else [], budget=OPT['bB']))


def HP(lam):
    return 8 * lam if lam < 5 else 80 + 8 * (lam - 5)


ACT = {}
for ks in range(18):
    ACT[(0, ks)] = ('a', HP(ks // 2) + 4 * (ks & 1))
pool = [('a', 144 + 4 * i) for i in range(12)] + [('a', 40), ('a', 44)] + [('v', 16 + 4 * i) for i in range(36)] + \
       [('a', 128 + 4 * i) for i in range(4)] + [('a', 192 + 4 * i) for i in range(8)] + [('v', BIASR)]
order = [(k, ks) for k in (1, 2, 3) for ks in range(10)] + [(k, ks) for k in (1, 2, 3) for ks in range(10, 18)] + \
        [(k, ks) for k in range(4) for ks in (18, 19)] + ['rem']
assert len(pool) == len(order)
for key, r in zip(order, pool):
    ACT[key] = r
ACT['remS'] = ('v', BIASR + 4)


def act_regs(key):
    k, r = ACT[key]
    return f'{k}[{r}:{r + 3}]'


def kname(key):
    return key if isinstance(key, str) else f'{key[0]}_{key[1]}'


ACC2 = [48, 64, 224, 240, 112]


def acc2(n):
    return f'a[{ACC2[n]}:{ACC2[n] + 15}]'


def act_req(key):
    if key != 'rem' and key != 'remS' and key[0] == 0 and key[1] < 18:
        return [f'h{key[1] // 2}']
    return [f'act{kname(key)}']


def p2op(g, pos, n, key, zero=False, first=False, name=None, req=()):
    f = newfrag()
    ops.append(Op([f'ds_read_b128 v[{f}:{f + 3}], {vRL} offset:{pos * 1024}'],
                  [f'v_mfma_f32_32x32x16_bf16 {acc2(n)}, v[{f}:{f + 3}], {act_regs(key)}, {"0" if zero else acc2(n)}'],
                  name=name, pre=barrier(g, rl_post(g)) if first else None, pre_requires=prereq(g) if first else [],
                  requires=act_req(key) + list(req), budget=OPT['bP']))


for p, (kind, k) in enumerate(RUNS):
    g = 15 + p
    nk = 10 if kind == 'A' else 8
    for kk in range(nk):
        key = (k, kk + (10 if kind == 'B' else 0))
        z = (p == 0 and kk == 0)
        for n in range(3):
            p2op(g, kk * 3 + n, n, key, zero=z, first=(kk == 0 and n == 0), req=['h4'] if z else [])
        if k % 2 == 0:
            p2op(g, 3 * nk + kk, 3, key, zero=z)
for i, (k, ks) in enumerate(((0, 18), (0, 19), (2, 18), (2, 19))):
    p2op(23, 24 + 2 * k + (ks - 18), 3, (k, ks), first=(i == 0))
p2op(23, 35, 3, 'remS', name='pend3')
for n in range(3):
    for k in range(4):
        for ks in (18, 19):
            p2op(23, 6 * k + 3 * (ks - 18) + n, n, (k, ks))
    p2op(23, 32 + n, n, 'rem', name=f'pend{n}')
p2op(23, 36, 4, 'rem', zero=True, name='c0')
for u, pair in enumerate(((2, 3), (1, 0))):
    for k in pair:
        for ks in (list(range(10, 20)) + list(range(10))):
            nm = 'rxfree' if (k == 1 and ks == OPT['rxks']) else None
            p2op(24 + u, (k & 1) * 20 + ks, 4, (k, ks), first=(k == pair[0] and ks == 10), name=nm)

npoll = [0]


def poll_check(load_txt, cmp_lines, tag):
    k = npoll[0]
    npoll[0] += 1
    E.wait_tags([tag])
    E(f'L_PC{k}:')
    E(cmp_lines)
    E(f's_cmp_lg_u64 {SPOLL}, 0')
    E(f's_cbranch_scc1 L_PS{k}')
    E(f'L_PR{k}:')
    slow_paths.append((k, load_txt))


def flags_cmp(v):
    return f'v_cmp_ne_u64 {SPOLL}, s[{NONCE}:{NONCE + 1}], v[{v}:{v + 1}]'


def poll_item(setup, va, vd, tag, gap):
    fl_ = ' nt' if (OPT.get('gplain') and tag in ('pfa', 'pfb', 'pfo')) else ' sc1'
    ld = f'buffer_load_dwordx2 v[{vd}:{vd + 1}], {va}, {srd(SRD_WS)}, 0 offen{fl_}'
    return ([setup] if setup else []) + [Inst(ld, tag=tag), ('gap', gap), ('call', lambda: poll_check(ld, flags_cmp(vd), tag))]


def get_nonce():
    poll_check(NONL, f'v_cmp_eq_u32 {SPOLL}, 0, v{vNON}', 'nonce')
    E(f'v_readfirstlane_b32 s{NONCE}, v{vNON}\nv_readfirstlane_b32 s{NONCE + 1}, v{vNON + 1}')


def wave_flag(soff, need, off=0):
    fl_ = GS if (need and need[0] in ('gsta', 'gstb', 'ost')) else ' sc1'
    return Inst(f'buffer_store_dwordx2 v[{vNON}:{vNON + 1}], {vF0}, {srd(SRD_WS)}, {soff} offen offset:{off}{fl_}', need=need)


st_tr = Stream('tr', own_vcc=True)
for q in range(1, 9):
    st_tr.add([('after', f'a{q - 1}')] + ([('after', f'xl{q}')] if q > (3 if OPT['x23'] else 1) else []) + transpose_seg(q))
st_tr.add([('mark', 'trdone')])

RPT = TMP + 16
st_rp = Stream('rp')
st_rp.add([Inst(NONL, tag='nonce'), ('after', 'Bx')])
CSA_ = 'a[144:159]'
for f in range(11):
    if f < 9:
        t = RPT + 4 * (f % 4)
        st_rp.add([f'ds_read_b64_tr_b16 v[{t}:{t + 1}], {vA1} offset:{f * 4096}', f'ds_read_b64_tr_b16 v[{t + 2}:{t + 3}], {vA1} offset:{f * 4096 + 1024}'])
    else:
        st_rp.add([('gap', 2)])
    if f >= 2:
        f2 = f - 2
        t2 = RPT + 4 * (f2 % 4)
        st_rp.add([Inst(f'buffer_store_dwordx4 v[{t2}:{t2 + 3}], {vLANE16}, {srd(SRD_WS)}, {sUD} offen sc1', tag='eust'),
                   f'v_mfma_f32_32x32x16_bf16 {CSA_}, a[{ONESR}:{ONESR + 3}], v[{t2}:{t2 + 3}], {"0" if f2 == 0 else CSA_}',
                   f's_add_u32 {sUD}, {sUD}, 16384'])
t0, t1, t2 = f'v{RPT}', f'v{RPT + 1}', f'v{RPT + 2}'
st_rp.add([('call', get_nonce), ('mark', 'nonce_ok'), ('gap', 1), f'''v_accvgpr_read_b32 {t0}, a144
v_cvt_pk_bf16_f32 {t1}, {t0}, {t0}
v_lshlrev_b32 {t1}, 16, {t1}
v_sub_f32 {t2}, {t0}, {t1}
v_cvt_pk_bf16_f32 {t0}, {t1}, {t2}
v_cmp_gt_u32 {SPOLL}, 32, v1
v_cndmask_b32 {t0}, {vZ}, {t0}, {SPOLL}''',
           Inst(f'buffer_store_dword {t0}, {vLANE16}, {srd(SRD_WS)}, {sUC} offen sc1', tag='eust'), ('mark', 'eudone')])
st_rp.items[-3].glue = True
st_rp.add([('after', 'B2'), f's_lshl_b32 {tR0}, s2, 3\ns_add_u32 {tR0}, {tR0}, {L.WS_FLAG_E}\ns_cmp_eq_u32 {sW}, 0\ns_cselect_b32 {tR0}, {tR0}, {OOB}',
           wave_flag(tR0, []),
           f's_lshl_b32 {tR0}, {sU1}, 3\ns_add_u32 {tR0}, {tR0}, {L.WS_FLAG_U}\ns_cmp_eq_u32 {sW}, 1\ns_cselect_b32 {tR0}, {tR0}, {OOB}',
           wave_flag(tR0, []), ('mark', 'eupub')])
sU2 = 's71'
st_rp.add([U2C.format(d=sU2, t=tR0) if OPT['umap'] else f's_sub_u32 {sU2}, s2, 92'])
vA2 = 'v2'
st_rp.add([('call', lambda: E(f"""s_mul_i32 {tR1}, {sU2}, 1821
s_lshr_b32 {tR1}, {tR1}, 16
s_mul_i32 {tR0}, {sU2}, 7282
s_lshr_b32 {tR0}, {tR0}, 16
s_mul_i32 {tR2}, {tR0}, 9
s_sub_u32 {tR2}, {sU2}, {tR2}
s_add_u32 {tR3}, {tR2}, 5
s_cmp_ge_u32 {tR3}, 9
s_cselect_b32 {tM0}, 9, 0
s_sub_u32 {tR3}, {tR3}, {tM0}
s_and_b32 {tM0}, {tR0}, 1
s_cmp_eq_u32 {tM0}, 0
s_cselect_b32 {tR2}, {tR3}, {tR2}
s_and_b32 {tR0}, {tR0}, 3
s_mul_i32 {sUS}, {tR0}, 20
s_lshl_b32 {tM0}, {tR2}, 1
s_add_u32 {sUS}, {sUS}, {tM0}
s_mul_i32 {tR0}, {tR0}, 9
s_add_u32 {tR2}, {tR2}, {tR0}
s_lshl_b32 {tR3}, {sU2}, 5
s_lshl_b32 {tR0}, {sW}, 3
s_add_u32 {tR3}, {tR3}, {tR0}
s_mov_b32 {tM0}, 4
s_mov_b32 {tR4}, 8
s_cmp_lt_u32 {sU2}, 144
s_cbranch_scc1 L_RP_W2C
s_sub_u32 {tR0}, {sU2}, 144
s_lshr_b32 {tR1}, {tR0}, 2
s_and_b32 {tR2}, {tR0}, 3
s_mul_i32 {sUS}, {tR2}, 20
s_add_u32 {sUS}, {sUS}, 18
s_add_u32 {tR2}, {tR2}, 36
s_mul_i32 {tR3}, {tR0}, 36
s_lshl_b32 {tR0}, {sW}, 3
s_add_u32 {tR3}, {tR3}, {tR0}
s_lshr_b32 {tR0}, {sW}, 1
s_lshl_b32 {tR0}, {tR0}, 2
s_add_u32 {tR3}, {tR3}, {tR0}
s_mov_b32 {tM0}, 8
s_mov_b32 {tR4}, 4
s_cmp_lt_u32 {sU2}, 160
s_cbranch_scc1 L_RP_W2C
s_sub_u32 {tR1}, {sU2}, 160
s_mov_b32 {tR2}, 40
s_mov_b32 {sUS}, 80
s_lshl_b32 {tR3}, {tR1}, 2
s_add_u32 {tR3}, {tR3}, {sW}
s_mul_i32 {tR3}, {tR3}, 36
s_add_u32 {tR3}, {tR3}, 16
s_mov_b32 {tM0}, 16
s_mov_b32 {tR4}, 8
L_RP_W2C:""")),
           f"""s_mul_i32 {tR3}, {tR3}, 1152
s_cmp_lt_u32 {sU2}, 164
s_cselect_b32 {tR3}, {tR3}, {OOB}
s_mul_i32 {sRPF}, {tR1}, 41
s_add_u32 {sRPF}, {sRPF}, {tR2}""", ('mark', 'rp2setup'),
           f"""v_lshrrev_b32 {t1}, 5, v1
v_mul_lo_u32 {t1}, {t1}, {tM0}
v_bfe_u32 {t2}, v1, 2, 2
v_add_u32 {t0}, {t1}, {t2}
v_mul_u32_u24 {t0}, 1152, {t0}
v_bfe_u32 {t1}, v1, 4, 1
v_lshl_add_u32 {t0}, {t1}, 5, {t0}
v_and_b32 {t1}, 3, v1
v_lshl_add_u32 {t0}, {t1}, 3, {t0}
s_lshr_b32 {tR0}, {sW}, 1
s_mul_i32 {tR0}, {tR0}, 576
s_add_u32 {tR0}, {tR0}, {AUX}
v_add_u32 {vA1}, {tR0}, {t0}
s_mul_i32 {tR4}, {tR4}, 1152
v_add_u32 {vA2}, {tR4}, {vA1}""", ('after', 'rp2dma'),
           f"""s_lshl_b32 {tR2}, {tR1}, 2
s_add_u32 {tR0}, {tR2}, {sW}
s_mul_i32 {tR0}, {tR0}, {L.SLABW_SZ}
s_add_u32 {tR0}, {tR0}, {L.WS_SLABW}
s_cmp_lt_u32 {sU2}, 164
s_cselect_b32 {tR0}, {tR0}, {OOB}
s_mul_i32 {sUD}, {sUS}, 3072
s_add_u32 {sUD}, {sUD}, {tR0}
s_lshl_b32 {tR3}, {sUS}, 10
s_add_u32 {tR3}, {tR3}, {tR0}
s_add_u32 {tR3}, {tR3}, {L.SLABW_O}
s_add_u32 {sUC}, {sUD}, 3072
s_add_u32 {tR4}, {tR3}, 1024
s_cmp_lt_u32 {sUS}, 80
s_cselect_b32 {sUC}, {sUC}, {OOB}
s_cselect_b32 {tR4}, {tR4}, {OOB}
s_mul_i32 {tM0}, {sUS}, 3277
s_lshr_b32 {tM0}, {tM0}, 16
s_mul_i32 {sUST}, {tM0}, 20
s_sub_u32 {sUST}, {sUS}, {sUST}
s_lshr_b32 {tR0}, {tM0}, 1
s_mul_i32 {tR0}, {tR0}, 20
s_add_u32 {sUST}, {sUST}, {tR0}
s_and_b32 {tR0}, {sW}, 1
s_and_b32 {tM0}, {tM0}, 1
s_cmp_lt_u32 {sUS}, 80
s_cselect_b32 {tM0}, {tM0}, {tR0}
s_cselect_b32 {sUS}, {tR0}, 0
s_add_u32 {sUST}, {sUST}, {sUS}
s_lshl_b32 {sUST}, {sUST}, 10
s_andn2_b32 {tR0}, {sW}, 1
s_add_u32 {tR0}, {tR0}, {tM0}
s_add_u32 {tR0}, {tR0}, {tR2}
s_mul_i32 {tR0}, {tR0}, {L.SLABW_SZ}
s_add_u32 {sUST}, {sUST}, {tR0}
s_add_u32 {sUST}, {sUST}, {L.WS_SLABW + L.SLABW_S}
s_cmp_lt_u32 {sU2}, 164
s_cselect_b32 {sUST}, {sUST}, {OOB}
s_mul_i32 {sUS}, {sUS}, {16 * 1152}
s_add_u32 {sUS}, {sUS}, 256
s_and_b32 {tR2}, {sW}, 1
s_mul_i32 {tR2}, {tR2}, 320""", ('after', f'B{RA + 1}')])
vB1_, vB2_ = f'v{TMP + 32}', f'v{TMP + 33}'
frs = []
for lam in range(4):
    pre = [f's_add_u32 {tR0}, {tR1}, {lam + 1}', f's_and_b32 {tR0}, {tR0}, 3', f's_lshl_b32 {tR0}, {tR0}, 6', f's_add_u32 {tR0}, {tR0}, {tR2}',
           f'v_add_u32 {vB1_}, {tR0}, {vA1}', f'v_add_u32 {vB2_}, {tR0}, {vA2}']
    for k2 in range(2):
        dst = ((sUD, sUC)[k2], lam * 1024) if lam < 3 else ((tR3, tR4)[k2], 0)
        frs.append((pre if k2 == 0 else [], k2 * 16 * 1152, dst))
frs.append(([f'v_add_u32 {vB1_}, {sUS}, {vA1}', f'v_add_u32 {vB2_}, {sUS}, {vA2}'], 0, (sUST, 0)))
for f in range(11):
    if f < 9:
        t = RPT + 4 * (f % 4)
        pre, off, _ = frs[f]
        st_rp.add(pre + [f'ds_read_b64_tr_b16 v[{t}:{t + 1}], {vB1_} offset:{off}', f'ds_read_b64_tr_b16 v[{t + 2}:{t + 3}], {vB2_} offset:{off}'])
    else:
        st_rp.add([('gap', 2)])
    if f >= 2:
        f2 = f - 2
        t2_ = RPT + 4 * (f2 % 4)
        sb, im = frs[f2][2]
        st_rp.add([Inst(f'buffer_store_dwordx4 v[{t2_}:{t2_ + 3}], {vLANE16}, {srd(SRD_WS)}, {sb} offen offset:{im} sc1', tag='rp2st')] + ([('gap', OPT['rgap'])] if OPT['rgap'] else []))
st_rp.add([('mark', 'rp2done'), ('after', f'B{RA + 4}'),
           f's_lshl_b32 {tR0}, {sRPF}, 3\ns_add_u32 {tR0}, {tR0}, {L.WS_FLAG_RP}\ns_cmp_lt_u32 {sU2}, 164\ns_cselect_b32 {tR0}, {tR0}, {OOB}\n'
           f's_cmp_eq_u32 {sW}, 0\ns_cselect_b32 {tR0}, {tR0}, {OOB}', wave_flag(tR0, []), ('mark', 'rp2pub')])

STAGE_FN = {}
for u in range(5):
    STAGE_FN[u] = (dma_a, u)
    STAGE_FN[5 + u] = (dma_q, u)
    STAGE_FN[10 + u] = (dma_b, u)
for p in range(8):
    STAGE_FN[15 + p] = (dma_p, p)
STAGE_FN[23] = (dma_o, 0)
for u in range(2):
    STAGE_FN[24 + u] = (dma_c, u)
TOUCH_AT = {2: [4] if OPT['tfirst'] else [3, 4], 3: [10], 4: [11], 5: [6, 7], 6: [8], 7: [12], 8: [13], 9: [14], 12: [15, 16], 13: [17], 14: [18],
            15: [19], 16: [20], 17: [21], 18: [22], 19: [24], 20: [25]}


STAG_AT = {4: [10], 5: [6, 7, 11], 6: [8, 9], 7: [12], 8: [13], 9: [14], 14: [15, 16, 17, 18], 15: [19], 16: [20], 17: [21], 18: [22],
           19: [24], 20: [25]}


def stag_touch(t):
    fn, arg = STAGE_FN[t]
    o = touch(fn, arg)[:-1]
    o += [f's_cmp_eq_u32 {sP8}, {t % 8}', f's_cselect_b32 {tD0}, {tD0}, {OOB}']
    if fn is dma_b:
        o.append(nodep(f'buffer_load_dword v{vTD}, {vTW}, {srd(SRD_W1)}, {tD0} offen'))
    else:
        npc = {dma_q: 8 if arg < 4 else 4, dma_c: 10}.get(fn) or ((10, 8) if RUNS[arg][0] == 'A' else (8, 6))[RUNS[arg][1] % 2]
        if npc < 8:
            o.append(f'v_min_u32 v11, {(8 * npc - 1) * 128}, {vTCH}')
        o.append(nodep(f'buffer_load_dword v{vTD}, {vTCH if npc >= 8 else "v11"}, {srd(SRD_WS)}, {tD0} offen sc1'))
        if npc > 8:
            o += [f's_add_u32 {tD0}, {tD0}, 8192', nodep(f'buffer_load_dword v{vTD}, {vTL}, {srd(SRD_WS)}, {tD0} offen sc1')]
    return o


def paced(items):
    if not OPT['dmagap']:
        return items
    o = []
    for x in items:
        o.append(x)
        if isinstance(x, Inst):
            o.append(('gap', OPT['dmagap']))
    return o


st_dma = Stream('dma')
st_dma.add(([] if OPT['x23'] else xload(2)) + paced(dma_a(1)) + [('mark', 'dma1')] + ([] if OPT['x23'] else xload(3)) + paced(xload(4)))
for g in range(2, NSTG):
    fn, arg = STAGE_FN[g]
    if g == 5:
        st_dma.add([('after', 'e_ok')])
        if OPT['btouch'] == 1:
            def bt1():
                E(f's_and_b32 {tD0}, {sR}, 7\ns_lshl_b32 {tD0}, {tD0}, 2\ns_add_u32 {tD0}, {tD0}, {sW}\ns_mul_i32 {tD1}, {tD0}, {36 * 128}\n'
                  f's_add_u32 {tD1}, {tD1}, {sQ0}\ns_sub_u32 {tD1}, {tD1}, {sL8}\nv_min_u32 v11, {35 * 128}, {vTCH}')
                E.emit(nodep(f'buffer_load_dword v{vTD}, v11, {srd(SRD_WS)}, {tD1} offen sc1'))
                E(f's_mul_i32 {tD1}, {tD0}, {18 * 9216}\ns_add_u32 {tD1}, {tD1}, {sB0}\ns_mul_i32 {tD0}, {sW}, {32 * 9216}\ns_sub_u32 {tD1}, {tD1}, {tD0}\n'
                  f'v_min_u32 v11, 35, v1\nv_lshrrev_b32 {vTW}, 1, v11\nv_mul_u32_u24 {vTW}, 9216, {vTW}\nv_and_b32 v11, 1, v11\nv_lshl_add_u32 v11, v11, 7, {vTW}')
                E.emit(nodep(f'buffer_load_dword v{vTD}, v11, {srd(SRD_W1)}, {tD1} offen'))
            st_dma.add([('call', bt1)])
    if g == AUXAT:
        st_dma.add([('after', 'Bodone')])
    st_dma.add([('after', f'B{max(DMA_AFTER[g], 0) if g > 2 else 0}')] + paced(fn(arg)) + [('mark', f'dma{g}')])
    if g == 2:
        st_dma.add(paced(xload(5) + xload(6)))
    if g == 3:
        st_dma.add(paced(xload(7) + xload(8)))
    if g == 3 and OPT['btouch'] == 2:
        st_dma.add([f's_and_b32 {sP8}, {sR}, 7\nv_lshrrev_b32 {vTW}, 1, v1\nv_mul_u32_u24 {vTW}, 9216, {vTW}\nv_and_b32 v11, 1, v1\n'
                    f'v_lshl_add_u32 {vTW}, v11, 7, {vTW}\nv_min_u32 {vTL}, {15 * 128}, {vTCH}'])
    if g == OPT['rp2at']:
        o = [('after', 'rp2setup')]
        for i in range(9):
            if i % 4 == 0:
                o += [f's_add_u32 m0, {sL9}, {AUX + i * 1024}'] + ([f's_add_u32 {tR3}, {tR3}, 4096'] if i else [])
            o.append(Inst(f'buffer_load_dwordx4 {vLANE16}, {srd(SRD_RP)}, {tR3} offen offset:{(i % 4) * 1024} lds', tag='rp2'))
        st_dma.add(paced(o) + [('mark', 'rp2dma')])
    if g == 14:
        st_dma.add([('after', 'w_ok')])
    if OPT['btouch'] == 2:
        for t in STAG_AT.get(g, []):
            st_dma.add(stag_touch(t))
    if OPT['stouch'] and not (OPT['btouch'] and g > 2):
        for t in TOUCH_AT.get(g, []):
            st_dma.add(touch(*STAGE_FN[t]))


st_pol = Stream('pol')
st_pol.add([('after', 'nonce_ok'), ('after', 'eupub'), ('after', OPT_E)])
st_pol.add(poll_item(None, vPA, vPF, 'pfe', OPT['pchk']) + [('mark', 'e_ok')])
st_pol.add([f'v_and_b32 {vPA}, 31, v1\nv_lshlrev_b32 {vPA}, 2, {vPA}',
            f'buffer_load_dword v{vPF}, {vPA}, {srd(SRD_WS)}, {sSTB} offen sc1', ('gap', 22),
            f"""v_xor_b32 v{vPF + 1}, 0x8000, v{vPF}
v_and_b32 v{vPF + 1}, 0xffff, v{vPF + 1}
v_lshl_or_b32 v{vPF + 1}, v{vPF + 1}, 16, v{vPF + 1}
v_lshrrev_b32 {vPA}, 16, v{vPF}
v_and_b32 v{vPF}, {vMASKHI}, v{vPF}
v_rcp_f32 {vRSTD}, v{vPF}
s_mov_b32 {tC0}, -1
s_mov_b32 {tC1}, 0
v_cndmask_b32 v{BCOR}, {vPA}, v{vPF + 1}, s[92:93]
v_cndmask_b32 v{BCOR + 1}, 0, v{vPF + 1}, s[92:93]
v_cndmask_b32 v{BCOR + 2}, 0, v{vPF + 1}, s[92:93]
v_cndmask_b32 v{BCOR + 3}, 0, v{vPF + 1}, s[92:93]""", ('mark', 'bcor')])
st_pol.add([('after', 'rp2pub'), ('after', 'pubA'), ('after', 'trdone'), ('after', f'B{OPT["pfwat"]}')])
st_pol.add(poll_item(f'v_lshrrev_b32 {vPA}, 1, {vLANE16}\nv_min_u32 {vPA}, {40 * 8}, {vPA}\ns_mul_i32 {tC0}, {sS}, {41 * 8}\n'
                     f's_add_u32 {tC0}, {tC0}, {L.WS_FLAG_RP}\nv_add_u32 {vPA}, {tC0}, {vPA}\n'
                     f'v_and_b32 v{vPF}, 3, v1\nv_lshlrev_b32 v{vPF}, 3, v{vPF}\nv_add_u32 v{vPF}, {sGF}, v{vPF}\n'
                     f'v_cmp_gt_u32 vcc, 48, v1\nv_cndmask_b32 {vPA}, v{vPF}, {vPA}, vcc', vPA, vPF, 'pfw', OPT['pchk']) + [('mark', 'w_ok'), ('mark', 'pf_free')])


def ffn_epi(n, tag):
    o = [('after', f'fin{n}' if n < 5 else 'fin8'), ('gap', 1)]
    t = TMP if n < 5 else 136
    X = t + 8
    for half in range(2):
        for e in range(8):
            o.append(f'v_accvgpr_read_b32 v{t + e}, a{16 * n + 8 * half + e}')
        for e in range(8):
            o.append(f'v_mul_f32 v{t + e}, v{t + e}, |v{t + e}|')
        for p in range(4):
            o.append(f'v_cvt_pk_bf16_f32 v{X + 4 * half + p}, v{t + 2 * p}, v{t + 2 * p + 1}')
        for p in range(4):
            o.append(f'v_pk_max_i16 v{X + 4 * half + p}, v{X + 4 * half + p}, 0')
    if not OPT['hbatch']:
        o.append(f's_add_u32 {tE0}, {sGB}, {2048 * n}')
        o.append(Inst(f'buffer_store_dwordx4 v[{X}:{X + 3}], {vLANE16}, {srd(SRD_WS)}, {tE0} offen{GS}', tag=tag))
        o.append(Inst(f'buffer_store_dwordx4 v[{X + 4}:{X + 7}], {vLANE16}, {srd(SRD_WS)}, {tE0} offen offset:1024{GS}', tag=tag))
    for d in range(8):
        o.append(f'v_accvgpr_write_b32 a{HP(n) + d}, v{X + d}')
    o.append(('mark', f'h{n}'))
    if OPT['hbatch'] and (n == 8 or (n == 4 and not OPT['sgap'])):
        if OPT['quiet']:
            o += [('idle', st_dma), ('quiet', OPT['quiet'])]
        for i, ks in enumerate(range(0, 10) if n == 4 else range(10, 18)):
            if i % 4 == 0:
                o.append(f's_add_u32 {tE0}, {sGB}, {1024 * ks}')
            r = HP(ks // 2) + 4 * (ks & 1)
            o.append(Inst(f'buffer_store_dwordx4 a[{r}:{r + 3}], {vLANE16}, {srd(SRD_WS)}, {tE0} offen offset:{(i % 4) * 1024}{GS}', tag=tag))
    return o


def g_publish(ev, tag, first_kb, nlines, tmps):
    o = [('gap', OPT['pubgap'])] + ([('idle', st_dma), ('quiet', OPT['quiet'])] if (OPT['quiet'] and OPT['gtouch']) else []) + [f's_lshl_b32 {tmps}, {sC}, 3\ns_add_u32 {tmps}, {tmps}, {sGF}', wave_flag(tmps, [tag], 32 * ev)]
    if OPT['gtouch']:
        for k in range(0, nlines, 64):
            n = min(64, nlines - k)
            o.append(f's_add_u32 {tmps}, {sGB}, {first_kb * 2048 + k * 128}')
            if n < 64:
                o.append(f'v_min_u32 {vXO}, {(n - 1) * 128}, {vTCH}')
            o.append(nodep(f'buffer_load_dword v{vTD}, {vTCH if n == 64 else vXO}, {srd(SRD_WS)}, {tmps} offen sc1'))
    return o


st_epi = Stream('epi')
st_epi.add([('after', 'trdone')])
for n in range(5):
    st_epi.add(ffn_epi(n, 'gsta'))
st_hs = Stream('hs')
if OPT['sgap']:
    st_epi.add([('mark', 'epiA')])
    tH = 's70'
    for ks in range(10):
        r = HP(ks // 2) + 4 * (ks & 1)
        st_hs.add([('after', f'h{ks // 2}')] + ([f's_add_u32 {tH}, {sGB}, {1024 * ks}'] if ks % 4 == 0 else []) +
                  [Inst(f'buffer_store_dwordx4 a[{r}:{r + 3}], {vLANE16}, {srd(SRD_WS)}, {tH} offen offset:{(ks % 4) * 1024}{GS}', tag='gsta'),
                   ('gap', OPT['sgap'])])
    st_hs.add(g_publish(0, 'gsta', 0, 80, tH) + [('mark', 'pubA')])
else:
    st_epi.add([('mark', 'epiA')] + g_publish(0, 'gsta', 0, 80, tE0) + [('mark', 'pubA')])
for n in range(5, 9):
    st_epi.add(ffn_epi(n, 'gstb'))
st_epi.add([('mark', 'epiB')] + g_publish(1, 'gstb', 5, 64, tE0) + [('mark', 'pubB')])

vKW, vHX = 'v2', 'v3'
st_att = Stream('att')
T2 = TMP + 16
st_att.add([('after', 'rp2done'), ('after', 'trdone'), ('after', f'B{max(8, RA + 3)}'),
            f"""v_and_b32 v{T2}, 31, v1
s_lshl_b32 {tA0}, {sW}, 5
v_add_u32 v{T2 + 1}, {tA0}, v{T2}
v_mul_u32_u24 v{T2 + 1}, {PITCH}, v{T2 + 1}
v_lshrrev_b32 v{T2 + 2}, 5, v1
v_lshl_add_u32 v{T2 + 1}, v{T2 + 2}, 4, v{T2 + 1}
v_add_u32 {vKW}, {QB1}, v{T2 + 1}
v_subrev_u32 {vHX}, {112 * PITCH}, v{T2 + 1}
s_lshl_b32 {tA0}, {sR}, 4
s_add_u32 {tA0}, {tA0}, {sJ}
s_add_u32 {tA0}, {tA0}, 16
s_lshl_b32 {tA1}, {tA0}, 12
s_add_u32 {tA1}, {tA1}, {L.WS_HALO}
s_cmp_eq_u32 {sR}, 15
s_cselect_b32 {tA1}, {OOB}, {tA1}
v_mov_b32 v{T2 + 2}, {OOB}
v_cmp_gt_u32 vcc, {112 * PITCH}, v{T2 + 1}
v_cndmask_b32 {vHX}, {vHX}, v{T2 + 2}, vcc"""])
hcount = 0
for t4 in (1, 2, 3, 0):
    o = [('after', f'qfin{t4}'), ('gap', 2)]
    for hh in range(2 if t4 < 3 else 1):
        X = T2 + 8 + 4 * (hcount % 2)
        hcount += 1
        for e in range(8):
            o.append(f'v_accvgpr_read_b32 v{T2 + e}, a{QA + 16 * t4 + 8 * hh + e}')
        for e in range(8):
            o.append(f'v_mul_f32 v{T2 + e}, v{T2 + e}, {vRSTD}')
        for pp in range(4):
            o.append(f'v_cvt_pk_bf16_f32 v{X + pp}, v{T2 + 2 * pp}, v{T2 + 2 * pp + 1}')
        if t4:
            o.append(Inst(f'buffer_store_dwordx4 v[{X}:{X + 3}], {vHX}, {srd(SRD_WS)}, {tA1} offen offset:{64 * t4 + 32 * hh} sc1', tag='hxst'))
        o.append(Inst(f'ds_write_b128 {vKW}, v[{X}:{X + 3}] offset:{64 * t4 + 32 * hh}', tag='kvw'))
    if t4 == 3:
        o.append(('mark', 'hx'))
    st_att.add(o)


def kv_barrier():
    E.wait_tags(['kvw'])
    E('s_barrier')
    S.marks.add('Bkv')


st_att.add([('mark', 'kvw'), ('gap', 3), ('call', kv_barrier)])
st_hal = Stream('hal')
st_hal.add([('after', 'hx'), ('gap', OPT['hxgap']), f's_lshl_b32 {tA1}, {tA0}, 7\ns_add_u32 {tA1}, {tA1}, {L.WS_FLAG_HALO}\ns_cmp_eq_u32 {sW}, 3\ns_cselect_b32 {tA1}, {tA1}, {OOB}',
            wave_flag(tA1, ['hxst'])])
SC = 0.2357022603955158 * 1.4426950408889634
A0, A0R, AP, APR, VT, VTP = (f'v{TMP + i}' for i in range(6))
vSD = [f'v{TMP + 34}', f'v{TMP + 35}']
st_at2 = Stream('at2')
st_at2.add([('after', 'kvw'), ('after', 'epiA'), f"""v_and_b32 v{TMP + 8}, 15, v1
v_lshlrev_b32 v{TMP + 9}, 2, v{TMP + 8}""",
            f'buffer_load_dword {vSD[0]}, v{TMP + 9}, {srd(SRD_WS)}, {sSTB} offen sc1',
            f'buffer_load_dword {vSD[1]}, v{TMP + 9}, {srd(SRD_WS)}, {sSTB} offen offset:64 sc1',
            f"""v_lshrrev_b32 v{TMP + 9}, 4, v1
s_mul_i32 {tA2}, {sW}, {32 * PITCH}
s_add_u32 {tA2}, {tA2}, {QB1}
s_sub_u32 {tA3}, {tA2}, {16 * PITCH}
s_cmp_eq_u32 {sW}, 0
s_cselect_b32 {tA3}, {QB}, {tA3}
v_mul_u32_u24 v{TMP + 10}, {PITCH}, v{TMP + 8}
v_add_u32 {A0R}, {tA2}, v{TMP + 10}
v_add_u32 {APR}, {tA3}, v{TMP + 10}
v_lshl_add_u32 {A0}, v{TMP + 9}, 3, {A0R}
v_lshl_add_u32 {AP}, v{TMP + 9}, 3, {APR}
v_lshrrev_b32 v{TMP + 10}, 2, v1
v_mul_u32_u24 v{TMP + 10}, {PITCH}, v{TMP + 10}
v_and_b32 v{TMP + 11}, 3, v1
v_lshl_add_u32 v{TMP + 10}, v{TMP + 11}, 3, v{TMP + 10}
v_add_u32 {VT}, {tA2}, v{TMP + 10}
v_add_u32 {VTP}, {tA3}, v{TMP + 10}
s_add_u32 {tA2}, {sGB}, {9 * 2048}
s_sub_u32 {tA3}, {sGF}, {L.WS_FLAG_G}
s_lshl_b32 {tA3}, {tA3}, 3
s_lshr_b32 {tM0}, {sC}, 1
s_lshl_b32 {tM0}, {tM0}, 9
s_add_u32 {tA3}, {tA3}, {tM0}
s_and_b32 {tM0}, {sC}, 1
s_lshl_b32 {tM0}, {tM0}, 3
s_add_u32 {tA3}, {tA3}, {tM0}
s_add_u32 {tA3}, {tA3}, {L.WS_GREM}
v_lshrrev_b32 v{TMP + 10}, 5, v1
v_lshlrev_b32 v{TMP + 10}, 9, v{TMP + 10}
v_lshl_add_u32 v{TMP + 10}, v{TMP + 8}, 4, v{TMP + 10}
v_and_b32 v{TMP + 9}, 1, v{TMP + 9}
v_lshl_add_u32 v2, v{TMP + 9}, 3, v{TMP + 10}""", ('after', 'Bkv'), ('after', 'bcor3')])
QV = TMP + 6
SV = TMP + 14
PB = [196, BCOR]
m0_, m1_, t1_, t2_ = f'v{TMP + 30}', f'v{TMP + 31}', 'v200', 'v205'


def att_block(b):
    o = []
    for hd in range(2):
        mo = 0 if hd == 0 else 40
        for wh in range(2):
            kb = b + wh
            kr = AK[hd] + 4 * wh
            a, ar, off = (AP, APR, 0) if kb == 0 else (A0, A0R, (kb - 1) * 16 * PITCH)
            o.append(f'ds_read_b64 a[{kr}:{kr + 1}], {a} offset:{off + 72 + mo}')
            o.append(f'ds_read_b64 a[{kr + 2}:{kr + 3}], {ar} offset:{off + 72 + 32}')
        Q = QV + 4 * hd
        o.append(f'ds_read_b64 v[{Q}:{Q + 1}], {A0} offset:{b * 16 * PITCH + mo}')
        o.append(f'ds_read_b32 v{Q + 2 + hd}, {A0R} offset:{b * 16 * PITCH + 32 + 4 * hd}')
        o.append(f'v_mov_b32 v{Q + 3 - hd}, 0')
    for tl, ch in enumerate((18, 23, 22)):
        vr = AK[2 + tl // 2] + 4 * (tl % 2)
        for wh in range(2):
            kb = b + wh
            a, off = (VTP, 0) if kb == 0 else (VT, (kb - 1) * 16 * PITCH)
            o.append(f'ds_read_b64_tr_b16 a[{vr + 2 * wh}:{vr + 2 * wh + 1}], {a} offset:{off + 8 * ch}')
    for hd in range(2):
        Q = QV + 4 * hd
        o.append(f'v_cndmask_b32 v{Q + 2 + hd}, 0, v{Q + 2 + hd}, {M16}')
    o.append(f'v_and_b32 {vSD[b]}, {vMASKHI}, {vSD[b]}')
    o.append(f'v_mul_f32 {vSD[b]}, {vSD[b]}, {vSD[b]}')
    for hd in range(2):
        Q = QV + 4 * hd
        for wh in range(2):
            kr = AK[hd] + 4 * wh
            sr = SV + 8 * hd + 4 * wh
            bias = BIASR + 4 * wh
            o.append(f'v_mfma_f32_16x16x32_bf16 v[{sr}:{sr + 3}], a[{kr}:{kr + 3}], v[{Q}:{Q + 3}], v[{bias}:{bias + 3}]')
    o.append(('gap', 1))
    for hd, m in enumerate((m0_, m1_)):
        s = [f'v{SV + 8 * hd + i}' for i in range(8)]
        t = (t1_, t2_)[hd]
        o += [f'v_max3_f32 {m}, {s[0]}, {s[1]}, {s[2]}', f'v_max3_f32 {t}, {s[3]}, {s[4]}, {s[5]}',
              f'v_max3_f32 {m}, {m}, {s[6]}, {s[7]}', f'v_max_f32 {m}, {m}, {t}']
    o += [f'v_mov_b32 {t2_}, {fl(SC)}', ('gap', 1),
          f'v_permlane16_swap_b32 {m0_}, {m1_}', f'v_max_f32 {m0_}, {m0_}, {m1_}', f'v_mov_b32 {m1_}, {m0_}', ('gap', 1),
          f'v_permlane32_swap_b32 {m0_}, {m1_}', f'v_max_f32 {m0_}, {m0_}, {m1_}', f'v_mul_f32 {m0_}, {fl(-SC)}, {m0_}',
          f'v_mov_b32 {m1_}, {m0_}', ('gap', 1), f'v_permlane16_swap_b32 {m0_}, {m1_}']
    for hd, m in enumerate((m0_, m1_)):
        s = [f'v{SV + 8 * hd + i}' for i in range(8)]
        for i in range(8):
            o.append(f'v_fma_f32 {s[i]}, {s[i]}, {t2_}, {m}')
        for i in range(8):
            o.append(f'v_exp_f32 {s[i]}, {s[i]}')
    for hd in range(2):
        s = [f'v{SV + 8 * hd + i}' for i in range(8)]
        for i in range(4):
            o.append(f'v_cvt_pk_bf16_f32 v{PB[hd] + i}, {s[2 * i]}, {s[2 * i + 1]}')
    for hd in range(2):
        P = f'v[{PB[hd]}:{PB[hd] + 3}]'
        vm = AK[2] + 4 * hd
        o.append(f'v_mfma_f32_16x16x32_bf16 v[{QV + 4 * hd}:{QV + 4 * hd + 3}], a[{ONESR}:{ONESR + 3}], {P}, 0')
        o.append(f'v_mfma_f32_16x16x32_bf16 v[{SV + 8 * hd}:{SV + 8 * hd + 3}], a[{vm}:{vm + 3}], {P}, 0')
        o.append(f'v_mfma_f32_16x16x32_bf16 v[{SV + 8 * hd + 4}:{SV + 8 * hd + 7}], a[{AK[3]}:{AK[3] + 3}], {P}, 0')
    o.append(('gap', 1))
    for hd, m in enumerate((m0_, m1_)):
        o.append(f'v_rcp_f32 {m}, v{QV + 4 * hd}')
    for hd, m in enumerate((m0_, m1_)):
        o.append(f'v_mul_f32 {m}, {m}, {vSD[b]}')
    for hd, m in enumerate((m0_, m1_)):
        r = SV + 8 * hd
        for i in (0, 1, 2, 3, 4 + 2 * hd, 5 + 2 * hd):
            o.append(f'v_mul_f32 v{r + i}, v{r + i}, {m}')
    for hd in range(2):
        r = SV + 8 * hd
        o.append(f'v_cvt_pk_bf16_f32 v{QV + 2 * hd}, v{r}, v{r + 1}')
        o.append(f'v_cvt_pk_bf16_f32 v{QV + 2 * hd + 1}, v{r + 2}, v{r + 3}')
        o.append(f'v_cvt_pk_bf16_f32 v{QV + 4 + hd}, v{r + 4 + 2 * hd}, v{r + 5 + 2 * hd}')
    for hd in range(2):
        o.append(Inst(f'buffer_store_dwordx2 v[{QV + 2 * hd}:{QV + 2 * hd + 1}], v2, {srd(SRD_WS)}, {tA2} offen offset:{1024 * hd + 256 * b}{GS}', tag='ost'))
    o.append(Inst(f'buffer_store_dwordx2 v[{QV + 4}:{QV + 5}], {vREM}, {srd(SRD_WS)}, {tA3} offen offset:{256 * b}{GS}', tag='ost'))
    return o


st_at2.add(att_block(1))
vH = TMP + 32
st_hal.add([('gap', OPT['higap']),
            f's_sub_u32 {tA0}, {tA0}, 16\ns_lshl_b32 {tA1}, {tA0}, 7\ns_add_u32 {tA1}, {tA1}, {L.WS_FLAG_HALO}\ns_lshl_b32 {tM1}, {sJ}, 5\n'
            f's_add_u32 {tM1}, {tM1}, {L.WS_FLAG_U}\ns_cmp_eq_u32 {sR}, 0\ns_cselect_b32 {tA1}, {tM1}, {tA1}\nv_mov_b32 v3, {tA1}'])
HL = f'buffer_load_dwordx2 v[{vH}:{vH + 1}], v3, {srd(SRD_WS)}, 0 offen sc1'
st_hal.add([Inst(HL, tag='pfh'), ('gap', 22)])


def halo_import():
    poll_check(HL, flags_cmp(vH), 'pfh')
    E(f's_cmp_lg_u32 {sW}, 0\ns_cbranch_scc1 L_HI')
    E(f's_lshl_b32 {tA1}, {tA0}, 12\ns_add_u32 {tA1}, {tA1}, {L.WS_HALO}\ns_cmp_eq_u32 {sR}, 0\ns_cselect_b32 {tA1}, {OOB}, {tA1}')
    E(f's_mov_b32 {tM1}, m0\ns_mov_b32 m0, {QB}\ns_nop 0')
    for i in range(4):
        E.raw(f'    buffer_load_dwordx4 {vLANE16}, {srd(SRD_WS)}, {tA1} offen offset:{i * 1024} sc1 lds')
    E(f's_mov_b32 m0, {tM1}')
    E('L_HI:')
    E(f'buffer_load_dword v{vH}, v14, {srd(SRD_DBG)}, 0 offen', tag='himp')


st_hal.add([('call', halo_import), ('gap', 22), ('call', lambda: E.wait_tags(['himp'])), ('mark', 'halo_in')])
st_at2.add([f's_or_b32 {tM0}, {sR}, {sW}\ns_cmp_eq_u32 {tM0}, 0\ns_cselect_b32 {tM0}, 0xf149f2ca, 0'] +
           [f'v_min_f32 v{BIASR + i}, {tM0}, v{BIASR + i}' for i in range(4)] + [('after', 'halo_in')])
st_at2.add(att_block(0))
st_at2.add([('mark', 'odone'), ('gap', OPT['pubgap']), f's_lshl_b32 {tA2}, {sC}, 3\ns_add_u32 {tA2}, {tA2}, {sGF}', wave_flag(tA2, ['ost'], 64), ('mark', 'opub')])

st_act = Stream('act')
GPA = f'v_and_b32 {vPA}, 3, v1\nv_lshlrev_b32 {vPA}, 3, {vPA}\nv_add_u32 {vPA}, {sGF}, {vPA}'


def act_load(key, soff, off):
    o = []
    kind, r = ACT[key]
    if kind == 'v':
        o.append(('after', 'odone' if r >= BIASR else (f'bs{(r - 16) // 16}' if r + 4 <= 136 else 'epiB')))
    elif r >= AK[0]:
        o.append(('after', 'odone'))
    elif r >= QA:
        o.append(('after', 'kvw'))
    elif r >= 128:
        o.append(('after', 'epiB'))
    else:
        o.append(('after', 'epiA'))
    o.append(f'buffer_load_dwordx4 {act_regs(key)}, {vLANE16}, {srd(SRD_WS)}, {soff} offen offset:{off}{GS}')
    o.append(('mark', f'act{kname(key)}'))
    return o


st_act.add([('after', 'pf_free'), ('after', 'kvw'), GPA])
for k in range(1, 4):
    for ks in range(10):
        if ks % 4 == 0:
            st_act.add([f's_add_u32 {tC0}, {sGP[k]}, {ks * 1024}'])
        st_act.add(act_load((k, ks), tC0, (ks % 4) * 1024))
st_act.add([('after', 'pubB'), ('gap', OPT['pollgap'])])
st_act.add(poll_item(f'v_add_u32 {vPA}, 32, {vPA}', vPA, vPF, 'pfb', OPT['pchk']))
for k in range(1, 4):
    for ks in range(10, 18):
        if (ks - 10) % 4 == 0:
            st_act.add([f's_add_u32 {tC0}, {sGP[k]}, {ks * 1024}'])
        st_act.add(act_load((k, ks), tC0, ((ks - 10) % 4) * 1024))
st_ao = Stream('ao')
tO0, tO1 = 's90', 's91'
st_ao.add([('after', 'opub'), ('gap', OPT['ogap'])])
st_ao.add(poll_item(f'v_and_b32 v{BCOR + 2}, 3, v1\nv_lshlrev_b32 v{BCOR + 2}, 3, v{BCOR + 2}\ns_add_u32 {tO0}, {sGF}, 64\nv_add_u32 v{BCOR + 2}, {tO0}, v{BCOR + 2}',
                    f'v{BCOR + 2}', BCOR, 'pfo', OPT['pchk']))
st_ao.add([f's_sub_u32 {tO0}, {sGF}, {L.WS_FLAG_G}\ns_lshl_b32 {tO0}, {tO0}, 3\ns_add_u32 {tO0}, {tO0}, {L.WS_GREM}'] + act_load('rem', tO0, 0))
for k in (0, 2, 1, 3):
    st_ao.add([f's_add_u32 {tO0}, {sGP[k] if k else sGB}, {18 * 1024}'] + act_load((k, 18), tO0, 0) + act_load((k, 19), tO0, 1024))
st_ao.add([('gap', 15), f's_and_b32 {tO0}, {sC}, 1\ns_sub_u32 {tO0}, {tO0}, 1\ns_not_b32 {tO1}, {tO0}'] +
          [f'v_cndmask_b32 v{BIASR + 4 + d}, 0, v{BIASR + d}, s[90:91]' for d in range(4)] + [('mark', 'actremS')])

XB = TMP
XR = TMP + 20
vOA, vOS, vRS2 = 'v4', 'v5', 'v6'
SOM, SOS = 's20', 's21'
st_fin = Stream('fin')
st_fin.add([('after', 'opub'), ('after', 'fin8'), ('after', 'B18'),
            f"""v_lshrrev_b32 v2, 2, v1
v_mul_u32_u24 v2, 1152, v2
v_and_b32 v3, 3, v1
v_lshlrev_b32 v3, 4, v3
v_add_u32 {vOA}, v2, v3
s_lshr_b32 {tA0}, {sC}, 1
s_mul_i32 {tA0}, {tA0}, 576
s_and_b32 {tA1}, {sC}, 1
s_mul_i32 {tA2}, {tA1}, 320
s_add_u32 {tA2}, {tA2}, {tA0}
s_lshl_b32 {tA3}, {sS}, 6
s_add_u32 {tA2}, {tA2}, {tA3}
s_add_u32 {SOM}, {sXB}, {tA2}""",
            f'buffer_load_dwordx4 v[{XR}:{XR + 3}], {vOA}, {srd(SRD_X)}, {SOM} offen',
            f's_add_u32 {tA3}, {SOM}, {16 * 1152}',
            f'buffer_load_dwordx4 v[{XR + 4}:{XR + 7}], {vOA}, {srd(SRD_X)}, {tA3} offen',
            f'buffer_load_dwordx4 v[{XR + 8}:{XR + 11}], v3, {srd(SRD_B)}, {tA2} offen',
            f"""v_and_b32 v2, 15, v1
v_bfe_u32 v3, v1, 4, 1
v_lshlrev_b32 v3, 3, v3
v_mul_u32_u24 v7, 1152, v2
v_add_u32 v7, v7, v3
v_mov_b32 {vOS}, {OOB}
v_cmp_gt_u32 vcc, 32, v1
v_cndmask_b32 {vOS}, {vOS}, v7, vcc
s_lshl_b32 {tA2}, {sR}, 2
s_add_u32 {tA2}, {tA2}, {sS}
s_lshl_b32 {tA2}, {tA2}, 1
s_add_u32 {tA2}, {tA2}, {tA1}
s_lshl_b32 {tA3}, {tA2}, 6
s_add_u32 {tA3}, {tA3}, {L.WS_STAT}
v_lshlrev_b32 v2, 2, v2""",
            f'buffer_load_dword {vRS2}, v2, {srd(SRD_WS)}, {tA3} offen sc1',
            f"""s_mul_i32 {tA2}, {tA2}, {16 * 1152}
s_lshl_b32 {tA3}, {sW}, 4
s_add_u32 {tA3}, {tA3}, {tA0}
s_add_u32 {tA3}, {tA3}, 256
s_add_u32 {SOS}, {tA2}, {tA3}""",
            f'buffer_load_dwordx2 v[{XR + 12}:{XR + 13}], {vOS}, {srd(SRD_X)}, {SOS} offen',
            f'buffer_load_dwordx2 v[{XR + 14}:{XR + 15}], v3, {srd(SRD_B)}, {tA3} offen', ('gap', 40)])
for d in range(4):
    for hi in range(2):
        un = (lambda r, dst: f'v_and_b32 {dst}, {vMASKHI}, v{r}') if hi else (lambda r, dst: f'v_lshlrev_b32 {dst}, 16, v{r}')
        st_fin.add([un(XR + 8 + d, 'v2')])
        for rd in range(2):
            st_fin.add([un(XR + 4 * rd + d, 'v3'), f'v_add_f32 v{XB + 8 * rd + 2 * d + hi}, v2, v3'])
for d in range(2):
    for hi in range(2):
        un = (lambda r, dst: f'v_and_b32 {dst}, {vMASKHI}, v{r}') if hi else (lambda r, dst: f'v_lshlrev_b32 {dst}, 16, v{r}')
        st_fin.add([un(XR + 12 + d, 'v2'), un(XR + 14 + d, 'v3'), f'v_add_f32 v{XB + 16 + 2 * d + hi}, v2, v3'])
SND = ['s16', 's17', 's18', 's19']
RCV = ['s12', 's13', 's15', 's38', 's39']
st_fin.add([f"""v_and_b32 {vRS2}, {vMASKHI}, {vRS2}
v_mul_f32 {vRS2}, {vRS2}, {vRS2}
v_rcp_f32 {vRS2}, {vRS2}
v_mul_f32 {vRSTD}, {vRSTD}, {vRSTD}
s_lshl_b32 {tA0}, {sR}, 2
s_add_u32 {tA0}, {tA0}, {sC}
s_lshl_b32 {tA0}, {tA0}, 18
s_add_u32 {tA0}, {tA0}, {L.WS_PART}
s_lshl_b32 {tA2}, {sW}, 12
s_add_u32 {tA0}, {tA0}, {tA2}
s_lshl_b32 {tA2}, {sS}, 14
s_add_u32 {tA2}, {tA2}, {tA0}"""])
for k in range(1, 4):
    st_fin.add([f's_add_u32 {tA3}, {sS}, {k}\ns_and_b32 {tA3}, {tA3}, 3\ns_lshl_b32 {tA3}, {tA3}, 16\ns_add_u32 {SND[k]}, {tA3}, {tA2}'])
st_fin.add([f"""s_lshl_b32 {tA2}, {sR}, 1
s_lshr_b32 {tA3}, {sC}, 1
s_add_u32 {tA2}, {tA2}, {tA3}
s_lshl_b32 {tM0}, {tA2}, 17
s_add_u32 {tM0}, {tM0}, {L.WS_PARTS}
s_lshl_b32 {tM1}, {sS}, 1
s_add_u32 {tM1}, {tM1}, {tA1}
s_lshl_b32 {tA3}, {tM1}, 11
s_add_u32 {SND[0]}, {tM0}, {tA3}
s_lshl_b32 {tA3}, {sW}, 15
s_add_u32 {SND[0]}, {SND[0]}, {tA3}
s_lshl_b32 {tA3}, {tM1}, 14
s_add_u32 {RCV[0]}, {tM0}, {tA3}
s_lshl_b32 {tA3}, {sW}, 9
s_add_u32 {RCV[0]}, {RCV[0]}, {tA3}
v_bfe_u32 v2, v1, 4, 1
v_lshlrev_b32 v2, 14, v2
v_lshrrev_b32 v3, 5, v1
v_lshl_add_u32 v2, v3, 8, v2
v_and_b32 v11, 15, v1
v_lshl_add_u32 v7, v11, 4, v2
v_lshlrev_b32 v3, 11, v3
v_and_b32 v11, 31, v1
v_lshl_add_u32 v3, v11, 4, v3
v_add_u32 v2, 8192, v3
s_lshl_b32 {tA2}, {sS}, 16
s_add_u32 {tA2}, {tA2}, {tA0}"""])
for k in range(1, 4):
    st_fin.add([f's_add_u32 {tA3}, {sS}, {k}\ns_and_b32 {tA3}, {tA3}, 3\ns_lshl_b32 {tA3}, {tA3}, 14\ns_add_u32 {RCV[k]}, {tA3}, {tA2}'])
PT = XR
PKR = 196
CH = [196, 200, XR + 8, XR + 12]
st_fin.add([f'v_mov_b32 v{c + 3}, v{vNON}' for c in CH] + [('after', f'dma{NSTG - 1}')])
for n in (3, 0, 1, 2):
    st_fin.add([('after', f'pend{n}'), ('gap', 2)])
    for half in range(2):
        st_fin.add([f'v_accvgpr_read_b32 v{PT + e}, a{ACC2[n] + 8 * half + e}' for e in range(8)])
        for d in range(4):
            dd = 4 * half + d
            dst = (CH[dd // 3] + dd % 3) if n < 3 else (CH[dd // 2] + dd % 2)
            st_fin.add([f'v_cvt_pk_bf16_f32 v{dst}, v{PT + 2 * d}, v{PT + 2 * d + 1}'])
    for q in range(3 if n < 3 else 4):
        if n < 3:
            st_fin.add([f'buffer_store_dwordx4 v[{CH[q]}:{CH[q] + 3}], {vLANE16}, {srd(SRD_WS)}, {SND[n + 1]} offen offset:{q * 1024} sc1'])
        else:
            st_fin.add([f'buffer_store_dwordx4 v[{CH[q]}:{CH[q] + 3}], v7, {srd(SRD_WS)}, {SND[0]} offen offset:{q * 512} sc1'])
RB = 80
RXL = []
for k in range(1, 4):
    for q in range(3):
        r = RB + 12 * (k - 1) + 4 * q
        RXL.append(f'buffer_load_dwordx4 v[{r}:{r + 3}], {vLANE16}, {srd(SRD_WS)}, {RCV[k]} offen offset:{q * 1024} sc1')
RS = RB + 36
for i in range(4):
    RXL.append(f'buffer_load_dwordx4 v[{RS + 4 * i}:{RS + 4 * i + 3}], {("v3", "v2")[i // 2]}, {srd(SRD_WS)}, {(RCV[0], RCV[4])[i % 2]} offen sc1')
st_fin.add([f's_add_u32 {RCV[4]}, {RCV[0]}, 4096', ('after', 'rxfree')] + [Inst(x, tag='rx') for x in RXL])

S = Sched(E, [st_dma, st_pol, st_hs, st_hal, st_rp, st_tr, st_att, st_epi, st_at2, st_act, st_ao, st_fin])
S.vrate = OPT['vrate']
S.memorder = [st_pol, st_hs, st_hal, st_att, st_at2, st_epi, st_rp, st_dma, st_act, st_ao, st_fin, st_tr]
S.vcap = OPT['vcap']
S.lat = OPT['lat']
st_dma.edf = True
st_act.edf = True
st_ao.edf = True
if OPT.get('zlo') is not None:
    def hook(i):
        if OPT['zlo'] <= i < OPT['zlo'] + 50 * OPT['zst'] and (i - OPT['zlo']) % OPT['zst'] == 0:
            E.raw(f'; ZSTAMP {nstamp[0]} op {i}')
            stamp()
    S.hook = hook
S.extra_deadline = {f'xl{q}': 20 * (q - 1) for q in range(2, 9)}
S.run(ops, D=OPT['D'], WB=OPT['WB'], budget=3.0, maxmem=OPT['maxmem'])
stamp()
S.drain()
stamp()

OA = 16
TP = 144
E(f"""v_and_b32 v8, 31, v1
v_mul_u32_u24 v8, {TP}, v8
v_lshrrev_b32 v9, 5, v1
v_lshl_add_u32 v8, v9, 4, v8
s_mul_i32 s90, {sW}, {32 * TP}
s_add_u32 s90, s90, {SLOTB[23]}
v_add_u32 v8, s90, v8
v_lshrrev_b32 v11, 2, v1
v_mul_u32_u24 v11, {TP}, v11
v_and_b32 v15, 3, v1
v_lshl_add_u32 v11, v15, 5, v11
v_add_u32 v11, s90, v11""")
for e in range(16):
    E(f'v_accvgpr_read_b32 v{OA + e}, a{ACC2[4] + e}')
E.wait_tags(['rx'])
E('L_RXC:')
tags = [RB + 4 * i + 3 for i in range(13)]
E(f'v_xor_b32 v9, s{NONCE}, v{tags[0]}')
for i in range(1, 13, 2):
    E(f'v_xor_b32 v15, s{NONCE}, v{tags[i]}\nv_xor_b32 v32, s{NONCE}, v{tags[i + 1]}\nv_or3_b32 v9, v9, v15, v32')
E(f'v_cmp_ne_u32 {SPOLL}, 0, v9\ns_cmp_lg_u64 {SPOLL}, 0\ns_cbranch_scc1 L_RXS')
E('L_RXR:')
stamp()
for k in range(3):
    for dd in range(8):
        r = RB + 12 * k + 4 * (dd // 3) + dd % 3
        E(f'v_lshlrev_b32 v32, 16, v{r}\nv_and_b32 v33, {vMASKHI}, v{r}\nv_add_f32 v{OA + 2 * dd}, v{OA + 2 * dd}, v32\nv_add_f32 v{OA + 2 * dd + 1}, v{OA + 2 * dd + 1}, v33')
for q4 in range(4):
    for e in range(4):
        E(f'v_mul_f32 v{OA + 4 * q4 + e}, v{OA + 4 * q4 + e}, {vRSTD}')
    E(f'ds_write_b128 v8, v[{OA + 4 * q4}:{OA + 4 * q4 + 3}] offset:{32 * q4}', tag='tw')
SH = 40
for i in range(4):
    for d in range(2):
        r = RS + 4 * i + d
        if i == 0:
            E(f'v_lshlrev_b32 v{SH + 2 * d}, 16, v{r}\nv_and_b32 v{SH + 2 * d + 1}, {vMASKHI}, v{r}')
        else:
            E(f'v_lshlrev_b32 v32, 16, v{r}\nv_and_b32 v33, {vMASKHI}, v{r}\nv_add_f32 v{SH + 2 * d}, v{SH + 2 * d}, v32\nv_add_f32 v{SH + 2 * d + 1}, v{SH + 2 * d + 1}, v33')
    if i == 1:
        E.wait_tags(['tw'])
        for rd in range(2):
            E(f'ds_read_b128 v[{48 + 8 * rd}:{51 + 8 * rd}], v11 offset:{rd * 16 * TP}')
            E(f'ds_read_b128 v[{52 + 8 * rd}:{55 + 8 * rd}], v11 offset:{rd * 16 * TP + 16}')
for rd in range(2):
    for e in range(8):
        E(f'v_add_f32 v{48 + 8 * rd + e}, v{48 + 8 * rd + e}, v{XB + 8 * rd + e}')
    for d in range(4):
        E(f'v_cvt_pk_bf16_f32 v{64 + 4 * rd + d}, v{48 + 8 * rd + 2 * d}, v{48 + 8 * rd + 2 * d + 1}')
    E(f'buffer_store_dwordx4 v[{64 + 4 * rd}:{67 + 4 * rd}], {vOA}, {srd(SRD_OUT)}, {SOM} offen')
    if rd == 0:
        E(f's_add_u32 {SOM}, {SOM}, {16 * 1152}')
for e in range(4):
    E(f'v_mov_b32 v{SH + 4 + e}, v{SH + e}')
for e in range(4):
    E(f'v_permlane32_swap_b32 v{SH + e}, v{SH + 4 + e}')
for e in range(4):
    E(f'v_add_f32 v{SH + e}, v{SH + e}, v{SH + 4 + e}\nv_fma_f32 v{SH + e}, v{SH + e}, {vRS2}, v{XB + 16 + e}')
E(f'v_cvt_pk_bf16_f32 v72, v{SH}, v{SH + 1}\nv_cvt_pk_bf16_f32 v73, v{SH + 2}, v{SH + 3}')
E(f'buffer_store_dwordx2 v[72:73], {vOS}, {srd(SRD_OUT)}, {SOS} offen')

if OPT['stamps']:
    stamp()
    E('s_waitcnt lgkmcnt(0)')
    E(f'v_writelane_b32 {vSTAMP}, s100, {nstamp[0] - 1}')
    E(f's_mov_b32 s84, {nstamp[0]}')
    E(f'v_writelane_b32 {vSTAMP}, s84, 63')
    E(f'v_writelane_b32 {vSTAMP}, s99, 62')
    E(f's_lshl_b32 s84, s2, 2\ns_add_u32 s84, s84, {sW}\ns_lshl_b32 s84, s84, 8\ns_add_u32 s84, s84, {L.WS_STAMP}')
    E('v_lshlrev_b32 v1, 2, v1')
    E(f'buffer_store_dword {vSTAMP}, v1, {srd(SRD_WS)}, s84 offen')
E('L_END:')
E('s_endpgm')
for k, load_txt in slow_paths:
    E.raw(f'''L_PS{k}:
    s_add_u32 s99, s99, 1
    s_cmp_gt_u32 s99, 400000
    s_cbranch_scc1 L_PR{k}
    s_sleep 1
    {load_txt}
    s_waitcnt vmcnt(0)
    s_branch L_PC{k}''')
E.raw('''L_RXS:
    s_add_u32 s99, s99, 1
    s_cmp_gt_u32 s99, 400000
    s_cbranch_scc1 L_RXR
    s_sleep 1
''' + '\n'.join('    ' + x for x in RXL) + '''
    s_waitcnt vmcnt(0)
    s_branch L_RXC''')
E.raw('L_CODE_END:')
E.raw(KD_FMT.format(name=KN, vgpr=512, sgpr=102, accum=256, kernarg=88))
txt = E.text()
if OPT.get('hot'):
    import re
    lines = []
    for l in txt.split('\n'):
        if (OPT['hot'] & 1) and 'buffer_store' in l and 's[48:51]' in l and 'v255' not in l:
            l = l.replace('s[48:51]', 's[64:67]')
        if 's_cbranch_scc1 L_PS' in l or 's_cbranch_scc1 L_RXS' in l:
            l = '    s_nop 0'
        lines.append(l)
    txt = '\n'.join(lines)
    if OPT['hot'] & 2:
        txt = txt.replace('    s_and_b32 s84, s2, 7\n    s_lshr_b32 s85, s2, 3\n', '    s_mov_b32 s84, 0\n    s_mov_b32 s85, 0\n', 1)
open(OUT, 'w').write(txt)
if OPT.get('log'):
    for x in S.log:
        if x[1] == 'BARRIER' or (x[1] == 'flushed' and x[3] > 6) or (x[1] == 'mark' and not x[2].startswith(('t', 'act', 'dma', 'xl'))):
            print(x)
print('insts', E.ninst, 'nops', E.n_nop, 'waits', E.n_wait)
```

```python
import sys
import struct
sys.path.insert(0, 'gen')
from kgen import *
from sched import *
import layout as L

KN = 'parallel_sum__sliding_local_dilated__dense_activation_squared_relu__prompt_kernel'
OPT = dict(stamps=0, D=6, WB=3, bA=3.5, bQ=4.5, bB=4.0, bP=4.5, pubgap=35, pollgap=20, stouch=0, gtouch=0,
           hxgap=30, higap=40, egap=5, pgap=60, dmagap=0, bx=16, maxmem=2, vrate=55, vcap=3, rp2at=3, lat=30, pfwat=10, auxat=20, rxks=17, ogap=40, btouch=0, hbatch=0, drain=1, eat=6, quiet=0, tfirst=0, pchk=24, umap=0, cpf=1, rot=0, wsoff=0, mtouch=0, mt0=4, sgap=0, rgap=0, rxat=50, etouch=0, x23=0)
for a in sys.argv[2:]:
    k, v = a.split('=')
    OPT[k] = float(v) if '.' in v else int(v)
OUT = sys.argv[1]
OPT_E = f"a{OPT['eat']}"
GS = '' if OPT.get('gplain') else ' sc1'

if OPT.get('gpad'):
    L.WS_G = 0x4000000
    L.G_WAVE = 20480 + OPT['gpad']
    L.G_WG = 4 * L.G_WAVE
E = Emitter()
slow_paths = []
fl = lambda x: '0x%08x' % struct.unpack('<I', struct.pack('<f', x))[0]
OOB = '0x40000000'

sW, sR, sS, sC, sJ = 's4', 's5', 's6', 's7', 's8'
P_X, P_WQKV, P_WO, P_W1, P_B1, P_W2, P_B2 = 16, 18, 20, 24, 26, 28, 30
P_OUT, P_DBG, P_WS = 32, 34, 36
SRD_X, SRD_W1, SRD_WS, SRD_RP, SRD_B, SRD_OUT, SRD_DBG, SRD_EU = 40, 44, 48, 52, 56, 60, 64, 68
NONCE = 82
sSLW, sGF, sRPF, sCSA, sCSB, sGB = 's9', 's10', 's11', 's12', 's13', 's14'
sUST, sUS, sUD, sUC = 's15', 's38', 's39', 's3'
sA0, sA4, sB0, sB4, sQ0, sQ4 = 's16', 's17', 's18', 's19', 's20', 's21'
sPF = ['s22', 's23', 's24', 's25']
sGP = [None, 's26', 's27', 's28']
sXB, sXB2, sSTB = 's29', 's30', 's31'
M16 = 's[32:33]'
MX1, MX2 = 's[34:35]', 's[36:37]'
sL10, sL8, sL9, sBO, sC0, sC1 = 's72', 's73', 's74', 's75', 's80', 's81'
sBO2, sL6, sP8 = 's76', 's0', 's1'
SPOLL = 's[78:79]'
tD0, tD1 = 's84', 's85'
tA0, tA1, tA2, tA3 = 's86', 's87', 's88', 's89'
tR0, tR1, tR2, tR3, tR4 = 's90', 's91', 's95', 's96', 's77'
tC0, tC1 = 's92', 's93'
tE0 = 's94'
tM0, tM1 = 's97', 's98'


def srd(n):
    return f's[{n}:{n + 3}]'


XN = 16
FR = 160
NF = 7
BIASR = 188
VDA = 196
VDB = 201
vTA = 'v205'
VTB = 4
vRL = 'v206'
vF0 = 'v207'
vTCH = 'v208'
vLANE16 = 'v209'
vTL = 'v210'
vRSTD = 'v211'
vXO = 'v212'
vREM = 'v213'
BCOR = 214
TMP = 218
vMASKHI = 'v254'
vSTAMP = 'v255'
vNON = 12
vPF = 8
vTD = 10
vPA = 'v15'
vTW = 'v0'
QA = 144
AK = [192, 200, 208, 216]
ONESR = 220

RING = [0, 40960, 81920]
AUX = 122880
LDS_TOTAL = 163840
QB = AUX
QB1 = QB + 4096
PITCH = 240
SLOTB = {g: RING[g % 3] for g in range(18)}
DMA_AFTER = {g: g - 1 for g in range(18)}
NSTG = 26
AUXAT = OPT['auxat']
for g in range(18, AUXAT):
    SLOTB[g] = RING[g % 3]
    DMA_AFTER[g] = g - 1
for g in range(AUXAT, NSTG):
    SLOTB[g] = [AUX, RING[AUXAT % 3], RING[(AUXAT + 1) % 3], RING[(AUXAT + 2) % 3]][(g - AUXAT) % 4]
    DMA_AFTER[g] = g - 2

if OPT['drain']:
    DMA_AFTER = {g: v - 1 for g, v in DMA_AFTER.items()}
nstamp = [0]


def stamp():
    if not OPT['stamps']:
        return
    k = nstamp[0]
    if k > 0:
        E(f'v_writelane_b32 {vSTAMP}, s100, {k - 1}')
    E('s_memrealtime s[100:101]' if OPT.get('rt') else 's_memtime s[100:101]')
    nstamp[0] += 1


def mk_srd(n, p, size):
    E(f's_mov_b32 s{n}, s{p}\ns_mov_b32 s{n + 1}, s{p + 1}\ns_mov_b32 s{n + 2}, {size}\ns_mov_b32 s{n + 3}, 0x20000')


def emit_all(lst):
    for x in lst:
        if isinstance(x, str):
            E(x)
        elif isinstance(x, Inst):
            E.emit(x)


def nodep(txt):
    ld = Inst(txt)
    ld.writes = set()
    return ld


hdr = open('parallel_sum__sliding_local_dilated__dense_activation_squared_relu__prompt.s.ref').read()
hdr = [l for l in hdr.split('\n') if l.startswith(';') and '@launch' not in l and 'Override' not in l and 'grid=ceil' not in l]
E.raw('\n'.join(hdr))
E.raw(f'; @launch grid=(256,1,1) block=(256,1,1) lds={LDS_TOTAL}')
E.raw(f'.amdgcn_target "amdgcn-amd-amdhsa--gfx950"\n.text\n.globl {KN}\n.p2align 8\n.type {KN},@function\n{KN}:')

E('s_cmp_ge_u32 s2, 256\ns_cbranch_scc1 L_END')
stamp()
E('s_load_dwordx16 s[16:31], s[0:1], 0')
E('s_load_dwordx4 s[32:35], s[0:1], 64')
E('s_load_dwordx2 s[36:37], s[0:1], 80')
E(f's_memrealtime s[{NONCE}:{NONCE + 1}]')
E('s_mov_b32 s99, 0')
E(f's_getpc_b64 s[{SRD_EU}:{SRD_EU + 1}]')
E('L_PCREF:')
E(f's_mov_b32 s{SRD_EU + 2}, L_CODE_END-L_PCREF\ns_mov_b32 s{SRD_EU + 3}, 0x20000')
E('v_lshlrev_b32 v2, 7, v0')
if OPT['cpf'] == 0:
    E('s_lshr_b32 s3, s2, 3\ns_and_b32 s3, s3, 1\ns_lshl_b32 s3, s3, 15')
else:
    sh = 11 + OPT['cpf']
    E(f's_lshr_b32 s3, s2, 3\ns_and_b32 s3, s3, {(1 << (16 - sh)) - 1}\ns_lshl_b32 s3, s3, {sh}\nv_lshrrev_b32 v3, {sh}, v2\nv_lshl_or_b32 v2, v3, 30, v2')
E.emit(nodep(f'buffer_load_dword v{vTD}, v2, {srd(SRD_EU)}, s3 offen'))
E('v_lshrrev_b32 v1, 6, v0')
E(f'v_readfirstlane_b32 {sW}, v1')
E('v_and_b32 v1, 63, v0')
E(f'''s_and_b32 s84, s2, 7
s_lshr_b32 s85, s2, 3
s_lshr_b32 {sS}, s84, 1
s_and_b32 {sC}, s85, 3
s_and_b32 s84, s84, 1
s_lshl_b32 s84, s84, 3
s_lshr_b32 s85, s85, 2
s_add_u32 {sR}, s84, s85
s_lshl_b32 {sJ}, {sS}, 2
s_add_u32 {sJ}, {sJ}, {sC}
v_bfe_u32 v2, v1, 2, 3
v_mul_u32_u24 v2, 4608, v2
v_lshrrev_b32 v3, 5, v1
v_lshl_add_u32 v2, v3, 6, v2
v_and_b32 v4, 3, v1
v_lshl_add_u32 {vXO}, v4, 4, v2
v_mul_u32_u24 v5, 1152, v3
v_and_b32 v6, 31, v1
v_lshl_add_u32 v5, v6, 4, v5
v_mov_b32 v7, {OOB}
v_cmp_gt_u32 vcc, 8, v6
v_cndmask_b32 v6, v7, v5, vcc
v_lshlrev_b32 {vLANE16}, 4, v1
s_lshl_b32 s86, {sR}, 2
s_add_u32 s86, s86, {sW}
s_mul_i32 s86, s86, 36864
s_lshl_b32 s87, {sR}, 4
s_add_u32 s87, s87, {sJ}
s_lshl_b32 s87, s87, 2
s_add_u32 s87, s87, {sW}
s_mul_i32 s88, s87, 2304''')
if OPT.get('stag'):
    E(f's_and_b32 s94, {sR}, {OPT["stagm"]}')
    E('L_STG:')
    E('s_cmp_eq_u32 s94, 0\ns_cbranch_scc1 L_STGD')
    E(f's_sleep {OPT["stag"]}\ns_sub_u32 s94, s94, 1\ns_branch L_STG')
    E('L_STGD:')
for i in range(5):
    E(f'''v_add_u32 v8, {64 * i}, v1
v_mul_u32_u24 v9, 3277, v8
v_lshrrev_b32 v9, 16, v9
v_mul_u32_u24 v11, 20, v9
v_sub_u32 v11, v8, v11
v_mul_u32_u24 v9, 9216, v9
v_lshl_add_u32 v{VDA + i}, v11, 4, v9''')
    if i % 4:
        E(f'v_subrev_u32 v{VDA + i}, {(i % 4) * 1024}, v{VDA + i}')
E(f'''s_mul_i32 s89, {sJ}, 576
s_and_b32 s84, {sJ}, 1
s_cmp_eq_u32 s84, 0
s_cselect_b32 s90, 256, 0
s_cselect_b32 s91, 0, 320
s_and_b32 s92, {sW}, {1 if OPT['rot'] else 3}
s_mul_i32 s92, s92, {32 * 9216}
s_add_u32 s92, s92, s89
s_add_u32 s93, s92, s90
s_mul_i32 {sL10}, {sW}, 10240''')
E('s_waitcnt lgkmcnt(0)')
mk_srd(SRD_X, P_X, 2359296)
mk_srd(SRD_W1, P_W1, 5308416)
if OPT['rot']:
    E(f's_mov_b32 s78, s30\ns_mov_b32 s79, s31\ns_and_b32 s1, {sR}, 7\ns_lshl_b32 s84, {sC}, 1\ns_add_u32 s1, s1, s84\ns_sub_u32 s84, s1, 9\ns_min_u32 s1, s1, s84\n'
      f's_lshr_b32 s84, {sW}, 1\ns_add_u32 s30, s1, s84')
def mall_touch(which):
    E(f's_lshl_b32 s84, s2, 2\ns_add_u32 s84, s84, {sW}\nv_lshlrev_b32 v8, 7, v1')
    for bit, p, size, n in ((1, P_W2, 5308416, 41), (2, P_WO, 663552, 6), (4, P_X, 2359296, 18), (8, P_WQKV, 1990656, 16), (16, P_W1, 5308416, 41)):
        if which & bit:
            mk_srd(SRD_OUT, p, size)
            E(f's_mul_i32 s85, s84, {n * 128}\nv_min_u32 v9, {(n - 1) * 128}, v8')
            E.emit(nodep(f'buffer_load_dword v{vTD}, v9, {srd(SRD_OUT)}, s85 offen'))
    mk_srd(SRD_OUT, P_OUT, 2359296)


if OPT['mt0']:
    mall_touch(OPT['mt0'])
E1R = TMP + 16
for k in range(3):
    E(f'buffer_load_dwordx4 v[{E1R + 4 * k}:{E1R + 4 * k + 3}], {"v5" if k < 2 else "v6"}, {srd(SRD_X)}, s88 offen offset:{512 * k}')


sROT, sROTW = 's1', 's30'


def sig(dst, base, add, tmp):
    return [f's_add_u32 {dst}, {base}, {add}', f's_sub_u32 {tmp}, {dst}, 9', f's_min_u32 {dst}, {dst}, {tmp}']


def xload(q, sb=None):
    o = []
    if OPT['rot']:
        o += sig(tD0, sROT, q, tD1) + [f's_lshl_b32 {tD0}, {tD0}, 7', f's_add_u32 {tD0}, {tD0}, {sb or sXB}']
        for i in range(4):
            r = XN + 16 * q + 4 * i
            o.append(Inst(f'buffer_load_dwordx4 v[{r}:{r + 3}], {vXO}, {srd(SRD_X)}, {tD0} offen offset:{1152 * i}', tag=f'x{q}'))
        o.append(('mark', f'xl{q}'))
        return o
    for i in range(4):
        r = XN + 16 * q + 4 * i
        b, off = (sb or sXB, 128 * q) if q < 5 else (sXB2, 128 * (q - 5))
        o.append(Inst(f'buffer_load_dwordx4 v[{r}:{r + 3}], {vXO}, {srd(SRD_X)}, {b} offen offset:{1152 * i + off}', tag=f'x{q}'))
    o.append(('mark', f'xl{q}'))
    return o


TOUCH_ONLY = [False]


def touch(fn, *a):
    TOUCH_ONLY[0] = True
    o = fn(*a)
    TOUCH_ONLY[0] = False
    return o


def dma_a(u, sb=None):
    g = u
    base = SLOTB[g]
    out = [f's_add_u32 {tD0}, {sb or sA0}, {u * 128 * 9216}' if u < 4 else f's_mov_b32 {tD0}, {sA4}']
    if OPT['rot']:
        out = sig(tD0, sROTW if u < 4 else sROT, 2 * u, tD1) + [f's_mul_i32 {tD0}, {tD0}, {64 * 9216}', f's_add_u32 {tD0}, {tD0}, {(sb or sA0) if u < 4 else sA4}']
    if TOUCH_ONLY[0]:
        return out + [nodep(f'buffer_load_dword v{vTD}, {vTW}, {srd(SRD_W1)}, {tD0} offen')]
    lw = sL10
    if u == 4:
        out.append(f's_lshr_b32 {tD1}, {sL10}, 1')
        lw = tD1
    for gr in range(2 if u < 4 else 1):
        if gr:
            out.append(f's_add_u32 {tD0}, {tD0}, {16 * 9216}')
        for i in range(5):
            if i % 4 == 0:
                out.append(f's_add_u32 m0, {lw}, {base + gr * 5120 + i * 1024}')
            out.append(Inst(f'buffer_load_dwordx4 v{VDA + i}, {srd(SRD_W1)}, {tD0} offen offset:{(i % 4) * 1024} lds', tag=f'st{g}'))
    return out


def lin_pieces(g, lw, lbase, npc):
    out = []
    for i in range(npc):
        if i % 4 == 0:
            out.append(f's_add_u32 m0, {lw}, {lbase + i * 1024}' if lw else f's_mov_b32 m0, {lbase + i * 1024}')
            if i:
                out.append(f's_add_u32 {tD0}, {tD0}, 4096')
        out.append(Inst(f'buffer_load_dwordx4 {vLANE16}, {srd(SRD_WS)}, {tD0} offen offset:{(i % 4) * 1024} sc1 lds', tag=f'st{g}'))
    return out


def cs_pieces(g, src, lofs, n):
    o = [f's_lshl_b32 {tD1}, {sW}, 10', f's_add_u32 {tD0}, {src}, {tD1}'] + lin_pieces(g, tD1, SLOTB[g] + lofs, 1)
    if n == 5:
        o += [f's_add_u32 {tD0}, {src}, 4096'] + lin_pieces(g, None, SLOTB[g] + lofs + 4096, 1)
    return o


def dma_b(u):
    g = 10 + u
    base = SLOTB[g]
    out = [f's_add_u32 {tD0}, {sB0}, {u * 128 * 9216}' if u < 4 else f's_mov_b32 {tD0}, {sB4}']
    if OPT['rot']:
        out = sig(tD0, sROTW if u < 4 else sROT, 2 * u, tD1) + [f's_mul_i32 {tD0}, {tD0}, {64 * 9216}', f's_add_u32 {tD0}, {tD0}, {sB0 if u < 4 else sB4}']
    if TOUCH_ONLY[0]:
        return out + [nodep(f'buffer_load_dword v{vTD}, {vTW}, {srd(SRD_W1)}, {tD0} offen')]
    lw = sL8
    if u == 4:
        out.append(f's_lshr_b32 {tD1}, {sL8}, 1')
        lw = tD1
    for gr in range(2 if u < 4 else 1):
        if gr:
            out.append(f's_add_u32 {tD0}, {tD0}, {16 * 9216}')
        out.append(f's_add_u32 m0, {lw}, {base + gr * 4096}')
        for i in range(4):
            out.append(Inst(f'buffer_load_dwordx4 v{VDB + i}, {srd(SRD_W1)}, {tD0} offen offset:{i * 1024} lds', tag=f'st{g}'))
    if u == 0:
        out += cs_pieces(g, sCSB, 32768, 4)
    return out


def dma_lin(g, setup, lw, npc):
    if TOUCH_ONLY[0]:
        return [setup[-1]] + [nodep(f'buffer_load_dword v{vTD}, {vTL}, {srd(SRD_WS)}, {tD0} offen sc1')]
    return list(setup) + lin_pieces(g, lw, SLOTB[g], npc)


def dma_q(u):
    g = 5 + u
    if u < 4:
        o = dma_lin(g, [f's_add_u32 {tD0}, {sQ0}, {u * 32768}'] if not OPT['rot'] else
                    sig(tD0, sROTW, 2 * u, tD1) + [f's_lshl_b32 {tD0}, {tD0}, 14', f's_add_u32 {tD0}, {tD0}, {sQ0}'], sL8, 8)
        if u == 0 and not TOUCH_ONLY[0]:
            o = cs_pieces(g, sCSA, 32768, 5) + o
        return o
    o = dma_lin(g, [f's_lshr_b32 {tD1}, {sL8}, 1', f's_mov_b32 {tD0}, {sQ4}'] if not OPT['rot'] else
                sig(tD0, sROT, 8, tD1) + [f's_lshl_b32 {tD0}, {tD0}, 14', f's_add_u32 {tD0}, {tD0}, {sQ4}', f's_lshr_b32 {tD1}, {sL8}, 1'], tD1, 4)
    if not TOUCH_ONLY[0]:
        o += [f's_lshl_b32 {tM1}, {sJ}, 12', f's_add_u32 {tM1}, {tM1}, {L.WS_CSQ}'] + cs_pieces(g, tM1, 16384, 4)
    return o


RUNS = [('A', k) for k in range(4)] + [('B', k) for k in range(4)]


def dma_p(p):
    kind, k = RUNS[p]
    g = 15 + p
    if kind == 'A':
        return dma_lin(g, [f's_mov_b32 {tD0}, {sPF[k]}'], (sL10, sL8)[k % 2], (10, 8)[k % 2])
    return dma_lin(g, [f's_add_u32 {tD0}, {sPF[k]}, {(sBO, sBO2)[k % 2]}'], (sL8, sL6)[k % 2], (8, 6)[k % 2])


def dma_o(_):
    g = 23
    if TOUCH_ONLY[0]:
        return []
    o = [f's_add_u32 {tD0}, {sC}, {sW}', f's_and_b32 {tD1}, {tD0}, 3', f's_mul_i32 {tD0}, {tD1}, 61440', f's_add_u32 {tD0}, {tD0}, {sSLW}',
         f's_add_u32 {tD0}, {tD0}, {54 * 1024}'] + lin_pieces(g, sL6, SLOTB[g], 6)
    o += [f's_lshr_b32 {tD0}, {tD1}, 1', f's_mul_i32 {tD0}, {tD0}, 20480', f's_add_u32 {tD0}, {tD0}, {sSLW}',
          f's_add_u32 {tD0}, {tD0}, {L.SLABW_S + 18 * 1024}', f's_lshl_b32 {tD1}, {sW}, 11'] + lin_pieces(g, tD1, SLOTB[g] + 24576, 2)
    o += [f's_lshl_b32 {tD1}, {sW}, 10', f's_add_u32 {tD0}, {tD1}, {240 * 1024}', f's_cmp_eq_u32 {sW}, 3',
          f's_cselect_b32 {tD0}, {L.SLABW_S + 40 * 1024}, {tD0}', f's_add_u32 {tD0}, {tD0}, {sSLW}'] + lin_pieces(g, tD1, SLOTB[g] + 32768, 1)
    o += [f's_add_u32 {tD0}, {sSLW}, {L.SLABW_O + 80 * 1024}'] + lin_pieces(g, None, SLOTB[g] + 36864, 1)
    return o


def dma_c(u):
    return dma_lin(24 + u, [f's_mov_b32 {tD0}, {(sC0, sC1)[u]}'], sL10, 10)


A0L = dma_a(0, 's93')
cut = [i for i, x in enumerate(A0L) if isinstance(x, Inst)][4] + 1
def early_touch(first_seg, first_stage):
    E(f'''v_and_b32 v8, 7, v1
s_lshl_b32 s84, {sC}, 3
v_add_u32 v8, s84, v8
v_mul_u32_u24 v8, 1152, v8
v_lshrrev_b32 v9, 3, v1
v_lshl_add_u32 v11, v9, 7, v8''')
    E.emit(nodep(f'buffer_load_dword v{vTD}, v11, {srd(SRD_X)}, s86 offen offset:{128 * first_seg}'))
    E(f'''v_mul_u32_u24 v11, 86, v1
v_lshrrev_b32 v11, 8, v11
v_mul_u32_u24 v9, 3, v11
v_sub_u32 v9, v1, v9
v_lshrrev_b32 v15, 2, v11
v_and_b32 v11, 3, v11
v_lshl_add_u32 v11, v15, 7, v11
s_and_b32 s84, {sR}, 7
s_lshl_b32 s84, s84, 2
s_add_u32 s84, s84, {128 * first_stage}
v_add_u32 v11, s84, v11
v_mul_u32_u24 v11, 9216, v11
v_lshl_add_u32 v11, v9, 7, v11
v_cmp_gt_u32 vcc, {12 * (4 - first_stage)}, v1
v_cndmask_b32 v11, v7, v11, vcc''')
    E.emit(nodep(f'buffer_load_dword v{vTD}, v11, {srd(SRD_W1)}, s93 offen'))
    if first_seg == 0:
        E.emit(nodep(f'buffer_load_dword v{vTD}, v8, {srd(SRD_X)}, s86 offen offset:1024'))


if OPT['tfirst']:
    early_touch(0, 0)
else:
    emit_all(xload(0, 's86') + A0L[:cut])
    E(f's_mov_b32 s97, {tD0}')
stamp()
mk_srd(SRD_DBG, P_DBG, 256)
E(f'''s_or_b32 s{NONCE}, s{NONCE}, 1
v_mov_b32 v8, s{NONCE}
v_mov_b32 v9, s{NONCE + 1}
v_mov_b32 v14, 0
v_cmp_eq_u32 vcc, 0, v1
v_cndmask_b32 {vF0}, v7, v14, vcc
s_or_b32 s85, s2, {sW}
s_cmp_eq_u32 s85, 0
s_cselect_b32 s85, 0, {OOB}''')
E(f'buffer_store_dwordx2 v[8:9], {vF0}, {srd(SRD_DBG)}, s85 offen sc1')
if OPT['wsoff']:
    E(f's_add_u32 s{P_WS}, s{P_WS}, {OPT["wsoff"] << 20}\ns_addc_u32 s{P_WS + 1}, s{P_WS + 1}, 0')
mk_srd(SRD_WS, P_WS, 0x10000000 - (OPT['wsoff'] << 20))
mk_srd(SRD_B, P_B1, 9216)
mk_srd(SRD_OUT, P_OUT, 2359296)
U2C = '''s_add_u32 {d}, s2, 48
s_cmp_ge_u32 s2, 144
s_cselect_b32 {d}, 255, {d}
s_sub_u32 {t}, s2, 208
s_cmp_ge_u32 s2, 208
s_cselect_b32 {d}, {t}, {d}'''
E(U2C.format(d='s84', t='s85') if OPT['umap'] else 's_sub_u32 s84, s2, 92')
E(f'''s_cmp_lt_u32 s84, 144
s_cselect_b32 s{SRD_RP}, s{P_W2}, s{P_WO}
s_cselect_b32 s{SRD_RP + 1}, s{P_W2 + 1}, s{P_WO + 1}
s_mov_b32 s{SRD_RP + 2}, 5308416
s_cselect_b32 s{SRD_RP + 2}, s{SRD_RP + 2}, 663552
s_mov_b32 s{SRD_RP + 3}, 0x20000''')
if OPT['mtouch']:
    mall_touch(OPT['mtouch'])
vU, vA1, vZ = 'v2', 'v3', f'v{TMP + 32}'
sU1 = 's98'
E(f'''s_lshr_b32 s85, s2, 3
s_and_b32 s84, s2, 1
s_lshl_b32 s84, s84, 1
s_cmp_ge_u32 s85, 9
s_cselect_b32 s94, 9, 0
s_cselect_b32 s95, 1, 0
s_sub_u32 s94, s85, s94
s_mul_i32 s96, {sS}, 9
s_add_u32 s94, s94, s96
s_lshl_b32 s94, s94, 2
s_add_u32 s94, s94, s84
s_add_u32 s94, s94, s95
s_add_u32 {sU1}, s94, 64
s_sub_u32 s94, s85, 18
s_and_b32 s95, s94, 3
s_lshl_b32 s96, {sS}, 2
s_add_u32 s95, s95, s96
s_lshl_b32 s95, s95, 2
s_add_u32 s95, s95, s84
s_lshr_b32 s94, s94, 2
s_add_u32 s95, s95, s94
s_cmp_ge_u32 s85, 18
s_cselect_b32 {sU1}, s95, {sU1}
s_cmp_ge_u32 s85, 26
s_cselect_b32 {sU1}, 255, {sU1}''')
if not OPT['umap']:
    E(f's_mov_b32 {sU1}, s2')
E(f'''s_and_b32 s84, {sU1}, 3
s_lshr_b32 s85, {sW}, 1
s_lshl_b32 s85, s85, 5
s_and_b32 s94, {sW}, 1
s_lshl_b32 s94, s94, 2
s_add_u32 s85, s85, s94
s_lshl_b32 s94, s84, 3
s_add_u32 s85, s85, s94
v_lshrrev_b32 v8, 4, v1
v_and_b32 v9, 15, v1
v_bfe_u32 v11, v1, 4, 1
v_lshrrev_b32 v3, 5, v1
v_lshlrev_b32 v3, 3, v3
v_bfe_u32 v15, v1, 2, 2
v_add_u32 v3, v3, v15
v_lshlrev_b32 v3, 8, v3
v_add_u32 v3, {AUX}, v3
s_cmp_ge_u32 {sU1}, 64
s_cbranch_scc1 L_EU_W1
s_lshr_b32 s94, {sU1}, 2
s_mov_b32 s{SRD_EU}, s{P_WQKV}
s_mov_b32 s{SRD_EU + 1}, s{P_WQKV + 1}
s_mov_b32 s{SRD_EU + 2}, 1990656
s_mov_b32 {sUST}, {64 * 3456}
s_mul_i32 {sUS}, s85, 3456
s_mul_i32 s95, s94, 72
s_add_u32 {sUS}, {sUS}, s95
s_mul_i32 {sUD}, s94, {L.SLABQ_SZ}
s_lshl_b32 s95, s84, 2
s_add_u32 s95, s95, {sW}
s_lshl_b32 s95, s95, 10
s_add_u32 {sUD}, {sUD}, s95
s_add_u32 {sUD}, {sUD}, {L.WS_SLABQ}
s_lshl_b32 {sUC}, s94, 12
s_add_u32 {sUC}, {sUC}, {L.WS_CSQ}
s_mov_b32 s96, {OOB}
v_mul_u32_u24 v8, 3456, v8
v_mul_u32_u24 v15, 13, v9
v_lshrrev_b32 v15, 6, v15
v_mul_u32_u24 v2, 5, v15
v_sub_u32 v9, v9, v2
v_mul_u32_u24 v15, 1152, v15
v_add_u32 v8, v8, v15
v_lshl_add_u32 {vU}, v9, 4, v8
v_lshlrev_b32 v11, 2, v11
v_and_b32 v8, 1, v1
v_lshl_add_u32 v11, v8, 1, v11
v_bfe_u32 v8, v1, 1, 1
v_add_u32 v11, v11, v8
s_lshl_b32 s95, {sW}, 3
v_add_u32 v11, s95, v11
v_min_u32 v11, 26, v11
v_mul_u32_u24 v8, 57, v11
v_lshrrev_b32 v8, 9, v8
v_lshl_add_u32 v11, v11, 3, v3
v_lshl_add_u32 {vA1}, v8, 3, v11
s_branch L_EU_DONE
L_EU_W1:
s_sub_u32 s94, {sU1}, 64
s_lshr_b32 s94, s94, 2
s_mov_b32 s{SRD_EU}, s{P_W1}
s_mov_b32 s{SRD_EU + 1}, s{P_W1 + 1}
s_mov_b32 s{SRD_EU + 2}, 5308416
s_mov_b32 {sUST}, {64 * 9216}
s_mul_i32 {sUS}, s85, 9216
s_lshl_b32 s95, s94, 8
s_add_u32 {sUS}, {sUS}, s95
s_mov_b32 {sUD}, {OOB}
s_lshl_b32 {sUC}, s94, 12
s_add_u32 {sUC}, {sUC}, {L.WS_CSF}
s_lshl_b32 s96, {sW}, 6
s_add_u32 s96, s96, s95
s_cmp_eq_u32 s84, 0
s_cselect_b32 s96, s96, {OOB}
s_cmp_lt_u32 {sU1}, 208
s_cselect_b32 {sUS}, {sUS}, {OOB}
s_cselect_b32 {sUC}, {sUC}, {OOB}
v_mul_u32_u24 v8, 9216, v8
v_lshl_add_u32 {vU}, v9, 4, v8
v_lshl_add_u32 v3, v11, 5, v3
v_lshl_add_u32 v3, v4, 3, v3
s_lshl_b32 s95, {sW}, 6
v_add_u32 {vA1}, s95, v3
L_EU_DONE:
s_lshl_b32 s95, {sW}, 10
s_add_u32 {sUC}, {sUC}, s95
s_lshl_b32 s94, s84, 2
s_add_u32 {sUC}, {sUC}, s94
v_and_b32 v8, 31, v1
v_lshlrev_b32 v8, 1, v8
s_nop 2''')
if not OPT['tfirst']:
    E(f's_mov_b32 {tD0}, s97')
    emit_all(A0L[cut:] + xload(1, 's86'))
E(f'buffer_load_ushort {vZ}, v8, {srd(SRD_B)}, s96 offen')
mk_srd(SRD_B, 78 if OPT['rot'] else P_B2, 1152)
def eu_dma():
    for i in range(9):
        E(f's_add_u32 m0, s95, {AUX + i * 4096}')
        E(f'buffer_load_dwordx4 {vU}, {srd(SRD_EU)}, {sUS} offen lds', tag='eu')
        if i < 8:
            E(f's_add_u32 {sUS}, {sUS}, {sUST}')


if OPT['tfirst']:
    eu_dma()
E(f'''s_mov_b32 {sXB}, s86
{'s_nop 0' if OPT['rot'] else f's_add_u32 {sXB2}, s86, 640'}
s_mov_b32 {sA0}, s93
s_add_u32 {sB0}, s92, s91
s_mul_i32 s84, {sW}, {16 * 9216}
s_add_u32 s84, s84, {0 if OPT['rot'] else 512 * 9216}
s_add_u32 s84, s84, s89
s_add_u32 {sA4}, s84, s90
s_add_u32 {sB4}, s84, s91
s_lshl_b32 {sL8}, {sW}, 13
s_mul_i32 {sL9}, {sW}, 9216
s_lshl_b32 {sBO2}, {sW}, 11
s_sub_u32 {sBO2}, 30720, {sBO2}
s_cmp_eq_u32 {sW}, 3
s_cselect_b32 {sBO}, 10240, {sBO2}
s_mul_i32 {sL6}, {sW}, 6144
s_mul_i32 s84, {sJ}, {L.SLABQ_SZ}
s_add_u32 s84, s84, {L.WS_SLABQ}
s_and_b32 s85, {sL8}, {0x3fff if OPT['rot'] else 0xffff}
s_add_u32 {sQ0}, s84, s85
s_lshl_b32 s85, {sW}, 12
s_add_u32 {sQ4}, s84, s85
s_add_u32 {sQ4}, {sQ4}, {0 if OPT['rot'] else 8 * 16384}
s_mul_i32 s84, {sJ}, 9216
s_add_u32 s84, s84, {L.WS_CSF}
s_lshl_b32 s90, s90, 4
s_lshl_b32 s91, s91, 4
s_add_u32 {sCSA}, s84, s90
s_add_u32 {sCSB}, s84, s91
s_mul_i32 {sGB}, s87, {L.G_WAVE}
s_add_u32 {sGB}, {sGB}, {L.WS_G}
s_mul_i32 {sSLW}, {sJ}, {L.SLABW_SZ}
s_add_u32 {sSLW}, {sSLW}, {L.WS_SLABW}''')
for k in range(4):
    E(f's_add_u32 s84, {sC}, {k}\ns_and_b32 s84, s84, 3\ns_mul_i32 s85, s84, 61440\ns_add_u32 s85, s85, {sL10 if k % 2 == 0 else sL8}')
    if k % 2 == 0:
        E(f's_lshr_b32 s90, s84, 1\ns_mul_i32 s90, s90, 20480\ns_add_u32 s90, s90, {L.SLABW_S}')
        E(f's_cmp_eq_u32 {sW}, 3\ns_cselect_b32 s85, s90, s85')
    E(f's_add_u32 {sPF[k]}, s85, {sSLW}')
    if k:
        E(f's_sub_u32 s84, s84, {sC}\ns_mul_i32 s84, s84, {L.G_WG}\ns_add_u32 {sGP[k]}, s84, {sGB}')
for u, d in enumerate((sC0, sC1)):
    E(f's_lshr_b32 s84, {sW}, 1\ns_add_u32 s84, s84, {sC}\ns_add_u32 s84, s84, {2 - 2 * u}\ns_and_b32 s84, s84, 3\ns_mul_i32 s84, s84, 20480\n'
      f's_and_b32 s85, {sW}, 1\ns_mul_i32 s85, s85, 10240\ns_add_u32 s84, s84, s85\ns_add_u32 s84, s84, {sSLW}\ns_add_u32 {d}, s84, {L.SLABW_O}')
E(f'''s_lshl_b32 {sGF}, {sR}, 2
s_add_u32 {sGF}, {sGF}, {sS}
s_lshl_b32 {sGF}, {sGF}, 2
s_add_u32 {sGF}, {sGF}, {sW}
s_lshl_b32 {sGF}, {sGF}, 7
s_add_u32 {sGF}, {sGF}, {L.WS_FLAG_G}
s_lshl_b32 {sSTB}, {sR}, 2
s_add_u32 {sSTB}, {sSTB}, {sW}
s_lshl_b32 {sSTB}, {sSTB}, 7
s_add_u32 {sSTB}, {sSTB}, {L.WS_STAT}
s_mov_b64 {M16}, 0xffff
s_mov_b32 s34, 0x55555555
s_mov_b32 s35, 0x55555555
s_mov_b32 s36, 0x33333333
s_mov_b32 s37, 0x33333333''')
if not OPT['tfirst']:
    eu_dma()
E(f'''s_and_b32 s84, {sR}, 7
v_mul_u32_u24 v8, 86, v1
v_lshrrev_b32 v8, 8, v8
v_mul_u32_u24 v9, 3, v8
v_sub_u32 v9, v1, v9
s_lshl_b32 s85, s84, 2
v_add_u32 v8, s85, v8
v_mul_u32_u24 v8, 9216, v8
v_lshl_add_u32 v8, v9, 7, v8
v_cmp_gt_u32 vcc, 12, v1
v_cndmask_b32 {vTW}, v7, v8, vcc
v_lshlrev_b32 {vTCH}, 7, v1
s_mul_i32 s85, s84, {10 * 128}
v_add_u32 v8, s85, {vTCH}
v_cmp_gt_u32 vcc, 10, v1
v_cndmask_b32 {vTL}, v7, v8, vcc
v_lshrrev_b32 v8, 5, v1
v_lshlrev_b32 v8, 5, v8
v_bfe_u32 v9, v1, 2, 2
v_add_u32 v8, v8, v9
v_bfe_u32 v11, v1, 4, 1
v_lshlrev_b32 v11, 5, v11
v_lshl_add_u32 v11, v4, 3, v11
v_mul_u32_u24 v15, 320, v8
v_add_u32 {vTA}, v15, v11
v_lshl_add_u32 v15, v8, 8, v11
v_add_u32 v15, {SLOTB[10]}, v15
v_lshrrev_b32 v8, 4, v1
v_xor_b32 v11, v9, v8
v_mul_u32_u24 v8, 9216, v8
v_lshl_add_u32 v8, v11, 6, v8
v_lshl_add_u32 v{VDB}, v4, 4, v8''')
for i in range(1, 4):
    E(f'v_add_u32 v{VDB + i}, {i * (4 * 9216 - 1024)}, v{VDB}')
E(f'''v_mov_b32 {vMASKHI}, 0xffff0000
v_cndmask_b32 {vREM}, v7, {vLANE16}, {M16}
v_mov_b32 v{TMP + 33}, v7''')
for t in range(4):
    E(f'v_xor_b32 v8, {t}, v9\nv_lshl_add_u32 v{TMP + t}, v8, 6, v15')
E(f'''v_and_b32 v8, 15, v1
v_lshrrev_b32 v9, 4, v1
v_lshlrev_b32 v9, 2, v9
v_sub_u32 v8, v8, v9
v_mov_b32 v15, 0xf149f2ca
v_mov_b32 v9, 0x3f803f80''')
for i in range(4):
    E(f'''v_accvgpr_write_b32 a{ONESR + i}, v9
v_subrev_u32 v11, {i}, v8
v_and_b32 v11, 0x80000001, v11
v_cmp_eq_u32 vcc, 0, v11
v_cndmask_b32 v{BIASR + 4 + i}, v15, v14, vcc
v_xor_b32 v11, 0x80000000, v11
v_cmp_eq_u32 vcc, 0, v11
v_cndmask_b32 v{BIASR + i}, v15, v14, vcc''')
E(f'''v_and_b32 v8, 31, v1
s_lshl_b32 s85, {sJ}, 2
v_add_u32 v11, s85, v8
s_mul_i32 s85, {sJ}, 9
s_andn2_b32 s85, s85, 3
s_add_u32 s85, s85, 60
v_add_u32 v15, s85, v8
v_min_u32 v15, 207, v15
v_cmp_gt_u32 vcc, 4, v8
v_cndmask_b32 v11, v15, v11, vcc
v_bfe_u32 v15, v1, 2, 2
v_lshlrev_b32 v15, 1, v15
v_lshl_add_u32 v15, v4, 3, v15
s_lshl_b32 s85, s84, 5
s_lshr_b32 s84, {sR}, 3
s_add_u32 s85, s85, s84
v_add_u32 v15, s85, v15
v_add_u32 v11, {(L.WS_FLAG_U - L.WS_FLAG_E) // 8}, v11
v_cmp_gt_u32 vcc, 16, v8
v_cndmask_b32 v11, v15, v11, vcc
v_lshlrev_b32 v11, 3, v11
v_add_u32 {vPA}, {L.WS_FLAG_E}, v11''')
for t in range(4):
    E(f'v_mov_b32 v{VTB + t}, v{TMP + t}')
stamp()
if OPT['tfirst']:
    emit_all(xload(0) + dma_a(0) + xload(1))
if OPT['x23']:
    emit_all(xload(2) + xload(3))
stamp()
a0, a1, q0, q1 = (f'v{TMP + i}' for i in range(4))
E(f'v_mov_b32 {a0}, 0\nv_mov_b32 {a1}, 0\nv_mov_b32 {q0}, 0\nv_mov_b32 {q1}, 0')
for e in range(12):
    r = f'v{E1R + e}'
    E(f'v_dot2_f32_bf16 {(a0, a1)[e & 1]}, {r}, v9, {(a0, a1)[e & 1]}')
    E(f'v_dot2_f32_bf16 {(q0, q1)[e & 1]}, {r}, {r}, {(q0, q1)[e & 1]}')
E(f'v_add_f32 {a0}, {a0}, {a1}\nv_add_f32 {q0}, {q0}, {q1}')
for sh in (1, 2, 4, 8):
    E(f'v_add_f32_dpp {a0}, {a0}, {a0} row_shr:{sh} row_mask:0xf bank_mask:0xf bound_ctrl:0')
    E(f'v_add_f32_dpp {q0}, {q0}, {q0} row_shr:{sh} row_mask:0xf bank_mask:0xf bound_ctrl:0')
E(f'v_add_f32_dpp {a0}, {a0}, {a0} row_bcast:15 row_mask:0xa bank_mask:0xf')
E(f'v_add_f32_dpp {q0}, {q0}, {q0} row_bcast:15 row_mask:0xa bank_mask:0xf')
E(f'''v_mul_f32 {a0}, 0x3ae38e39, {a0}
v_mul_f32 {q0}, 0x3ae38e39, {q0}
v_fma_f32 {q0}, -{a0}, {a0}, {q0}
v_max_f32 {q0}, 0, {q0}
v_cvt_pk_bf16_f32 {q0}, {q0}, {q0}
v_lshlrev_b32 {q0}, 16, {q0}
v_add_f32 {q0}, 0x3727c5ac, {q0}
v_cvt_pk_bf16_f32 {q0}, {q0}, {q0}
v_lshlrev_b32 {q0}, 16, {q0}
v_sqrt_f32 {q0}, {q0}
v_and_b32 {a1}, 31, v1
v_cvt_pk_bf16_f32 {a0}, {a0}, {q0}
v_lshrrev_b32 {q1}, 5, v1
v_lshlrev_b32 {q1}, 2, {q1}
v_cmp_eq_u32 vcc, 31, {a1}
v_cndmask_b32 {q1}, v{TMP + 33}, {q1}, vcc
s_lshl_b32 s84, s87, 3
s_add_u32 s84, s84, {L.WS_STAT}''')
E(f'buffer_store_dword {a0}, {q1}, {srd(SRD_WS)}, s84 offen sc1', tag='eust')
NONL = f'buffer_load_dwordx2 v[{vNON}:{vNON + 1}], v14, {srd(SRD_DBG)}, 0 offen sc1'
stamp()

X1 = 'quad_perm:[1,0,3,2] row_mask:0xf bank_mask:0xf'
X2 = 'quad_perm:[2,3,0,1] row_mask:0xf bank_mask:0xf'


def transpose_seg(q):
    R = lambda i, d: f'v{XN + 16 * q + 4 * i + d}'
    Tm = lambda i, d: f'v{TMP + 4 * i + d}'
    o = [f's_mov_b64 vcc, {MX1}']
    for i0 in (0, 2):
        for d in range(4):
            o.append(f'v_cndmask_b32_dpp {Tm(i0, d)}, {R(i0 + 1, d)}, {R(i0, d)}, vcc {X1}')
    o.append('s_not_b64 vcc, vcc')
    for i0 in (0, 2):
        for d in range(4):
            o.append(f'v_cndmask_b32_dpp {Tm(i0 + 1, d)}, {R(i0, d)}, {R(i0 + 1, d)}, vcc {X1}')
    o.append(f's_mov_b64 vcc, {MX2}')
    for i0 in (0, 1):
        for d in range(4):
            o.append(f'v_cndmask_b32_dpp {R(i0, d)}, {Tm(i0 + 2, d)}, {Tm(i0, d)}, vcc {X2}')
        o.append(('mark', f't{q}_{i0}'))
    o.append('s_not_b64 vcc, vcc')
    for i0 in (0, 1):
        for d in range(4):
            o.append(f'v_cndmask_b32_dpp {R(i0 + 2, d)}, {Tm(i0, d)}, {Tm(i0 + 2, d)}, vcc {X2}')
        o.append(('mark', f't{q}_{i0 + 2}'))
    return o


k = 0
for x in transpose_seg(0):
    if isinstance(x, str):
        E(x)
        k += 1
        if k % 3 == 0:
            E('v_nop')
stamp()

fragi = [0]


def newfrag():
    f = FR + 4 * (fragi[0] % NF)
    fragi[0] += 1
    return f


RA = OPT['rp2at']
BAR_TAGS = {2: ['eust'], RA + 1: ['rp2'], RA + 4: ['rp2st']}
BAR_MARKS = {2: ['eudone'], RA + 1: ['rp2dma'], RA + 3: ['rp2done'], OPT['auxat'] - 1: ['odone']}


def barrier(g, post=()):
    def f():
        if OPT['stamps'] > 2:
            stamp()
        E.wait_tags([f'st{g}'] + BAR_TAGS.get(g, []))
        if OPT['drain']:
            E.wait_all(vm=False)
        E('s_barrier')
        if OPT['stamps'] > 1:
            stamp()
        S.marks.add(f'B{g}')
        if 'odone' in S.marks:
            S.marks.add('Bodone')
        S.log.append((S.cur, 'BARRIER', g, 0))
        emit_all(post)
    return f


def eu_barrier():
    E.wait_tags(['eu'])
    E('s_barrier')
    S.marks.add('Bx')


def prereq(g):
    return ([f'dma{g}'] if g >= 1 else []) + BAR_MARKS.get(g, [])


def rl_post(g):
    return [f'v_add_u32 {vRL}, {SLOTB[g]}, {vLANE16}']


ops = []
for q in range(9):
    u, sg = q // 2, q % 2
    g = u
    for k, (jj, n) in enumerate([(jj, n) for jj in range(4) for n in range(5)]):
        f = newfrag()
        off = sg * 20480 + 8 * jj * 320 + 64 * n
        x = XN + 16 * q + 4 * jj
        first = (k == 0 and sg == 0)
        post = []
        if g:
            d = SLOTB[g] - SLOTB[g - 1]
            post = [f'v_add_u32 {vTA}, {d}, {vTA}' if d > 0 else f'v_subrev_u32 {vTA}, {-d}, {vTA}']
        acc = f'a[{16 * n}:{16 * n + 15}]'
        ops.append(Op([f'ds_read_b64_tr_b16 v[{f}:{f + 1}], {vTA} offset:{off}',
                       f'ds_read_b64_tr_b16 v[{f + 2}:{f + 3}], {vTA} offset:{off + 4 * 320}'],
                      [f'v_mfma_f32_32x32x16_bf16 {acc}, v[{f}:{f + 3}], v[{x}:{x + 3}], {"0" if (q == 0 and jj == 0) else acc}'],
                      name=f'a{q}' if k == 0 else None,
                      pre=barrier(g, post) if first else (eu_barrier if (q == 0 and k == OPT['bx']) else None),
                      requires=[f't{q}_{jj}'] if q else [],
                      pre_requires=prereq(g) if first else [], budget=OPT['bA']))
for n in range(5):
    f = newfrag()
    acc = f'a[{16 * n}:{16 * n + 15}]'
    ops.append(Op([f'ds_read_b128 v[{f}:{f + 3}], {vRL} offset:{32768 + 1024 * n}'],
                  [f'v_mfma_f32_32x32x16_bf16 {acc}, v[{f}:{f + 3}], v[{BCOR}:{BCOR + 3}], {acc}'],
                  name=f'fin{n}', pre=barrier(5, rl_post(5)) if n == 0 else None, pre_requires=prereq(5) if n == 0 else [],
                  requires=['bcor'], budget=OPT['bQ']))
for q in range(9):
    u, sg = q // 2, q % 2
    g = 5 + u
    for k, (jj, t4) in enumerate([(jj, t4) for jj in range(4) for t4 in range(4)]):
        f = newfrag()
        x = XN + 16 * q + 4 * jj
        acc = f'a[{QA + 16 * t4}:{QA + 16 * t4 + 15}]'
        first = (k == 0 and sg == 0 and u > 0)
        ops.append(Op([f'ds_read_b128 v[{f}:{f + 3}], {vRL} offset:{(sg * 16 + jj * 4 + t4) * 1024}'],
                      [f'v_mfma_f32_32x32x16_bf16 {acc}, v[{f}:{f + 3}], v[{x}:{x + 3}], {"0" if (q == 0 and jj == 0) else acc}'],
                      pre=barrier(g, rl_post(g)) if first else None,
                      pre_requires=prereq(g) if first else [], budget=OPT['bQ']))
for t4 in (1, 2, 3, 0):
    f = newfrag()
    acc = f'a[{QA + 16 * t4}:{QA + 16 * t4 + 15}]'
    ops.append(Op([f'ds_read_b128 v[{f}:{f + 3}], {vRL} offset:{16384 + 1024 * t4}'],
                  [f'v_mfma_f32_32x32x16_bf16 {acc}, v[{f}:{f + 3}], v[{BCOR}:{BCOR + 3}], {acc}'], name=f'qfin{t4}', budget=OPT['bQ']))
for t in range(4):
    f = newfrag()
    lam = 5 + t
    ops.append(Op([f'ds_read_b128 v[{f}:{f + 3}], {vRL} offset:{32768 + 1024 * t}'],
                  [f'v_mfma_f32_32x32x16_bf16 a[{16 * lam}:{16 * lam + 15}], v[{f}:{f + 3}], v[{BCOR}:{BCOR + 3}], 0'],
                  pre=barrier(10, rl_post(10)) if t == 0 else None, pre_requires=prereq(10) if t == 0 else [],
                  name=f'bcor{t}', budget=OPT['bQ']))
for q in range(9):
    u, sg = q // 2, q % 2
    g = 10 + u
    order = [(jj, n) for jj in range(4) for n in range(4)] if q < 8 else [(jj, n) for n in range(4) for jj in range(4)]
    for k, (jj, t) in enumerate(order):
        f = newfrag()
        lam = 5 + t
        off = sg * 16384 + 8 * jj * 256
        x = XN + 16 * q + 4 * jj
        first = (k == 0 and sg == 0 and u > 0)
        post = []
        if u > 0:
            d = SLOTB[g] - SLOTB[g - 1]
            post = [(f'v_add_u32 v{VTB + i}, {d}, v{VTB + i}' if d > 0 else f'v_subrev_u32 v{VTB + i}, {-d}, v{VTB + i}') for i in range(4)]
        ops.append(Op([f'ds_read_b64_tr_b16 v[{f}:{f + 1}], v{VTB + t} offset:{off}',
                       f'ds_read_b64_tr_b16 v[{f + 2}:{f + 3}], v{VTB + t} offset:{off + 4 * 256}'],
                      [f'v_mfma_f32_32x32x16_bf16 a[{16 * lam}:{16 * lam + 15}], v[{f}:{f + 3}], v[{x}:{x + 3}], a[{16 * lam}:{16 * lam + 15}]'],
                      name=f'fin{lam}' if (q == 8 and jj == 3) else (f'bs{q}' if k == 15 else None), pre=barrier(g, post) if first else None,
                      pre_requires=prereq(g) if first else [], budget=OPT['bB']))


def HP(lam):
    return 8 * lam if lam < 5 else 80 + 8 * (lam - 5)


ACT = {}
for ks in range(18):
    ACT[(0, ks)] = ('a', HP(ks // 2) + 4 * (ks & 1))
pool = [('a', 144 + 4 * i) for i in range(12)] + [('a', 40), ('a', 44)] + [('v', 16 + 4 * i) for i in range(36)] + \
       [('a', 128 + 4 * i) for i in range(4)] + [('a', 192 + 4 * i) for i in range(8)] + [('v', BIASR)]
order = [(k, ks) for k in (1, 2, 3) for ks in range(10)] + [(k, ks) for k in (1, 2, 3) for ks in range(10, 18)] + \
        [(k, ks) for k in range(4) for ks in (18, 19)] + ['rem']
assert len(pool) == len(order)
for key, r in zip(order, pool):
    ACT[key] = r
ACT['remS'] = ('v', BIASR + 4)


def act_regs(key):
    k, r = ACT[key]
    return f'{k}[{r}:{r + 3}]'


def kname(key):
    return key if isinstance(key, str) else f'{key[0]}_{key[1]}'


ACC2 = [48, 64, 224, 240, 112]


def acc2(n):
    return f'a[{ACC2[n]}:{ACC2[n] + 15}]'


def act_req(key):
    if key != 'rem' and key != 'remS' and key[0] == 0 and key[1] < 18:
        return [f'h{key[1] // 2}']
    return [f'act{kname(key)}']


def p2op(g, pos, n, key, zero=False, first=False, name=None, req=()):
    f = newfrag()
    ops.append(Op([f'ds_read_b128 v[{f}:{f + 3}], {vRL} offset:{pos * 1024}'],
                  [f'v_mfma_f32_32x32x16_bf16 {acc2(n)}, v[{f}:{f + 3}], {act_regs(key)}, {"0" if zero else acc2(n)}'],
                  name=name, pre=barrier(g, rl_post(g)) if first else None, pre_requires=prereq(g) if first else [],
                  requires=act_req(key) + list(req), budget=OPT['bP']))


for p, (kind, k) in enumerate(RUNS):
    g = 15 + p
    nk = 10 if kind == 'A' else 8
    for kk in range(nk):
        key = (k, kk + (10 if kind == 'B' else 0))
        z = (p == 0 and kk == 0)
        for n in range(3):
            p2op(g, kk * 3 + n, n, key, zero=z, first=(kk == 0 and n == 0), req=['h4'] if z else [])
        if k % 2 == 0:
            p2op(g, 3 * nk + kk, 3, key, zero=z)
for i, (k, ks) in enumerate(((0, 18), (0, 19), (2, 18), (2, 19))):
    p2op(23, 24 + 2 * k + (ks - 18), 3, (k, ks), first=(i == 0))
p2op(23, 35, 3, 'remS', name='pend3')
for n in range(3):
    for k in range(4):
        for ks in (18, 19):
            p2op(23, 6 * k + 3 * (ks - 18) + n, n, (k, ks))
    p2op(23, 32 + n, n, 'rem', name=f'pend{n}')
p2op(23, 36, 4, 'rem', zero=True, name='c0')
for u, pair in enumerate(((2, 3), (1, 0))):
    for k in pair:
        for ks in (list(range(10, 20)) + list(range(10))):
            nm = 'rxfree' if (k == 1 and ks == OPT['rxks']) else None
            p2op(24 + u, (k & 1) * 20 + ks, 4, (k, ks), first=(k == pair[0] and ks == 10), name=nm)

npoll = [0]


def poll_check(load_txt, cmp_lines, tag):
    k = npoll[0]
    npoll[0] += 1
    E.wait_tags([tag])
    E(f'L_PC{k}:')
    E(cmp_lines)
    E(f's_cmp_lg_u64 {SPOLL}, 0')
    E(f's_cbranch_scc1 L_PS{k}')
    E(f'L_PR{k}:')
    slow_paths.append((k, load_txt))


def flags_cmp(v):
    return f'v_cmp_ne_u64 {SPOLL}, s[{NONCE}:{NONCE + 1}], v[{v}:{v + 1}]'


def poll_item(setup, va, vd, tag, gap):
    fl_ = ' nt' if (OPT.get('gplain') and tag in ('pfa', 'pfb', 'pfo')) else ' sc1'
    ld = f'buffer_load_dwordx2 v[{vd}:{vd + 1}], {va}, {srd(SRD_WS)}, 0 offen{fl_}'
    return ([setup] if setup else []) + [Inst(ld, tag=tag), ('gap', gap), ('call', lambda: poll_check(ld, flags_cmp(vd), tag))]


def get_nonce():
    poll_check(NONL, f'v_cmp_eq_u32 {SPOLL}, 0, v{vNON}', 'nonce')
    E(f'v_readfirstlane_b32 s{NONCE}, v{vNON}\nv_readfirstlane_b32 s{NONCE + 1}, v{vNON + 1}')


def wave_flag(soff, need, off=0):
    fl_ = GS if (need and need[0] in ('gsta', 'gstb', 'ost')) else ' sc1'
    return Inst(f'buffer_store_dwordx2 v[{vNON}:{vNON + 1}], {vF0}, {srd(SRD_WS)}, {soff} offen offset:{off}{fl_}', need=need)


st_tr = Stream('tr', own_vcc=True)
for q in range(1, 9):
    st_tr.add([('after', f'a{q - 1}')] + ([('after', f'xl{q}')] if q > (3 if OPT['x23'] else 1) else []) + transpose_seg(q))
st_tr.add([('mark', 'trdone')])

RPT = TMP + 16
st_rp = Stream('rp')
st_rp.add([Inst(NONL, tag='nonce'), ('after', 'Bx')])
CSA_ = 'a[144:159]'
for f in range(11):
    if f < 9:
        t = RPT + 4 * (f % 4)
        st_rp.add([f'ds_read_b64_tr_b16 v[{t}:{t + 1}], {vA1} offset:{f * 4096}', f'ds_read_b64_tr_b16 v[{t + 2}:{t + 3}], {vA1} offset:{f * 4096 + 1024}'])
    else:
        st_rp.add([('gap', 2)])
    if f >= 2:
        f2 = f - 2
        t2 = RPT + 4 * (f2 % 4)
        st_rp.add([Inst(f'buffer_store_dwordx4 v[{t2}:{t2 + 3}], {vLANE16}, {srd(SRD_WS)}, {sUD} offen sc1', tag='eust'),
                   f'v_mfma_f32_32x32x16_bf16 {CSA_}, a[{ONESR}:{ONESR + 3}], v[{t2}:{t2 + 3}], {"0" if f2 == 0 else CSA_}',
                   f's_add_u32 {sUD}, {sUD}, 16384'])
t0, t1, t2 = f'v{RPT}', f'v{RPT + 1}', f'v{RPT + 2}'
st_rp.add([('call', get_nonce), ('mark', 'nonce_ok'), ('gap', 1), f'''v_accvgpr_read_b32 {t0}, a144
v_cvt_pk_bf16_f32 {t1}, {t0}, {t0}
v_lshlrev_b32 {t1}, 16, {t1}
v_sub_f32 {t2}, {t0}, {t1}
v_cvt_pk_bf16_f32 {t0}, {t1}, {t2}
v_cmp_gt_u32 {SPOLL}, 32, v1
v_cndmask_b32 {t0}, {vZ}, {t0}, {SPOLL}''',
           Inst(f'buffer_store_dword {t0}, {vLANE16}, {srd(SRD_WS)}, {sUC} offen sc1', tag='eust'), ('mark', 'eudone')])
st_rp.items[-3].glue = True
st_rp.add([('after', 'B2'), f's_lshl_b32 {tR0}, s2, 3\ns_add_u32 {tR0}, {tR0}, {L.WS_FLAG_E}\ns_cmp_eq_u32 {sW}, 0\ns_cselect_b32 {tR0}, {tR0}, {OOB}',
           wave_flag(tR0, []),
           f's_lshl_b32 {tR0}, {sU1}, 3\ns_add_u32 {tR0}, {tR0}, {L.WS_FLAG_U}\ns_cmp_eq_u32 {sW}, 1\ns_cselect_b32 {tR0}, {tR0}, {OOB}',
           wave_flag(tR0, []), ('mark', 'eupub')])
sU2 = 's71'
st_rp.add([U2C.format(d=sU2, t=tR0) if OPT['umap'] else f's_sub_u32 {sU2}, s2, 92'])
vA2 = 'v2'
st_rp.add([('call', lambda: E(f"""s_mul_i32 {tR1}, {sU2}, 1821
s_lshr_b32 {tR1}, {tR1}, 16
s_mul_i32 {tR0}, {sU2}, 7282
s_lshr_b32 {tR0}, {tR0}, 16
s_mul_i32 {tR2}, {tR0}, 9
s_sub_u32 {tR2}, {sU2}, {tR2}
s_add_u32 {tR3}, {tR2}, 5
s_cmp_ge_u32 {tR3}, 9
s_cselect_b32 {tM0}, 9, 0
s_sub_u32 {tR3}, {tR3}, {tM0}
s_and_b32 {tM0}, {tR0}, 1
s_cmp_eq_u32 {tM0}, 0
s_cselect_b32 {tR2}, {tR3}, {tR2}
s_and_b32 {tR0}, {tR0}, 3
s_mul_i32 {sUS}, {tR0}, 20
s_lshl_b32 {tM0}, {tR2}, 1
s_add_u32 {sUS}, {sUS}, {tM0}
s_mul_i32 {tR0}, {tR0}, 9
s_add_u32 {tR2}, {tR2}, {tR0}
s_lshl_b32 {tR3}, {sU2}, 5
s_lshl_b32 {tR0}, {sW}, 3
s_add_u32 {tR3}, {tR3}, {tR0}
s_mov_b32 {tM0}, 4
s_mov_b32 {tR4}, 8
s_cmp_lt_u32 {sU2}, 144
s_cbranch_scc1 L_RP_W2C
s_sub_u32 {tR0}, {sU2}, 144
s_lshr_b32 {tR1}, {tR0}, 2
s_and_b32 {tR2}, {tR0}, 3
s_mul_i32 {sUS}, {tR2}, 20
s_add_u32 {sUS}, {sUS}, 18
s_add_u32 {tR2}, {tR2}, 36
s_mul_i32 {tR3}, {tR0}, 36
s_lshl_b32 {tR0}, {sW}, 3
s_add_u32 {tR3}, {tR3}, {tR0}
s_lshr_b32 {tR0}, {sW}, 1
s_lshl_b32 {tR0}, {tR0}, 2
s_add_u32 {tR3}, {tR3}, {tR0}
s_mov_b32 {tM0}, 8
s_mov_b32 {tR4}, 4
s_cmp_lt_u32 {sU2}, 160
s_cbranch_scc1 L_RP_W2C
s_sub_u32 {tR1}, {sU2}, 160
s_mov_b32 {tR2}, 40
s_mov_b32 {sUS}, 80
s_lshl_b32 {tR3}, {tR1}, 2
s_add_u32 {tR3}, {tR3}, {sW}
s_mul_i32 {tR3}, {tR3}, 36
s_add_u32 {tR3}, {tR3}, 16
s_mov_b32 {tM0}, 16
s_mov_b32 {tR4}, 8
L_RP_W2C:""")),
           f"""s_mul_i32 {tR3}, {tR3}, 1152
s_cmp_lt_u32 {sU2}, 164
s_cselect_b32 {tR3}, {tR3}, {OOB}
s_mul_i32 {sRPF}, {tR1}, 41
s_add_u32 {sRPF}, {sRPF}, {tR2}""", ('mark', 'rp2setup'),
           f"""v_lshrrev_b32 {t1}, 5, v1
v_mul_lo_u32 {t1}, {t1}, {tM0}
v_bfe_u32 {t2}, v1, 2, 2
v_add_u32 {t0}, {t1}, {t2}
v_mul_u32_u24 {t0}, 1152, {t0}
v_bfe_u32 {t1}, v1, 4, 1
v_lshl_add_u32 {t0}, {t1}, 5, {t0}
v_and_b32 {t1}, 3, v1
v_lshl_add_u32 {t0}, {t1}, 3, {t0}
s_lshr_b32 {tR0}, {sW}, 1
s_mul_i32 {tR0}, {tR0}, 576
s_add_u32 {tR0}, {tR0}, {AUX}
v_add_u32 {vA1}, {tR0}, {t0}
s_mul_i32 {tR4}, {tR4}, 1152
v_add_u32 {vA2}, {tR4}, {vA1}""", ('after', 'rp2dma'),
           f"""s_lshl_b32 {tR2}, {tR1}, 2
s_add_u32 {tR0}, {tR2}, {sW}
s_mul_i32 {tR0}, {tR0}, {L.SLABW_SZ}
s_add_u32 {tR0}, {tR0}, {L.WS_SLABW}
s_cmp_lt_u32 {sU2}, 164
s_cselect_b32 {tR0}, {tR0}, {OOB}
s_mul_i32 {sUD}, {sUS}, 3072
s_add_u32 {sUD}, {sUD}, {tR0}
s_lshl_b32 {tR3}, {sUS}, 10
s_add_u32 {tR3}, {tR3}, {tR0}
s_add_u32 {tR3}, {tR3}, {L.SLABW_O}
s_add_u32 {sUC}, {sUD}, 3072
s_add_u32 {tR4}, {tR3}, 1024
s_cmp_lt_u32 {sUS}, 80
s_cselect_b32 {sUC}, {sUC}, {OOB}
s_cselect_b32 {tR4}, {tR4}, {OOB}
s_mul_i32 {tM0}, {sUS}, 3277
s_lshr_b32 {tM0}, {tM0}, 16
s_mul_i32 {sUST}, {tM0}, 20
s_sub_u32 {sUST}, {sUS}, {sUST}
s_lshr_b32 {tR0}, {tM0}, 1
s_mul_i32 {tR0}, {tR0}, 20
s_add_u32 {sUST}, {sUST}, {tR0}
s_and_b32 {tR0}, {sW}, 1
s_and_b32 {tM0}, {tM0}, 1
s_cmp_lt_u32 {sUS}, 80
s_cselect_b32 {tM0}, {tM0}, {tR0}
s_cselect_b32 {sUS}, {tR0}, 0
s_add_u32 {sUST}, {sUST}, {sUS}
s_lshl_b32 {sUST}, {sUST}, 10
s_andn2_b32 {tR0}, {sW}, 1
s_add_u32 {tR0}, {tR0}, {tM0}
s_add_u32 {tR0}, {tR0}, {tR2}
s_mul_i32 {tR0}, {tR0}, {L.SLABW_SZ}
s_add_u32 {sUST}, {sUST}, {tR0}
s_add_u32 {sUST}, {sUST}, {L.WS_SLABW + L.SLABW_S}
s_cmp_lt_u32 {sU2}, 164
s_cselect_b32 {sUST}, {sUST}, {OOB}
s_mul_i32 {sUS}, {sUS}, {16 * 1152}
s_add_u32 {sUS}, {sUS}, 256
s_and_b32 {tR2}, {sW}, 1
s_mul_i32 {tR2}, {tR2}, 320""", ('after', f'B{RA + 1}')])
vB1_, vB2_ = f'v{TMP + 32}', f'v{TMP + 33}'
frs = []
for lam in range(4):
    pre = [f's_add_u32 {tR0}, {tR1}, {lam + 1}', f's_and_b32 {tR0}, {tR0}, 3', f's_lshl_b32 {tR0}, {tR0}, 6', f's_add_u32 {tR0}, {tR0}, {tR2}',
           f'v_add_u32 {vB1_}, {tR0}, {vA1}', f'v_add_u32 {vB2_}, {tR0}, {vA2}']
    for k2 in range(2):
        dst = ((sUD, sUC)[k2], lam * 1024) if lam < 3 else ((tR3, tR4)[k2], 0)
        frs.append((pre if k2 == 0 else [], k2 * 16 * 1152, dst))
frs.append(([f'v_add_u32 {vB1_}, {sUS}, {vA1}', f'v_add_u32 {vB2_}, {sUS}, {vA2}'], 0, (sUST, 0)))
for f in range(11):
    if f < 9:
        t = RPT + 4 * (f % 4)
        pre, off, _ = frs[f]
        st_rp.add(pre + [f'ds_read_b64_tr_b16 v[{t}:{t + 1}], {vB1_} offset:{off}', f'ds_read_b64_tr_b16 v[{t + 2}:{t + 3}], {vB2_} offset:{off}'])
    else:
        st_rp.add([('gap', 2)])
    if f >= 2:
        f2 = f - 2
        t2_ = RPT + 4 * (f2 % 4)
        sb, im = frs[f2][2]
        st_rp.add([Inst(f'buffer_store_dwordx4 v[{t2_}:{t2_ + 3}], {vLANE16}, {srd(SRD_WS)}, {sb} offen offset:{im} sc1', tag='rp2st')] + ([('gap', OPT['rgap'])] if OPT['rgap'] else []))
st_rp.add([('mark', 'rp2done'), ('after', f'B{RA + 4}'),
           f's_lshl_b32 {tR0}, {sRPF}, 3\ns_add_u32 {tR0}, {tR0}, {L.WS_FLAG_RP}\ns_cmp_lt_u32 {sU2}, 164\ns_cselect_b32 {tR0}, {tR0}, {OOB}\n'
           f's_cmp_eq_u32 {sW}, 0\ns_cselect_b32 {tR0}, {tR0}, {OOB}', wave_flag(tR0, []), ('mark', 'rp2pub')])

STAGE_FN = {}
for u in range(5):
    STAGE_FN[u] = (dma_a, u)
    STAGE_FN[5 + u] = (dma_q, u)
    STAGE_FN[10 + u] = (dma_b, u)
for p in range(8):
    STAGE_FN[15 + p] = (dma_p, p)
STAGE_FN[23] = (dma_o, 0)
for u in range(2):
    STAGE_FN[24 + u] = (dma_c, u)
TOUCH_AT = {2: [4] if OPT['tfirst'] else [3, 4], 3: [10], 4: [11], 5: [6, 7], 6: [8], 7: [12], 8: [13], 9: [14], 12: [15, 16], 13: [17], 14: [18],
            15: [19], 16: [20], 17: [21], 18: [22], 19: [24], 20: [25]}


STAG_AT = {4: [10], 5: [6, 7, 11], 6: [8, 9], 7: [12], 8: [13], 9: [14], 14: [15, 16, 17, 18], 15: [19], 16: [20], 17: [21], 18: [22],
           19: [24], 20: [25]}


def stag_touch(t):
    fn, arg = STAGE_FN[t]
    o = touch(fn, arg)[:-1]
    o += [f's_cmp_eq_u32 {sP8}, {t % 8}', f's_cselect_b32 {tD0}, {tD0}, {OOB}']
    if fn is dma_b:
        o.append(nodep(f'buffer_load_dword v{vTD}, {vTW}, {srd(SRD_W1)}, {tD0} offen'))
    else:
        npc = {dma_q: 8 if arg < 4 else 4, dma_c: 10}.get(fn) or ((10, 8) if RUNS[arg][0] == 'A' else (8, 6))[RUNS[arg][1] % 2]
        if npc < 8:
            o.append(f'v_min_u32 v11, {(8 * npc - 1) * 128}, {vTCH}')
        o.append(nodep(f'buffer_load_dword v{vTD}, {vTCH if npc >= 8 else "v11"}, {srd(SRD_WS)}, {tD0} offen sc1'))
        if npc > 8:
            o += [f's_add_u32 {tD0}, {tD0}, 8192', nodep(f'buffer_load_dword v{vTD}, {vTL}, {srd(SRD_WS)}, {tD0} offen sc1')]
    return o


def paced(items):
    if not OPT['dmagap']:
        return items
    o = []
    for x in items:
        o.append(x)
        if isinstance(x, Inst):
            o.append(('gap', OPT['dmagap']))
    return o


st_dma = Stream('dma')
st_dma.add(([] if OPT['x23'] else xload(2)) + paced(dma_a(1)) + [('mark', 'dma1')] + ([] if OPT['x23'] else xload(3)) + paced(xload(4)))
for g in range(2, NSTG):
    fn, arg = STAGE_FN[g]
    if g == 5:
        st_dma.add([('after', 'e_ok')])
        if OPT['btouch'] == 1:
            def bt1():
                E(f's_and_b32 {tD0}, {sR}, 7\ns_lshl_b32 {tD0}, {tD0}, 2\ns_add_u32 {tD0}, {tD0}, {sW}\ns_mul_i32 {tD1}, {tD0}, {36 * 128}\n'
                  f's_add_u32 {tD1}, {tD1}, {sQ0}\ns_sub_u32 {tD1}, {tD1}, {sL8}\nv_min_u32 v11, {35 * 128}, {vTCH}')
                E.emit(nodep(f'buffer_load_dword v{vTD}, v11, {srd(SRD_WS)}, {tD1} offen sc1'))
                E(f's_mul_i32 {tD1}, {tD0}, {18 * 9216}\ns_add_u32 {tD1}, {tD1}, {sB0}\ns_mul_i32 {tD0}, {sW}, {32 * 9216}\ns_sub_u32 {tD1}, {tD1}, {tD0}\n'
                  f'v_min_u32 v11, 35, v1\nv_lshrrev_b32 {vTW}, 1, v11\nv_mul_u32_u24 {vTW}, 9216, {vTW}\nv_and_b32 v11, 1, v11\nv_lshl_add_u32 v11, v11, 7, {vTW}')
                E.emit(nodep(f'buffer_load_dword v{vTD}, v11, {srd(SRD_W1)}, {tD1} offen'))
            st_dma.add([('call', bt1)])
    if g == AUXAT:
        st_dma.add([('after', 'Bodone')])
    st_dma.add([('after', f'B{max(DMA_AFTER[g], 0) if g > 2 else 0}')] + paced(fn(arg)) + [('mark', f'dma{g}')])
    if g == 2:
        st_dma.add(paced(xload(5) + xload(6)))
    if g == 3:
        st_dma.add(paced(xload(7) + xload(8)))
    if g == 3 and OPT['btouch'] == 2:
        st_dma.add([f's_and_b32 {sP8}, {sR}, 7\nv_lshrrev_b32 {vTW}, 1, v1\nv_mul_u32_u24 {vTW}, 9216, {vTW}\nv_and_b32 v11, 1, v1\n'
                    f'v_lshl_add_u32 {vTW}, v11, 7, {vTW}\nv_min_u32 {vTL}, {15 * 128}, {vTCH}'])
    if g == OPT['rp2at']:
        o = [('after', 'rp2setup')]
        for i in range(9):
            if i % 4 == 0:
                o += [f's_add_u32 m0, {sL9}, {AUX + i * 1024}'] + ([f's_add_u32 {tR3}, {tR3}, 4096'] if i else [])
            o.append(Inst(f'buffer_load_dwordx4 {vLANE16}, {srd(SRD_RP)}, {tR3} offen offset:{(i % 4) * 1024} lds', tag='rp2'))
        st_dma.add(paced(o) + [('mark', 'rp2dma')])
    if g == 14:
        st_dma.add([('after', 'w_ok')])
    if OPT['btouch'] == 2:
        for t in STAG_AT.get(g, []):
            st_dma.add(stag_touch(t))
    if OPT['stouch'] and not (OPT['btouch'] and g > 2):
        for t in TOUCH_AT.get(g, []):
            st_dma.add(touch(*STAGE_FN[t]))


st_pol = Stream('pol')
st_pol.add([('after', 'nonce_ok'), ('after', 'eupub'), ('after', OPT_E)])
st_pol.add(poll_item(None, vPA, vPF, 'pfe', OPT['pchk']) + [('mark', 'e_ok')])
st_pol.add([f'v_and_b32 {vPA}, 31, v1\nv_lshlrev_b32 {vPA}, 2, {vPA}',
            f'buffer_load_dword v{vPF}, {vPA}, {srd(SRD_WS)}, {sSTB} offen sc1', ('gap', 22),
            f"""v_xor_b32 v{vPF + 1}, 0x8000, v{vPF}
v_and_b32 v{vPF + 1}, 0xffff, v{vPF + 1}
v_lshl_or_b32 v{vPF + 1}, v{vPF + 1}, 16, v{vPF + 1}
v_lshrrev_b32 {vPA}, 16, v{vPF}
v_and_b32 v{vPF}, {vMASKHI}, v{vPF}
v_rcp_f32 {vRSTD}, v{vPF}
s_mov_b32 {tC0}, -1
s_mov_b32 {tC1}, 0
v_cndmask_b32 v{BCOR}, {vPA}, v{vPF + 1}, s[92:93]
v_cndmask_b32 v{BCOR + 1}, 0, v{vPF + 1}, s[92:93]
v_cndmask_b32 v{BCOR + 2}, 0, v{vPF + 1}, s[92:93]
v_cndmask_b32 v{BCOR + 3}, 0, v{vPF + 1}, s[92:93]""", ('mark', 'bcor')])
st_pol.add([('after', 'rp2pub'), ('after', 'pubA'), ('after', 'trdone'), ('after', f'B{OPT["pfwat"]}')])
st_pol.add(poll_item(f'v_lshrrev_b32 {vPA}, 1, {vLANE16}\nv_min_u32 {vPA}, {40 * 8}, {vPA}\ns_mul_i32 {tC0}, {sS}, {41 * 8}\n'
                     f's_add_u32 {tC0}, {tC0}, {L.WS_FLAG_RP}\nv_add_u32 {vPA}, {tC0}, {vPA}\n'
                     f'v_and_b32 v{vPF}, 3, v1\nv_lshlrev_b32 v{vPF}, 3, v{vPF}\nv_add_u32 v{vPF}, {sGF}, v{vPF}\n'
                     f'v_cmp_gt_u32 vcc, 48, v1\nv_cndmask_b32 {vPA}, v{vPF}, {vPA}, vcc', vPA, vPF, 'pfw', OPT['pchk']) + [('mark', 'w_ok'), ('mark', 'pf_free')])


def ffn_epi(n, tag):
    o = [('after', f'fin{n}' if n < 5 else 'fin8'), ('gap', 1)]
    t = TMP if n < 5 else 136
    X = t + 8
    for half in range(2):
        for e in range(8):
            o.append(f'v_accvgpr_read_b32 v{t + e}, a{16 * n + 8 * half + e}')
        for e in range(8):
            o.append(f'v_mul_f32 v{t + e}, v{t + e}, |v{t + e}|')
        for p in range(4):
            o.append(f'v_cvt_pk_bf16_f32 v{X + 4 * half + p}, v{t + 2 * p}, v{t + 2 * p + 1}')
        for p in range(4):
            o.append(f'v_pk_max_i16 v{X + 4 * half + p}, v{X + 4 * half + p}, 0')
    if not OPT['hbatch']:
        o.append(f's_add_u32 {tE0}, {sGB}, {2048 * n}')
        o.append(Inst(f'buffer_store_dwordx4 v[{X}:{X + 3}], {vLANE16}, {srd(SRD_WS)}, {tE0} offen{GS}', tag=tag))
        o.append(Inst(f'buffer_store_dwordx4 v[{X + 4}:{X + 7}], {vLANE16}, {srd(SRD_WS)}, {tE0} offen offset:1024{GS}', tag=tag))
    for d in range(8):
        o.append(f'v_accvgpr_write_b32 a{HP(n) + d}, v{X + d}')
    o.append(('mark', f'h{n}'))
    if OPT['hbatch'] and (n == 8 or (n == 4 and not OPT['sgap'])):
        if OPT['quiet']:
            o += [('idle', st_dma), ('quiet', OPT['quiet'])]
        for i, ks in enumerate(range(0, 10) if n == 4 else range(10, 18)):
            if i % 4 == 0:
                o.append(f's_add_u32 {tE0}, {sGB}, {1024 * ks}')
            r = HP(ks // 2) + 4 * (ks & 1)
            o.append(Inst(f'buffer_store_dwordx4 a[{r}:{r + 3}], {vLANE16}, {srd(SRD_WS)}, {tE0} offen offset:{(i % 4) * 1024}{GS}', tag=tag))
    return o


def g_publish(ev, tag, first_kb, nlines, tmps):
    o = [('gap', OPT['pubgap'])] + ([('idle', st_dma), ('quiet', OPT['quiet'])] if (OPT['quiet'] and OPT['gtouch']) else []) + [f's_lshl_b32 {tmps}, {sC}, 3\ns_add_u32 {tmps}, {tmps}, {sGF}', wave_flag(tmps, [tag], 32 * ev)]
    if OPT['gtouch']:
        for k in range(0, nlines, 64):
            n = min(64, nlines - k)
            o.append(f's_add_u32 {tmps}, {sGB}, {first_kb * 2048 + k * 128}')
            if n < 64:
                o.append(f'v_min_u32 {vXO}, {(n - 1) * 128}, {vTCH}')
            o.append(nodep(f'buffer_load_dword v{vTD}, {vTCH if n == 64 else vXO}, {srd(SRD_WS)}, {tmps} offen sc1'))
    return o


st_epi = Stream('epi')
st_epi.add([('after', 'trdone')])
for n in range(5):
    st_epi.add(ffn_epi(n, 'gsta'))
st_hs = Stream('hs')
if OPT['sgap']:
    st_epi.add([('mark', 'epiA')])
    tH = 's70'
    for ks in range(10):
        r = HP(ks // 2) + 4 * (ks & 1)
        st_hs.add([('after', f'h{ks // 2}')] + ([f's_add_u32 {tH}, {sGB}, {1024 * ks}'] if ks % 4 == 0 else []) +
                  [Inst(f'buffer_store_dwordx4 a[{r}:{r + 3}], {vLANE16}, {srd(SRD_WS)}, {tH} offen offset:{(ks % 4) * 1024}{GS}', tag='gsta'),
                   ('gap', OPT['sgap'])])
    st_hs.add(g_publish(0, 'gsta', 0, 80, tH) + [('mark', 'pubA')])
else:
    st_epi.add([('mark', 'epiA')] + g_publish(0, 'gsta', 0, 80, tE0) + [('mark', 'pubA')])
for n in range(5, 9):
    st_epi.add(ffn_epi(n, 'gstb'))
st_epi.add([('mark', 'epiB')] + g_publish(1, 'gstb', 5, 64, tE0) + [('mark', 'pubB')])

vKW, vHX = 'v2', 'v3'
st_att = Stream('att')
T2 = TMP + 16
st_att.add([('after', 'rp2done'), ('after', 'trdone'), ('after', f'B{max(8, RA + 3)}'),
            f"""v_and_b32 v{T2}, 31, v1
s_lshl_b32 {tA0}, {sW}, 5
v_add_u32 v{T2 + 1}, {tA0}, v{T2}
v_mul_u32_u24 v{T2 + 1}, {PITCH}, v{T2 + 1}
v_lshrrev_b32 v{T2 + 2}, 5, v1
v_lshl_add_u32 v{T2 + 1}, v{T2 + 2}, 4, v{T2 + 1}
v_add_u32 {vKW}, {QB1}, v{T2 + 1}
v_subrev_u32 {vHX}, {112 * PITCH}, v{T2 + 1}
s_lshl_b32 {tA0}, {sR}, 4
s_add_u32 {tA0}, {tA0}, {sJ}
s_add_u32 {tA0}, {tA0}, 16
s_lshl_b32 {tA1}, {tA0}, 12
s_add_u32 {tA1}, {tA1}, {L.WS_HALO}
s_cmp_eq_u32 {sR}, 15
s_cselect_b32 {tA1}, {OOB}, {tA1}
v_mov_b32 v{T2 + 2}, {OOB}
v_cmp_gt_u32 vcc, {112 * PITCH}, v{T2 + 1}
v_cndmask_b32 {vHX}, {vHX}, v{T2 + 2}, vcc"""])
hcount = 0
for t4 in (1, 2, 3, 0):
    o = [('after', f'qfin{t4}'), ('gap', 2)]
    for hh in range(2 if t4 < 3 else 1):
        X = T2 + 8 + 4 * (hcount % 2)
        hcount += 1
        for e in range(8):
            o.append(f'v_accvgpr_read_b32 v{T2 + e}, a{QA + 16 * t4 + 8 * hh + e}')
        for e in range(8):
            o.append(f'v_mul_f32 v{T2 + e}, v{T2 + e}, {vRSTD}')
        for pp in range(4):
            o.append(f'v_cvt_pk_bf16_f32 v{X + pp}, v{T2 + 2 * pp}, v{T2 + 2 * pp + 1}')
        if t4:
            o.append(Inst(f'buffer_store_dwordx4 v[{X}:{X + 3}], {vHX}, {srd(SRD_WS)}, {tA1} offen offset:{64 * t4 + 32 * hh} sc1', tag='hxst'))
        o.append(Inst(f'ds_write_b128 {vKW}, v[{X}:{X + 3}] offset:{64 * t4 + 32 * hh}', tag='kvw'))
    if t4 == 3:
        o.append(('mark', 'hx'))
    st_att.add(o)


def kv_barrier():
    E.wait_tags(['kvw'])
    E('s_barrier')
    S.marks.add('Bkv')


st_att.add([('mark', 'kvw'), ('gap', 3), ('call', kv_barrier)])
st_hal = Stream('hal')
st_hal.add([('after', 'hx'), ('gap', OPT['hxgap']), f's_lshl_b32 {tA1}, {tA0}, 7\ns_add_u32 {tA1}, {tA1}, {L.WS_FLAG_HALO}\ns_cmp_eq_u32 {sW}, 3\ns_cselect_b32 {tA1}, {tA1}, {OOB}',
            wave_flag(tA1, ['hxst'])])
SC = 0.2357022603955158 * 1.4426950408889634
A0, A0R, AP, APR, VT, VTP = (f'v{TMP + i}' for i in range(6))
vSD = [f'v{TMP + 34}', f'v{TMP + 35}']
st_at2 = Stream('at2')
st_at2.add([('after', 'kvw'), ('after', 'epiA'), f"""v_and_b32 v{TMP + 8}, 15, v1
v_lshlrev_b32 v{TMP + 9}, 2, v{TMP + 8}""",
            f'buffer_load_dword {vSD[0]}, v{TMP + 9}, {srd(SRD_WS)}, {sSTB} offen sc1',
            f'buffer_load_dword {vSD[1]}, v{TMP + 9}, {srd(SRD_WS)}, {sSTB} offen offset:64 sc1',
            f"""v_lshrrev_b32 v{TMP + 9}, 4, v1
s_mul_i32 {tA2}, {sW}, {32 * PITCH}
s_add_u32 {tA2}, {tA2}, {QB1}
s_sub_u32 {tA3}, {tA2}, {16 * PITCH}
s_cmp_eq_u32 {sW}, 0
s_cselect_b32 {tA3}, {QB}, {tA3}
v_mul_u32_u24 v{TMP + 10}, {PITCH}, v{TMP + 8}
v_add_u32 {A0R}, {tA2}, v{TMP + 10}
v_add_u32 {APR}, {tA3}, v{TMP + 10}
v_lshl_add_u32 {A0}, v{TMP + 9}, 3, {A0R}
v_lshl_add_u32 {AP}, v{TMP + 9}, 3, {APR}
v_lshrrev_b32 v{TMP + 10}, 2, v1
v_mul_u32_u24 v{TMP + 10}, {PITCH}, v{TMP + 10}
v_and_b32 v{TMP + 11}, 3, v1
v_lshl_add_u32 v{TMP + 10}, v{TMP + 11}, 3, v{TMP + 10}
v_add_u32 {VT}, {tA2}, v{TMP + 10}
v_add_u32 {VTP}, {tA3}, v{TMP + 10}
s_add_u32 {tA2}, {sGB}, {9 * 2048}
s_sub_u32 {tA3}, {sGF}, {L.WS_FLAG_G}
s_lshl_b32 {tA3}, {tA3}, 3
s_lshr_b32 {tM0}, {sC}, 1
s_lshl_b32 {tM0}, {tM0}, 9
s_add_u32 {tA3}, {tA3}, {tM0}
s_and_b32 {tM0}, {sC}, 1
s_lshl_b32 {tM0}, {tM0}, 3
s_add_u32 {tA3}, {tA3}, {tM0}
s_add_u32 {tA3}, {tA3}, {L.WS_GREM}
v_lshrrev_b32 v{TMP + 10}, 5, v1
v_lshlrev_b32 v{TMP + 10}, 9, v{TMP + 10}
v_lshl_add_u32 v{TMP + 10}, v{TMP + 8}, 4, v{TMP + 10}
v_and_b32 v{TMP + 9}, 1, v{TMP + 9}
v_lshl_add_u32 v2, v{TMP + 9}, 3, v{TMP + 10}""", ('after', 'Bkv'), ('after', 'bcor3')])
QV = TMP + 6
SV = TMP + 14
PB = [196, BCOR]
m0_, m1_, t1_, t2_ = f'v{TMP + 30}', f'v{TMP + 31}', 'v200', 'v205'


def att_block(b):
    o = []
    for hd in range(2):
        mo = 0 if hd == 0 else 40
        for wh in range(2):
            kb = b + wh
            kr = AK[hd] + 4 * wh
            a, ar, off = (AP, APR, 0) if kb == 0 else (A0, A0R, (kb - 1) * 16 * PITCH)
            o.append(f'ds_read_b64 a[{kr}:{kr + 1}], {a} offset:{off + 72 + mo}')
            o.append(f'ds_read_b64 a[{kr + 2}:{kr + 3}], {ar} offset:{off + 72 + 32}')
        Q = QV + 4 * hd
        o.append(f'ds_read_b64 v[{Q}:{Q + 1}], {A0} offset:{b * 16 * PITCH + mo}')
        o.append(f'ds_read_b32 v{Q + 2 + hd}, {A0R} offset:{b * 16 * PITCH + 32 + 4 * hd}')
        o.append(f'v_mov_b32 v{Q + 3 - hd}, 0')
    for tl, ch in enumerate((18, 23, 22)):
        vr = AK[2 + tl // 2] + 4 * (tl % 2)
        for wh in range(2):
            kb = b + wh
            a, off = (VTP, 0) if kb == 0 else (VT, (kb - 1) * 16 * PITCH)
            o.append(f'ds_read_b64_tr_b16 a[{vr + 2 * wh}:{vr + 2 * wh + 1}], {a} offset:{off + 8 * ch}')
    for hd in range(2):
        Q = QV + 4 * hd
        o.append(f'v_cndmask_b32 v{Q + 2 + hd}, 0, v{Q + 2 + hd}, {M16}')
    o.append(f'v_and_b32 {vSD[b]}, {vMASKHI}, {vSD[b]}')
    o.append(f'v_mul_f32 {vSD[b]}, {vSD[b]}, {vSD[b]}')
    for hd in range(2):
        Q = QV + 4 * hd
        for wh in range(2):
            kr = AK[hd] + 4 * wh
            sr = SV + 8 * hd + 4 * wh
            bias = BIASR + 4 * wh
            o.append(f'v_mfma_f32_16x16x32_bf16 v[{sr}:{sr + 3}], a[{kr}:{kr + 3}], v[{Q}:{Q + 3}], v[{bias}:{bias + 3}]')
    o.append(('gap', 1))
    for hd, m in enumerate((m0_, m1_)):
        s = [f'v{SV + 8 * hd + i}' for i in range(8)]
        t = (t1_, t2_)[hd]
        o += [f'v_max3_f32 {m}, {s[0]}, {s[1]}, {s[2]}', f'v_max3_f32 {t}, {s[3]}, {s[4]}, {s[5]}',
              f'v_max3_f32 {m}, {m}, {s[6]}, {s[7]}', f'v_max_f32 {m}, {m}, {t}']
    o += [f'v_mov_b32 {t2_}, {fl(SC)}', ('gap', 1),
          f'v_permlane16_swap_b32 {m0_}, {m1_}', f'v_max_f32 {m0_}, {m0_}, {m1_}', f'v_mov_b32 {m1_}, {m0_}', ('gap', 1),
          f'v_permlane32_swap_b32 {m0_}, {m1_}', f'v_max_f32 {m0_}, {m0_}, {m1_}', f'v_mul_f32 {m0_}, {fl(-SC)}, {m0_}',
          f'v_mov_b32 {m1_}, {m0_}', ('gap', 1), f'v_permlane16_swap_b32 {m0_}, {m1_}']
    for hd, m in enumerate((m0_, m1_)):
        s = [f'v{SV + 8 * hd + i}' for i in range(8)]
        for i in range(8):
            o.append(f'v_fma_f32 {s[i]}, {s[i]}, {t2_}, {m}')
        for i in range(8):
            o.append(f'v_exp_f32 {s[i]}, {s[i]}')
    for hd in range(2):
        s = [f'v{SV + 8 * hd + i}' for i in range(8)]
        for i in range(4):
            o.append(f'v_cvt_pk_bf16_f32 v{PB[hd] + i}, {s[2 * i]}, {s[2 * i + 1]}')
    for hd in range(2):
        P = f'v[{PB[hd]}:{PB[hd] + 3}]'
        vm = AK[2] + 4 * hd
        o.append(f'v_mfma_f32_16x16x32_bf16 v[{QV + 4 * hd}:{QV + 4 * hd + 3}], a[{ONESR}:{ONESR + 3}], {P}, 0')
        o.append(f'v_mfma_f32_16x16x32_bf16 v[{SV + 8 * hd}:{SV + 8 * hd + 3}], a[{vm}:{vm + 3}], {P}, 0')
        o.append(f'v_mfma_f32_16x16x32_bf16 v[{SV + 8 * hd + 4}:{SV + 8 * hd + 7}], a[{AK[3]}:{AK[3] + 3}], {P}, 0')
    o.append(('gap', 1))
    for hd, m in enumerate((m0_, m1_)):
        o.append(f'v_rcp_f32 {m}, v{QV + 4 * hd}')
    for hd, m in enumerate((m0_, m1_)):
        o.append(f'v_mul_f32 {m}, {m}, {vSD[b]}')
    for hd, m in enumerate((m0_, m1_)):
        r = SV + 8 * hd
        for i in (0, 1, 2, 3, 4 + 2 * hd, 5 + 2 * hd):
            o.append(f'v_mul_f32 v{r + i}, v{r + i}, {m}')
    for hd in range(2):
        r = SV + 8 * hd
        o.append(f'v_cvt_pk_bf16_f32 v{QV + 2 * hd}, v{r}, v{r + 1}')
        o.append(f'v_cvt_pk_bf16_f32 v{QV + 2 * hd + 1}, v{r + 2}, v{r + 3}')
        o.append(f'v_cvt_pk_bf16_f32 v{QV + 4 + hd}, v{r + 4 + 2 * hd}, v{r + 5 + 2 * hd}')
    for hd in range(2):
        o.append(Inst(f'buffer_store_dwordx2 v[{QV + 2 * hd}:{QV + 2 * hd + 1}], v2, {srd(SRD_WS)}, {tA2} offen offset:{1024 * hd + 256 * b}{GS}', tag='ost'))
    o.append(Inst(f'buffer_store_dwordx2 v[{QV + 4}:{QV + 5}], {vREM}, {srd(SRD_WS)}, {tA3} offen offset:{256 * b}{GS}', tag='ost'))
    return o


st_at2.add(att_block(1))
vH = TMP + 32
st_hal.add([('gap', OPT['higap']),
            f's_sub_u32 {tA0}, {tA0}, 16\ns_lshl_b32 {tA1}, {tA0}, 7\ns_add_u32 {tA1}, {tA1}, {L.WS_FLAG_HALO}\ns_lshl_b32 {tM1}, {sJ}, 5\n'
            f's_add_u32 {tM1}, {tM1}, {L.WS_FLAG_U}\ns_cmp_eq_u32 {sR}, 0\ns_cselect_b32 {tA1}, {tM1}, {tA1}\nv_mov_b32 v3, {tA1}'])
HL = f'buffer_load_dwordx2 v[{vH}:{vH + 1}], v3, {srd(SRD_WS)}, 0 offen sc1'
st_hal.add([Inst(HL, tag='pfh'), ('gap', 22)])


def halo_import():
    poll_check(HL, flags_cmp(vH), 'pfh')
    E(f's_cmp_lg_u32 {sW}, 0\ns_cbranch_scc1 L_HI')
    E(f's_lshl_b32 {tA1}, {tA0}, 12\ns_add_u32 {tA1}, {tA1}, {L.WS_HALO}\ns_cmp_eq_u32 {sR}, 0\ns_cselect_b32 {tA1}, {OOB}, {tA1}')
    E(f's_mov_b32 {tM1}, m0\ns_mov_b32 m0, {QB}\ns_nop 0')
    for i in range(4):
        E.raw(f'    buffer_load_dwordx4 {vLANE16}, {srd(SRD_WS)}, {tA1} offen offset:{i * 1024} sc1 lds')
    E(f's_mov_b32 m0, {tM1}')
    E('L_HI:')
    E(f'buffer_load_dword v{vH}, v14, {srd(SRD_DBG)}, 0 offen', tag='himp')


st_hal.add([('call', halo_import), ('gap', 22), ('call', lambda: E.wait_tags(['himp'])), ('mark', 'halo_in')])
st_at2.add([f's_or_b32 {tM0}, {sR}, {sW}\ns_cmp_eq_u32 {tM0}, 0\ns_cselect_b32 {tM0}, 0xf149f2ca, 0'] +
           [f'v_min_f32 v{BIASR + i}, {tM0}, v{BIASR + i}' for i in range(4)] + [('after', 'halo_in')])
st_at2.add(att_block(0))
st_at2.add([('mark', 'odone'), ('gap', OPT['pubgap']), f's_lshl_b32 {tA2}, {sC}, 3\ns_add_u32 {tA2}, {tA2}, {sGF}', wave_flag(tA2, ['ost'], 64), ('mark', 'opub')])

st_act = Stream('act')
GPA = f'v_and_b32 {vPA}, 3, v1\nv_lshlrev_b32 {vPA}, 3, {vPA}\nv_add_u32 {vPA}, {sGF}, {vPA}'


def act_load(key, soff, off):
    o = []
    kind, r = ACT[key]
    if kind == 'v':
        o.append(('after', 'odone' if r >= BIASR else (f'bs{(r - 16) // 16}' if r + 4 <= 136 else 'epiB')))
    elif r >= AK[0]:
        o.append(('after', 'odone'))
    elif r >= QA:
        o.append(('after', 'kvw'))
    elif r >= 128:
        o.append(('after', 'epiB'))
    else:
        o.append(('after', 'epiA'))
    o.append(f'buffer_load_dwordx4 {act_regs(key)}, {vLANE16}, {srd(SRD_WS)}, {soff} offen offset:{off}{GS}')
    o.append(('mark', f'act{kname(key)}'))
    return o


st_act.add([('after', 'pf_free'), ('after', 'kvw'), GPA])
for k in range(1, 4):
    for ks in range(10):
        if ks % 4 == 0:
            st_act.add([f's_add_u32 {tC0}, {sGP[k]}, {ks * 1024}'])
        st_act.add(act_load((k, ks), tC0, (ks % 4) * 1024))
st_act.add([('after', 'pubB'), ('gap', OPT['pollgap'])])
st_act.add(poll_item(f'v_add_u32 {vPA}, 32, {vPA}', vPA, vPF, 'pfb', OPT['pchk']))
for k in range(1, 4):
    for ks in range(10, 18):
        if (ks - 10) % 4 == 0:
            st_act.add([f's_add_u32 {tC0}, {sGP[k]}, {ks * 1024}'])
        st_act.add(act_load((k, ks), tC0, ((ks - 10) % 4) * 1024))
st_ao = Stream('ao')
tO0, tO1 = 's90', 's91'
st_ao.add([('after', 'opub'), ('gap', OPT['ogap'])])
st_ao.add(poll_item(f'v_and_b32 v{BCOR + 2}, 3, v1\nv_lshlrev_b32 v{BCOR + 2}, 3, v{BCOR + 2}\ns_add_u32 {tO0}, {sGF}, 64\nv_add_u32 v{BCOR + 2}, {tO0}, v{BCOR + 2}',
                    f'v{BCOR + 2}', BCOR, 'pfo', OPT['pchk']))
st_ao.add([f's_sub_u32 {tO0}, {sGF}, {L.WS_FLAG_G}\ns_lshl_b32 {tO0}, {tO0}, 3\ns_add_u32 {tO0}, {tO0}, {L.WS_GREM}'] + act_load('rem', tO0, 0))
for k in (0, 2, 1, 3):
    st_ao.add([f's_add_u32 {tO0}, {sGP[k] if k else sGB}, {18 * 1024}'] + act_load((k, 18), tO0, 0) + act_load((k, 19), tO0, 1024))
st_ao.add([('gap', 15), f's_and_b32 {tO0}, {sC}, 1\ns_sub_u32 {tO0}, {tO0}, 1\ns_not_b32 {tO1}, {tO0}'] +
          [f'v_cndmask_b32 v{BIASR + 4 + d}, 0, v{BIASR + d}, s[90:91]' for d in range(4)] + [('mark', 'actremS')])

XB = TMP
XR = TMP + 20
vOA, vOS, vRS2 = 'v4', 'v5', 'v6'
SOM, SOS = 's20', 's21'
st_fin = Stream('fin')
st_fin.add([('after', 'opub'), ('after', 'fin8'), ('after', 'B18'),
            f"""v_lshrrev_b32 v2, 2, v1
v_mul_u32_u24 v2, 1152, v2
v_and_b32 v3, 3, v1
v_lshlrev_b32 v3, 4, v3
v_add_u32 {vOA}, v2, v3
s_lshr_b32 {tA0}, {sC}, 1
s_mul_i32 {tA0}, {tA0}, 576
s_and_b32 {tA1}, {sC}, 1
s_mul_i32 {tA2}, {tA1}, 320
s_add_u32 {tA2}, {tA2}, {tA0}
s_lshl_b32 {tA3}, {sS}, 6
s_add_u32 {tA2}, {tA2}, {tA3}
s_add_u32 {SOM}, {sXB}, {tA2}""",
            f'buffer_load_dwordx4 v[{XR}:{XR + 3}], {vOA}, {srd(SRD_X)}, {SOM} offen',
            f's_add_u32 {tA3}, {SOM}, {16 * 1152}',
            f'buffer_load_dwordx4 v[{XR + 4}:{XR + 7}], {vOA}, {srd(SRD_X)}, {tA3} offen',
            f'buffer_load_dwordx4 v[{XR + 8}:{XR + 11}], v3, {srd(SRD_B)}, {tA2} offen',
            f"""v_and_b32 v2, 15, v1
v_bfe_u32 v3, v1, 4, 1
v_lshlrev_b32 v3, 3, v3
v_mul_u32_u24 v7, 1152, v2
v_add_u32 v7, v7, v3
v_mov_b32 {vOS}, {OOB}
v_cmp_gt_u32 vcc, 32, v1
v_cndmask_b32 {vOS}, {vOS}, v7, vcc
s_lshl_b32 {tA2}, {sR}, 2
s_add_u32 {tA2}, {tA2}, {sS}
s_lshl_b32 {tA2}, {tA2}, 1
s_add_u32 {tA2}, {tA2}, {tA1}
s_lshl_b32 {tA3}, {tA2}, 6
s_add_u32 {tA3}, {tA3}, {L.WS_STAT}
v_lshlrev_b32 v2, 2, v2""",
            f'buffer_load_dword {vRS2}, v2, {srd(SRD_WS)}, {tA3} offen sc1',
            f"""s_mul_i32 {tA2}, {tA2}, {16 * 1152}
s_lshl_b32 {tA3}, {sW}, 4
s_add_u32 {tA3}, {tA3}, {tA0}
s_add_u32 {tA3}, {tA3}, 256
s_add_u32 {SOS}, {tA2}, {tA3}""",
            f'buffer_load_dwordx2 v[{XR + 12}:{XR + 13}], {vOS}, {srd(SRD_X)}, {SOS} offen',
            f'buffer_load_dwordx2 v[{XR + 14}:{XR + 15}], v3, {srd(SRD_B)}, {tA3} offen', ('gap', 40)])
for d in range(4):
    for hi in range(2):
        un = (lambda r, dst: f'v_and_b32 {dst}, {vMASKHI}, v{r}') if hi else (lambda r, dst: f'v_lshlrev_b32 {dst}, 16, v{r}')
        st_fin.add([un(XR + 8 + d, 'v2')])
        for rd in range(2):
            st_fin.add([un(XR + 4 * rd + d, 'v3'), f'v_add_f32 v{XB + 8 * rd + 2 * d + hi}, v2, v3'])
for d in range(2):
    for hi in range(2):
        un = (lambda r, dst: f'v_and_b32 {dst}, {vMASKHI}, v{r}') if hi else (lambda r, dst: f'v_lshlrev_b32 {dst}, 16, v{r}')
        st_fin.add([un(XR + 12 + d, 'v2'), un(XR + 14 + d, 'v3'), f'v_add_f32 v{XB + 16 + 2 * d + hi}, v2, v3'])
SND = ['s16', 's17', 's18', 's19']
RCV = ['s12', 's13', 's15', 's38', 's39']
st_fin.add([f"""v_and_b32 {vRS2}, {vMASKHI}, {vRS2}
v_mul_f32 {vRS2}, {vRS2}, {vRS2}
v_rcp_f32 {vRS2}, {vRS2}
v_mul_f32 {vRSTD}, {vRSTD}, {vRSTD}
s_lshl_b32 {tA0}, {sR}, 2
s_add_u32 {tA0}, {tA0}, {sC}
s_lshl_b32 {tA0}, {tA0}, 18
s_add_u32 {tA0}, {tA0}, {L.WS_PART}
s_lshl_b32 {tA2}, {sW}, 12
s_add_u32 {tA0}, {tA0}, {tA2}
s_lshl_b32 {tA2}, {sS}, 14
s_add_u32 {tA2}, {tA2}, {tA0}"""])
for k in range(1, 4):
    st_fin.add([f's_add_u32 {tA3}, {sS}, {k}\ns_and_b32 {tA3}, {tA3}, 3\ns_lshl_b32 {tA3}, {tA3}, 16\ns_add_u32 {SND[k]}, {tA3}, {tA2}'])
st_fin.add([f"""s_lshl_b32 {tA2}, {sR}, 1
s_lshr_b32 {tA3}, {sC}, 1
s_add_u32 {tA2}, {tA2}, {tA3}
s_lshl_b32 {tM0}, {tA2}, 17
s_add_u32 {tM0}, {tM0}, {L.WS_PARTS}
s_lshl_b32 {tM1}, {sS}, 1
s_add_u32 {tM1}, {tM1}, {tA1}
s_lshl_b32 {tA3}, {tM1}, 11
s_add_u32 {SND[0]}, {tM0}, {tA3}
s_lshl_b32 {tA3}, {sW}, 15
s_add_u32 {SND[0]}, {SND[0]}, {tA3}
s_lshl_b32 {tA3}, {tM1}, 14
s_add_u32 {RCV[0]}, {tM0}, {tA3}
s_lshl_b32 {tA3}, {sW}, 9
s_add_u32 {RCV[0]}, {RCV[0]}, {tA3}
v_bfe_u32 v2, v1, 4, 1
v_lshlrev_b32 v2, 14, v2
v_lshrrev_b32 v3, 5, v1
v_lshl_add_u32 v2, v3, 8, v2
v_and_b32 v11, 15, v1
v_lshl_add_u32 v7, v11, 4, v2
v_lshlrev_b32 v3, 11, v3
v_and_b32 v11, 31, v1
v_lshl_add_u32 v3, v11, 4, v3
v_add_u32 v2, 8192, v3
s_lshl_b32 {tA2}, {sS}, 16
s_add_u32 {tA2}, {tA2}, {tA0}"""])
for k in range(1, 4):
    st_fin.add([f's_add_u32 {tA3}, {sS}, {k}\ns_and_b32 {tA3}, {tA3}, 3\ns_lshl_b32 {tA3}, {tA3}, 14\ns_add_u32 {RCV[k]}, {tA3}, {tA2}'])
PT = XR
PKR = 196
CH = [196, 200, XR + 8, XR + 12]
st_fin.add([f'v_mov_b32 v{c + 3}, v{vNON}' for c in CH] + [('after', f'dma{NSTG - 1}')])
for n in (3, 0, 1, 2):
    st_fin.add([('after', f'pend{n}'), ('gap', 2)])
    for half in range(2):
        st_fin.add([f'v_accvgpr_read_b32 v{PT + e}, a{ACC2[n] + 8 * half + e}' for e in range(8)])
        for d in range(4):
            dd = 4 * half + d
            dst = (CH[dd // 3] + dd % 3) if n < 3 else (CH[dd // 2] + dd % 2)
            st_fin.add([f'v_cvt_pk_bf16_f32 v{dst}, v{PT + 2 * d}, v{PT + 2 * d + 1}'])
    for q in range(3 if n < 3 else 4):
        if n < 3:
            st_fin.add([f'buffer_store_dwordx4 v[{CH[q]}:{CH[q] + 3}], {vLANE16}, {srd(SRD_WS)}, {SND[n + 1]} offen offset:{q * 1024} sc1'])
        else:
            st_fin.add([f'buffer_store_dwordx4 v[{CH[q]}:{CH[q] + 3}], v7, {srd(SRD_WS)}, {SND[0]} offen offset:{q * 512} sc1'])
RB = 80
RXL = []
for k in range(1, 4):
    for q in range(3):
        r = RB + 12 * (k - 1) + 4 * q
        RXL.append(f'buffer_load_dwordx4 v[{r}:{r + 3}], {vLANE16}, {srd(SRD_WS)}, {RCV[k]} offen offset:{q * 1024} sc1')
RS = RB + 36
for i in range(4):
    RXL.append(f'buffer_load_dwordx4 v[{RS + 4 * i}:{RS + 4 * i + 3}], {("v3", "v2")[i // 2]}, {srd(SRD_WS)}, {(RCV[0], RCV[4])[i % 2]} offen sc1')
st_fin.add([f's_add_u32 {RCV[4]}, {RCV[0]}, 4096', ('after', 'rxfree')] + [Inst(x, tag='rx') for x in RXL])

S = Sched(E, [st_dma, st_pol, st_hs, st_hal, st_rp, st_tr, st_att, st_epi, st_at2, st_act, st_ao, st_fin])
S.vrate = OPT['vrate']
S.memorder = [st_pol, st_hs, st_hal, st_att, st_at2, st_epi, st_rp, st_dma, st_act, st_ao, st_fin, st_tr]
S.vcap = OPT['vcap']
S.lat = OPT['lat']
st_dma.edf = True
st_act.edf = True
st_ao.edf = True
if OPT.get('zlo') is not None:
    def hook(i):
        if OPT['zlo'] <= i < OPT['zlo'] + 50 * OPT['zst'] and (i - OPT['zlo']) % OPT['zst'] == 0:
            E.raw(f'; ZSTAMP {nstamp[0]} op {i}')
            stamp()
    S.hook = hook
S.extra_deadline = {f'xl{q}': 20 * (q - 1) for q in range(2, 9)}
S.run(ops, D=OPT['D'], WB=OPT['WB'], budget=3.0, maxmem=OPT['maxmem'])
stamp()
S.drain()
stamp()

OA = 16
TP = 144
E(f"""v_and_b32 v8, 31, v1
v_mul_u32_u24 v8, {TP}, v8
v_lshrrev_b32 v9, 5, v1
v_lshl_add_u32 v8, v9, 4, v8
s_mul_i32 s90, {sW}, {32 * TP}
s_add_u32 s90, s90, {SLOTB[23]}
v_add_u32 v8, s90, v8
v_lshrrev_b32 v11, 2, v1
v_mul_u32_u24 v11, {TP}, v11
v_and_b32 v15, 3, v1
v_lshl_add_u32 v11, v15, 5, v11
v_add_u32 v11, s90, v11""")
for e in range(16):
    E(f'v_accvgpr_read_b32 v{OA + e}, a{ACC2[4] + e}')
E.wait_tags(['rx'])
E('L_RXC:')
tags = [RB + 4 * i + 3 for i in range(13)]
E(f'v_xor_b32 v9, s{NONCE}, v{tags[0]}')
for i in range(1, 13, 2):
    E(f'v_xor_b32 v15, s{NONCE}, v{tags[i]}\nv_xor_b32 v32, s{NONCE}, v{tags[i + 1]}\nv_or3_b32 v9, v9, v15, v32')
E(f'v_cmp_ne_u32 {SPOLL}, 0, v9\ns_cmp_lg_u64 {SPOLL}, 0\ns_cbranch_scc1 L_RXS')
E('L_RXR:')
stamp()
for k in range(3):
    for dd in range(8):
        r = RB + 12 * k + 4 * (dd // 3) + dd % 3
        E(f'v_lshlrev_b32 v32, 16, v{r}\nv_and_b32 v33, {vMASKHI}, v{r}\nv_add_f32 v{OA + 2 * dd}, v{OA + 2 * dd}, v32\nv_add_f32 v{OA + 2 * dd + 1}, v{OA + 2 * dd + 1}, v33')
for q4 in range(4):
    for e in range(4):
        E(f'v_mul_f32 v{OA + 4 * q4 + e}, v{OA + 4 * q4 + e}, {vRSTD}')
    E(f'ds_write_b128 v8, v[{OA + 4 * q4}:{OA + 4 * q4 + 3}] offset:{32 * q4}', tag='tw')
SH = 40
for i in range(4):
    for d in range(2):
        r = RS + 4 * i + d
        if i == 0:
            E(f'v_lshlrev_b32 v{SH + 2 * d}, 16, v{r}\nv_and_b32 v{SH + 2 * d + 1}, {vMASKHI}, v{r}')
        else:
            E(f'v_lshlrev_b32 v32, 16, v{r}\nv_and_b32 v33, {vMASKHI}, v{r}\nv_add_f32 v{SH + 2 * d}, v{SH + 2 * d}, v32\nv_add_f32 v{SH + 2 * d + 1}, v{SH + 2 * d + 1}, v33')
    if i == 1:
        E.wait_tags(['tw'])
        for rd in range(2):
            E(f'ds_read_b128 v[{48 + 8 * rd}:{51 + 8 * rd}], v11 offset:{rd * 16 * TP}')
            E(f'ds_read_b128 v[{52 + 8 * rd}:{55 + 8 * rd}], v11 offset:{rd * 16 * TP + 16}')
for rd in range(2):
    for e in range(8):
        E(f'v_add_f32 v{48 + 8 * rd + e}, v{48 + 8 * rd + e}, v{XB + 8 * rd + e}')
    for d in range(4):
        E(f'v_cvt_pk_bf16_f32 v{64 + 4 * rd + d}, v{48 + 8 * rd + 2 * d}, v{48 + 8 * rd + 2 * d + 1}')
    E(f'buffer_store_dwordx4 v[{64 + 4 * rd}:{67 + 4 * rd}], {vOA}, {srd(SRD_OUT)}, {SOM} offen')
    if rd == 0:
        E(f's_add_u32 {SOM}, {SOM}, {16 * 1152}')
for e in range(4):
    E(f'v_mov_b32 v{SH + 4 + e}, v{SH + e}')
for e in range(4):
    E(f'v_permlane32_swap_b32 v{SH + e}, v{SH + 4 + e}')
for e in range(4):
    E(f'v_add_f32 v{SH + e}, v{SH + e}, v{SH + 4 + e}\nv_fma_f32 v{SH + e}, v{SH + e}, {vRS2}, v{XB + 16 + e}')
E(f'v_cvt_pk_bf16_f32 v72, v{SH}, v{SH + 1}\nv_cvt_pk_bf16_f32 v73, v{SH + 2}, v{SH + 3}')
E(f'buffer_store_dwordx2 v[72:73], {vOS}, {srd(SRD_OUT)}, {SOS} offen')

if OPT['stamps']:
    stamp()
    E('s_waitcnt lgkmcnt(0)')
    E(f'v_writelane_b32 {vSTAMP}, s100, {nstamp[0] - 1}')
    E(f's_mov_b32 s84, {nstamp[0]}')
    E(f'v_writelane_b32 {vSTAMP}, s84, 63')
    E(f'v_writelane_b32 {vSTAMP}, s99, 62')
    E(f's_lshl_b32 s84, s2, 2\ns_add_u32 s84, s84, {sW}\ns_lshl_b32 s84, s84, 8\ns_add_u32 s84, s84, {L.WS_STAMP}')
    E('v_lshlrev_b32 v1, 2, v1')
    E(f'buffer_store_dword {vSTAMP}, v1, {srd(SRD_WS)}, s84 offen')
E('L_END:')
E('s_endpgm')
for k, load_txt in slow_paths:
    E.raw(f'''L_PS{k}:
    s_add_u32 s99, s99, 1
    s_cmp_gt_u32 s99, 400000
    s_cbranch_scc1 L_PR{k}
    s_sleep 1
    {load_txt}
    s_waitcnt vmcnt(0)
    s_branch L_PC{k}''')
E.raw('''L_RXS:
    s_add_u32 s99, s99, 1
    s_cmp_gt_u32 s99, 400000
    s_cbranch_scc1 L_RXR
    s_sleep 1
''' + '\n'.join('    ' + x for x in RXL) + '''
    s_waitcnt vmcnt(0)
    s_branch L_RXC''')
E.raw('L_CODE_END:')
E.raw(KD_FMT.format(name=KN, vgpr=512, sgpr=102, accum=256, kernarg=88))
txt = E.text()
if OPT.get('hot'):
    import re
    lines = []
    for l in txt.split('\n'):
        if (OPT['hot'] & 1) and 'buffer_store' in l and 's[48:51]' in l and 'v255' not in l:
            l = l.replace('s[48:51]', 's[64:67]')
        if 's_cbranch_scc1 L_PS' in l or 's_cbranch_scc1 L_RXS' in l:
            l = '    s_nop 0'
        lines.append(l)
    txt = '\n'.join(lines)
    if OPT['hot'] & 2:
        txt = txt.replace('    s_and_b32 s84, s2, 7\n    s_lshr_b32 s85, s2, 3\n', '    s_mov_b32 s84, 0\n    s_mov_b32 s85, 0\n', 1)
open(OUT, 'w').write(txt)
if OPT.get('log'):
    for x in S.log:
        if x[1] == 'BARRIER' or (x[1] == 'flushed' and x[3] > 6) or (x[1] == 'mark' and not x[2].startswith(('t', 'act', 'dma', 'xl'))):
            print(x)
print('insts', E.ninst, 'nops', E.n_nop, 'waits', E.n_wait)
```
